```python
import torch

def _softmax(x, axis=-1):
    return torch.softmax(x, dim=axis)
def _gelu(x):
    return torch.nn.functional.gelu(x, approximate="tanh")
def _silu(x):
    return torch.nn.functional.silu(x)
def _sigmoid(x):
    return torch.sigmoid(x)
def _layernorm(x, axis=-1, eps=1e-5):
    m = x.mean(dim=axis, keepdim=True)
    v = x.var(dim=axis, keepdim=True, unbiased=False)
    return (x - m) / torch.sqrt(v + eps)
def _scatter_add(tgt, idx, src, axis=0):
    return tgt.clone().index_add_(axis, idx, src)
def _segment_sum(src, seg, n):
    out = torch.zeros((n,) + src.shape[1:], dtype=src.dtype)
    return out.index_add_(0, seg, src)
def _pad(x, pw):
    flat = tuple(v for pair in reversed(pw) for v in pair)
    return torch.nn.functional.pad(x, flat)

kernel_name = 'gated_mix__linear_attn_block__dense_activation_gelu__prompt'

def setup_inputs():

    _w = (lambda a: (lambda t: t.to(torch.bfloat16) if t.is_floating_point() else t)(torch.as_tensor(a)))
    def _A_setup():
        B, S, D = 1, 2048, 512
        return {
            "x": _w((lambda *s: torch.randn(*s, dtype=torch.bfloat16) * 0.05)(B, S, D)),
            "wqkv": _w((lambda *s: torch.randn(*s, dtype=torch.bfloat16) * 0.8)(D, 3 * D)),
            "wo": _w((lambda *s: torch.randn(*s, dtype=torch.bfloat16) * 0.05)(D, D)),
        }
    _A_in = _A_setup()

    def _B_setup():
        B, S, D, F = 1, 2048, 512, 1376
        return {
            "x": _w((lambda *s: torch.randn(*s, dtype=torch.bfloat16) * 0.05)(B, S, D)),
            "w1": _w((lambda *s: torch.randn(*s, dtype=torch.bfloat16) * 3.2)(D, F) * (D ** -0.5)),
            "b1": _w((lambda *s: torch.randn(*s, dtype=torch.bfloat16) * 3.2)(F) * 0.01),
            "w2": _w((lambda *s: torch.randn(*s, dtype=torch.bfloat16) * 0.4)(F, D) * (F ** -0.5)),
            "b2": _w((lambda *s: torch.randn(*s, dtype=torch.bfloat16) * 0.8)(D) * 0.01),
        }
    _B_in = _B_setup()

    return {
        "A_x": _A_in["x"],
        "A_wqkv": _A_in["wqkv"],
        "A_wo": _A_in["wo"],
        "B_x": _B_in["x"],
        "B_w1": _B_in["w1"],
        "B_b1": _B_in["b1"],
        "B_w2": _B_in["w2"],
        "B_b2": _B_in["b2"],
        "gate_w": _w((lambda *s: torch.randn(*s, dtype=torch.bfloat16) * 0.05)(512) * 16.0),
    }

def reference(A_x, A_wqkv, A_wo, B_x, B_w1, B_b1, B_w2, B_b2, gate_w):
    def _A_ref(x, wqkv, wo):
        B, S, D = x.shape
        H = 32; Dh = D // H
        qkv = (lambda x, *d: x.permute(*d))((x @ wqkv).reshape(B, S, 3, H, Dh), 2, 0, 3, 1, 4)
        q, k, v = qkv[0], qkv[1], qkv[2]
        phi = lambda t: torch.where(t > 0, t + 1, torch.exp(t)) + 1e-6
        pq, pk = phi(q), phi(k)
        kv = torch.einsum("bhsd,bhse->bhde", pk, v)
        z = torch.einsum("bhsd->bhd", pk)
        num = torch.einsum("bhqd,bhde->bhqe", pq, kv)
        den = torch.einsum("bhqd,bhd->bhq", pq, z)[..., None] + 1e-6
        o = num / den
        return (lambda x, *d: x.permute(*d))(o, 0, 2, 1, 3).reshape(B, S, D) @ wo

    def _B_ref(x, w1, b1, w2, b2):
        h = torch.einsum("bsd,df->bsf", x, w1) + b1
        h = _gelu(h)
        return torch.einsum("bsf,fd->bsd", h, w2) + b2

    x = A_x
    g = _sigmoid((x * gate_w).sum(-1, keepdims=True))
    a = _A_ref(x, A_wqkv, A_wo)
    b = _B_ref(x, B_w1, B_b1, B_w2, B_b2)
    return g * a + (1 - g) * b
```

```python
import re

REG = re.compile(r'^(v|s|a)(\d+)$')
RNG = re.compile(r'^(v|s|a)\[(\d+):(\d+)\]$')

def regs_of(op):
    op = op.strip()
    neg = op.lstrip('-')
    if neg.startswith('abs(') and neg.endswith(')'): neg = neg[4:-1]
    if neg.startswith('|') and neg.endswith('|'): neg = neg[1:-1]
    m = REG.match(neg)
    if m: return [(m.group(1), int(m.group(2)))]
    m = RNG.match(neg)
    if m: return [(m.group(1), i) for i in range(int(m.group(2)), int(m.group(3)) + 1)]
    if neg == 'vcc': return [('s', 'vcc')]
    if neg in ('vcc_lo', 'vcc_hi'): return [('s', 'vcc')]
    if neg == 'exec': return [('s', 'exec')]
    if neg == 'm0': return [('s', 'm0')]
    return []

def split_ops(s):
    out, depth, cur = [], 0, ''
    for ch in s:
        if ch in '[(': depth += 1
        if ch in '])': depth -= 1
        if ch == ',' and depth == 0:
            out.append(cur.strip()); cur = ''
        else: cur += ch
    if cur.strip(): out.append(cur.strip())
    return out

TRANS = ('v_exp_f32', 'v_log_f32', 'v_rcp_f32', 'v_rsq_f32', 'v_sqrt_f32', 'v_sin_f32', 'v_cos_f32')

class Ins:
    __slots__ = ('text', 'mn', 'kind', 'rd', 'wr', 'srcc', 'ab', 'trans', 'lds_dma', 'wide_store', 'passes', 'nstates')
    def __init__(self, text):
        self.text = text
        t = text.split(';')[0].strip()
        parts = t.split(None, 1)
        mn = parts[0]; self.mn = mn
        rest = parts[1] if len(parts) > 1 else ''
        ops = split_ops(rest)
        mods = []
        if ops:
            toks = ops[-1].split()
            ops[-1] = toks[0]; mods = toks[1:]
        self.rd, self.wr, self.srcc, self.ab = [], [], [], []
        self.trans = False; self.lds_dma = False; self.wide_store = False; self.passes = 0; self.nstates = 1
        R = lambda i: regs_of(ops[i]) if i < len(ops) else []
        base = re.sub(r'_(e32|e64|dpp|sdwa)$', '', mn)
        if mn.startswith('v_mfma'):
            self.kind = 'mfma'
            self.wr = R(0); self.ab = R(1) + R(2); self.srcc = R(3); self.rd = self.ab + self.srcc
            self.passes = 8 if '32x32x16' in mn or '32x32x8' in mn else 4
        elif mn.startswith('v_'):
            self.kind = 'valu'
            self.trans = base in TRANS
            if base.startswith('v_cmp'):
                self.wr = R(0); self.rd = R(1) + R(2)
                if base.startswith('v_cmpx'): self.wr = self.wr + [('s', 'exec')]
            elif base.startswith('v_permlane') and 'swap' in base:
                self.wr = R(0) + R(1); self.rd = R(0) + R(1)
            elif base in ('v_add_co_u32', 'v_sub_co_u32', 'v_addc_co_u32', 'v_subb_co_u32', 'v_mad_u64_u32'):
                self.wr = R(0) + R(1); self.rd = sum((R(i) for i in range(2, len(ops))), [])
            else:
                self.wr = R(0); self.rd = sum((R(i) for i in range(1, len(ops))), [])
                if base in ('v_fmac_f32', 'v_dot2c_f32_bf16', 'v_pk_fmac_f16', 'v_writelane_b32'): self.rd = self.rd + R(0)
                if base == 'v_cndmask_b32' and len(ops) == 3: self.rd = self.rd + [('s', 'vcc')]
        elif mn.startswith('ds_'):
            self.kind = 'ds'
            if 'read' in mn or 'bpermute' in mn or 'permute' in mn or 'swizzle' in mn:
                self.wr = R(0); self.rd = sum((R(i) for i in range(1, len(ops))), [])
            else:
                self.rd = sum((R(i) for i in range(len(ops))), [])
        elif mn.startswith('buffer_') or mn.startswith('global_'):
            self.kind = 'vmem'
            if mn in ('buffer_wbl2', 'buffer_inv'):
                pass
            elif 'lds' in mods or '_lds_' in mn:
                self.lds_dma = True
                self.rd = sum((R(i) for i in range(len(ops))), []) + [('s', 'm0')]
            elif 'load' in mn:
                self.wr = R(0); self.rd = sum((R(i) for i in range(1, len(ops))), [])
            elif 'atomic' in mn:
                self.rd = sum((R(i) for i in range(len(ops))), [])
                if 'sc0' in mods: self.wr = R(0)
            else:
                self.rd = sum((R(i) for i in range(len(ops))), [])
                if 'x4' in mn or 'x3' in mn:
                    self.wide_store = True
                    self.srcc = R(0) if mn.startswith('buffer_') else R(1)
        elif mn.startswith('s_'):
            if mn.startswith('s_load') or mn.startswith('s_buffer_load') or mn in ('s_memtime', 's_memrealtime'):
                self.kind = 'smem'; self.wr = R(0); self.rd = sum((R(i) for i in range(1, len(ops))), [])
            else:
                self.kind = 'salu'
                if mn == 's_nop': self.nstates = int(ops[0], 0) + 1
                if mn.startswith('s_cmp') or mn.startswith('s_bitcmp') or mn in ('s_waitcnt', 's_barrier', 's_nop', 's_sleep', 's_setprio', 's_endpgm', 's_branch') or mn.startswith('s_cbranch'):
                    self.rd = sum((R(i) for i in range(len(ops))), [])
                else:
                    self.wr = R(0); self.rd = sum((R(i) for i in range(1, len(ops))), [])
                    if 'saveexec' in mn: self.wr = self.wr + [('s', 'exec')]
        else:
            raise ValueError('unknown instruction: ' + text)

class Kern:
    def __init__(self):
        self.out = []
        self.hist = []
        self.pos = 0
        self.vm = []
        self.lg = []
        self.smem_pending = set()
        self.nid = 0
        self.track = True
        self.ninstr = 0
        self.nnop = 0

    def snapshot(self):
        return (list(self.hist), self.pos, [dict(x) for x in self.vm], [dict(x) for x in self.lg], set(self.smem_pending))
    def restore(self, s):
        self.hist, self.pos = list(s[0]), s[1]
        self.vm = [dict(x) for x in s[2]]; self.lg = [dict(x) for x in s[3]]; self.smem_pending = set(s[4])

    def raw(self, line):
        self.out.append(line)
    def label(self, name):
        self.out.append(name + ':')
    def comment(self, c):
        self.out.append('    ; ' + c)

    def _emit(self, ins):
        self.out.append('    ' + ins.text)
        self.hist.append((self.pos, ins))
        self.pos += ins.nstates
        if len(self.hist) > 40: self.hist.pop(0)
        self.ninstr += 1

    def _need_waits(self, ins):
        touched = set(ins.rd) | set(ins.wr)
        n = None
        for i, op in enumerate(self.vm):
            if op['wr'] & touched: n = len(self.vm) - 1 - i
        l = None
        for i, op in enumerate(self.lg):
            if op['wr'] & touched: l = len(self.lg) - 1 - i
        if self.smem_pending & touched: l = 0
        if self.smem_pending and l is not None: l = 0
        if n is not None or l is not None:
            self.waitcnt(vm=n, lgkm=l)

    def waitcnt(self, vm=None, lgkm=None):
        parts = []
        if vm is not None:
            vm = min(vm, 63)
            if vm < len(self.vm) or vm == 0:
                parts.append(f'vmcnt({vm})')
                self.vm = self.vm[len(self.vm) - vm:] if vm else []
        if lgkm is not None:
            lgkm = min(lgkm, 15)
            if lgkm < len(self.lg) or lgkm == 0:
                parts.append(f'lgkmcnt({lgkm})')
                self.lg = self.lg[len(self.lg) - lgkm:] if lgkm else []
                if lgkm == 0: self.smem_pending = set()
        if parts:
            self._emit(Ins('s_waitcnt ' + ' '.join(parts)))

    def wait_vm_tok(self, tok):
        for i, op in enumerate(self.vm):
            if op['id'] == tok:
                self.waitcnt(vm=len(self.vm) - 1 - i); return
    def wait_lg_all(self):
        if self.lg or self.smem_pending: self.waitcnt(lgkm=0)

    def _hazard(self, ins):
        need = 0
        rd, wr = set(ins.rd), set(ins.wr)
        vrd = {r for r in rd if r[0] in 'va'}; vwr = {r for r in wr if r[0] in 'va'}
        srd = {r for r in rd if r[0] == 's'}
        base = re.sub(r'_(e32|e64|dpp|sdwa)$', '', ins.mn)
        for p, h in self.hist:
            d = self.pos - (p + h.nstates)
            req = 0
            hw = set(h.wr)
            hvw = {r for r in hw if r[0] in 'va'}; hsw = {r for r in hw if r[0] == 's'}
            if h.kind == 'valu':
                if ins.kind == 'mfma' and hvw & vrd: req = max(req, 2)
                if ins.kind == 'mfma' and ('s', 'exec') in hsw: req = max(req, 4)
                if h.trans and ins.kind in ('valu',) and not ins.trans and hvw & vrd: req = max(req, 1)
                if h.trans and ins.kind in ('valu',) and ins.trans and hvw & vrd: req = max(req, 1)
                if ins.kind in ('valu', 'mfma') and hsw & srd: req = max(req, 2)
                if base in ('v_readlane_b32', 'v_writelane_b32') and hsw & srd: req = max(req, 4)
                if ins.kind == 'vmem' and hsw & srd: req = max(req, 5)
                if base in ('v_readfirstlane_b32', 'v_readlane_b32') and hvw & vrd: req = max(req, 1)
                if base.startswith('v_permlane') and hvw & vrd: req = max(req, 2)
                if ('dpp' in ins.text or 'row_' in ins.text or 'quad_perm' in ins.text) and hvw & vrd: req = max(req, 2)
                if ('s', 'exec') in hsw and base in ('v_readfirstlane_b32', 'v_readlane_b32', 'v_writelane_b32'): req = max(req, 4)
            if h.kind == 'mfma':
                big = {2: 5, 4: 8, 8: 12, 16: 20}[h.passes]
                ovl = {2: 4, 4: 6, 8: 10, 16: 18}[h.passes]
                war = {2: 1, 4: 3, 8: 7, 16: 15}[h.passes]
                if ins.kind == 'mfma':
                    if hvw & set(ins.ab): req = max(req, big)
                    if hvw & set(ins.srcc):
                        if not (list(h.wr) == list(ins.srcc) and h.passes == ins.passes): req = max(req, ovl)
                    if hvw & vwr and not (hvw & set(ins.srcc)): req = max(req, big)
                elif ins.kind in ('valu', 'vmem', 'ds'):
                    if hvw & (vrd | vwr): req = max(req, big)
                    if ins.kind == 'valu' and set(h.srcc) & vwr: req = max(req, war)
                    if ins.kind in ('vmem', 'ds') and set(h.srcc) & vwr: req = max(req, war)
            if h.kind == 'salu' and ('s', 'm0') in hsw and ins.lds_dma: req = max(req, 1)
            if h.wide_store and set(h.srcc) & vwr: req = max(req, 2)
            if req > d: need = max(need, req - d)
        while need > 0:
            n = min(need, 16)
            self._emit(Ins(f's_nop {n-1}')); self.nnop += 1
            need -= n

    def i(self, text):
        text = text.strip()
        if not text or text.startswith(';'):
            if text: self.out.append('    ' + text)
            return None
        if text.endswith(':'):
            self.label(text[:-1]); return None
        ins = Ins(text)
        if ins.mn == 's_waitcnt':
            m = re.search(r'vmcnt\((\d+)\)', text); l = re.search(r'lgkmcnt\((\d+)\)', text)
            if m:
                v = int(m.group(1)); self.vm = self.vm[len(self.vm) - v:] if v and v < len(self.vm) else ([] if not v else self.vm)
            if l:
                v = int(l.group(1)); self.lg = self.lg[len(self.lg) - v:] if v and v < len(self.lg) else ([] if not v else self.lg)
                if v == 0: self.smem_pending = set()
            self._emit(ins); return None
        self._need_waits(ins)
        self._hazard(ins)
        self._emit(ins)
        tok = None
        if ins.kind == 'vmem' and self.track:
            self.nid += 1; tok = self.nid
            self.vm.append({'id': tok, 'wr': set(ins.wr)})
            if len(self.vm) > 63:
                raise RuntimeError('more than 63 vmem ops outstanding')
        elif ins.kind == 'ds':
            self.nid += 1; tok = self.nid
            self.lg.append({'id': tok, 'wr': set(ins.wr)})
        elif ins.kind == 'smem':
            self.smem_pending |= set(ins.wr)
        return tok

    def __call__(self, block):
        tok = None
        for l in block.split('\n'):
            r = self.i(l)
            if r is not None: tok = r
        return tok

    def text(self):
        return '\n'.join(self.out) + '\n'

def vr(b, n=1):
    return f'v{b}' if n == 1 else f'v[{b}:{b+n-1}]'
def sr(b, n=1):
    return f's{b}' if n == 1 else f's[{b}:{b+n-1}]'
```

```python
import sys, struct
from kern import *

KNAME = 'gated_mix__linear_attn_block__dense_activation_gelu__prompt_kernel'
def f32(x): return '0x%08x' % struct.unpack('<I', struct.pack('<f', x))[0]

class Cfg:
    stamps = False
    rot = 0
cfg = Cfg()
for a in sys.argv[2:]:
    k, v = a.split('='); setattr(cfg, k, int(v))

NSTEP = 120
WS_A = 0
WS_KVP = 0x800000
WS_KVZ = WS_KVP + 16*16*2048
WS_G = WS_KVZ + 16*16*128
WS_FL = WS_G + 8192
FL_KV, FL_H, FL_O = WS_FL, WS_FL + 8*128, WS_FL + 24*128
WS_END = WS_FL + 5120
STAMP_OFF = 0x8000000
WS_SIZE = 0x10000000

L_X = 0
L_WA = 49152
L_WB = 98304
L_SCR = 81920
LDS_BYTES = 163840

S_X, S_A, S_B, S_WS, S_DBG, S_W2, S_WO, S_OUT, S_B1, S_B2, S_GW = 8, 12, 16, 20, 24, 28, 32, 36, 40, 44, 48
sRB, sCG, sJ, sISQ, sSLAB, sCT, sWAVE, sROT = 52, 53, 54, 55, 56, 57, 58, 59
sSTRA, sSTRB, sSTPA, sSTPB = 60, 61, 62, 63
sW1K = 64
sT0, sT1, sT2, sT3, sT4, sT5 = 65, 66, 67, 68, 69, 70
sRT, sC = 71, 72
sM16 = 74
sC0, sC1 = 76, 78
sL2E, sEPS = 80, 81
sSAVE = 82
sSPIN = 84
sST = 86

vLANE, vXA, vWA, vWB = 1, 2, 6, 7
vDX0, vDX1, vDA0, vDA1, vDB, vDW, vL16, vCLR = 8, 9, 10, 11, 12, 13, 14, 15
vT = 16
vX = 32
vAC0, vAC1, vAC2 = 160, 176, 192
vWF = 208
vE = 240

k = Kern()
STREG = [86, 88, 90, 92, 94, 96, 98, 100, 4, 6]
nst = [0]
def stamp():
    if cfg.stamps:
        k(f's_memrealtime {sr(STREG[nst[0]], 2)}')
    nst[0] += 1

def srd(base, ptr, size):
    k(f's_mov_b32 s{base}, s{ptr}\ns_mov_b32 s{base+1}, s{ptr+1}\ns_mov_b32 s{base+2}, {size}\ns_mov_b32 s{base+3}, 0x20000')

stamp()
k(f'''
s_cmp_ge_u32 s2, 256
s_cbranch_scc1 L_end
s_load_dwordx4 s[76:79], s[0:1], 0
s_load_dwordx2 s[80:81], s[0:1], 32
s_load_dwordx2 s[82:83], s[0:1], 16
s_load_dwordx8 s[64:71], s[0:1], 40
s_load_dwordx4 s[4:7], s[0:1], 72
s_load_dwordx2 s[84:85], s[0:1], 88
v_lshrrev_b32 v{vT}, 6, v0
v_and_b32 v{vLANE}, 63, v0
s_and_b32 s52, s2, 1
s_lshr_b32 s53, s2, 1
v_readfirstlane_b32 s{sWAVE}, v{vT}
s_and_b32 s53, s53, 3
s_lshr_b32 s54, s2, 3
s_lshr_b32 s55, s54, 2
s_lshl_b32 s52, s52, 3
s_add_u32 s{sRB}, s52, s55
s_lshl_b32 s53, s53, 2
s_and_b32 s56, s54, 3
s_add_u32 s{sCG}, s53, s56
s_lshl_b32 s56, s56, 1
s_add_u32 s{sROT}, s56, s55
s_and_b32 s{sROT}, s{sROT}, {cfg.rot}
s_and_b32 s56, s2, 7
s_lshl_b32 s56, s56, 2
s_lshr_b32 s57, s54, 3
s_add_u32 s{sSLAB}, s56, s57
s_and_b32 s{sCT}, s54, 7
s_lshr_b32 s{sJ}, s{sCG}, 1
s_and_b32 s{sISQ}, s{sCG}, 1
''')
k(f'''
v_lshrrev_b32 v{vT}, 3, v{vLANE}
v_and_b32 v{vT+1}, 7, v{vLANE}
v_lshrrev_b32 v{vT+2}, 1, v{vT}
v_xor_b32 v{vT+3}, v{vT+1}, v{vT+2}
v_lshlrev_b32 v{vT+3}, 4, v{vT+3}
v_and_b32 v{vT+2}, 1, v{vT+2}
v_lshlrev_b32 v{vT+2}, 2, v{vT+2}
v_xor_b32 v{vT+4}, v{vT+1}, v{vT+2}
v_lshlrev_b32 v{vT+4}, 4, v{vT+4}
s_lshl_b32 s60, s{sRB}, 7
s_lshl_b32 s61, s{sWAVE}, 4
s_add_u32 s60, s60, s61
v_add_u32 v{vDX0}, s60, v{vT}
v_lshl_add_u32 v{vDX0}, v{vDX0}, 10, v{vT+3}
v_xor_b32 v{vDX1}, 64, v{vDX0}
v_add_u32 v{vDX1}, 0x2000, v{vDX1}
s_lshl_b32 s61, s{sWAVE}, 3
v_add_u32 v{vT+5}, s61, v{vT}
s_cmp_eq_u32 s{sISQ}, 1
s_movk_i32 s62, 3072
s_movk_i32 s63, 2752
s_cselect_b32 s{sSTRA}, s63, s62
s_cselect_b32 s{sSTRB}, s62, s63
''')
k(f'''
v_mul_lo_u32 v{vDA0}, v{vT+5}, s{sSTRA}
v_mul_lo_u32 v{vDB}, v{vT+5}, s{sSTRB}
s_lshl_b32 s62, s{sJ}, 7
s_lshl_b32 s63, s{sJ}, 8
s_cselect_b32 s63, s63, s62
s_add_u32 s63, s63, 1024
v_add3_u32 v{vDA0}, v{vDA0}, v{vT+4}, s63
v_add3_u32 v{vDB}, v{vDB}, v{vT+4}, s62
s_cmp_eq_u32 s{sISQ}, 1
s_cselect_b32 s62, 128, 0x400
v_add_u32 v{vDA1}, s62, v{vDA0}
s_lshl_b32 s{sSTPA}, s{sSTRA}, 6
s_lshl_b32 s{sSTPB}, s{sSTRB}, 6
'''.replace('s_cselect_b32 s63, s63, s62', f's_cmp_eq_u32 s{sISQ}, 1\ns_cselect_b32 s63, s63, s62').replace('s_cselect_b32 s62, 128, 0x400', 's_movk_i32 s62, 0x400\ns_cselect_b32 s62, 0x80, s62'))
k('s_waitcnt lgkmcnt(0)')
srd(S_X, 76, 0x200000)
k(f'''
s_cmp_eq_u32 s{sISQ}, 1
s_cselect_b32 s{S_A}, s80, s78
s_cselect_b32 s{S_A+1}, s81, s79
s_mov_b32 s{S_B+2}, 0x180000
s_cselect_b32 s{S_A+2}, {512*2752}, s{S_B+2}
s_mov_b32 s{S_A+3}, 0x20000
s_cselect_b32 s{S_B}, s78, s80
s_cselect_b32 s{S_B+1}, s79, s81
s_cselect_b32 s{S_B+2}, s{S_B+2}, {512*2752}
s_mov_b32 s{S_B+3}, 0x20000
''')
srd(S_WO, 82, 512*1024)
srd(S_B1, 64, 2752)
srd(S_W2, 66, 1376*1024)
srd(S_B2, 68, 1024)
srd(S_GW, 70, 1024)
srd(S_OUT, 4, 2048*1024)
srd(S_DBG, 6, 256)
srd(S_WS, 84, WS_SIZE if cfg.stamps else hex(WS_END))
k(f'''
s_lshl_b32 s{sW1K}, s{sWAVE}, 10
s_and_b32 s{sRT}, s{sWAVE}, 3
s_lshr_b32 s{sC}, s{sWAVE}, 2
''')

def dma(voff, srd_, soff, lds_s, lds_imm):
    k(f's_add_u32 m0, s{lds_s}, {lds_imm}')
    return k(f'buffer_load_dwordx4 v{voff}, {sr(srd_,4)}, s{soff} offen lds')

tokA = {}
def issue_A(s):
    slot = s % 3
    k(f'''
    s_add_u32 s{sT0}, s{sROT}, {s}
    s_and_b32 s{sT0}, s{sT0}, 7
    s_lshl_b32 s{sT1}, s{sT0}, 7
    s_mul_i32 s{sT2}, s{sT0}, s{sSTPA}
    s_lshl_b32 s{sT3}, s{sWAVE}, 11
    ''')
    dma(vDX0, S_X, sT1, sT3, L_X + slot*16384)
    dma(vDX1, S_X, sT1, sT3, L_X + slot*16384 + 1024)
    dma(vDA0, S_A, sT2, sW1K, L_WA + slot*16384)
    tokA[s] = dma(vDA1, S_A, sT2, sW1K, L_WA + slot*16384 + 8192)
tokB = {}
def issue_B(s):
    k(f'''
    s_add_u32 s{sT0}, s{sROT}, {s}
    s_and_b32 s{sT0}, s{sT0}, 7
    s_mul_i32 s{sT2}, s{sT0}, s{sSTPB}
    ''')
    tokB[s] = dma(vDB, S_B, sT2, sW1K, L_WB + s*8192)

for s in range(3): issue_A(s)

k(f'''
v_lshlrev_b32 v{vL16}, 4, v{vLANE}
s_or_b32 s{sT0}, s2, s{sWAVE}
s_cmp_lg_u32 s{sT0}, 0
s_cbranch_scc1 L_noclear
''')
snap = k.snapshot(); k.track = False
k(f'''
v_mov_b32 v{vE}, 0
v_mov_b32 v{vE+1}, 0
v_mov_b32 v{vE+2}, 0
v_mov_b32 v{vE+3}, 0
s_mov_b32 s{sT0}, {WS_FL}
buffer_store_dwordx4 {vr(vE,4)}, v{vL16}, {sr(S_WS,4)}, s{sT0} offen sc1
buffer_store_dwordx4 {vr(vE,4)}, v{vL16}, {sr(S_WS,4)}, s{sT0} offen offset:1024 sc1
buffer_store_dwordx4 {vr(vE,4)}, v{vL16}, {sr(S_WS,4)}, s{sT0} offen offset:2048 sc1
buffer_store_dwordx4 {vr(vE,4)}, v{vL16}, {sr(S_WS,4)}, s{sT0} offen offset:3072 sc1
s_add_u32 s{sT0}, s{sT0}, 4096
buffer_store_dwordx4 {vr(vE,4)}, v{vL16}, {sr(S_WS,4)}, s{sT0} offen sc1
v_mov_b32 v{vE+4}, 1
s_waitcnt vmcnt(0)
s_mov_b64 exec, 1
buffer_store_dword v{vE+4}, off, {sr(S_DBG,4)}, 0 sc1
s_mov_b64 exec, -1
s_nop 1
''')
k.out.append('L_noclear:'); k.restore(snap); k.track = True

k(f'''
v_and_b32 v{vT}, 31, v{vLANE}
v_lshrrev_b32 v{vT+1}, 5, v{vLANE}
s_lshl_b32 s{sT0}, s{sRT}, 5
v_add_u32 v{vT+2}, s{sT0}, v{vT}
v_bfe_u32 v{vT+3}, v{vT}, 1, 3
v_xor_b32 v{vT+3}, v{vT+3}, v{vT+1}
v_lshlrev_b32 v{vT+3}, 4, v{vT+3}
v_lshl_add_u32 v{vXA}, v{vT+2}, 7, v{vT+3}
v_xor_b32 v{vXA+1}, 32, v{vXA}
v_xor_b32 v{vXA+2}, 64, v{vXA}
v_xor_b32 v{vXA+3}, 0x60, v{vXA}
''')
k(f'''
v_bfe_u32 v{vT+2}, v{vLANE}, 2, 2
v_lshl_add_u32 v{vT+3}, v{vT+1}, 3, v{vT+2}
v_lshlrev_b32 v{vT+3}, 7, v{vT+3}
v_lshrrev_b32 v{vT+4}, 1, v{vT+2}
v_xor_b32 v{vT+4}, s{sC}, v{vT+4}
v_lshl_add_u32 v{vT+3}, v{vT+4}, 6, v{vT+3}
v_bfe_u32 v{vT+4}, v{vLANE}, 4, 1
v_lshl_add_u32 v{vT+3}, v{vT+4}, 5, v{vT+3}
v_and_b32 v{vT+4}, 3, v{vLANE}
v_lshl_add_u32 v{vT+3}, v{vT+4}, 3, v{vT+3}
v_add_u32 v{vWA}, {L_WA}, v{vT+3}
v_add_u32 v{vWB}, {L_WB}, v{vT+3}
v_and_b32 v{vT+4}, 16, v{vLANE}
v_cmp_ne_u32 {sr(sM16,2)}, 0, v{vT+4}
s_mov_b32 s{sC0}, {f32(-2.302208198)}
s_mov_b32 s{sC0+1}, {f32(-2.302208198)}
s_mov_b32 s{sC1}, {f32(-2.302208198*0.044715)}
s_mov_b32 s{sC1+1}, {f32(-2.302208198*0.044715)}
s_mov_b32 s{sL2E}, {f32(1.4426950408889634)}
s_mov_b32 s{sEPS}, {f32(1e-6)}
''')
k(f'''
v_lshrrev_b32 v{vT+2}, 3, v{vLANE}
v_and_b32 v{vT+3}, 7, v{vLANE}
v_bfe_u32 v{vT+4}, v{vLANE}, 4, 1
v_lshlrev_b32 v{vT+4}, 2, v{vT+4}
v_xor_b32 v{vT+3}, v{vT+3}, v{vT+4}
v_lshlrev_b32 v{vT+3}, 4, v{vT+3}
s_lshl_b32 s{sT0}, s{sC}, 13
s_lshl_b32 s{sT1}, s{sCT}, 7
s_add_u32 s{sT0}, s{sT0}, s{sT1}
v_lshl_add_u32 v{vDW}, v{vT+2}, 10, v{vT+3}
v_add_u32 v{vDW}, s{sT0}, v{vDW}
''')

def bias_init(acc, srd_, s_off, hfreg):
    for j in range(4):
        k(f'buffer_load_dwordx2 {vr(acc+4*j+2,2)}, v{hfreg}, {sr(srd_,4)}, s{s_off} offen offset:{16*j}')
    return
def bias_unpack(acc):
    for j in range(4):
        b = acc + 4*j
        k(f'''
        v_lshlrev_b32 v{b}, 16, v{b+2}
        v_and_b32 v{b+1}, 0xffff0000, v{b+2}
        v_lshlrev_b32 v{b+2}, 16, v{b+3}
        v_and_b32 v{b+3}, 0xffff0000, v{b+3}
        ''')
def const_init(acc, val):
    for r in range(16): k(f'v_mov_b32 v{acc+r}, {val}')

vHF8 = vT + 15
k(f'v_lshlrev_b32 v{vHF8}, 3, v{vT+1}')

tokW = {}
def issue_W(part):
    if part == 1: steps = [('f', i) for i in range(12)]; lb = 0
    if part == 2: steps = [('f', i) for i in range(12, 20)]; lb = L_WB
    if part == 3: steps = [('f', 20), ('f', 21)] + [('a', i) for i in range(8)]; lb = 0
    n = len(steps)
    k(f'''
    s_mul_i32 s{sT3}, s{sRT}, {n*2048}
    s_lshl_b32 s{sT4}, s{sC}, 10
    s_add_u32 s{sT3}, s{sT3}, s{sT4}
    s_mul_i32 s{sT4}, s{sRT}, {352*1024}
    s_lshl_b32 s{sT5}, s{sRT}, 17
    ''')
    for i, (kind, st) in enumerate(steps):
        if kind == 'f':
            k(f's_add_u32 s{sT2}, s{sT4}, {st*16384}')
            tokW[part] = dma(vDW, S_W2, sT2, sT3, lb + i*2048)
        else:
            k(f's_add_u32 s{sT2}, s{sT5}, {st*16384}')
            tokW[part] = dma(vDW, S_WO, sT2, sT3, lb + i*2048)

def mfma(d, a, b, c=None):
    k(f'v_mfma_f32_32x32x16_bf16 {vr(d,16)}, {vr(a,4)}, {vr(b,4)}, {vr(d,16) if c is None else c}')

def pass_A(mode):
    for s in range(8):
        slot = s % 3
        k.wait_vm_tok(tokA[s])
        k('s_barrier')
        if s == 0: stamp()
        if 1 <= s and s + 2 <= 7: issue_A(s + 2)
        if s == 5:
            for b in range(8): issue_B(b)
            k(f'buffer_load_dword v{vCLR}, off, {sr(S_DBG,4)}, 0 sc1')
        def reads(kk):
            k(f'ds_read_b128 {vr(vX + 4*(4*s+kk), 4)}, v{vXA+kk} offset:{L_X + slot*16384}')
            if mode == 'gate':
                k(f'ds_read_b128 {vr(vWF + 8*kk, 4)}, v{vE+8} offset:{32*kk}')
                return
            for u in range(2):
                for i in range(2):
                    k(f'ds_read_b64_tr_b16 {vr(vWF + 8*kk + 4*u + 2*i, 2)}, v{vWA} offset:{slot*16384 + u*8192 + kk*2048 + i*512}')
        def mm(kk):
            x = vX + 4*(4*s+kk)
            if mode == 'gate':
                mfma(vAC0, vWF + 8*kk, x); return
            for u in range(2):
                w = vWF + 8*kk + 4*u
                acc = (vAC0, vAC1)[u]
                if mode == 'kv': mfma(acc, x, w)
                else: mfma(acc, w, x)
        if mode == 'gate':
            k(f'''
            s_add_u32 s{sT0}, s{sROT}, {s}
            s_and_b32 s{sT0}, s{sT0}, 7
            s_lshl_b32 s{sT0}, s{sT0}, 7
            s_add_u32 s{sT0}, s{sT0}, {LDS_BYTES - 1024 if False else 0}
            v_add_u32 v{vE+8}, s{sT0}, v{vE+9}
            ''')
        reads(0); reads(1); reads(2)
        mm(0); reads(3); mm(1); mm(2); mm(3)

def pass_B(mode):
    def rd(t):
        s, kk = t // 4, t % 4
        for i in range(2):
            k(f'ds_read_b64_tr_b16 {vr(vWF + 4*(t%8) + 2*i, 2)}, v{vWB} offset:{s*8192 + kk*2048 + i*512}')
    for t in range(6): rd(t)
    for t in range(32):
        mfma(vAC2, vWF + 4*(t%8), vX + 4*t)
        if t + 6 < 32: rd(t + 6)

def gelu_tile(acc, out):
    p = lambda r: vr(r, 2)
    T = vE
    for i in range(0, 16, 2): k(f'v_pk_mul_f32 {p(T+i)}, {p(acc+i)}, {p(acc+i)}')
    for i in range(0, 16, 2): k(f'v_pk_fma_f32 {p(T+i)}, {p(T+i)}, {sr(sC1,2)}, {vr(vT+8,2)}')
    for i in range(0, 16, 2): k(f'v_pk_mul_f32 {p(T+i)}, {p(acc+i)}, {p(T+i)}')
    for i in range(16): k(f'v_exp_f32 v{T+i}, v{T+i}')
    for i in range(0, 16, 2): k(f'v_pk_add_f32 {p(T+i)}, {p(T+i)}, 1.0 op_sel_hi:[1,0]')
    for i in range(16): k(f'v_rcp_f32 v{T+i}, v{T+i}')
    for i in range(0, 16, 2): k(f'v_pk_mul_f32 {p(T+i)}, {p(acc+i)}, {p(T+i)}')
    for i in range(0, 16, 2): k(f'v_cvt_pk_bf16_f32 v{out+i//2}, v{T+i}, v{T+i+1}')

def phi_tile(acc, out):
    T = vE
    for i in range(16): k(f'v_fma_f32 v{T+i}, v{acc+i}, s{sL2E}, v{vT+10}')
    for i in range(16): k(f'v_exp_f32_e64 v{T+i}, v{T+i} clamp')
    for i in range(16): k(f'v_max_f32 v{acc+i}, s{sEPS}, v{acc+i}')
    for i in range(0, 16, 2): k(f'v_pk_add_f32 {vr(T+i,2)}, {vr(T+i,2)}, {vr(acc+i,2)}')
    for i in range(0, 16, 2): k(f'v_cvt_pk_bf16_f32 v{out+i//2}, v{T+i}, v{T+i+1}')

def store_frags(src, s_off, n=2):
    tok = None
    for i in range(n):
        tok = k(f'buffer_store_dwordx4 {vr(src+4*i,4)}, v{vL16}, {sr(S_WS,4)}, s{s_off} offen offset:{1024*i} sc1')
    return tok

uid = [0]
def publish_flag(tok, s_off_expr, check_clear):
    uid[0] += 1; u = uid[0]
    k.wait_vm_tok(tok)
    if check_clear:
        k(f'v_readfirstlane_b32 s{sT1}, v{vCLR}')
    k('s_barrier')
    k(f's_cmp_lg_u32 s{sWAVE}, 0\ns_cbranch_scc1 L_pf{u}')
    snap = k.snapshot(); k.track = False
    if check_clear:
        k(f'''
        s_mov_b32 s{sSPIN}, 0x40000
        L_pc{u}:
        s_cmp_eq_u32 s{sT1}, 1
        s_cbranch_scc1 L_pd{u}
        s_sub_u32 s{sSPIN}, s{sSPIN}, 1
        s_cmp_eq_u32 s{sSPIN}, 0
        s_cbranch_scc1 L_pd{u}
        buffer_load_dword v{vCLR}, off, {sr(S_DBG,4)}, 0 sc1
        s_waitcnt vmcnt(0)
        v_readfirstlane_b32 s{sT1}, v{vCLR}
        s_branch L_pc{u}
        L_pd{u}:
        ''')
    k(s_off_expr)
    k(f'''
    v_mov_b32 v{vT+11}, 1
    s_mov_b64 exec, 1
    buffer_store_dword v{vT+11}, off, {sr(S_WS,4)}, s{sT0} sc1
    s_mov_b64 exec, -1
    ''')
    k.out.append(f'L_pf{u}:'); k.restore(snap); k.track = True

def wait_flags(s_off_expr, n):
    uid[0] += 1; u = uid[0]
    k(f's_cmp_lg_u32 s{sWAVE}, 0\ns_cbranch_scc1 L_wf{u}')
    snap = k.snapshot(); k.track = False
    k(s_off_expr)
    k(f'''
    v_and_b32 v{vT+12}, {n-1}, v{vLANE}
    v_lshlrev_b32 v{vT+12}, 2, v{vT+12}
    s_mov_b32 s{sSPIN}, 0x40000
    L_wl{u}:
    buffer_load_dword v{vT+13}, v{vT+12}, {sr(S_WS,4)}, s{sT0} offen sc1
    s_sub_u32 s{sSPIN}, s{sSPIN}, 1
    s_cmp_eq_u32 s{sSPIN}, 0
    s_cbranch_scc1 L_wf{u}
    s_waitcnt vmcnt(0)
    v_cmp_ne_u32 vcc, 1, v{vT+13}
    s_cmp_lg_u64 vcc, 0
    s_cbranch_scc1 L_wl{u}
    ''')
    k.out.append(f'L_wf{u}:'); k.restore(snap); k.track = True
    k('s_barrier')

k(f'''
v_mov_b32 v{vT+8}, s{sC0}
v_mov_b32 v{vT+9}, s{sC0}
v_mov_b32 v{vT+10}, {f32(-1e-6*1.4426950408889634)}
''')
sAB = 73
k(f'''
s_lshl_b32 s{sT0}, s{sRB}, 2
s_add_u32 s{sT0}, s{sT0}, s{sRT}
s_mul_i32 s{sAB}, s{sT0}, {NSTEP*1024}
s_cmp_eq_u32 s{sISQ}, 1
s_cbranch_scc1 L_q
''')
snap0 = k.snapshot(); tok0 = (dict(tokA), dict(tokB), dict(tokW)); nst0 = nst[0]
H_FLAG = f's_lshl_b32 s{sT0}, s{sRB}, 7\ns_lshl_b32 s{sT1}, s{sCG}, 2\ns_add_u32 s{sT0}, s{sT0}, s{sT1}\ns_add_u32 s{sT0}, s{sT0}, {FL_H}'

def after_passB_common():
    k('s_barrier')
    issue_W(2)

def w1_to_regs():
    k.wait_vm_tok(tokW[1])
    k('s_barrier')
    p2_addr()
    for st in range(12):
        for c2 in range(2):
            for i in range(2):
                k(f'ds_read_b64_tr_b16 {vr(vX + 8*st + 4*c2 + 2*i, 2)}, v{vP2A + c2} offset:{st*2048 + i*1024}')
    k.wait_lg_all()
    k('s_barrier')
    issue_W(3)

vP2A = 2
def p2_addr():
    k(f'''
    v_lshrrev_b32 v{vT+1}, 5, v{vLANE}
    v_bfe_u32 v{vT+2}, v{vLANE}, 2, 2
    v_lshl_add_u32 v{vT+3}, v{vT+1}, 2, v{vT+2}
    v_lshlrev_b32 v{vT+3}, 7, v{vT+3}
    v_lshrrev_b32 v{vT+4}, 1, v{vT+2}
    v_lshl_add_u32 v{vT+3}, v{vT+4}, 6, v{vT+3}
    v_bfe_u32 v{vT+4}, v{vLANE}, 4, 1
    v_lshl_add_u32 v{vT+3}, v{vT+4}, 5, v{vT+3}
    v_and_b32 v{vT+4}, 3, v{vLANE}
    v_lshl_add_u32 v{vT+3}, v{vT+4}, 3, v{vT+3}
    s_mul_i32 s{sT0}, s{sRT}, {12*2048}
    v_add_u32 v{vP2A}, s{sT0}, v{vT+3}
    v_xor_b32 v{vP2A+1}, 64, v{vP2A}
    s_mul_i32 s{sT0}, s{sRT}, {8*2048}
    s_add_u32 s{sT0}, s{sT0}, {L_WB}
    v_add_u32 v{vP2A+2}, s{sT0}, v{vT+3}
    v_xor_b32 v{vP2A+3}, 64, v{vP2A+2}
    s_mul_i32 s{sT0}, s{sRT}, {10*2048}
    v_add_u32 v{vP2A+4}, s{sT0}, v{vT+3}
    v_xor_b32 v{vP2A+5}, 64, v{vP2A+4}
    ''')

k(f's_lshl_b32 s{sT0}, s{sJ}, 7\ns_lshl_b32 s{sT1}, s{sC}, 6\ns_add_u32 s{sT5}, s{sT0}, s{sT1}')
bias_init(vAC2, S_B1, sT5, vHF8)
const_init(vAC0, f's{sEPS}')
const_init(vAC1, 0)
pass_A('kv')
stamp()
PK, VV, ONES = vWF, vWF + 8, vWF + 16
phi_tile(vAC0, PK)
for i in range(0, 16, 2): k(f'v_cvt_pk_bf16_f32 v{VV+i//2}, v{vAC1+i}, v{vAC1+i+1}')
for i in range(4): k(f'v_mov_b32 v{ONES+i}, 0x3f803f80')
mfma(vAC0, PK, VV, '0'); mfma(vAC1, PK, ONES, '0')
mfma(vAC0, PK+4, VV+4); mfma(vAC1, PK+4, ONES)
k('s_barrier')
for r in range(8): k(f'v_cndmask_b32_e64 v{vE+r}, v{vAC0+r}, v{vAC0+8+r}, {sr(sM16,2)}')
for r in range(8): k(f'v_cndmask_b32_e64 v{vE+8+r}, v{vAC1+8+r}, v{vAC1+r}, {sr(sM16,2)}')
k(f's_lshl_b32 s{sT0}, s{sWAVE}, 12\nv_add_u32 v{vT}, s{sT0}, v{vL16}')
for p in range(4): k(f'ds_write_b128 v{vT}, {vr(vE+4*p,4)} offset:{1024*p}')
k.wait_lg_all()
k('s_barrier')
k(f's_lshl_b32 s{sT0}, s{sC}, 14\ns_lshl_b32 s{sT1}, s{sRT}, 10\ns_add_u32 s{sT0}, s{sT0}, s{sT1}\nv_add_u32 v{vT}, s{sT0}, v{vL16}')
for p in range(4): k(f'ds_read_b128 {vr(vE+4*p,4)}, v{vT} offset:{4096*p}')
for i in range(0, 4, 2):
    k(f'v_pk_add_f32 {vr(vE+i,2)}, {vr(vE+i,2)}, {vr(vE+4+i,2)}')
    k(f'v_pk_add_f32 {vr(vE+8+i,2)}, {vr(vE+8+i,2)}, {vr(vE+12+i,2)}')
for i in range(0, 4, 2):
    k(f'v_pk_add_f32 {vr(vE+i,2)}, {vr(vE+i,2)}, {vr(vE+8+i,2)}')
k(f'''
s_lshl_b32 s{sT0}, s{sJ}, 1
s_add_u32 s{sT0}, s{sT0}, s{sC}
s_lshl_b32 s{sT0}, s{sT0}, 4
s_add_u32 s{sT0}, s{sT0}, s{sRB}
s_lshl_b32 s{sT1}, s{sT0}, 11
s_lshl_b32 s{sT2}, s{sRT}, 10
s_add_u32 s{sT1}, s{sT1}, s{sT2}
s_add_u32 s{sT1}, s{sT1}, {WS_KVP}
s_lshl_b32 s{sT0}, s{sT0}, 7
s_lshl_b32 s{sT2}, s{sRT}, 6
s_add_u32 s{sT0}, s{sT0}, s{sT2}
s_add_u32 s{sT0}, s{sT0}, {WS_KVZ - 128}
v_and_b32 v{vT+1}, 15, v{vLANE}
v_cmp_eq_u32 vcc, 0, v{vT+1}
v_mov_b32 v{vT+2}, 0x7ffffff0
v_cndmask_b32 v{vT+1}, v{vT+2}, v{vLANE}, vcc
s_cmp_lt_u32 s{sRT}, 2
s_cselect_b32 s{sT5}, s{sT1}, s{sT0}
s_cselect_b64 vcc, -1, 0
v_cndmask_b32 v{vT+1}, v{vT+1}, v{vL16}, vcc
''')
tok = k(f'buffer_store_dwordx4 {vr(vE,4)}, v{vT+1}, {sr(S_WS,4)}, s{sT5} offen sc1')
publish_flag(tok, f's_lshl_b32 s{sT0}, s{sJ}, 7\ns_lshl_b32 s{sT1}, s{sRB}, 2\ns_add_u32 s{sT0}, s{sT0}, s{sT1}\ns_add_u32 s{sT0}, s{sT0}, {FL_KV}', True)
issue_W(1)
stamp()
bias_unpack(vAC2)
pass_B('kv')
after_passB_common()
gelu_tile(vAC2, vWF)
k(f's_lshl_b32 s{sT0}, s{sJ}, 12\ns_lshl_b32 s{sT1}, s{sC}, 11\ns_add_u32 s{sT0}, s{sT0}, s{sT1}\ns_add_u32 s{sT0}, s{sT0}, s{sAB}\ns_add_u32 s{sT5}, s{sT0}, {32*1024}')
tok = store_frags(vWF, sT5)
publish_flag(tok, H_FLAG, False)
stamp()
w1_to_regs()
stamp()
snap_kv = k.snapshot(); tokW_kv = dict(tokW)
k('s_branch L_p2')

k.label('L_q')
k.restore(snap0); tokA.clear(); tokA.update(tok0[0]); tokB.clear(); tokW.clear(); nst[0] = nst0
const_init(vAC2, f's{sEPS}')
k(f's_cmp_eq_u32 s{sJ}, 7\ns_cbranch_scc1 L_gate')
snap1 = k.snapshot(); tok1 = dict(tokA)
k(f's_lshl_b32 s{sT0}, s{sJ}, 8\ns_lshl_b32 s{sT1}, s{sC}, 6\ns_add_u32 s{sT0}, s{sT0}, s{sT1}\ns_add_u32 s{sT4}, s{sT0}, 1024\ns_add_u32 s{sT5}, s{sT0}, 1152')
bias_init(vAC0, S_B1, sT4, vHF8)
bias_init(vAC1, S_B1, sT5, vHF8)
bias_unpack(vAC0); bias_unpack(vAC1)
pass_A('q')
stamp()
gelu_tile(vAC0, vWF)
gelu_tile(vAC1, vWF + 8)
k(f's_lshl_b32 s{sT0}, s{sJ}, 13\ns_lshl_b32 s{sT1}, s{sC}, 11\ns_add_u32 s{sT0}, s{sT0}, s{sT1}\ns_add_u32 s{sT0}, s{sT0}, s{sAB}\ns_add_u32 s{sT4}, s{sT0}, {64*1024}\ns_add_u32 s{sT5}, s{sT0}, {68*1024}')
store_frags(vWF, sT4)
tok = store_frags(vWF + 8, sT5)
k.wait_vm_tok(tok)
k('s_branch L_qjoin')
k.label('L_gate')
k.restore(snap1); tokA.clear(); tokA.update(tok1); tokB.clear(); nst[0] = nst0
L_GATE = L_WB + 7*8192 + 7168
const_init(vAC0, 0)
k(f'v_lshlrev_b32 v{vE+9}, 1, v{vHF8}')
def pass_A_gate():
    for s in range(8):
        slot = s % 3
        k(f'''
        s_add_u32 s{sT0}, s{sROT}, {s}
        s_and_b32 s{sT0}, s{sT0}, 7
        s_lshl_b32 s{sT5}, s{sT0}, 7
        ''')
        for kk in range(4):
            k(f'buffer_load_dwordx4 {vr(vWF + 4*kk, 4)}, v{vE+9}, {sr(S_GW,4)}, s{sT5} offen offset:{32*kk}')
        k.wait_vm_tok(tokA[s])
        k('s_barrier')
        if s == 0: stamp()
        for kk in range(4):
            k(f'ds_read_b128 {vr(vX + 4*(4*s+kk), 4)}, v{vXA+kk} offset:{L_X + slot*16384}')
        for kk in range(4):
            mfma(vAC0, vWF + 4*kk, vX + 4*(4*s+kk))
        if 1 <= s and s + 2 <= 7: issue_A(s + 2)
        if s == 5:
            for b in range(8): issue_B(b)
            k(f'buffer_load_dword v{vCLR}, off, {sr(S_DBG,4)}, 0 sc1')
pass_A_gate()
stamp()
k(f'''
v_mul_f32 v{vE}, {f32(-1.4426950408889634)}, v{vAC0}
v_exp_f32 v{vE}, v{vE}
v_add_f32 v{vE}, 1.0, v{vE}
v_rcp_f32 v{vE}, v{vE}
v_and_b32 v{vE+1}, 31, v{vLANE}
v_lshlrev_b32 v{vE+1}, 2, v{vE+1}
s_lshl_b32 s{sT0}, s{sRB}, 9
s_lshl_b32 s{sT1}, s{sRT}, 7
s_add_u32 s{sT0}, s{sT0}, s{sT1}
s_add_u32 s{sT5}, s{sT0}, {WS_G}
buffer_store_dword v{vE}, v{vE+1}, {sr(S_WS,4)}, s{sT5} offen sc1
s_waitcnt vmcnt(0)
''')
k.label('L_qjoin')
k('s_waitcnt vmcnt(0)')
tok = None
publish_flag(-1, H_FLAG, True)
issue_W(1)
stamp()
pass_B('q')
after_passB_common()
PQ = vT
PQ = vAC0
phi_tile(vAC2, PQ)
stamp()
w1_to_regs()
wait_flags(f's_lshl_b32 s{sT0}, s{sJ}, 7\ns_add_u32 s{sT0}, s{sT0}, {FL_KV}', 16)
k(f'''
s_lshl_b32 s{sT0}, s{sJ}, 1
s_add_u32 s{sT0}, s{sT0}, s{sC}
s_lshl_b32 s{sT1}, s{sT0}, 15
s_lshl_b32 s{sT2}, s{sRT}, 10
s_add_u32 s{sT1}, s{sT1}, s{sT2}
s_add_u32 s{sT1}, s{sT1}, {WS_KVP}
s_lshl_b32 s{sT0}, s{sT0}, 11
s_lshl_b32 s{sT2}, s{sRT}, 6
s_add_u32 s{sT0}, s{sT0}, s{sT2}
s_add_u32 s{sT0}, s{sT0}, {WS_KVZ - 128}
v_and_b32 v{vT+1}, 48, v{vLANE}
s_cmp_lt_u32 s{sRT}, 2
s_cselect_b32 s{sT5}, s{sT1}, s{sT0}
s_cselect_b64 vcc, -1, 0
s_movk_i32 s{sT4}, 128
s_cselect_b32 s{sT4}, 0x800, s{sT4}
v_cndmask_b32 v{vT+1}, v{vT+1}, v{vL16}, vcc
''')
KB = 176
for r in range(16):
    k(f'buffer_load_dwordx4 {vr(KB+4*r,4)}, v{vT+1}, {sr(S_WS,4)}, s{sT5} offen sc1')
    if r < 15: k(f's_add_u32 s{sT5}, s{sT5}, s{sT4}')
for step in (8, 4, 2, 1):
    for r in range(step):
        for i in (0, 2):
            k(f'v_pk_add_f32 {vr(KB+4*r+i,2)}, {vr(KB+4*r+i,2)}, {vr(KB+4*(r+step)+i,2)}')
k(f'v_add_u32 v{vT}, s{sW1K}, v{vL16}')
k(f'ds_write_b128 v{vT}, {vr(KB,4)} offset:{L_SCR - 32768}'.replace(f'offset:{L_SCR - 32768}', f'offset:{L_SCR % 65536}') if False else f'v_add_u32 v{vT}, {L_SCR}, v{vT}')
k(f'ds_write_b128 v{vT}, {vr(KB,4)}')
k.wait_lg_all()
k('s_barrier')
k(f's_lshl_b32 s{sT0}, s{sC}, 12\ns_add_u32 s{sT0}, s{sT0}, {L_SCR}\nv_add_u32 v{vT}, s{sT0}, v{vL16}')
for p in range(4): k(f'ds_read_b128 {vr(KB+4*p,4)}, v{vT} offset:{1024*p}')
Pp, Zp, FA, FB = KB+16, KB+20, KB+24, KB+28
for i in range(4): k(f'v_cvt_pk_bf16_f32 v{Pp+i}, v{KB+2*i}, v{KB+2*i+1}')
for i in range(4): k(f'v_cvt_pk_bf16_f32 v{Zp+i}, v{KB+8+2*i}, v{KB+8+2*i+1}')
for i in range(4): k(f'v_cndmask_b32_e64 v{FA+i}, v{Pp+i}, v{Zp+i}, {sr(sM16,2)}')
for i in range(4): k(f'v_cndmask_b32_e64 v{FB+i}, v{Zp+i}, v{Pp+i}, {sr(sM16,2)}')
DA, DB = 208, 224
mfma(DA, FA, PQ, '0'); mfma(DB, FB, PQ+4, '0')
OO = KB
k(f'''
v_add_f32 v{vE}, s{sEPS}, v{DA+8}
v_add_f32 v{vE+2}, s{sEPS}, v{DB}
v_rcp_f32 v{vE}, v{vE}
v_rcp_f32 v{vE+2}, v{vE+2}
''')
for i in range(0, 8, 2): k(f'v_pk_mul_f32 {vr(DA+i,2)}, {vr(DA+i,2)}, {vr(vE,2)} op_sel_hi:[1,0]')
for i in range(0, 8, 2): k(f'v_pk_mul_f32 {vr(DB+8+i,2)}, {vr(DB+8+i,2)}, {vr(vE+2,2)} op_sel_hi:[1,0]')
for i in range(4): k(f'v_cvt_pk_bf16_f32 v{OO+i}, v{DA+2*i}, v{DA+2*i+1}')
for i in range(4): k(f'v_cvt_pk_bf16_f32 v{OO+4+i}, v{DB+8+2*i}, v{DB+8+2*i+1}')
k(f's_lshl_b32 s{sT0}, s{sJ}, 12\ns_lshl_b32 s{sT1}, s{sC}, 11\ns_add_u32 s{sT0}, s{sT0}, s{sT1}\ns_add_u32 s{sT5}, s{sT0}, s{sAB}')
tok = store_frags(OO, sT5)
publish_flag(tok, f's_lshl_b32 s{sT0}, s{sRB}, 7\ns_lshl_b32 s{sT1}, s{sJ}, 2\ns_add_u32 s{sT0}, s{sT0}, s{sT1}\ns_add_u32 s{sT0}, s{sT0}, {FL_O}', False)
stamp()

k.label('L_p2')
k.restore(snap_kv); tokW.clear(); tokW.update(tokW_kv)
ACB, ACA, AB, WF2 = 192, 32, 128, 224
k(f'''
v_lshrrev_b32 v{vHF8}, 5, v{vLANE}
v_lshlrev_b32 v{vHF8}, 3, v{vHF8}
s_lshl_b32 s{sT0}, s{sCT}, 7
s_lshl_b32 s{sT1}, s{sRT}, 12
s_add_u32 s{sT4}, s{sT0}, s{sT1}
s_add_u32 s{sT5}, s{sT4}, 64
''')
bias_init(ACB, S_B2, sT4, vHF8)
bias_init(ACB+16, S_B2, sT5, vHF8)
bias_unpack(ACB); bias_unpack(ACB+16)
wait_flags(f's_lshr_b32 s{sT0}, s{sSLAB}, 1\ns_lshl_b32 s{sT0}, s{sT0}, 7\ns_add_u32 s{sT0}, s{sT0}, {FL_H}', 16)
stamp()
sAF, sAO = 60, 61
k(f'''
s_lshl_b32 s{sT0}, s{sSLAB}, 1
s_add_u32 s{sT0}, s{sT0}, s{sC}
s_mul_i32 s{sT1}, s{sT0}, {NSTEP*1024}
s_mul_i32 s{sT2}, s{sRT}, {22*1024}
s_add_u32 s{sAF}, s{sT1}, s{sT2}
s_add_u32 s{sAF}, s{sAF}, {32*1024}
s_lshl_b32 s{sT2}, s{sRT}, 13
s_add_u32 s{sAO}, s{sT1}, s{sT2}
s_lshl_b32 s{sT0}, s{sT0}, 7
s_add_u32 s{sT0}, s{sT0}, {WS_G}
v_and_b32 v{vT+1}, 31, v{vLANE}
v_lshlrev_b32 v{vT+1}, 2, v{vT+1}
''')
vG = vT + 6
def loadA(idx, sbase, t):
    if t % 4 == 0 and t > 0: k(f's_add_u32 s{sbase}, s{sbase}, 4096')
    k(f'buffer_load_dwordx4 {vr(AB + 4*(idx%16), 4)}, v{vL16}, {sr(S_WS,4)}, s{sbase} offen offset:{1024*(t%4)} sc1')
for t in range(16): loadA(t, sAF, t)
k(f'buffer_load_dword v{vG}, v{vT+1}, {sr(S_WS,4)}, s{sT0} offen sc1')
def wsrc(f):
    if f < 12: return None
    if f < 20: return (vP2A + 2, (f - 12) * 2048)
    return (vP2A + 4, (f - 20) * 2048)
def rdW(slot, areg, off):
    for c2 in range(2):
        for i in range(2):
            k(f'ds_read_b64_tr_b16 {vr(WF2 + 8*(slot%4) + 4*c2 + 2*i, 2)}, v{areg + c2} offset:{off + i*1024}')
for f in range(22):
    if f + 3 >= 12 and f + 3 < 22: rdW(f + 3, *wsrc(f + 3))
    for c2 in range(2):
        w = vX + 8*f + 4*c2 if f < 12 else WF2 + 8*(f%4) + 4*c2
        mfma(ACB + 16*c2, w, AB + 4*(f%16))
    if f + 16 < 22: loadA(f + 16, sAF, f + 16)
wait_flags(f's_lshr_b32 s{sT0}, s{sSLAB}, 1\ns_lshl_b32 s{sT0}, s{sT0}, 7\ns_add_u32 s{sT0}, s{sT0}, {FL_O}', 8)
stamp()
for t in range(8): loadA(t + 6, sAO, t)
for t in range(3): rdW(t + 2, vP2A + 4, (2 + t) * 2048)
for t in range(8):
    if t + 3 < 8: rdW(t + 5, vP2A + 4, (5 + t) * 2048)
    for c2 in range(2):
        mfma(ACA + 16*c2, WF2 + 8*((t+2)%4) + 4*c2, AB + 4*((t+6)%16), '0' if t == 0 else None)
k(f'v_sub_f32 v{vG+1}, 1.0, v{vG}')
for i in range(0, 32, 2): k(f'v_pk_mul_f32 {vr(ACB+i,2)}, {vr(ACB+i,2)}, {vr(vG,2)} op_sel:[0,1] op_sel_hi:[1,1]')
for i in range(0, 32, 2): k(f'v_pk_fma_f32 {vr(ACB+i,2)}, {vr(ACA+i,2)}, {vr(vG,2)}, {vr(ACB+i,2)} op_sel_hi:[1,0,1]')
k('s_barrier')
k(f'''
v_and_b32 v{vT}, 31, v{vLANE}
s_lshl_b32 s{sT0}, s{sRT}, 6
s_lshl_b32 s{sT1}, s{sC}, 5
s_add_u32 s{sT0}, s{sT0}, s{sT1}
v_add_u32 v{vT}, s{sT0}, v{vT}
v_mul_u32_u24 v{vT}, 272, v{vT}
v_lshl_add_u32 v{vT}, v{vHF8}, 1, v{vT}
''')
for c2 in range(2):
    for j in range(4):
        k(f'ds_write_b128 v{vT}, {vr(ACB + 16*c2 + 4*j, 4)} offset:{128*c2 + 32*j}')
k.wait_lg_all()
k('s_barrier')
k(f'''
v_lshrrev_b32 v{vT}, 3, v{vLANE}
s_lshl_b32 s{sT0}, s{sWAVE}, 3
v_add_u32 v{vT}, s{sT0}, v{vT}
v_and_b32 v{vT+2}, 7, v{vLANE}
v_mul_u32_u24 v{vT+1}, 272, v{vT}
v_lshl_add_u32 v{vT+1}, v{vT+2}, 5, v{vT+1}
v_lshlrev_b32 v{vT}, 10, v{vT}
v_lshl_add_u32 v{vT}, v{vT+2}, 4, v{vT}
s_lshl_b32 s{sT0}, s{sSLAB}, 16
s_lshl_b32 s{sT1}, s{sCT}, 7
s_add_u32 s{sT0}, s{sT0}, s{sT1}
''')
R = 128
for q in range(4):
    for h in range(2):
        k(f'ds_read_b128 {vr(R + 8*q + 4*h, 4)}, v{vT+1} offset:{q*64*272 + 16*h}')
for i in range(0, 8, 2):
    k(f'v_pk_add_f32 {vr(R+i,2)}, {vr(R+i,2)}, {vr(R+8+i,2)}')
    k(f'v_pk_add_f32 {vr(R+16+i,2)}, {vr(R+16+i,2)}, {vr(R+24+i,2)}')
for i in range(0, 8, 2):
    k(f'v_pk_add_f32 {vr(R+i,2)}, {vr(R+i,2)}, {vr(R+16+i,2)}')
for i in range(4): k(f'v_cvt_pk_bf16_f32 v{R+32+i}, v{R+2*i}, v{R+2*i+1}')
k(f'buffer_store_dwordx4 {vr(R+32,4)}, v{vT}, {sr(S_OUT,4)}, s{sT0} offen')
if cfg.stamps:
    k('s_waitcnt vmcnt(0)')
    stamp()
    k(f'''
    s_waitcnt lgkmcnt(0)
    s_cmp_lg_u32 s{sWAVE}, 0
    s_cbranch_scc1 L_end
    s_mov_b64 exec, 1
    s_mul_i32 s{sT0}, s2, {8*nst[0]}
    s_add_u32 s{sT0}, s{sT0}, {STAMP_OFF}
    ''')
    for s in range(nst[0]):
        k(f'v_mov_b32 v4, s{STREG[s]}\nv_mov_b32 v5, s{STREG[s]+1}\nbuffer_store_dwordx2 v[4:5], off, {sr(S_WS,4)}, s{sT0} offset:{8*s}\ns_nop 1')
k.label('L_end')
k('s_endpgm')

hdr = open('gated_mix__linear_attn_block__dense_activation_gelu__prompt.s.ref').read().split('; @launch')[0]
text = hdr + f'''; @launch grid=(256,1,1) block=(512,1,1) lds={LDS_BYTES}
.amdgcn_target "amdgcn-amd-amdhsa--gfx950"
.text
.globl {KNAME}
.p2align 8
.type {KNAME},@function
{KNAME}:
{k.text()}
.section .rodata,"a"
.p2align 6
.amdhsa_kernel {KNAME}
  .amdhsa_next_free_vgpr 256
  .amdhsa_next_free_sgpr 102
  .amdhsa_accum_offset 256
  .amdhsa_group_segment_fixed_size 0
  .amdhsa_kernarg_size 96
  .amdhsa_user_sgpr_count 2
  .amdhsa_user_sgpr_kernarg_segment_ptr 1
  .amdhsa_system_sgpr_workgroup_id_x 1
.end_amdhsa_kernel
'''
open(sys.argv[1], 'w').write(text)
print('instructions', k.ninstr, 'nops', k.nnop, 'stamps', nst[0])
```

```python
import sys, struct
from kern import *

KNAME = 'gated_mix__linear_attn_block__dense_activation_gelu__prompt_kernel'
def f32(x): return '0x%08x' % struct.unpack('<I', struct.pack('<f', x))[0]

class Cfg:
    stamps = False
    rot = 0
    probe = -1
    pwg = -1
cfg = Cfg()
for a in sys.argv[2:]:
    k, v = a.split('='); setattr(cfg, k, int(v))

NSTEP = 120
WS_A = 0
WS_KVP = 0x800000
WS_KVZ = WS_KVP + 16*16*2048
WS_G = WS_KVZ + 16*16*128
WS_FL = WS_G + 8192
FL_KV, FL_H, FL_O = WS_FL, WS_FL + 8*128, WS_FL + 24*128
WS_END = WS_FL + 5120
STAMP_OFF = 0x8000000
WS_SIZE = 0x10000000

L_X = 0
L_WA = 49152
L_WB = 98304
L_SCR = 81920
LDS_BYTES = 163840

S_X, S_A, S_B, S_WS, S_DBG, S_W2, S_WO, S_OUT, S_B1, S_B2, S_GW = 8, 12, 16, 20, 24, 28, 32, 36, 40, 44, 48
sRB, sCG, sJ, sISQ, sSLAB, sCT, sWAVE, sROT = 52, 53, 54, 55, 56, 57, 58, 59
sSTRA, sSTRB, sSTPA, sSTPB = 60, 61, 62, 63
sW1K = 64
sT0, sT1, sT2, sT3, sT4, sT5 = 65, 66, 67, 68, 69, 70
sRT, sC = 71, 72
sM16 = 74
sC0, sC1 = 76, 78
sL2E, sEPS = 80, 81
sSAVE = 82
sSPIN = 84
sST = 86

vLANE, vXA, vWA, vWB = 1, 2, 6, 7
vDX0, vDX1, vDA0, vDA1, vDB, vDW, vL16, vCLR = 8, 9, 10, 11, 12, 13, 14, 15
vT = 16
vX = 32
vAC0, vAC1, vAC2 = 160, 176, 192
vWF = 208
vE = 240

k = Kern()
STREG = [86, 88, 90, 92, 94, 96, 98, 100, 4, 6]
nst = [0]
def stamp():
    if cfg.stamps:
        k(f's_memrealtime {sr(STREG[nst[0]], 2)}')
    nst[0] += 1

def srd(base, ptr, size):
    k(f's_mov_b32 s{base}, s{ptr}\ns_mov_b32 s{base+1}, s{ptr+1}\ns_mov_b32 s{base+2}, {size}\ns_mov_b32 s{base+3}, 0x20000')

stamp()
k(f'''
s_cmp_ge_u32 s2, 256
s_cbranch_scc1 L_end
s_load_dwordx4 s[76:79], s[0:1], 0
s_load_dwordx2 s[80:81], s[0:1], 32
s_load_dwordx2 s[82:83], s[0:1], 16
s_load_dwordx8 s[64:71], s[0:1], 40
s_load_dwordx4 s[4:7], s[0:1], 72
s_load_dwordx2 s[84:85], s[0:1], 88
v_lshrrev_b32 v{vT}, 6, v0
v_and_b32 v{vLANE}, 63, v0
s_and_b32 s52, s2, 1
s_lshr_b32 s53, s2, 1
v_readfirstlane_b32 s{sWAVE}, v{vT}
s_and_b32 s53, s53, 3
s_lshr_b32 s54, s2, 3
s_lshr_b32 s55, s54, 2
s_lshl_b32 s52, s52, 3
s_add_u32 s{sRB}, s52, s55
s_lshl_b32 s53, s53, 2
s_and_b32 s56, s54, 3
s_add_u32 s{sCG}, s53, s56
s_lshl_b32 s56, s56, 1
s_add_u32 s{sROT}, s56, s55
s_and_b32 s{sROT}, s{sROT}, {cfg.rot}
s_and_b32 s56, s2, 7
s_lshl_b32 s56, s56, 2
s_lshr_b32 s57, s54, 3
s_add_u32 s{sSLAB}, s56, s57
s_and_b32 s{sCT}, s54, 7
s_lshr_b32 s{sJ}, s{sCG}, 1
s_and_b32 s{sISQ}, s{sCG}, 1
''')
k(f'''
v_lshrrev_b32 v{vT}, 3, v{vLANE}
v_and_b32 v{vT+1}, 7, v{vLANE}
v_lshrrev_b32 v{vT+2}, 1, v{vT}
v_xor_b32 v{vT+3}, v{vT+1}, v{vT+2}
v_lshlrev_b32 v{vT+3}, 4, v{vT+3}
v_and_b32 v{vT+2}, 1, v{vT+2}
v_lshlrev_b32 v{vT+2}, 2, v{vT+2}
v_xor_b32 v{vT+4}, v{vT+1}, v{vT+2}
v_lshlrev_b32 v{vT+4}, 4, v{vT+4}
s_lshl_b32 s60, s{sRB}, 7
s_lshl_b32 s61, s{sWAVE}, 4
s_add_u32 s60, s60, s61
v_add_u32 v{vDX0}, s60, v{vT}
v_lshl_add_u32 v{vDX0}, v{vDX0}, 10, v{vT+3}
v_xor_b32 v{vDX1}, 64, v{vDX0}
v_add_u32 v{vDX1}, 0x2000, v{vDX1}
s_lshl_b32 s61, s{sWAVE}, 3
v_add_u32 v{vT+5}, s61, v{vT}
s_cmp_eq_u32 s{sISQ}, 1
s_movk_i32 s62, 3072
s_movk_i32 s63, 2752
s_cselect_b32 s{sSTRA}, s63, s62
s_cselect_b32 s{sSTRB}, s62, s63
''')
k(f'''
v_mul_lo_u32 v{vDA0}, v{vT+5}, s{sSTRA}
v_mul_lo_u32 v{vDB}, v{vT+5}, s{sSTRB}
s_lshl_b32 s62, s{sJ}, 7
s_lshl_b32 s63, s{sJ}, 8
s_cselect_b32 s63, s63, s62
s_add_u32 s63, s63, 1024
v_add3_u32 v{vDA0}, v{vDA0}, v{vT+4}, s63
v_add3_u32 v{vDB}, v{vDB}, v{vT+4}, s62
s_cmp_eq_u32 s{sISQ}, 1
s_cselect_b32 s62, 128, 0x400
v_add_u32 v{vDA1}, s62, v{vDA0}
s_lshl_b32 s{sSTPA}, s{sSTRA}, 6
s_lshl_b32 s{sSTPB}, s{sSTRB}, 6
'''.replace('s_cselect_b32 s63, s63, s62', f's_cmp_eq_u32 s{sISQ}, 1\ns_cselect_b32 s63, s63, s62').replace('s_cselect_b32 s62, 128, 0x400', 's_movk_i32 s62, 0x400\ns_cselect_b32 s62, 0x80, s62'))
k('s_waitcnt lgkmcnt(0)')
srd(S_X, 76, 0x200000)
k(f'''
s_cmp_eq_u32 s{sISQ}, 1
s_cselect_b32 s{S_A}, s80, s78
s_cselect_b32 s{S_A+1}, s81, s79
s_mov_b32 s{S_B+2}, 0x180000
s_cselect_b32 s{S_A+2}, {512*2752}, s{S_B+2}
s_mov_b32 s{S_A+3}, 0x20000
s_cselect_b32 s{S_B}, s78, s80
s_cselect_b32 s{S_B+1}, s79, s81
s_cselect_b32 s{S_B+2}, s{S_B+2}, {512*2752}
s_mov_b32 s{S_B+3}, 0x20000
''')
srd(S_WO, 82, 512*1024)
srd(S_B1, 64, 2752)
srd(S_W2, 66, 1376*1024)
srd(S_B2, 68, 1024)
srd(S_GW, 70, 1024)
srd(S_OUT, 4, 2048*1024)
srd(S_DBG, 6, 256)
srd(S_WS, 84, WS_SIZE if cfg.stamps else hex(WS_END))
k(f'''
s_lshl_b32 s{sW1K}, s{sWAVE}, 10
s_and_b32 s{sRT}, s{sWAVE}, 3
s_lshr_b32 s{sC}, s{sWAVE}, 2
''')

def dma(voff, srd_, soff, lds_s, lds_imm):
    k(f's_add_u32 m0, s{lds_s}, {lds_imm}')
    return k(f'buffer_load_dwordx4 v{voff}, {sr(srd_,4)}, s{soff} offen lds')

tokA = {}
def issue_A(s):
    slot = s % 3
    k(f'''
    s_add_u32 s{sT0}, s{sROT}, {s}
    s_and_b32 s{sT0}, s{sT0}, 7
    s_lshl_b32 s{sT1}, s{sT0}, 7
    s_mul_i32 s{sT2}, s{sT0}, s{sSTPA}
    s_lshl_b32 s{sT3}, s{sWAVE}, 11
    ''')
    dma(vDX0, S_X, sT1, sT3, L_X + slot*16384)
    dma(vDX1, S_X, sT1, sT3, L_X + slot*16384 + 1024)
    dma(vDA0, S_A, sT2, sW1K, L_WA + slot*16384)
    tokA[s] = dma(vDA1, S_A, sT2, sW1K, L_WA + slot*16384 + 8192)
tokB = {}
def issue_B(s):
    k(f'''
    s_add_u32 s{sT0}, s{sROT}, {s}
    s_and_b32 s{sT0}, s{sT0}, 7
    s_mul_i32 s{sT2}, s{sT0}, s{sSTPB}
    ''')
    tokB[s] = dma(vDB, S_B, sT2, sW1K, L_WB + s*8192)

for s in range(3): issue_A(s)

k(f'''
v_lshlrev_b32 v{vL16}, 4, v{vLANE}
s_or_b32 s{sT0}, s2, s{sWAVE}
s_cmp_lg_u32 s{sT0}, 0
s_cbranch_scc1 L_noclear
''')
snap = k.snapshot(); k.track = False
k(f'''
v_mov_b32 v{vE}, 0
v_mov_b32 v{vE+1}, 0
v_mov_b32 v{vE+2}, 0
v_mov_b32 v{vE+3}, 0
s_mov_b32 s{sT0}, {WS_FL}
buffer_store_dwordx4 {vr(vE,4)}, v{vL16}, {sr(S_WS,4)}, s{sT0} offen sc1
buffer_store_dwordx4 {vr(vE,4)}, v{vL16}, {sr(S_WS,4)}, s{sT0} offen offset:1024 sc1
buffer_store_dwordx4 {vr(vE,4)}, v{vL16}, {sr(S_WS,4)}, s{sT0} offen offset:2048 sc1
buffer_store_dwordx4 {vr(vE,4)}, v{vL16}, {sr(S_WS,4)}, s{sT0} offen offset:3072 sc1
s_add_u32 s{sT0}, s{sT0}, 4096
buffer_store_dwordx4 {vr(vE,4)}, v{vL16}, {sr(S_WS,4)}, s{sT0} offen sc1
v_mov_b32 v{vE+4}, 1
s_waitcnt vmcnt(0)
s_mov_b64 exec, 1
buffer_store_dword v{vE+4}, off, {sr(S_DBG,4)}, 0 sc1
s_mov_b64 exec, -1
s_nop 1
''')
k.out.append('L_noclear:'); k.restore(snap); k.track = True

k(f'''
v_and_b32 v{vT}, 31, v{vLANE}
v_lshrrev_b32 v{vT+1}, 5, v{vLANE}
s_lshl_b32 s{sT0}, s{sRT}, 5
v_add_u32 v{vT+2}, s{sT0}, v{vT}
v_bfe_u32 v{vT+3}, v{vT}, 1, 3
v_xor_b32 v{vT+3}, v{vT+3}, v{vT+1}
v_lshlrev_b32 v{vT+3}, 4, v{vT+3}
v_lshl_add_u32 v{vXA}, v{vT+2}, 7, v{vT+3}
v_xor_b32 v{vXA+1}, 32, v{vXA}
v_xor_b32 v{vXA+2}, 64, v{vXA}
v_xor_b32 v{vXA+3}, 0x60, v{vXA}
''')
k(f'''
v_bfe_u32 v{vT+2}, v{vLANE}, 2, 2
v_lshl_add_u32 v{vT+3}, v{vT+1}, 3, v{vT+2}
v_lshlrev_b32 v{vT+3}, 7, v{vT+3}
v_lshrrev_b32 v{vT+4}, 1, v{vT+2}
v_xor_b32 v{vT+4}, s{sC}, v{vT+4}
v_lshl_add_u32 v{vT+3}, v{vT+4}, 6, v{vT+3}
v_bfe_u32 v{vT+4}, v{vLANE}, 4, 1
v_lshl_add_u32 v{vT+3}, v{vT+4}, 5, v{vT+3}
v_and_b32 v{vT+4}, 3, v{vLANE}
v_lshl_add_u32 v{vT+3}, v{vT+4}, 3, v{vT+3}
v_add_u32 v{vWA}, {L_WA}, v{vT+3}
v_add_u32 v{vWB}, {L_WB}, v{vT+3}
v_and_b32 v{vT+4}, 16, v{vLANE}
v_cmp_ne_u32 {sr(sM16,2)}, 0, v{vT+4}
s_mov_b32 s{sC0}, {f32(-2.302208198)}
s_mov_b32 s{sC0+1}, {f32(-2.302208198)}
s_mov_b32 s{sC1}, {f32(-2.302208198*0.044715)}
s_mov_b32 s{sC1+1}, {f32(-2.302208198*0.044715)}
s_mov_b32 s{sL2E}, {f32(1.4426950408889634)}
s_mov_b32 s{sEPS}, {f32(1e-6)}
''')
k(f'''
v_lshrrev_b32 v{vT+2}, 3, v{vLANE}
v_and_b32 v{vT+3}, 7, v{vLANE}
v_bfe_u32 v{vT+4}, v{vLANE}, 4, 1
v_lshlrev_b32 v{vT+4}, 2, v{vT+4}
v_xor_b32 v{vT+3}, v{vT+3}, v{vT+4}
v_lshlrev_b32 v{vT+3}, 4, v{vT+3}
s_lshl_b32 s{sT0}, s{sC}, 13
s_lshl_b32 s{sT1}, s{sCT}, 7
s_add_u32 s{sT0}, s{sT0}, s{sT1}
v_lshl_add_u32 v{vDW}, v{vT+2}, 10, v{vT+3}
v_add_u32 v{vDW}, s{sT0}, v{vDW}
''')

def bias_init(acc, srd_, s_off, hfreg):
    for j in range(4):
        k(f'buffer_load_dwordx2 {vr(acc+4*j+2,2)}, v{hfreg}, {sr(srd_,4)}, s{s_off} offen offset:{16*j}')
    return
def bias_unpack(acc):
    for j in range(4):
        b = acc + 4*j
        k(f'''
        v_lshlrev_b32 v{b}, 16, v{b+2}
        v_and_b32 v{b+1}, 0xffff0000, v{b+2}
        v_lshlrev_b32 v{b+2}, 16, v{b+3}
        v_and_b32 v{b+3}, 0xffff0000, v{b+3}
        ''')
def const_init(acc, val):
    for r in range(16): k(f'v_mov_b32 v{acc+r}, {val}')

vHF8 = vT + 15
k(f'v_lshlrev_b32 v{vHF8}, 3, v{vT+1}')

tokW = {}
def issue_W(part):
    if part == 1: steps = [('f', i) for i in range(12)]; lb = 0
    if part == 2: steps = [('f', i) for i in range(12, 20)]; lb = L_WB
    if part == 3: steps = [('f', 20), ('f', 21)] + [('a', i) for i in range(8)]; lb = 0
    n = len(steps)
    k(f'''
    s_mul_i32 s{sT3}, s{sRT}, {n*2048}
    s_lshl_b32 s{sT4}, s{sC}, 10
    s_add_u32 s{sT3}, s{sT3}, s{sT4}
    s_mul_i32 s{sT4}, s{sRT}, {352*1024}
    s_lshl_b32 s{sT5}, s{sRT}, 17
    ''')
    for i, (kind, st) in enumerate(steps):
        if kind == 'f':
            k(f's_add_u32 s{sT2}, s{sT4}, {st*16384}')
            tokW[part] = dma(vDW, S_W2, sT2, sT3, lb + i*2048)
        else:
            k(f's_add_u32 s{sT2}, s{sT5}, {st*16384}')
            tokW[part] = dma(vDW, S_WO, sT2, sT3, lb + i*2048)

def mfma(d, a, b, c=None):
    k(f'v_mfma_f32_32x32x16_bf16 {vr(d,16)}, {vr(a,4)}, {vr(b,4)}, {vr(d,16) if c is None else c}')

def pass_A(mode):
    for s in range(8):
        slot = s % 3
        k.wait_vm_tok(tokA[s])
        k('s_barrier')
        if s == 0: stamp()
        if 1 <= s and s + 2 <= 7: issue_A(s + 2)
        if s == 5:
            for b in range(8): issue_B(b)
            k(f'buffer_load_dword v{vCLR}, off, {sr(S_DBG,4)}, 0 sc1')
        def reads(kk):
            k(f'ds_read_b128 {vr(vX + 4*(4*s+kk), 4)}, v{vXA+kk} offset:{L_X + slot*16384}')
            if mode == 'gate':
                k(f'ds_read_b128 {vr(vWF + 8*kk, 4)}, v{vE+8} offset:{32*kk}')
                return
            for u in range(2):
                for i in range(2):
                    k(f'ds_read_b64_tr_b16 {vr(vWF + 8*kk + 4*u + 2*i, 2)}, v{vWA} offset:{slot*16384 + u*8192 + kk*2048 + i*512}')
        def mm(kk):
            x = vX + 4*(4*s+kk)
            if mode == 'gate':
                mfma(vAC0, vWF + 8*kk, x); return
            for u in range(2):
                w = vWF + 8*kk + 4*u
                acc = (vAC0, vAC1)[u]
                if mode == 'kv': mfma(acc, x, w)
                else: mfma(acc, w, x)
        if mode == 'gate':
            k(f'''
            s_add_u32 s{sT0}, s{sROT}, {s}
            s_and_b32 s{sT0}, s{sT0}, 7
            s_lshl_b32 s{sT0}, s{sT0}, 7
            s_add_u32 s{sT0}, s{sT0}, {LDS_BYTES - 1024 if False else 0}
            v_add_u32 v{vE+8}, s{sT0}, v{vE+9}
            ''')
        reads(0); reads(1); reads(2)
        mm(0); reads(3); mm(1); mm(2); mm(3)

def pass_B(mode):
    def rd(t):
        s, kk = t // 4, t % 4
        for i in range(2):
            k(f'ds_read_b64_tr_b16 {vr(vWF + 4*(t%8) + 2*i, 2)}, v{vWB} offset:{s*8192 + kk*2048 + i*512}')
    for t in range(6): rd(t)
    for t in range(32):
        mfma(vAC2, vWF + 4*(t%8), vX + 4*t)
        if t + 6 < 32: rd(t + 6)

def gelu_tile(acc, out):
    p = lambda r: vr(r, 2)
    T = vE
    for i in range(0, 16, 2): k(f'v_pk_mul_f32 {p(T+i)}, {p(acc+i)}, {p(acc+i)}')
    for i in range(0, 16, 2): k(f'v_pk_fma_f32 {p(T+i)}, {p(T+i)}, {sr(sC1,2)}, {vr(vT+8,2)}')
    for i in range(0, 16, 2): k(f'v_pk_mul_f32 {p(T+i)}, {p(acc+i)}, {p(T+i)}')
    for i in range(16): k(f'v_exp_f32 v{T+i}, v{T+i}')
    for i in range(0, 16, 2): k(f'v_pk_add_f32 {p(T+i)}, {p(T+i)}, 1.0 op_sel_hi:[1,0]')
    for i in range(16): k(f'v_rcp_f32 v{T+i}, v{T+i}')
    for i in range(0, 16, 2): k(f'v_pk_mul_f32 {p(T+i)}, {p(acc+i)}, {p(T+i)}')
    for i in range(0, 16, 2): k(f'v_cvt_pk_bf16_f32 v{out+i//2}, v{T+i}, v{T+i+1}')

def phi_tile(acc, out):
    T = vE
    for i in range(16): k(f'v_fma_f32 v{T+i}, v{acc+i}, s{sL2E}, v{vT+10}')
    for i in range(16): k(f'v_exp_f32_e64 v{T+i}, v{T+i} clamp')
    for i in range(16): k(f'v_max_f32 v{acc+i}, s{sEPS}, v{acc+i}')
    for i in range(0, 16, 2): k(f'v_pk_add_f32 {vr(T+i,2)}, {vr(T+i,2)}, {vr(acc+i,2)}')
    for i in range(0, 16, 2): k(f'v_cvt_pk_bf16_f32 v{out+i//2}, v{T+i}, v{T+i+1}')

def store_frags(src, s_off, n=2):
    tok = None
    for i in range(n):
        tok = k(f'buffer_store_dwordx4 {vr(src+4*i,4)}, v{vL16}, {sr(S_WS,4)}, s{s_off} offen offset:{1024*i} sc1')
    return tok

uid = [0]
def publish_flag(tok, s_off_expr, check_clear):
    uid[0] += 1; u = uid[0]
    k.wait_vm_tok(tok)
    if check_clear:
        k(f'v_readfirstlane_b32 s{sT1}, v{vCLR}')
    k('s_barrier')
    k(f's_cmp_lg_u32 s{sWAVE}, 0\ns_cbranch_scc1 L_pf{u}')
    snap = k.snapshot(); k.track = False
    if check_clear:
        k(f'''
        s_mov_b32 s{sSPIN}, 0x40000
        L_pc{u}:
        s_cmp_eq_u32 s{sT1}, 1
        s_cbranch_scc1 L_pd{u}
        s_sub_u32 s{sSPIN}, s{sSPIN}, 1
        s_cmp_eq_u32 s{sSPIN}, 0
        s_cbranch_scc1 L_pd{u}
        buffer_load_dword v{vCLR}, off, {sr(S_DBG,4)}, 0 sc1
        s_waitcnt vmcnt(0)
        v_readfirstlane_b32 s{sT1}, v{vCLR}
        s_branch L_pc{u}
        L_pd{u}:
        ''')
    k(s_off_expr)
    k(f'''
    v_mov_b32 v{vT+11}, 1
    s_mov_b64 exec, 1
    buffer_store_dword v{vT+11}, off, {sr(S_WS,4)}, s{sT0} sc1
    s_mov_b64 exec, -1
    ''')
    k.out.append(f'L_pf{u}:'); k.restore(snap); k.track = True

def wait_flags(s_off_expr, n):
    uid[0] += 1; u = uid[0]
    k(f's_cmp_lg_u32 s{sWAVE}, 0\ns_cbranch_scc1 L_wf{u}')
    snap = k.snapshot(); k.track = False
    k(s_off_expr)
    k(f'''
    v_and_b32 v{vT+12}, {n-1}, v{vLANE}
    v_lshlrev_b32 v{vT+12}, 2, v{vT+12}
    s_mov_b32 s{sSPIN}, 0x40000
    L_wl{u}:
    buffer_load_dword v{vT+13}, v{vT+12}, {sr(S_WS,4)}, s{sT0} offen sc1
    s_sub_u32 s{sSPIN}, s{sSPIN}, 1
    s_cmp_eq_u32 s{sSPIN}, 0
    s_cbranch_scc1 L_wf{u}
    s_waitcnt vmcnt(0)
    v_cmp_ne_u32 vcc, 1, v{vT+13}
    s_cmp_lg_u64 vcc, 0
    s_cbranch_scc1 L_wl{u}
    ''')
    k.out.append(f'L_wf{u}:'); k.restore(snap); k.track = True
    k('s_barrier')

k(f'''
v_mov_b32 v{vT+8}, s{sC0}
v_mov_b32 v{vT+9}, s{sC0}
v_mov_b32 v{vT+10}, {f32(-1e-6*1.4426950408889634)}
''')
sAB = 73
k(f'''
s_lshl_b32 s{sT0}, s{sRB}, 2
s_add_u32 s{sT0}, s{sT0}, s{sRT}
s_mul_i32 s{sAB}, s{sT0}, {NSTEP*1024}
s_cmp_eq_u32 s{sISQ}, 1
s_cbranch_scc1 L_q
''')
snap0 = k.snapshot(); tok0 = (dict(tokA), dict(tokB), dict(tokW)); nst0 = nst[0]
H_FLAG = f's_lshl_b32 s{sT0}, s{sRB}, 7\ns_lshl_b32 s{sT1}, s{sCG}, 2\ns_add_u32 s{sT0}, s{sT0}, s{sT1}\ns_add_u32 s{sT0}, s{sT0}, {FL_H}'

def after_passB_common():
    k('s_barrier')
    issue_W(2)

def w1_to_regs():
    k.wait_vm_tok(tokW[1])
    k('s_barrier')
    p2_addr()
    for st in range(12):
        for c2 in range(2):
            for i in range(2):
                k(f'ds_read_b64_tr_b16 {vr(vX + 8*st + 4*c2 + 2*i, 2)}, v{vP2A + c2} offset:{st*2048 + i*1024}')
    k.wait_lg_all()
    k('s_barrier')
    issue_W(3)

vP2A = 2
def p2_addr():
    k(f'''
    v_lshrrev_b32 v{vT+1}, 5, v{vLANE}
    v_bfe_u32 v{vT+2}, v{vLANE}, 2, 2
    v_lshl_add_u32 v{vT+3}, v{vT+1}, 2, v{vT+2}
    v_lshlrev_b32 v{vT+3}, 7, v{vT+3}
    v_lshrrev_b32 v{vT+4}, 1, v{vT+2}
    v_lshl_add_u32 v{vT+3}, v{vT+4}, 6, v{vT+3}
    v_bfe_u32 v{vT+4}, v{vLANE}, 4, 1
    v_lshl_add_u32 v{vT+3}, v{vT+4}, 5, v{vT+3}
    v_and_b32 v{vT+4}, 3, v{vLANE}
    v_lshl_add_u32 v{vT+3}, v{vT+4}, 3, v{vT+3}
    s_mul_i32 s{sT0}, s{sRT}, {12*2048}
    v_add_u32 v{vP2A}, s{sT0}, v{vT+3}
    v_xor_b32 v{vP2A+1}, 64, v{vP2A}
    s_mul_i32 s{sT0}, s{sRT}, {8*2048}
    s_add_u32 s{sT0}, s{sT0}, {L_WB}
    v_add_u32 v{vP2A+2}, s{sT0}, v{vT+3}
    v_xor_b32 v{vP2A+3}, 64, v{vP2A+2}
    s_mul_i32 s{sT0}, s{sRT}, {10*2048}
    v_add_u32 v{vP2A+4}, s{sT0}, v{vT+3}
    v_xor_b32 v{vP2A+5}, 64, v{vP2A+4}
    ''')

k(f's_lshl_b32 s{sT0}, s{sJ}, 7\ns_lshl_b32 s{sT1}, s{sC}, 6\ns_add_u32 s{sT5}, s{sT0}, s{sT1}')
bias_init(vAC2, S_B1, sT5, vHF8)
const_init(vAC0, f's{sEPS}')
const_init(vAC1, 0)
pass_A('kv')
stamp()
PK, VV, ONES = vWF, vWF + 8, vWF + 16
phi_tile(vAC0, PK)
for i in range(0, 16, 2): k(f'v_cvt_pk_bf16_f32 v{VV+i//2}, v{vAC1+i}, v{vAC1+i+1}')
for i in range(4): k(f'v_mov_b32 v{ONES+i}, 0x3f803f80')
mfma(vAC0, PK, VV, '0'); mfma(vAC1, PK, ONES, '0')
mfma(vAC0, PK+4, VV+4); mfma(vAC1, PK+4, ONES)
k('s_barrier')
for r in range(8): k(f'v_cndmask_b32_e64 v{vE+r}, v{vAC0+r}, v{vAC0+8+r}, {sr(sM16,2)}')
for r in range(8): k(f'v_cndmask_b32_e64 v{vE+8+r}, v{vAC1+8+r}, v{vAC1+r}, {sr(sM16,2)}')
k(f's_lshl_b32 s{sT0}, s{sWAVE}, 12\nv_add_u32 v{vT}, s{sT0}, v{vL16}')
for p in range(4): k(f'ds_write_b128 v{vT}, {vr(vE+4*p,4)} offset:{1024*p}')
k.wait_lg_all()
k('s_barrier')
k(f's_lshl_b32 s{sT0}, s{sC}, 14\ns_lshl_b32 s{sT1}, s{sRT}, 10\ns_add_u32 s{sT0}, s{sT0}, s{sT1}\nv_add_u32 v{vT}, s{sT0}, v{vL16}')
for p in range(4): k(f'ds_read_b128 {vr(vE+4*p,4)}, v{vT} offset:{4096*p}')
for i in range(0, 4, 2):
    k(f'v_pk_add_f32 {vr(vE+i,2)}, {vr(vE+i,2)}, {vr(vE+4+i,2)}')
    k(f'v_pk_add_f32 {vr(vE+8+i,2)}, {vr(vE+8+i,2)}, {vr(vE+12+i,2)}')
for i in range(0, 4, 2):
    k(f'v_pk_add_f32 {vr(vE+i,2)}, {vr(vE+i,2)}, {vr(vE+8+i,2)}')
k(f'''
s_lshl_b32 s{sT0}, s{sJ}, 1
s_add_u32 s{sT0}, s{sT0}, s{sC}
s_lshl_b32 s{sT0}, s{sT0}, 4
s_add_u32 s{sT0}, s{sT0}, s{sRB}
s_lshl_b32 s{sT1}, s{sT0}, 11
s_lshl_b32 s{sT2}, s{sRT}, 10
s_add_u32 s{sT1}, s{sT1}, s{sT2}
s_add_u32 s{sT1}, s{sT1}, {WS_KVP}
s_lshl_b32 s{sT0}, s{sT0}, 7
s_lshl_b32 s{sT2}, s{sRT}, 6
s_add_u32 s{sT0}, s{sT0}, s{sT2}
s_add_u32 s{sT0}, s{sT0}, {WS_KVZ - 128}
v_and_b32 v{vT+1}, 15, v{vLANE}
v_cmp_eq_u32 vcc, 0, v{vT+1}
v_mov_b32 v{vT+2}, 0x7ffffff0
v_cndmask_b32 v{vT+1}, v{vT+2}, v{vLANE}, vcc
s_cmp_lt_u32 s{sRT}, 2
s_cselect_b32 s{sT5}, s{sT1}, s{sT0}
s_cselect_b64 vcc, -1, 0
v_cndmask_b32 v{vT+1}, v{vT+1}, v{vL16}, vcc
''')
tok = k(f'buffer_store_dwordx4 {vr(vE,4)}, v{vT+1}, {sr(S_WS,4)}, s{sT5} offen sc1')
publish_flag(tok, f's_lshl_b32 s{sT0}, s{sJ}, 7\ns_lshl_b32 s{sT1}, s{sRB}, 2\ns_add_u32 s{sT0}, s{sT0}, s{sT1}\ns_add_u32 s{sT0}, s{sT0}, {FL_KV}', True)
issue_W(1)
stamp()
bias_unpack(vAC2)
pass_B('kv')
after_passB_common()
gelu_tile(vAC2, vWF)
k(f's_lshl_b32 s{sT0}, s{sJ}, 12\ns_lshl_b32 s{sT1}, s{sC}, 11\ns_add_u32 s{sT0}, s{sT0}, s{sT1}\ns_add_u32 s{sT0}, s{sT0}, s{sAB}\ns_add_u32 s{sT5}, s{sT0}, {32*1024}')
tok = store_frags(vWF, sT5)
publish_flag(tok, H_FLAG, False)
stamp()
w1_to_regs()
stamp()
snap_kv = k.snapshot(); tokW_kv = dict(tokW)
k('s_branch L_p2')

k.label('L_q')
k.restore(snap0); tokA.clear(); tokA.update(tok0[0]); tokB.clear(); tokW.clear(); nst[0] = nst0
const_init(vAC2, f's{sEPS}')
k(f's_cmp_eq_u32 s{sJ}, 7\ns_cbranch_scc1 L_gate')
snap1 = k.snapshot(); tok1 = dict(tokA)
k(f's_lshl_b32 s{sT0}, s{sJ}, 8\ns_lshl_b32 s{sT1}, s{sC}, 6\ns_add_u32 s{sT0}, s{sT0}, s{sT1}\ns_add_u32 s{sT4}, s{sT0}, 1024\ns_add_u32 s{sT5}, s{sT0}, 1152')
bias_init(vAC0, S_B1, sT4, vHF8)
bias_init(vAC1, S_B1, sT5, vHF8)
bias_unpack(vAC0); bias_unpack(vAC1)
pass_A('q')
stamp()
gelu_tile(vAC0, vWF)
gelu_tile(vAC1, vWF + 8)
k(f's_lshl_b32 s{sT0}, s{sJ}, 13\ns_lshl_b32 s{sT1}, s{sC}, 11\ns_add_u32 s{sT0}, s{sT0}, s{sT1}\ns_add_u32 s{sT0}, s{sT0}, s{sAB}\ns_add_u32 s{sT4}, s{sT0}, {64*1024}\ns_add_u32 s{sT5}, s{sT0}, {68*1024}')
store_frags(vWF, sT4)
tok = store_frags(vWF + 8, sT5)
k.wait_vm_tok(tok)
k('s_branch L_qjoin')
k.label('L_gate')
k.restore(snap1); tokA.clear(); tokA.update(tok1); tokB.clear(); nst[0] = nst0
L_GATE = L_WB + 7*8192 + 7168
const_init(vAC0, 0)
k(f'v_lshlrev_b32 v{vE+9}, 1, v{vHF8}')
def pass_A_gate():
    for s in range(8):
        slot = s % 3
        k(f'''
        s_add_u32 s{sT0}, s{sROT}, {s}
        s_and_b32 s{sT0}, s{sT0}, 7
        s_lshl_b32 s{sT5}, s{sT0}, 7
        ''')
        for kk in range(4):
            k(f'buffer_load_dwordx4 {vr(vWF + 4*kk, 4)}, v{vE+9}, {sr(S_GW,4)}, s{sT5} offen offset:{32*kk}')
        k.wait_vm_tok(tokA[s])
        k('s_barrier')
        if s == 0: stamp()
        for kk in range(4):
            k(f'ds_read_b128 {vr(vX + 4*(4*s+kk), 4)}, v{vXA+kk} offset:{L_X + slot*16384}')
        for kk in range(4):
            mfma(vAC0, vWF + 4*kk, vX + 4*(4*s+kk))
        if 1 <= s and s + 2 <= 7: issue_A(s + 2)
        if s == 5:
            for b in range(8): issue_B(b)
            k(f'buffer_load_dword v{vCLR}, off, {sr(S_DBG,4)}, 0 sc1')
pass_A_gate()
stamp()
k(f'''
v_mul_f32 v{vE}, {f32(-1.4426950408889634)}, v{vAC0}
v_exp_f32 v{vE}, v{vE}
v_add_f32 v{vE}, 1.0, v{vE}
v_rcp_f32 v{vE}, v{vE}
v_and_b32 v{vE+1}, 31, v{vLANE}
v_lshlrev_b32 v{vE+1}, 2, v{vE+1}
s_lshl_b32 s{sT0}, s{sRB}, 9
s_lshl_b32 s{sT1}, s{sRT}, 7
s_add_u32 s{sT0}, s{sT0}, s{sT1}
s_add_u32 s{sT5}, s{sT0}, {WS_G}
buffer_store_dword v{vE}, v{vE+1}, {sr(S_WS,4)}, s{sT5} offen sc1
s_waitcnt vmcnt(0)
''')
k.label('L_qjoin')
k('s_waitcnt vmcnt(0)')
tok = None
publish_flag(-1, H_FLAG, True)
issue_W(1)
stamp()
pass_B('q')
after_passB_common()
PQ = vT
PQ = vAC0
phi_tile(vAC2, PQ)
stamp()
w1_to_regs()
wait_flags(f's_lshl_b32 s{sT0}, s{sJ}, 7\ns_add_u32 s{sT0}, s{sT0}, {FL_KV}', 16)
k(f'''
s_lshl_b32 s{sT0}, s{sJ}, 1
s_add_u32 s{sT0}, s{sT0}, s{sC}
s_lshl_b32 s{sT1}, s{sT0}, 15
s_lshl_b32 s{sT2}, s{sRT}, 10
s_add_u32 s{sT1}, s{sT1}, s{sT2}
s_add_u32 s{sT1}, s{sT1}, {WS_KVP}
s_lshl_b32 s{sT0}, s{sT0}, 11
s_lshl_b32 s{sT2}, s{sRT}, 6
s_add_u32 s{sT0}, s{sT0}, s{sT2}
s_add_u32 s{sT0}, s{sT0}, {WS_KVZ - 128}
v_and_b32 v{vT+1}, 48, v{vLANE}
s_cmp_lt_u32 s{sRT}, 2
s_cselect_b32 s{sT5}, s{sT1}, s{sT0}
s_cselect_b64 vcc, -1, 0
s_movk_i32 s{sT4}, 128
s_cselect_b32 s{sT4}, 0x800, s{sT4}
v_cndmask_b32 v{vT+1}, v{vT+1}, v{vL16}, vcc
''')
KB = 176
for r in range(16):
    k(f'buffer_load_dwordx4 {vr(KB+4*r,4)}, v{vT+1}, {sr(S_WS,4)}, s{sT5} offen sc1')
    if r < 15: k(f's_add_u32 s{sT5}, s{sT5}, s{sT4}')
for step in (8, 4, 2, 1):
    for r in range(step):
        for i in (0, 2):
            k(f'v_pk_add_f32 {vr(KB+4*r+i,2)}, {vr(KB+4*r+i,2)}, {vr(KB+4*(r+step)+i,2)}')
k(f'v_add_u32 v{vT}, s{sW1K}, v{vL16}')
k(f'ds_write_b128 v{vT}, {vr(KB,4)} offset:{L_SCR - 32768}'.replace(f'offset:{L_SCR - 32768}', f'offset:{L_SCR % 65536}') if False else f'v_add_u32 v{vT}, {L_SCR}, v{vT}')
k(f'ds_write_b128 v{vT}, {vr(KB,4)}')
k.wait_lg_all()
k('s_barrier')
k(f's_lshl_b32 s{sT0}, s{sC}, 12\ns_add_u32 s{sT0}, s{sT0}, {L_SCR}\nv_add_u32 v{vT}, s{sT0}, v{vL16}')
for p in range(4): k(f'ds_read_b128 {vr(KB+4*p,4)}, v{vT} offset:{1024*p}')
Pp, Zp, FA, FB = KB+16, KB+20, KB+24, KB+28
for i in range(4): k(f'v_cvt_pk_bf16_f32 v{Pp+i}, v{KB+2*i}, v{KB+2*i+1}')
for i in range(4): k(f'v_cvt_pk_bf16_f32 v{Zp+i}, v{KB+8+2*i}, v{KB+8+2*i+1}')
for i in range(4): k(f'v_cndmask_b32_e64 v{FA+i}, v{Pp+i}, v{Zp+i}, {sr(sM16,2)}')
for i in range(4): k(f'v_cndmask_b32_e64 v{FB+i}, v{Zp+i}, v{Pp+i}, {sr(sM16,2)}')
DA, DB = 208, 224
mfma(DA, FA, PQ, '0'); mfma(DB, FB, PQ+4, '0')
OO = KB
k(f'''
v_add_f32 v{vE}, s{sEPS}, v{DA+8}
v_add_f32 v{vE+2}, s{sEPS}, v{DB}
v_rcp_f32 v{vE}, v{vE}
v_rcp_f32 v{vE+2}, v{vE+2}
''')
for i in range(0, 8, 2): k(f'v_pk_mul_f32 {vr(DA+i,2)}, {vr(DA+i,2)}, {vr(vE,2)} op_sel_hi:[1,0]')
for i in range(0, 8, 2): k(f'v_pk_mul_f32 {vr(DB+8+i,2)}, {vr(DB+8+i,2)}, {vr(vE+2,2)} op_sel_hi:[1,0]')
for i in range(4): k(f'v_cvt_pk_bf16_f32 v{OO+i}, v{DA+2*i}, v{DA+2*i+1}')
for i in range(4): k(f'v_cvt_pk_bf16_f32 v{OO+4+i}, v{DB+8+2*i}, v{DB+8+2*i+1}')
k(f's_lshl_b32 s{sT0}, s{sJ}, 12\ns_lshl_b32 s{sT1}, s{sC}, 11\ns_add_u32 s{sT0}, s{sT0}, s{sT1}\ns_add_u32 s{sT5}, s{sT0}, s{sAB}')
tok = store_frags(OO, sT5)
publish_flag(tok, f's_lshl_b32 s{sT0}, s{sRB}, 7\ns_lshl_b32 s{sT1}, s{sJ}, 2\ns_add_u32 s{sT0}, s{sT0}, s{sT1}\ns_add_u32 s{sT0}, s{sT0}, {FL_O}', False)
stamp()

k.label('L_p2')
k.restore(snap_kv); tokW.clear(); tokW.update(tokW_kv)
ACB, ACA, AB, WF2 = 192, 32, 128, 224
k(f'''
v_lshrrev_b32 v{vHF8}, 5, v{vLANE}
v_lshlrev_b32 v{vHF8}, 3, v{vHF8}
s_lshl_b32 s{sT0}, s{sCT}, 7
s_lshl_b32 s{sT1}, s{sRT}, 12
s_add_u32 s{sT4}, s{sT0}, s{sT1}
s_add_u32 s{sT5}, s{sT4}, 64
''')
bias_init(ACB, S_B2, sT4, vHF8)
bias_init(ACB+16, S_B2, sT5, vHF8)
bias_unpack(ACB); bias_unpack(ACB+16)
wait_flags(f's_lshr_b32 s{sT0}, s{sSLAB}, 1\ns_lshl_b32 s{sT0}, s{sT0}, 7\ns_add_u32 s{sT0}, s{sT0}, {FL_H}', 16)
stamp()
sAF, sAO = 60, 61
k(f'''
s_lshl_b32 s{sT0}, s{sSLAB}, 1
s_add_u32 s{sT0}, s{sT0}, s{sC}
s_mul_i32 s{sT1}, s{sT0}, {NSTEP*1024}
s_mul_i32 s{sT2}, s{sRT}, {22*1024}
s_add_u32 s{sAF}, s{sT1}, s{sT2}
s_add_u32 s{sAF}, s{sAF}, {32*1024}
s_lshl_b32 s{sT2}, s{sRT}, 13
s_add_u32 s{sAO}, s{sT1}, s{sT2}
s_lshl_b32 s{sT0}, s{sT0}, 7
s_add_u32 s{sT0}, s{sT0}, {WS_G}
v_and_b32 v{vT+1}, 31, v{vLANE}
v_lshlrev_b32 v{vT+1}, 2, v{vT+1}
''')
vG = vT + 6
def loadA(idx, sbase, t):
    if t % 4 == 0 and t > 0: k(f's_add_u32 s{sbase}, s{sbase}, 4096')
    k(f'buffer_load_dwordx4 {vr(AB + 4*(idx%16), 4)}, v{vL16}, {sr(S_WS,4)}, s{sbase} offen offset:{1024*(t%4)} sc1')
for t in range(16): loadA(t, sAF, t)
k(f'buffer_load_dword v{vG}, v{vT+1}, {sr(S_WS,4)}, s{sT0} offen sc1')
def wsrc(f):
    if f < 12: return None
    if f < 20: return (vP2A + 2, (f - 12) * 2048)
    return (vP2A + 4, (f - 20) * 2048)
def rdW(slot, areg, off):
    for c2 in range(2):
        for i in range(2):
            k(f'ds_read_b64_tr_b16 {vr(WF2 + 8*(slot%4) + 4*c2 + 2*i, 2)}, v{areg + c2} offset:{off + i*1024}')
for f in range(22):
    if f + 3 >= 12 and f + 3 < 22: rdW(f + 3, *wsrc(f + 3))
    for c2 in range(2):
        w = vX + 8*f + 4*c2 if f < 12 else WF2 + 8*(f%4) + 4*c2
        mfma(ACB + 16*c2, w, AB + 4*(f%16))
    if f + 16 < 22: loadA(f + 16, sAF, f + 16)
wait_flags(f's_lshr_b32 s{sT0}, s{sSLAB}, 1\ns_lshl_b32 s{sT0}, s{sT0}, 7\ns_add_u32 s{sT0}, s{sT0}, {FL_O}', 8)
stamp()
for t in range(8): loadA(t + 6, sAO, t)
for t in range(3): rdW(t + 2, vP2A + 4, (2 + t) * 2048)
for t in range(8):
    if t + 3 < 8: rdW(t + 5, vP2A + 4, (5 + t) * 2048)
    for c2 in range(2):
        mfma(ACA + 16*c2, WF2 + 8*((t+2)%4) + 4*c2, AB + 4*((t+6)%16), '0' if t == 0 else None)
k(f'v_sub_f32 v{vG+1}, 1.0, v{vG}')
for i in range(0, 32, 2): k(f'v_pk_mul_f32 {vr(ACB+i,2)}, {vr(ACB+i,2)}, {vr(vG,2)} op_sel:[0,1] op_sel_hi:[1,1]')
for i in range(0, 32, 2): k(f'v_pk_fma_f32 {vr(ACB+i,2)}, {vr(ACA+i,2)}, {vr(vG,2)}, {vr(ACB+i,2)} op_sel_hi:[1,0,1]')
k('s_barrier')
k(f'''
v_and_b32 v{vT}, 31, v{vLANE}
s_lshl_b32 s{sT0}, s{sRT}, 6
s_lshl_b32 s{sT1}, s{sC}, 5
s_add_u32 s{sT0}, s{sT0}, s{sT1}
v_add_u32 v{vT}, s{sT0}, v{vT}
v_mul_u32_u24 v{vT}, 272, v{vT}
v_lshl_add_u32 v{vT}, v{vHF8}, 1, v{vT}
''')
for c2 in range(2):
    for j in range(4):
        k(f'ds_write_b128 v{vT}, {vr(ACB + 16*c2 + 4*j, 4)} offset:{128*c2 + 32*j}')
k.wait_lg_all()
k('s_barrier')
k(f'''
v_lshrrev_b32 v{vT}, 3, v{vLANE}
s_lshl_b32 s{sT0}, s{sWAVE}, 3
v_add_u32 v{vT}, s{sT0}, v{vT}
v_and_b32 v{vT+2}, 7, v{vLANE}
v_mul_u32_u24 v{vT+1}, 272, v{vT}
v_lshl_add_u32 v{vT+1}, v{vT+2}, 5, v{vT+1}
v_lshlrev_b32 v{vT}, 10, v{vT}
v_lshl_add_u32 v{vT}, v{vT+2}, 4, v{vT}
s_lshl_b32 s{sT0}, s{sSLAB}, 16
s_lshl_b32 s{sT1}, s{sCT}, 7
s_add_u32 s{sT0}, s{sT0}, s{sT1}
''')
R = 128
for q in range(4):
    for h in range(2):
        k(f'ds_read_b128 {vr(R + 8*q + 4*h, 4)}, v{vT+1} offset:{q*64*272 + 16*h}')
for i in range(0, 8, 2):
    k(f'v_pk_add_f32 {vr(R+i,2)}, {vr(R+i,2)}, {vr(R+8+i,2)}')
    k(f'v_pk_add_f32 {vr(R+16+i,2)}, {vr(R+16+i,2)}, {vr(R+24+i,2)}')
for i in range(0, 8, 2):
    k(f'v_pk_add_f32 {vr(R+i,2)}, {vr(R+i,2)}, {vr(R+16+i,2)}')
for i in range(4): k(f'v_cvt_pk_bf16_f32 v{R+32+i}, v{R+2*i}, v{R+2*i+1}')
k(f'buffer_store_dwordx4 {vr(R+32,4)}, v{vT}, {sr(S_OUT,4)}, s{sT0} offen')
if cfg.stamps:
    k('s_waitcnt vmcnt(0)')
    stamp()
    k(f'''
    s_waitcnt lgkmcnt(0)
    s_cmp_lg_u32 s{sWAVE}, 0
    s_cbranch_scc1 L_end
    ''')
    if cfg.probe >= 0:
        if cfg.pwg >= 0:
            k(f's_cmp_lg_u32 s2, {cfg.pwg}\ns_cbranch_scc1 L_end')
        k(f'''
        s_sub_u32 s{sT0}, s{STREG[cfg.probe]}, s{STREG[0]}
        s_lshl_b32 s{sT0}, s{sT0}, 2
        s_add_u32 s{sT0}, s{sT0}, 5000
        L_probe:
        s_memrealtime s[60:61]
        s_waitcnt lgkmcnt(0)
        s_sub_u32 s{sT1}, s60, s{STREG[0]}
        s_cmp_lt_u32 s{sT1}, s{sT0}
        s_cbranch_scc1 L_probe
        s_branch L_end
        ''')
    k(f'''
    s_mov_b64 exec, 1
    s_mul_i32 s{sT0}, s2, {8*nst[0]}
    s_add_u32 s{sT0}, s{sT0}, {STAMP_OFF}
    ''')
    for s in range(nst[0]):
        k(f'v_mov_b32 v4, s{STREG[s]}\nv_mov_b32 v5, s{STREG[s]+1}\nbuffer_store_dwordx2 v[4:5], off, {sr(S_WS,4)}, s{sT0} offset:{8*s}\ns_nop 1')
k.label('L_end')
k('s_endpgm')

hdr = open('gated_mix__linear_attn_block__dense_activation_gelu__prompt.s.ref').read().split('; @launch')[0]
text = hdr + f'''; @launch grid=(256,1,1) block=(512,1,1) lds={LDS_BYTES}
.amdgcn_target "amdgcn-amd-amdhsa--gfx950"
.text
.globl {KNAME}
.p2align 8
.type {KNAME},@function
{KNAME}:
{k.text()}
.section .rodata,"a"
.p2align 6
.amdhsa_kernel {KNAME}
  .amdhsa_next_free_vgpr 256
  .amdhsa_next_free_sgpr 102
  .amdhsa_accum_offset 256
  .amdhsa_group_segment_fixed_size 0
  .amdhsa_kernarg_size 96
  .amdhsa_user_sgpr_count 2
  .amdhsa_user_sgpr_kernarg_segment_ptr 1
  .amdhsa_system_sgpr_workgroup_id_x 1
.end_amdhsa_kernel
'''
open(sys.argv[1], 'w').write(text)
print('instructions', k.ninstr, 'nops', k.nnop, 'stamps', nst[0])
```

```python
import re

REG = re.compile(r'^(v|s|a)(\d+)$')
RNG = re.compile(r'^(v|s|a)\[(\d+):(\d+)\]$')

def regs_of(op):
    op = op.strip()
    neg = op.lstrip('-')
    if neg.startswith('abs(') and neg.endswith(')'): neg = neg[4:-1]
    if neg.startswith('|') and neg.endswith('|'): neg = neg[1:-1]
    m = REG.match(neg)
    if m: return [(m.group(1), int(m.group(2)))]
    m = RNG.match(neg)
    if m: return [(m.group(1), i) for i in range(int(m.group(2)), int(m.group(3)) + 1)]
    if neg == 'vcc': return [('s', 'vcc')]
    if neg in ('vcc_lo', 'vcc_hi'): return [('s', 'vcc')]
    if neg == 'exec': return [('s', 'exec')]
    if neg == 'm0': return [('s', 'm0')]
    return []

def split_ops(s):
    out, depth, cur = [], 0, ''
    for ch in s:
        if ch in '[(': depth += 1
        if ch in '])': depth -= 1
        if ch == ',' and depth == 0:
            out.append(cur.strip()); cur = ''
        else: cur += ch
    if cur.strip(): out.append(cur.strip())
    return out

TRANS = ('v_exp_f32', 'v_log_f32', 'v_rcp_f32', 'v_rsq_f32', 'v_sqrt_f32', 'v_sin_f32', 'v_cos_f32')

class Ins:
    __slots__ = ('text', 'mn', 'kind', 'rd', 'wr', 'srcc', 'ab', 'trans', 'lds_dma', 'wide_store', 'passes', 'nstates')
    def __init__(self, text):
        self.text = text
        t = text.split(';')[0].strip()
        parts = t.split(None, 1)
        mn = parts[0]; self.mn = mn
        rest = parts[1] if len(parts) > 1 else ''
        ops = split_ops(rest)
        mods = []
        if ops:
            toks = ops[-1].split()
            ops[-1] = toks[0]; mods = toks[1:]
        self.rd, self.wr, self.srcc, self.ab = [], [], [], []
        self.trans = False; self.lds_dma = False; self.wide_store = False; self.passes = 0; self.nstates = 1
        R = lambda i: regs_of(ops[i]) if i < len(ops) else []
        base = re.sub(r'_(e32|e64|dpp|sdwa)$', '', mn)
        if mn.startswith('v_mfma'):
            self.kind = 'mfma'
            self.wr = R(0); self.ab = R(1) + R(2); self.srcc = R(3); self.rd = self.ab + self.srcc
            self.passes = 8 if '32x32x16' in mn or '32x32x8' in mn else 4
        elif mn.startswith('v_'):
            self.kind = 'valu'
            self.trans = base in TRANS
            if base.startswith('v_cmp'):
                self.wr = R(0); self.rd = R(1) + R(2)
                if base.startswith('v_cmpx'): self.wr = self.wr + [('s', 'exec')]
            elif (base.startswith('v_permlane') and 'swap' in base) or base == 'v_swap_b32':
                self.wr = R(0) + R(1); self.rd = R(0) + R(1)
            elif base in ('v_add_co_u32', 'v_sub_co_u32', 'v_addc_co_u32', 'v_subb_co_u32', 'v_mad_u64_u32'):
                self.wr = R(0) + R(1); self.rd = sum((R(i) for i in range(2, len(ops))), [])
            else:
                self.wr = R(0); self.rd = sum((R(i) for i in range(1, len(ops))), [])
                if base in ('v_fmac_f32', 'v_dot2c_f32_bf16', 'v_pk_fmac_f16', 'v_writelane_b32'): self.rd = self.rd + R(0)
                if base.startswith('v_dot'): self.ab = R(1) + R(2)
                if base == 'v_cndmask_b32' and len(ops) == 3: self.rd = self.rd + [('s', 'vcc')]
        elif mn.startswith('ds_'):
            self.kind = 'ds'
            if 'read' in mn or 'bpermute' in mn or 'permute' in mn or 'swizzle' in mn:
                self.wr = R(0); self.rd = sum((R(i) for i in range(1, len(ops))), [])
            else:
                self.rd = sum((R(i) for i in range(len(ops))), [])
        elif mn.startswith('buffer_') or mn.startswith('global_'):
            self.kind = 'vmem'
            if mn in ('buffer_wbl2', 'buffer_inv'):
                pass
            elif 'lds' in mods or '_lds_' in mn:
                self.lds_dma = True
                self.rd = sum((R(i) for i in range(len(ops))), []) + [('s', 'm0')]
            elif 'load' in mn:
                self.wr = R(0); self.rd = sum((R(i) for i in range(1, len(ops))), [])
            elif 'atomic' in mn:
                self.rd = sum((R(i) for i in range(len(ops))), [])
                if 'sc0' in mods: self.wr = R(0)
            else:
                self.rd = sum((R(i) for i in range(len(ops))), [])
                if 'x4' in mn or 'x3' in mn:
                    self.wide_store = True
                    self.srcc = R(0) if mn.startswith('buffer_') else R(1)
        elif mn.startswith('s_'):
            if mn.startswith('s_load') or mn.startswith('s_buffer_load') or mn in ('s_memtime', 's_memrealtime'):
                self.kind = 'smem'; self.wr = R(0); self.rd = sum((R(i) for i in range(1, len(ops))), [])
            else:
                self.kind = 'salu'
                if mn == 's_nop': self.nstates = int(ops[0], 0) + 1
                if mn.startswith('s_cmp') or mn.startswith('s_bitcmp') or mn in ('s_waitcnt', 's_barrier', 's_nop', 's_sleep', 's_setprio', 's_endpgm', 's_branch') or mn.startswith('s_cbranch'):
                    self.rd = sum((R(i) for i in range(len(ops))), [])
                else:
                    self.wr = R(0); self.rd = sum((R(i) for i in range(1, len(ops))), [])
                    if 'saveexec' in mn: self.wr = self.wr + [('s', 'exec')]
        else:
            raise ValueError('unknown instruction: ' + text)

class Kern:
    def __init__(self):
        self.out = []
        self.hist = []
        self.pos = 0
        self.vm = []
        self.lg = []
        self.smem_pending = set()
        self.nid = 0
        self.track = True
        self.redo = False
        self.ninstr = 0
        self.nnop = 0

    def snapshot(self):
        return (list(self.hist), self.pos, [dict(x) for x in self.vm], [dict(x) for x in self.lg], set(self.smem_pending))
    def restore(self, s):
        self.hist, self.pos = list(s[0]), s[1]
        self.vm = [dict(x) for x in s[2]]; self.lg = [dict(x) for x in s[3]]; self.smem_pending = set(s[4])

    def raw(self, line):
        self.out.append(line)
    def label(self, name):
        self.out.append(name + ':')
    def comment(self, c):
        self.out.append('    ; ' + c)

    def _emit(self, ins):
        self.out.append('    ' + ins.text)
        self.hist.append((self.pos, ins))
        self.pos += ins.nstates
        if len(self.hist) > 40: self.hist.pop(0)
        self.ninstr += 1

    def _need_waits(self, ins):
        touched = set(ins.rd) | set(ins.wr)
        n = None
        for i, op in enumerate(self.vm):
            if op['wr'] & touched: n = len(self.vm) - 1 - i
        l = None
        for i, op in enumerate(self.lg):
            if op['wr'] & touched: l = len(self.lg) - 1 - i
        if self.smem_pending & touched: l = 0
        if self.smem_pending and l is not None: l = 0
        if n is not None or l is not None:
            self.waitcnt(vm=n, lgkm=l)

    def waitcnt(self, vm=None, lgkm=None):
        parts = []
        if vm is not None:
            vm = min(vm, 63)
            if vm < len(self.vm) or vm == 0:
                parts.append(f'vmcnt({vm})')
                self.vm = self.vm[len(self.vm) - vm:] if vm else []
        if lgkm is not None:
            lgkm = min(lgkm, 15)
            if lgkm < len(self.lg) or lgkm == 0:
                parts.append(f'lgkmcnt({lgkm})')
                self.lg = self.lg[len(self.lg) - lgkm:] if lgkm else []
                if lgkm == 0: self.smem_pending = set()
        if parts:
            self._emit(Ins('s_waitcnt ' + ' '.join(parts)))

    def wait_vm_tok(self, tok):
        for i, op in enumerate(self.vm):
            if op['id'] == tok:
                self.waitcnt(vm=len(self.vm) - 1 - i); return
    def wait_lg_all(self):
        if self.lg or self.smem_pending: self.waitcnt(lgkm=0)

    def _hazard(self, ins):
        need = 0
        rd, wr = set(ins.rd), set(ins.wr)
        vrd = {r for r in rd if r[0] in 'va'}; vwr = {r for r in wr if r[0] in 'va'}
        srd = {r for r in rd if r[0] == 's'}
        base = re.sub(r'_(e32|e64|dpp|sdwa)$', '', ins.mn)
        for p, h in self.hist:
            d = self.pos - (p + h.nstates)
            req = 0
            hw = set(h.wr)
            hvw = {r for r in hw if r[0] in 'va'}; hsw = {r for r in hw if r[0] == 's'}
            if h.kind == 'valu':
                if ins.kind == 'mfma' and hvw & vrd: req = max(req, 2)
                if h.mn.startswith('v_dot') and hvw & (vrd | vwr):
                    if not (ins.mn == h.mn and not (hvw & set(ins.ab))): req = max(req, 3)
                if ins.kind == 'mfma' and ('s', 'exec') in hsw: req = max(req, 4)
                if h.trans and ins.kind in ('valu',) and not ins.trans and hvw & vrd: req = max(req, 1)
                if h.trans and ins.kind in ('valu',) and ins.trans and hvw & vrd: req = max(req, 1)
                if ins.kind in ('valu', 'mfma') and hsw & srd: req = max(req, 2)
                if base in ('v_readlane_b32', 'v_writelane_b32') and hsw & srd: req = max(req, 4)
                if ins.kind == 'vmem' and hsw & srd: req = max(req, 5)
                if base in ('v_readfirstlane_b32', 'v_readlane_b32') and hvw & vrd: req = max(req, 1)
                if base.startswith('v_permlane') and hvw & vrd: req = max(req, 2)
                if ('dpp' in ins.text or 'row_' in ins.text or 'quad_perm' in ins.text) and hvw & vrd: req = max(req, 2)
                if ('s', 'exec') in hsw and base in ('v_readfirstlane_b32', 'v_readlane_b32', 'v_writelane_b32'): req = max(req, 4)
            if h.kind == 'mfma':
                big = {2: 5, 4: 8, 8: 12, 16: 20}[h.passes]
                ovl = {2: 4, 4: 6, 8: 10, 16: 18}[h.passes]
                war = {2: 1, 4: 3, 8: 7, 16: 15}[h.passes]
                if ins.kind == 'mfma':
                    if hvw & set(ins.ab): req = max(req, big)
                    if hvw & set(ins.srcc):
                        if not (list(h.wr) == list(ins.srcc) and h.passes == ins.passes): req = max(req, ovl)
                    if hvw & vwr and not (hvw & set(ins.srcc)): req = max(req, big)
                elif ins.kind in ('valu', 'vmem', 'ds'):
                    if hvw & (vrd | vwr): req = max(req, big)
                    if ins.kind == 'valu' and set(h.srcc) & vwr: req = max(req, war)
                    if ins.kind in ('vmem', 'ds') and set(h.srcc) & vwr: req = max(req, war)
            if h.kind == 'salu' and ('s', 'm0') in hsw and ins.lds_dma: req = max(req, 1)
            if h.wide_store and set(h.srcc) & vwr: req = max(req, 2)
            if req > d: need = max(need, req - d)
        while need > 0:
            n = min(need, 16)
            self._emit(Ins(f's_nop {n-1}')); self.nnop += 1
            need -= n

    def i(self, text):
        text = text.strip()
        if not text or text.startswith(';'):
            if text: self.out.append('    ' + text)
            return None
        if text.endswith(':'):
            self.label(text[:-1]); return None
        ins = Ins(text)
        if ins.mn == 's_waitcnt':
            m = re.search(r'vmcnt\((\d+)\)', text); l = re.search(r'lgkmcnt\((\d+)\)', text)
            if m:
                v = int(m.group(1)); self.vm = self.vm[len(self.vm) - v:] if v and v < len(self.vm) else ([] if not v else self.vm)
            if l:
                v = int(l.group(1)); self.lg = self.lg[len(self.lg) - v:] if v and v < len(self.lg) else ([] if not v else self.lg)
                if v == 0: self.smem_pending = set()
            self._emit(ins); return None
        self._need_waits(ins)
        self._hazard(ins)
        self._emit(ins)
        tok = None
        if ins.kind == 'vmem' and self.track:
            self.nid += 1; tok = self.nid
            self.vm.append({'id': tok, 'wr': set(ins.wr), 'text': text, 'redo': self.redo})
            if len(self.vm) > 63:
                raise RuntimeError('more than 63 vmem ops outstanding')
        elif ins.kind == 'ds':
            self.nid += 1; tok = self.nid
            self.lg.append({'id': tok, 'wr': set(ins.wr)})
        elif ins.kind == 'smem':
            self.smem_pending |= set(ins.wr)
        return tok

    def __call__(self, block):
        tok = None
        for l in block.split('\n'):
            r = self.i(l)
            if r is not None: tok = r
        return tok

    def text(self):
        return '\n'.join(self.out) + '\n'

def vr(b, n=1):
    return f'v{b}' if n == 1 else f'v[{b}:{b+n-1}]'
def sr(b, n=1):
    return f's{b}' if n == 1 else f's[{b}:{b+n-1}]'
```

```python
import sys, struct
from kern import *

KNAME = 'gated_mix__linear_attn_block__dense_activation_gelu__prompt_kernel'
def f32(x): return '0x%08x' % struct.unpack('<I', struct.pack('<f', x))[0]

class Cfg:
    stamps = 0
    rot = 7
    wrot = 1
    wtouch = 1
    probe = -1
    pwg = -1
    ptype = -1
    ogrp = 4
    clk = 0
    nopoison = 0
    s2early = 1
    gint = 8
    aearly = 8
    prio = 0
cfg = Cfg()
for a in sys.argv[2:]:
    k_, v_ = a.split('='); setattr(cfg, k_, int(v_))

RTS = 30 * 4096
WS_KVP = 0x800000
WS_KVZ = WS_KVP + 256 * 1024
WS_G = WS_KVZ + 256 * 1024
WS_FL = WS_G + 8192
WS_END = WS_FL + 3072
STAMP_OFF = 0x8000000
WS_SIZE = 0x10000000
OOB = 0x7f000000

SLOT = 40960
L_S1 = 2 * 8192
WP, PP = 2304, 1152
L_S2 = 8 * 8192
LDS_BYTES = 163840

S_X, S_W0, S_W12, S_WS, S_DBG, S_W2, S_WO, S_OUT, S_B1, S_B2 = 8, 12, 16, 20, 24, 28, 32, 36, 40, 44
sWAVE, sRT, sC, sRB, sGRP, sTYPE, sROT, sSTP0, sSTP12, sW1K, sW2K, sSLAB, sCT = range(48, 61)
sFLX, sSPIN, sEPS = 61, 62, 63
sC1 = 64
sM16 = 66
sT0, sT1, sT2, sT3, sT4, sT5 = range(68, 74)
sTF = 74
sTO = 81
sB7, sF21 = 89, 3
sH0, sH1, sH2, sGS = 98, 99, 100, 101
sWOOB = 44
STREG = [90, 92, 94, 96, 4, 6]
sK0, sK1, sSEL0, sSEL1, sGO = 8, 9, 10, 12, 13
STREG2 = [14, 16, 18]

vLANE, vL16 = 1, 2
vDX0, vDX1, vDW0, vDW1, vDW2 = 3, 4, 5, 6, 7
vDP = 8
vAQ = 11
vXA, vXB, vWA, vWB = 15, 19, 23, 24
vT = 25
vC0 = 32
vKS = 35
vB2 = 36
vFL, vDUM = 3, 4
vP2A = 5
vP2 = [5, 0, 15, 16, 17, 18]
vG = 6
vE = 40
vO = 56
vAC = 64
vFR = 112
vAW = 112
vWR = 176
vBF = 240
WF2 = [40, 48, 56, 96, 104]
ACB, ACA = 64, 176

k = Kern()
slow = []
nst = [0]
ALLST = STREG + STREG2
def stamp():
    if cfg.stamps:
        k(f'{"s_memtime" if cfg.clk else "s_memrealtime"} {sr(ALLST[nst[0]], 2)}')
    nst[0] += 1

fill = []
def tick(n=1):
    for _ in range(n):
        if fill: fill.pop(0)()
def flush():
    while fill: fill.pop(0)()
vcnt = [0]
def V(text):
    k(text); vcnt[0] += 1
    if vcnt[0] % cfg.gint == 0: tick()

def side(label, cond):
    k(cond + f'\ns_cbranch_scc1 {label}')
    snap = k.snapshot(); k.track = False
    def end():
        k('s_nop 1')
        k.out.append(label + ':'); k.restore(snap); k.track = True
    return end

stamp()
k(f'''
s_cmp_ge_u32 s2, 256
s_cbranch_scc1 L_end
s_load_dwordx2 {sr(S_X,2)}, s[0:1], 0
s_bfe_u32 s{sTYPE}, s2, 0x10003
s_mul_i32 s{sT0}, s{sTYPE}, 24
s_add_u32 s{sT0}, s{sT0}, 8
s_load_dwordx2 {sr(S_W0,2)}, s[0:1], s{sT0}
s_and_b32 s{sT1}, s2, 0x1e
s_cmp_eq_u32 s{sT1}, 0x1e
s_cselect_b32 s{sB7}, 1, 0
s_cselect_b32 s{sT0}, 64, s{sT0}
s_load_dwordx2 {sr(S_W12,2)}, s[0:1], s{sT0}
s_load_dwordx2 {sr(S_WS,2)}, s[0:1], 88
s_load_dwordx2 {sr(S_B1,2)}, s[0:1], 40
s_load_dwordx2 {sr(S_DBG,2)}, s[0:1], 80
s_load_dwordx2 {sr(S_W2,2)}, s[0:1], 48
s_load_dwordx2 {sr(S_WO,2)}, s[0:1], 16
s_load_dwordx2 {sr(S_B2,2)}, s[0:1], 56
s_load_dwordx2 {sr(S_OUT,2)}, s[0:1], 72
v_lshrrev_b32 v{vT}, 6, v0
v_and_b32 v{vLANE}, 63, v0
s_lshr_b32 s{sT2}, s2, 5
v_readfirstlane_b32 s{sWAVE}, v{vT}
s_and_b32 s{sT1}, s2, 1
s_lshl_b32 s{sT1}, s{sT1}, 3
s_add_u32 s{sRB}, s{sT1}, s{sT2}
s_bfe_u32 s{sT1}, s2, 0x20003
s_lshl_b32 s{sT1}, s{sT1}, 1
s_add_u32 s{sROT}, s{sT1}, s{sT2}
s_and_b32 s{sROT}, s{sROT}, {cfg.rot}
s_and_b32 s{sT1}, s2, 6
s_bfe_u32 s{sT2}, s2, 0x10004
s_add_u32 s{sGRP}, s{sT1}, s{sT2}
v_lshrrev_b32 v{vT}, 3, v{vLANE}
v_and_b32 v{vT+1}, 7, v{vLANE}
v_lshrrev_b32 v{vT+2}, 1, v{vT}
v_xor_b32 v{vT+3}, v{vT+1}, v{vT+2}
v_lshlrev_b32 v{vT+3}, 4, v{vT+3}
v_and_b32 v{vT+2}, 1, v{vT+2}
v_lshlrev_b32 v{vT+2}, 2, v{vT+2}
v_xor_b32 v{vT+4}, v{vT+1}, v{vT+2}
v_lshlrev_b32 v{vT+6}, 4, v{vT+4}
s_lshl_b32 s{sT1}, s{sRB}, 7
s_lshl_b32 s{sT2}, s{sWAVE}, 4
s_add_u32 s{sT1}, s{sT1}, s{sT2}
v_add_u32 v{vDX0}, s{sT1}, v{vT}
v_lshl_add_u32 v{vDX0}, v{vDX0}, 10, v{vT+3}
v_xor_b32 v{vDX1}, 64, v{vDX0}
v_add_u32 v{vDX1}, 0x2000, v{vDX1}
s_lshl_b32 s{sT1}, s{sWAVE}, 3
v_add_u32 v{vT+5}, s{sT1}, v{vT}
s_lshl_b32 s{sT3}, s{sGRP}, 7
s_add_u32 s{sT4}, s{sT3}, 1024
s_mul_i32 s{sT3}, s{sT3}, 3
s_movk_i32 s{sT1}, 3072
s_movk_i32 s{sT5}, 0x400
s_cmp_eq_u32 s{sTYPE}, 1
s_cselect_b32 s{sT1}, 2752, s{sT1}
s_cselect_b32 s{sT3}, s{sT3}, s{sT4}
s_cselect_b32 s{sT4}, 0x80, s{sT5}
s_movk_i32 s{sT5}, 0xfc00
s_cselect_b32 s{sT5}, 0x100, s{sT5}
s_mov_b32 s{S_W0+2}, 0x180000
s_cselect_b32 s{S_W0+2}, {512*2752}, s{S_W0+2}
v_mul_lo_u32 v{vDW0}, v{vT+5}, s{sT1}
v_add3_u32 v{vDW0}, v{vDW0}, v{vT+6}, s{sT3}
v_add_u32 v{vDW1}, s{sT4}, v{vDW0}
v_add_u32 v{vDW2}, s{sT5}, v{vDW0}
s_lshl_b32 s{sSTP0}, s{sT1}, 6
s_mov_b32 s{sSTP12}, s{sSTP0}
s_mov_b32 s{S_W12+2}, s{S_W0+2}
s_mov_b32 s{S_X+2}, 0x200000
s_mov_b32 s{S_X+3}, 0x20000
s_mov_b32 s{S_W0+3}, 0x20000
s_mov_b32 s{S_W12+3}, 0x20000
s_lshl_b32 s{sW1K}, s{sWAVE}, 10
s_lshl_b32 s{sW2K}, s{sWAVE}, 11
v_lshlrev_b32 v{vL16}, 4, v{vLANE}
s_mov_b32 s{S_WS+2}, {hex(WS_SIZE) if cfg.stamps else hex(WS_END)}
s_mov_b32 s{S_WS+3}, 0x20000
s_mov_b32 s{S_DBG+2}, 256
s_mov_b32 s{S_DBG+3}, 0x20000
s_or_b32 s{sT5}, s2, s{sWAVE}
''')
e = side('L_nob7', f's_cmp_eq_u32 s{sB7}, 0')
k(f'''
s_movk_i32 s{sSTP12}, 128
s_movk_i32 s{S_W12+2}, 1024
v_mov_b32 v{vT+1}, {hex(OOB)}
v_mov_b32 v{vT+2}, s{sT2}
v_cmp_eq_u32 vcc, v{vT+4}, v{vT}
v_cndmask_b32 v{vDW1}, v{vT+1}, v{vT+2}, vcc
v_cmp_gt_u32 vcc, 4, v{vT}
v_cndmask_b32 v{vDW1}, v{vT+1}, v{vDW1}, vcc
v_add_u32 v{vT+3}, 4, v{vT+4}
v_cmp_eq_u32 vcc, v{vT+3}, v{vT}
v_cndmask_b32 v{vDW2}, v{vT+1}, v{vT+2}, vcc
''')
e()
e = side('L_noclr', f's_cmp_lg_u32 s{sT5}, 0')
k(f'''
v_mov_b32 v{vE}, 0
v_mov_b32 v{vE+1}, 0
v_mov_b32 v{vE+2}, 0
v_mov_b32 v{vE+3}, 0
s_mov_b32 s{sT0}, {WS_FL}
buffer_store_dwordx4 {vr(vE,4)}, v{vL16}, {sr(S_WS,4)}, s{sT0} offen sc1
buffer_store_dwordx4 {vr(vE,4)}, v{vL16}, {sr(S_WS,4)}, s{sT0} offen offset:1024 sc1
buffer_store_dwordx4 {vr(vE,4)}, v{vL16}, {sr(S_WS,4)}, s{sT0} offen offset:2048 sc1
''')
e()

def dma(voff, srd_, soff, lds_s, lds_imm):
    k(f's_add_u32 m0, s{lds_s}, {lds_imm}')
    return k(f'buffer_load_dwordx4 v{voff}, {sr(srd_,4)}, s{soff} offen lds')

tokS = {}
def S_parts(s):
    base = (s % 4) * SLOT
    def pre():
        k(f'''
        s_add_u32 s{sT0}, s{sROT}, {s}
        s_and_b32 s{sT0}, s{sT0}, 7
        s_add_u32 m0, s{sW2K}, {base}
        s_lshl_b32 s{sT1}, s{sT0}, 7
        buffer_load_dwordx4 v{vDX0}, {sr(S_X,4)}, s{sT1} offen lds
        ''')
    def p1():
        k(f's_add_u32 m0, s{sW2K}, {base+1024}\ns_mul_i32 s{sT2}, s{sT0}, s{sSTP0}\nbuffer_load_dwordx4 v{vDX1}, {sr(S_X,4)}, s{sT1} offen lds')
    def p2():
        k(f's_add_u32 m0, s{sW1K}, {base+16384}\ns_mul_i32 s{sT3}, s{sT0}, s{sSTP12}\nbuffer_load_dwordx4 v{vDW0}, {sr(S_W0,4)}, s{sT2} offen lds')
    def last():
        tokS[s] = dma(vDW2, S_W12, sT3, sW1K, base + 16384 + 16384)
    return [pre, p1, p2, lambda: dma(vDW1, S_W12, sT3, sW1K, base + 16384 + 8192), last]
def issue_S(s):
    for f in S_parts(s): f()

issue_S(0)
issue_S(1)
e = side('L_noclr2', f's_cmp_lg_u32 s{sT5}, 0')
k(f'''
v_mov_b32 v{vE+4}, 1
s_waitcnt vmcnt(10)
s_mov_b64 exec, 1
buffer_store_dword v{vE+4}, off, {sr(S_DBG,4)}, 0 sc1
s_mov_b64 exec, -1
''')
e()

def srd_tail(base, size):
    k(f's_mov_b32 s{base+2}, {size}\ns_mov_b32 s{base+3}, 0x20000')
srd_tail(S_B1, 2752); srd_tail(S_W2, 1376*1024); srd_tail(S_WO, 512*1024)
srd_tail(S_B2, 1024); srd_tail(S_OUT, 2048*1024)
k(f'''
s_and_b32 s{sRT}, s{sWAVE}, 3
s_lshr_b32 s{sC}, s{sWAVE}, 2
v_mov_b32 v{vE}, -1
v_mov_b32 v{vE+1}, -1
v_mov_b32 v{vE+2}, -1
v_mov_b32 v{vE+3}, -1
s_and_b32 s{sT0}, s2, 7
s_lshl_b32 s{sT0}, s{sT0}, 2
s_lshr_b32 s{sT1}, s2, 6
s_add_u32 s{sSLAB}, s{sT0}, s{sT1}
s_bfe_u32 s{sCT}, s2, 0x30003
s_lshl_b32 s{sT0}, s{sCT}, 7
v_lshl_add_u32 v{vDP}, v{vT+5}, 10, v{vT+6}
v_add_u32 v{vDP}, s{sT0}, v{vDP}
v_add_u32 v{vDP+1}, 0x10000, v{vDP}
v_add_u32 v{vDP+2}, 0x20000, v{vDP}
v_lshrrev_b32 v{vT+1}, 5, v{vLANE}
v_lshlrev_b32 v{vT+2}, 3, v{vT+1}
s_lshl_b32 s{sT2}, s{sRT}, 5
s_add_u32 s{sT0}, s{sT0}, s{sT2}
buffer_load_dwordx2 {vr(vB2,2)}, v{vT+2}, {sr(S_B2,4)}, s{sT0} offen
buffer_load_dwordx2 {vr(vB2+2,2)}, v{vT+2}, {sr(S_B2,4)}, s{sT0} offen offset:16
''')
if cfg.wtouch:
    k(f'''
    s_mul_i32 s{sT0}, s2, {43*128}
    s_lshl_b32 s{sT2}, s2, 11
    s_cmp_eq_u32 s{sWAVE}, 1
    s_cselect_b32 s{sT0}, s{sT0}, {hex(OOB)}
    s_cmp_eq_u32 s{sWAVE}, 2
    s_cselect_b32 s{sT2}, s{sT2}, {hex(OOB)}
    v_min_u32 v{vT+2}, 42, v{vLANE}
    v_lshlrev_b32 v{vT+2}, 7, v{vT+2}
    v_and_b32 v{vT+3}, 0x780, v{vT+2}
    buffer_load_dword v{vO}, v{vT+2}, {sr(S_W2,4)}, s{sT0} offen
    buffer_load_dword v{vO+1}, v{vT+3}, {sr(S_WO,4)}, s{sT2} offen
    ''')
k(f's_lshl_b32 s{sT1}, s{sT1}, 1' if cfg.wrot else f's_mov_b32 s{sT1}, 0')
k(f's_mul_i32 s{sTF}, s{sT1}, 12288\ns_lshl_b32 s{sTO}, s{sT1}, 12')
for i in range(1, 7):
    k(f's_add_u32 s{sTF+i}, s{sTF+i-1}, 12288\ns_cmp_eq_u32 s{sTF+i}, {7*12288}\ns_cselect_b32 s{sTF+i}, 0, s{sTF+i}')
for i in range(1, 8):
    k(f's_add_u32 s{sTO+i}, s{sTO+i-1}, 4096\ns_and_b32 s{sTO+i}, s{sTO+i}, 0x7fff')
k(f'''
s_mov_b32 s{sF21}, {21*4096}
s_lshl_b32 s{sT0}, s{sSLAB}, 1
s_add_u32 s{sT0}, s{sT0}, s{sC}
s_mul_i32 s{sT0}, s{sT0}, {RTS}
s_lshl_b32 s{sT1}, s{sRT}, 10
s_add_u32 s{sT0}, s{sT0}, s{sT1}
v_add_u32 v{vAQ}, s{sT0}, v{vL16}
v_add_u32 v{vAQ+1}, 0x1000, v{vAQ}
v_add_u32 v{vAQ+2}, 0x2000, v{vAQ}
v_add_u32 v{vAQ+3}, {22*4096}, v{vAQ}
v_and_b32 v{vT}, 31, v{vLANE}
s_lshl_b32 s{sT0}, s{sRT}, 5
v_add_u32 v{vT+2}, s{sT0}, v{vT}
v_bfe_u32 v{vT+3}, v{vT}, 1, 3
v_xor_b32 v{vT+3}, v{vT+3}, v{vT+1}
v_lshlrev_b32 v{vT+3}, 4, v{vT+3}
v_lshl_add_u32 v{vXA}, v{vT+2}, 7, v{vT+3}
v_xor_b32 v{vXA+1}, 32, v{vXA}
v_xor_b32 v{vXA+2}, 64, v{vXA}
v_xor_b32 v{vXA+3}, 0x60, v{vXA}
v_add_u32 v{vXB}, {2*SLOT}, v{vXA}
v_add_u32 v{vXB+1}, {2*SLOT}, v{vXA+1}
v_add_u32 v{vXB+2}, {2*SLOT}, v{vXA+2}
v_add_u32 v{vXB+3}, {2*SLOT}, v{vXA+3}
v_bfe_u32 v{vT+2}, v{vLANE}, 2, 2
v_lshrrev_b32 v{vT+4}, 1, v{vT+2}
v_lshlrev_b32 v{vT+4}, 6, v{vT+4}
v_bfe_u32 v{vT+5}, v{vLANE}, 4, 1
v_lshl_add_u32 v{vT+4}, v{vT+5}, 5, v{vT+4}
v_and_b32 v{vT+5}, 3, v{vLANE}
v_lshl_add_u32 v{vT+4}, v{vT+5}, 3, v{vT+4}
v_lshl_add_u32 v{vT+3}, v{vT+1}, 3, v{vT+2}
v_lshl_add_u32 v{vT+3}, v{vT+3}, 7, v{vT+4}
s_lshl_b32 s{sT0}, s{sC}, 6
v_xor_b32 v{vT+3}, s{sT0}, v{vT+3}
v_add_u32 v{vWA}, 16384, v{vT+3}
v_add_u32 v{vWB}, {16384 + 2*SLOT}, v{vT+3}
v_lshl_add_u32 v{vT+3}, v{vT+1}, 2, v{vT+2}
v_lshl_add_u32 v{vT+3}, v{vT+3}, 7, v{vT+4}
s_mul_i32 s{sT0}, s{sRT}, {2048 + 32}
s_xor_b32 s{sT0}, s{sT0}, 64
v_xor_b32 v{vP2[1]}, s{sT0}, v{vT+3}
s_mov_b32 s{sSPIN}, 0x4000
s_cmp_eq_u32 s{sWAVE}, 0
s_cselect_b32 s{sFLX}, 1, 0
s_cselect_b32 s{sWOOB}, 0, {hex(OOB)}
s_lshl_b32 s{sT0}, s{sRB}, 2
s_add_u32 s{sT0}, s{sT0}, s{sRT}
s_mul_i32 s{sT0}, s{sT0}, {RTS}
s_lshl_b32 s{sT1}, s{sC}, 11
s_add_u32 s{sT5}, s{sT0}, s{sT1}
''')
k(f'''
s_lshl_b32 s{sT0}, s{sRB}, 7
s_lshl_b32 s{sT1}, s{sGRP}, 3
s_add_u32 s{sT0}, s{sT0}, s{sT1}
s_lshl_b32 s{sT1}, s{sTYPE}, 2
s_add_u32 s{sT0}, s{sT0}, s{sT1}
s_add_u32 s{sT0}, s{sT0}, {WS_FL}
s_lshl_b32 s{sT1}, s{sGRP}, 7
s_add_u32 s{sT1}, s{sT1}, {WS_FL + 2048}
s_lshl_b32 s{sT2}, s{sRB}, 2
s_add_u32 s{sT2}, s{sT2}, s{sT1}
s_lshr_b32 s{sT3}, s{sSLAB}, 1
s_lshl_b32 s{sT3}, s{sT3}, 7
s_add_u32 s{sT3}, s{sT3}, {WS_FL}
s_cmp_eq_u32 s{sTYPE}, 1
s_cselect_b32 s{sT2}, {hex(OOB)}, s{sT2}
s_cselect_b32 s{sT1}, s{sT3}, s{sT1}
v_mov_b32 v{vO+2}, {hex(OOB)}
v_writelane_b32 v{vO+2}, s{sT0}, 0
v_writelane_b32 v{vO+2}, s{sT2}, 1
v_mov_b32 v{vO+3}, 1
v_and_b32 v{vT+2}, 16, v{vLANE}
v_cmp_ne_u32 {sr(sM16,2)}, 0, v{vT+2}
v_mov_b32 v{vT+2}, s{sT3}
v_mov_b32 v{vT+3}, s{sT1}
v_cndmask_b32_e64 v{vT+2}, v{vT+2}, v{vT+3}, {sr(sM16,2)}
v_and_b32 v{vT+3}, 15, v{vLANE}
v_lshl_add_u32 v{vT}, v{vT+3}, 2, v{vT+2}
s_cmp_eq_u32 s{sTYPE}, 1
s_cbranch_scc1 L_B
''')
snap0 = k.snapshot(); tok0 = dict(tokS); nst0 = nst[0]
DBTEXT = f'buffer_load_dword v{vO+4}, off, {sr(S_DBG,4)}, s{sW1K} sc1'
FLTEXT = f'buffer_load_dword v{vFL}, v{vT}, {sr(S_WS,4)}, s{sWOOB} offen sc1'

def store2(src, s_off):
    k(f'buffer_store_dwordx4 {vr(src,4)}, v{vL16}, {sr(S_WS,4)}, s{s_off} offen sc1')
    return k(f'buffer_store_dwordx4 {vr(src+4,4)}, v{vL16}, {sr(S_WS,4)}, s{s_off} offen offset:1024 sc1')
def poison2(s_off):
    if cfg.nopoison: return []
    return [lambda: k(f'buffer_store_dwordx4 {vr(vE,4)}, v{vL16}, {sr(S_WS,4)}, s{s_off} offen sc1'),
            lambda: k(f'buffer_store_dwordx4 {vr(vE,4)}, v{vL16}, {sr(S_WS,4)}, s{s_off} offen offset:1024 sc1')]

tokW = {}
def W_part(i):
    def f():
        if i < 7: tab, vo, srd_ = sTF + i, vDP, S_W2
        elif i == 7: tab, vo, srd_ = sF21, vDP, S_W2
        elif i < 15: tab, vo, srd_ = sTF + i - 8, vDP + 1, S_W2
        elif i < 22: tab, vo, srd_ = sTF + i - 15, vDP + 2, S_W2
        else: tab, vo, srd_ = sTO + i - 22, vDP, S_WO
        k(f's_add_u32 m0, s{sW1K}, {(i % 20)*8192}\ns_lshl_b32 s{sT4}, s{tab}, 4')
        tokW[i] = k(f'buffer_load_dwordx4 v{vo}, {sr(srd_,4)}, s{sT4} offen lds')
    return f
def W_parts(lo, hi): return [W_part(i) for i in range(lo, hi)]

def mfma(d, a, b, c=None):
    k(f'v_mfma_f32_32x32x16_bf16 {vr(d,16)}, {vr(a,4)}, {vr(b,4)}, {vr(d,16) if c is None else c}')

def rdW(dst, blk):
    for c2 in range(2):
        for i in range(2):
            k(f'ds_read_b64_tr_b16 {vr(dst + 4*c2 + 2*i, 2)}, v{vP2[2*(blk//8) + c2]} offset:{(blk%8)*8192 + i*1024}')
def WR_parts(lo, hi): return [(lambda i=i: rdW(vWR + 8*i, i)) for i in range(lo, hi)]

uid = [0]
def checked(texts, regs, flag=False):
    uid[0] += 1; u = uid[0]
    def check(kk):
        if flag:
            kk(f'v_cmp_ne_u32 vcc, s{sFLX}, v{regs[0]}')
            return
        r = list(regs)
        if len(r) == 1:
            kk(f'v_cmp_eq_u32 vcc, -1, v{r[0]}'); return
        t = [vT + 2, vT + 3]
        h = len(r) // 2
        parts = [r[:h], r[h:]]
        first = [True, True]
        while parts[0] or parts[1]:
            for c in range(2):
                q = parts[c]
                if not q: continue
                if first[c]:
                    a = q[:3]; parts[c] = q[3:]; first[c] = False
                    kk(f'v_max3_u32 v{t[c]}, v{a[0]}, v{a[1]}, v{a[2]}')
                elif len(q) >= 2:
                    parts[c] = q[2:]
                    kk(f'v_max3_u32 v{t[c]}, v{t[c]}, v{q[0]}, v{q[1]}')
                else:
                    parts[c] = []
                    kk(f'v_max_u32 v{t[c]}, v{t[c]}, v{q[0]}')
        kk(f'v_max_u32 v{t[0]}, v{t[0]}, v{t[1]}')
        kk(f'v_cmp_eq_u32 vcc, -1, v{t[0]}')
    check(k)
    k(f's_cbranch_vccnz L_slow{u}')
    k.label(f'L_back{u}')
    vm = [dict(x) for x in k.vm]
    while vm and not vm[0]['redo']: vm.pop(0)
    s = Kern()
    s.label(f'L_slow{u}')
    s(f's_sub_u32 s{sSPIN}, s{sSPIN}, 1\ns_cbranch_scc1 L_give{u}\ns_nop 7\ns_nop 3')
    for t in texts: s(t)
    s('s_waitcnt vmcnt(0)')
    check(s)
    s(f's_cbranch_vccnz L_slow{u}')
    for op in vm:
        s(op['text'] if op['redo'] else f'buffer_load_dword v{vDUM}, off, {sr(S_DBG,4)}, 0 offset:4080')
        s.vm = []
    s(f's_branch L_back{u}')
    s.label(f'L_give{u}')
    s(f's_mov_b32 s{sSPIN}, 0\ns_waitcnt vmcnt(0)\ns_branch L_back{u}')
    slow.append(s.text())

def phase1(typ, poison):
    def reads(s, kk):
        slot = s % 4
        xa = (vXA if slot < 2 else vXB) + kk; wa = vWA if slot < 2 else vWB
        off = (slot % 2) * SLOT
        k(f'ds_read_b128 {vr(vFR + 16*kk, 4)}, v{xa} offset:{off}')
        for u in range(3):
            for i in range(2):
                k(f'ds_read_b64_tr_b16 {vr(vFR + 16*kk + 4 + 4*u + 2*i, 2)}, v{wa} offset:{off + u*8192 + kk*2048 + i*512}')
    def mm(kk, first, dense):
        x = vFR + 16*kk
        for u in range(3):
            w = x + 4 + 4*u; acc = vAC + 16*u
            c = '0' if first and (typ == 'B' or u == 1) else None
            if typ == 'A' and u < 2: mfma(acc, x, w, c)
            else: mfma(acc, w, x, c)
            if dense or u != 1: tick()
    if cfg.s2early: issue_S(2)
    for s in range(8):
        k.wait_vm_tok(tokS[s])
        if s == 7: k.wait_vm_tok(tokW[4])
        k.wait_lg_all()
        k('s_barrier')
        if s == 0: stamp()
        if s == 0:
            if not cfg.s2early: fill.extend(S_parts(2))
            fill.extend(S_parts(3)); fill.extend(poison[:4])
        if s == 1: fill.extend(poison[4:]); fill.append(lambda: k(DBTEXT))
        if 1 <= s <= 4: fill.extend(S_parts(s + 3))
        if s >= 5: fill.extend(W_parts(5*(s-5), 5*(s-4)))
        if s == 7: fill.append(lambda: k(FLTEXT))
        dense = len(fill) > 8 or s == 0
        reads(s, 0); reads(s, 1)
        if s == 4:
            checked([DBTEXT], [vO+4], flag=True)
            k(f'buffer_store_dword v{vO+3}, v{vO+2}, {sr(S_WS,4)}, s{sWOOB} offen sc1')
        if s > 0: mm(3, False, dense)
        mm(0, s == 0, dense); reads(s, 2)
        mm(1, False, dense); reads(s, 3)
        if s == 7: fill.extend(WR_parts(0, 5))
        mm(2, False, dense or s == 7)
        flush()
        if s == 2 and typ == 'B':
            for u in range(3): mfma(vAC + 16*u, vBF + 4*u, vBF + 12)
        if s == 5: k(f'v_xor_b32 v{vP2[0]}, 64, v{vP2[1]}')
    k.wait_vm_tok(tokW[9])
    k.wait_lg_all()
    k('s_barrier')
    k(f'''
    v_add_u32 v{vP2[2]}, 0x10000, v{vP2[0]}
    v_add_u32 v{vP2[3]}, 0x10000, v{vP2[1]}
    v_add_u32 v{vP2[4]}, 0x20000, v{vP2[0]}
    v_add_u32 v{vP2[5]}, 0x20000, v{vP2[1]}
    ''')
    return mm

def gelu_tile(acc, out):
    p = lambda r: vr(r, 2)
    T = vE
    for i in range(0, 16, 2): V(f'v_pk_mul_f32 {p(T+i)}, {p(acc+i)}, {p(acc+i)}')
    for i in range(0, 16, 2): V(f'v_pk_fma_f32 {p(T+i)}, {p(T+i)}, {sr(sC1,2)}, {vr(vC0,2)}')
    for i in range(0, 16, 2): V(f'v_pk_mul_f32 {p(T+i)}, {p(acc+i)}, {p(T+i)}')
    for i in range(16): V(f'v_exp_f32 v{T+i}, v{T+i}')
    for i in range(0, 16, 2): V(f'v_pk_add_f32 {p(T+i)}, {p(T+i)}, 1.0 op_sel_hi:[1,0]')
    for i in range(16): V(f'v_rcp_f32 v{T+i}, v{T+i}')
    for i in range(0, 16, 2): V(f'v_pk_mul_f32 {p(T+i)}, {p(acc+i)}, {p(T+i)}')
    for i in range(0, 16, 2): V(f'v_cvt_pk_bf16_f32 v{out+i//2}, v{T+i}, v{T+i+1}')

def phi_tile(acc, out):
    p = lambda r: vr(r, 2)
    T = vE
    for i in range(0, 16, 2): V(f'v_pk_fma_f32 {p(T+i)}, {p(acc+i)}, {sr(sC1,2)}, {vr(vC0,2)}')
    for i in range(16): V(f'v_exp_f32_e64 v{T+i}, v{T+i} clamp')
    for i in range(16): V(f'v_max_f32 v{acc+i}, s{sEPS}, v{acc+i}')
    for i in range(0, 16, 2): V(f'v_pk_add_f32 {p(T+i)}, {p(T+i)}, {p(acc+i)}')
    for i in range(0, 16, 2): V(f'v_cvt_pk_bf16_f32 v{out+i//2}, v{T+i}, v{T+i+1}')

Atext = {}
def loadA(i):
    if i < 7: tab, vo = sTF + i, vAQ
    elif i == 7: tab, vo = sF21, vAQ
    elif i < 15: tab, vo = sTF + i - 8, vAQ + 1
    elif i < 22: tab, vo = sTF + i - 15, vAQ + 2
    else: tab, vo = sTO + i - 22, vAQ + 3
    t = f'buffer_load_dwordx4 {vr(vAW + 4*(i%16), 4)}, v{vo}, {sr(S_WS,4)}, s{tab} offen sc1'
    Atext[i] = t
    k.redo = True; k(t); k.redo = False
def A_parts(lo, hi): return [(lambda i=i: loadA(i)) for i in range(lo, hi)]

GROUPS = [(0,4),(4,8),(8,12),(12,15),(15,19),(19,22),(22,26),(26,30)]
def phase2(hooks):
    gtext = f'buffer_load_dword v{vG}, v{vT+5}, {sr(S_WS,4)}, s{sGO} offen sc1'
    nread = [10]
    def prefetch(upto):
        while nread[0] <= min(upto, 29):
            i = nread[0]
            if i in hooks.get('stop', ()): break
            rdW(WF2[i % 5], i % 20); nread[0] += 1
    pend = list(range(16, 22))
    flush()
    for g, (lo, hi) in enumerate(GROUPS):
        if g in hooks: hooks[g]()
        prefetch(lo + 2)
        for i in range(lo, hi):
            while i not in Atext: tick()
        checked([Atext[i] for i in range(lo, hi)], [vAW + 4*(i%16) + j for i in range(lo, hi) for j in range(4)])
        if g == 1: stamp()
        if g == 6: stamp()
        for i in range(lo, hi):
            prefetch(i + 3)
            w = vWR + 8*i if i < 10 else WF2[i % 5]
            for c2 in range(2):
                if i < 22: mfma(ACB + 16*c2, w + 4*c2, vAW + 4*(i%16), '0' if i == 0 else None)
                else: mfma(ACA + 16*c2, w + 4*c2, vAW + 4*(i%16), '0' if i == 22 else None)
                tick()
            if pend and pend[0] - 16 <= i: fill.extend(A_parts(pend[0], pend[0] + 1)); pend.pop(0)
        if g == cfg.ogrp:
            fill.extend(A_parts(22, 30))
            def gl():
                k.redo = True; k(gtext); k.redo = False
            fill.append(gl)
    flush()
    checked([gtext], [vG])
    k(f'v_sub_f32 v{vG+1}, 1.0, v{vG}')
    k(f'''
    s_lshl_b32 s{sT0}, s{sC}, 2
    s_add_u32 s{sT0}, s{sT0}, s{sRT}
    s_xor_b32 s{sT1}, s{sT0}, 1
    s_xor_b32 s{sT2}, s{sT0}, 2
    s_xor_b32 s{sT3}, s{sT0}, 3
    s_mul_i32 s{sT0}, s{sT0}, 6144
    s_mul_i32 s{sT1}, s{sT1}, 6144
    s_mul_i32 s{sT2}, s{sT2}, 6144
    s_mul_i32 s{sT3}, s{sT3}, 6144
    v_add_u32 v{vT}, s{sT0}, v{vL16}
    v_add_u32 v{vT+1}, s{sT1}, v{vL16}
    v_add_u32 v{vT+2}, s{sT2}, v{vL16}
    v_add_u32 v{vT+3}, s{sT3}, v{vL16}
    ''')
    for i in list(range(8, 32, 2)) + list(range(0, 8, 2)):
        k(f'v_pk_mul_f32 {vr(ACB+i,2)}, {vr(ACB+i,2)}, {vr(vG,2)} op_sel:[0,1] op_sel_hi:[1,1]')
    k('s_barrier')
    for p in range(1, 4):
        for i in range(8*p, 8*p + 8, 2):
            k(f'v_pk_fma_f32 {vr(ACB+i,2)}, {vr(ACA+i,2)}, {vr(vG,2)}, {vr(ACB+i,2)} op_sel_hi:[1,0,1]')
        for h in range(2):
            k(f'ds_write_b128 v{vT+p}, {vr(ACB + 8*p + 4*h, 4)} offset:{(p-1)*2048 + 1024*h}')
    for i in range(0, 8, 2):
        k(f'v_pk_fma_f32 {vr(ACB+i,2)}, {vr(ACA+i,2)}, {vr(vG,2)}, {vr(ACB+i,2)} op_sel_hi:[1,0,1]')
    for j in range(4):
        k(f'v_lshlrev_b32 v{vE+2*j}, 16, v{vB2+j}\nv_and_b32 v{vE+2*j+1}, 0xffff0000, v{vB2+j}')
    for i in range(0, 8, 2):
        k(f'v_pk_fma_f32 {vr(ACB+i,2)}, {vr(vE+i,2)}, {vr(vG,2)}, {vr(ACB+i,2)} op_sel:[0,1,0] op_sel_hi:[1,1,1]')
    k(f'''
    v_and_b32 v{vT+4}, 31, v{vLANE}
    v_lshrrev_b32 v{vT+5}, 5, v{vLANE}
    v_lshlrev_b32 v{vT+5}, 4, v{vT+5}
    v_lshl_add_u32 v{vT+4}, v{vT+4}, 10, v{vT+5}
    s_lshl_b32 s{sT0}, s{sSLAB}, 16
    s_lshl_b32 s{sT1}, s{sC}, 15
    s_add_u32 s{sT0}, s{sT0}, s{sT1}
    s_lshl_b32 s{sT1}, s{sCT}, 7
    s_add_u32 s{sT0}, s{sT0}, s{sT1}
    s_lshl_b32 s{sT1}, s{sRT}, 5
    s_add_u32 s{sT0}, s{sT0}, s{sT1}
    ''')
    k.wait_lg_all()
    k('s_barrier')
    R = vAW
    for p in range(3):
        for h in range(2):
            k(f'ds_read_b128 {vr(R + 8*p + 4*h, 4)}, v{vT} offset:{p*2048 + 1024*h}')
    for p in range(3):
        for i in range(0, 8, 2):
            k(f'v_pk_add_f32 {vr(ACB+i,2)}, {vr(ACB+i,2)}, {vr(R+8*p+i,2)}')
    for i in range(4): k(f'v_cvt_pk_bf16_f32 v{vO+i}, v{ACB+2*i}, v{ACB+2*i+1}')
    k(f'v_permlane32_swap_b32 v{vO}, v{vO+2}\nv_permlane32_swap_b32 v{vO+1}, v{vO+3}')
    k(f'buffer_store_dwordx4 {vr(vO,4)}, v{vT+4}, {sr(S_OUT,4)}, s{sT0} offen')
    k('s_branch L_fin')

def g_addr():
    k(f'''
    s_lshl_b32 s{sT0}, s{sSLAB}, 8
    s_lshl_b32 s{sT1}, s{sC}, 7
    s_add_u32 s{sT0}, s{sT0}, s{sT1}
    s_add_u32 s{sGO}, s{sT0}, {WS_G}
    v_and_b32 v{vT+5}, 31, v{vLANE}
    v_lshlrev_b32 v{vT+5}, 2, v{vT+5}
    ''')

k(f'''
s_lshl_b32 s{sT0}, s{sGRP}, 12
s_add_u32 s{sT0}, s{sT0}, {22*4096}
s_add_u32 s{sH0}, s{sT5}, s{sT0}
s_lshl_b32 s{sT0}, s{sGRP}, 1
s_add_u32 s{sT0}, s{sT0}, s{sC}
s_lshl_b32 s{sT0}, s{sT0}, 14
s_lshl_b32 s{sT1}, s{sRB}, 10
s_add_u32 s{sT0}, s{sT0}, s{sT1}
s_lshl_b32 s{sT1}, s{sC}, 1
s_xor_b32 s{sH2}, s{sRT}, s{sT1}
s_lshl_b32 s{sT1}, s{sH2}, 18
s_add_u32 s{sT0}, s{sT0}, s{sT1}
s_add_u32 s{sT0}, s{sT0}, {WS_KVP}
s_cmp_lt_u32 s{sH2}, 2
s_cselect_b32 s{sH1}, s{sT0}, {hex(OOB)}
v_and_b32 v{vT+1}, 15, v{vLANE}
v_cmp_eq_u32 vcc, 0, v{vT+1}
v_mov_b32 v{vT+2}, {hex(OOB)}
v_cndmask_b32 v{vT+1}, v{vT+2}, v{vLANE}, vcc
s_cmp_eq_u32 s{sH2}, 0
s_cselect_b64 vcc, -1, 0
v_cndmask_b32 v{vKS}, v{vT+1}, v{vL16}, vcc
s_mov_b32 s{sC1}, {f32(1.4426950408889634)}
s_mov_b32 s{sC1+1}, {f32(1.4426950408889634)}
s_mov_b32 s{sEPS}, {f32(1e-6)}
v_mov_b32 v{vC0}, {f32(-1e-6*1.4426950408889634)}
v_mov_b32 v{vC0+1}, {f32(-1e-6*1.4426950408889634)}
''')
for r in range(16): k(f'v_mov_b32 v{vAC+r}, s{sEPS}')
for r in range(16): k(f'v_mov_b32 v{vAC+32+r}, s{sEPS}')
pz = poison2(sH0) + [lambda: k(f'buffer_store_dwordx4 {vr(vE,4)}, v{vKS}, {sr(S_WS,4)}, s{sH1} offen sc1')]
mm = phase1('A', pz)
fill.extend(W_parts(15, 22))
mm(3, False, True)
stamp()
PK, VV, ONES = vFR, vFR + 8, vFR + 16
k(f'''
s_mul_i32 s{sT0}, s{sWAVE}, {WP}
s_add_u32 s{sT0}, s{sT0}, {L_S1}
v_add_u32 v{vT+1}, s{sT0}, v{vL16}
v_add_u32 v{vT+2}, s{sT0}, v{vLANE}
''')
for i in range(4): k(f'v_mov_b32 v{ONES+i}, 0x3f803f80')
phi_tile(vAC, PK)
for i in range(0, 16, 2): V(f'v_cvt_pk_bf16_f32 v{VV+i//2}, v{vAC+16+i}, v{vAC+16+i+1}')
mfma(vAC, PK, VV, '0'); mfma(vAC + 16, PK, ONES, '0')
mfma(vAC, PK+4, VV+4); mfma(vAC + 16, PK+4, ONES)
flush()
k(f'''
s_mul_i32 s{sT0}, s{sC}, {4*WP}
s_add_u32 s{sT0}, s{sT0}, {L_S1}
v_and_b32 v{vT+3}, 48, v{vLANE}
v_add_u32 v{vT+3}, 1024, v{vT+3}
s_cmp_eq_u32 s{sH2}, 0
s_cselect_b64 vcc, -1, 0
v_cndmask_b32 v{vT+3}, v{vT+3}, v{vL16}, vcc
v_add_u32 v{vT+3}, s{sT0}, v{vT+3}
''')
for r in range(8): k(f'v_cndmask_b32_e64 v{vE+r}, v{vAC+r}, v{vAC+8+r}, {sr(sM16,2)}')
for p in range(2): k(f'ds_write_b128 v{vT+1}, {vr(vE+4*p,4)} offset:{PP*p}')
for r in range(8): k(f'v_cndmask_b32_e64 v{vE+8+r}, v{vAC+24+r}, v{vAC+16+r}, {sr(sM16,2)}')
k('s_mov_b32 exec_lo, 0x00010001\ns_mov_b32 exec_hi, 0x00010001')
for p in range(2): k(f'ds_write_b128 v{vT+2}, {vr(vE+8+4*p,4)} offset:{PP*p + 1024}')
k('s_mov_b64 exec, -1')
k.wait_lg_all()
k('s_barrier')
e = side('L_nored', f's_cmp_ge_u32 s{sH2}, 2')
for q in range(4):
    for p in range(2): k(f'ds_read_b128 {vr(vAC + 8*q + 4*p, 4)}, v{vT+3} offset:{q*WP + p*PP}')
for i in range(0, 8, 2): k(f'v_pk_add_f32 {vr(vAC+i,2)}, {vr(vAC+i,2)}, {vr(vAC+8+i,2)}')
for i in range(0, 8, 2): k(f'v_pk_add_f32 {vr(vAC+16+i,2)}, {vr(vAC+16+i,2)}, {vr(vAC+24+i,2)}')
for i in range(0, 8, 2): k(f'v_pk_add_f32 {vr(vAC+i,2)}, {vr(vAC+i,2)}, {vr(vAC+16+i,2)}')
for i in range(4): k(f'v_cvt_pk_bf16_f32 v{vAC+8+i}, v{vAC+2*i}, v{vAC+2*i+1}')
k(f'buffer_store_dwordx4 {vr(vAC+8,4)}, v{vKS}, {sr(S_WS,4)}, s{sH1} offen sc1')
e()
stamp()
PQ = vO
fill.extend(WR_parts(5, 10))
phi_tile(vAC + 32, PQ)
flush()
k(f'''
s_lshl_b32 s{sT0}, s{sGRP}, 1
s_add_u32 s{sT0}, s{sT0}, s{sC}
s_lshl_b32 s{sT0}, s{sT0}, 14
s_and_b32 s{sT1}, s{sRT}, 1
s_lshl_b32 s{sT1}, s{sT1}, 13
s_add_u32 s{sT0}, s{sT0}, s{sT1}
s_lshr_b32 s{sT1}, s{sRT}, 1
s_lshl_b32 s{sT1}, s{sT1}, 18
s_add_u32 s{sT0}, s{sT0}, s{sT1}
s_add_u32 s{sK0}, s{sT0}, {WS_KVP}
s_add_u32 s{sK1}, s{sK0}, 4096
s_mov_b32 s{sSEL0}, 0x00003f80
s_mov_b32 s{sSEL1}, 0x3f800000
v_and_b32 v{vT+1}, 48, v{vLANE}
s_cmp_lt_u32 s{sRT}, 2
s_cselect_b64 vcc, -1, 0
v_cndmask_b32 v{vKS}, v{vT+1}, v{vL16}, vcc
''')
checked([FLTEXT], [vFL], flag=True)
k.wait_lg_all()
k('s_barrier')
KB = vAC
kt = [f'buffer_load_dwordx4 {vr(KB+4*r,4)}, v{vKS}, {sr(S_WS,4)}, s{sK0 if r < 4 else sK1} offen offset:{1024*(r%4)} sc1' for r in range(8)]
k.redo = True
for t in kt: k(t)
k.redo = False
for f in W_parts(22, 28): f()
g_addr()
k(f'v_add_u32 v{vT+4}, s{sW2K}, v{vL16}\nv_add_u32 v{vT+4}, {L_S2}, v{vT+4}')
k(f's_lshl_b32 s{sT0}, s{sC}, 13\ns_add_u32 s{sT0}, s{sT0}, {L_S2}\nv_add_u32 v{vT+6}, s{sT0}, v{vL16}')
checked(kt, [KB + i for i in range(32)])
fill.extend(A_parts(0, 8))
SUM = vAC + 32
for r in range(8):
    for j in range(4):
        V(f'v_dot2_f32_bf16 v{SUM+2*j}, v{KB+4*r+j}, s{sSEL0}, {"0" if r == 0 else "v%d" % (SUM+2*j)}')
        V(f'v_dot2_f32_bf16 v{SUM+2*j+1}, v{KB+4*r+j}, s{sSEL1}, {"0" if r == 0 else "v%d" % (SUM+2*j+1)}')
for p in range(2): k(f'ds_write_b128 v{vT+4}, {vr(SUM+4*p,4)} offset:{1024*p}')
k.wait_lg_all()
k('s_barrier')
for q in range(4):
    for p in range(2): k(f'ds_read_b128 {vr(KB + 8*q + 4*p, 4)}, v{vT+6} offset:{q*2048 + p*1024}')
for i in range(0, 8, 2): k(f'v_pk_add_f32 {vr(KB+i,2)}, {vr(KB+i,2)}, {vr(KB+8+i,2)}')
for i in range(0, 8, 2): k(f'v_pk_add_f32 {vr(KB+16+i,2)}, {vr(KB+16+i,2)}, {vr(KB+24+i,2)}')
Pp, Zp, FA, FB = vE, vE+4, vE+8, vE+12
for i in range(4): k(f'v_cvt_pk_bf16_f32 v{Pp+i}, v{KB+2*i}, v{KB+2*i+1}')
for i in range(4): k(f'v_cvt_pk_bf16_f32 v{Zp+i}, v{KB+16+2*i}, v{KB+16+2*i+1}')
for i in range(4): k(f'v_cndmask_b32_e64 v{FA+i}, v{Pp+i}, v{Zp+i}, {sr(sM16,2)}')
for i in range(4): k(f'v_cndmask_b32_e64 v{FB+i}, v{Zp+i}, v{Pp+i}, {sr(sM16,2)}')
DA, DB = vAC, vAC + 16
mfma(DA, FA, PQ, '0'); mfma(DB, FB, PQ+4, '0')
OO = SUM
k(f'''
v_add_f32 v{vE}, s{sEPS}, v{DA+8}
v_add_f32 v{vE+2}, s{sEPS}, v{DB}
v_rcp_f32 v{vE}, v{vE}
v_rcp_f32 v{vE+2}, v{vE+2}
''')
for i in range(0, 8, 2): k(f'v_pk_mul_f32 {vr(DA+i,2)}, {vr(DA+i,2)}, {vr(vE,2)} op_sel_hi:[1,0]')
for i in range(0, 8, 2): k(f'v_pk_mul_f32 {vr(DB+8+i,2)}, {vr(DB+8+i,2)}, {vr(vE+2,2)} op_sel_hi:[1,0]')
for i in range(4): k(f'v_cvt_pk_bf16_f32 v{OO+i}, v{DA+2*i}, v{DA+2*i+1}')
for i in range(4): k(f'v_cvt_pk_bf16_f32 v{OO+4+i}, v{DB+8+2*i}, v{DB+8+2*i+1}')
store2(OO, sH0)
stamp()
flush()
fill.extend(A_parts(8, 16))
def hkA1():
    k.wait_vm_tok(tokW[27])
    k('s_barrier')
    fill.extend(W_parts(28, 30))
    hooksA['stop'] = (28,)
def hkA6():
    flush()
    k.wait_vm_tok(tokW[29])
    k('s_barrier')
    hooksA['stop'] = ()
hooksA = {1: hkA1, 6: hkA6, 'stop': (22,)}
phase2(hooksA)
nstA = nst[0]

k.label('L_B')
k.restore(snap0); tokS.clear(); tokS.update(tok0); tokW.clear(); Atext.clear(); nst[0] = nst0
k(f'''
s_mul_i32 s{sT0}, s{sGRP}, 12288
s_add_u32 s{sH0}, s{sT5}, s{sT0}
s_add_u32 s{sH1}, s{sH0}, 4096
s_add_u32 s{sH2}, s{sH0}, 8192
s_cmp_eq_u32 s{sB7}, 1
s_cselect_b32 s{sH1}, {hex(OOB)}, s{sH1}
s_cselect_b32 s{sH2}, {hex(OOB)}, s{sH2}
s_lshl_b32 s{sT0}, s{sRB}, 9
s_lshl_b32 s{sT1}, s{sRT}, 7
s_add_u32 s{sT0}, s{sT0}, s{sT1}
s_add_u32 s{sT0}, s{sT0}, {WS_G}
s_cmp_gt_u32 s{sB7}, s{sC}
s_cselect_b32 s{sGS}, s{sT0}, {hex(OOB)}
v_and_b32 v{vT+1}, 31, v{vLANE}
v_lshlrev_b32 v{vKS}, 2, v{vT+1}
v_lshlrev_b32 v{vT+1}, 1, v{vT+1}
s_mul_i32 s{sT0}, s{sGRP}, 384
s_lshl_b32 s{sT1}, s{sC}, 6
s_add_u32 s{sT0}, s{sT0}, s{sT1}
''')
for u in range(3):
    k(f'buffer_load_ushort v{vBF+4*u}, v{vT+1}, {sr(S_B1,4)}, s{sT0} offen offset:{128*u}')
k(f'''
s_mov_b32 s{sC1}, {f32(-2.302208198*0.044715)}
s_mov_b32 s{sC1+1}, {f32(-2.302208198*0.044715)}
v_mov_b32 v{vC0}, {f32(-2.302208198)}
v_mov_b32 v{vC0+1}, {f32(-2.302208198)}
v_cmp_gt_u32 vcc, 32, v{vLANE}
v_mov_b32 v{vBF+12}, 0x3f80
v_cndmask_b32 v{vBF+12}, 0, v{vBF+12}, vcc
''')
for u in range(4):
    for j in range(1, 4): k(f'v_mov_b32 v{vBF+4*u+j}, 0')
pz = poison2(sH0) + poison2(sH1) + poison2(sH2) + [lambda: k(f'buffer_store_dword v{vE}, v{vKS}, {sr(S_WS,4)}, s{sGS} offen sc1')]
mm = phase1('B', pz)
fill.extend(WR_parts(5, 8))
mm(3, False, True)
fill.extend(WR_parts(8, 10))
fill.extend(W_parts(15, 25))
stamp()
gelu_tile(vAC, vO)
store2(vO, sH0)
stamp()
checked([FLTEXT], [vFL], flag=True)
k.wait_lg_all()
k('s_barrier')
fill.extend(W_parts(25, 30))
e = side('L_nogate', f's_cmp_eq_u32 s{sB7}, 0')
k(f'''
v_add_f32 v{vE}, v{vAC+16}, v{vAC+16+5}
v_add_f32 v{vE+1}, v{vAC+16+10}, v{vAC+16+15}
v_add_f32 v{vE+2}, v{vAC+32}, v{vAC+32+5}
v_add_f32 v{vE+3}, v{vAC+32+10}, v{vAC+32+15}
v_add_f32 v{vE}, v{vE}, v{vE+1}
v_add_f32 v{vE+2}, v{vE+2}, v{vE+3}
v_mov_b32 v{vE+1}, v{vE}
v_permlane32_swap_b32 v{vE+2}, v{vE+1}
v_add_f32 v{vE}, v{vE}, v{vE+1}
v_mul_f32 v{vE}, {f32(-1.4426950408889634)}, v{vE}
v_exp_f32 v{vE}, v{vE}
v_add_f32 v{vE}, 1.0, v{vE}
v_rcp_f32 v{vE}, v{vE}
s_mov_b32 exec_hi, 0
buffer_store_dword v{vE}, v{vKS}, {sr(S_WS,4)}, s{sGS} offen sc1
s_mov_b32 exec_hi, -1
''')
e()
gelu_tile(vAC + 16, vAC)
store2(vAC, sH1)
flush()
g_addr()
fill.extend(A_parts(0, cfg.aearly))
gelu_tile(vAC + 32, vO)
store2(vO, sH2)
stamp()
flush()
fill.extend(A_parts(cfg.aearly, 16))
def hkB1():
    k.wait_vm_tok(tokW[29])
    k('s_barrier')
    hooksB['stop'] = ()
hooksB = {1: hkB1, 'stop': (10,)}
phase2(hooksB)
assert nst[0] == nstA

k.label('L_fin')
if cfg.stamps:
    k('s_waitcnt vmcnt(0)')
    stamp()
    k(f'''
    s_waitcnt lgkmcnt(0)
    s_cmp_lg_u32 s{sWAVE}, 0
    s_cbranch_scc1 L_end
    ''')
    if cfg.probe >= 0:
        if cfg.pwg >= 0:
            k(f's_cmp_lg_u32 s2, {cfg.pwg}\ns_cbranch_scc1 L_end')
        if cfg.ptype >= 0:
            k(f's_cmp_lg_u32 s{sTYPE}, {cfg.ptype}\ns_cbranch_scc1 L_end')
        k(f'''
        s_sub_u32 s{sT0}, s{ALLST[cfg.probe]}, s{ALLST[0]}
        s_lshl_b32 s{sT0}, s{sT0}, 2
        s_add_u32 s{sT0}, s{sT0}, 5000
        L_probe:
        s_memrealtime s[74:75]
        s_waitcnt lgkmcnt(0)
        s_sub_u32 s{sT1}, s74, s{ALLST[0]}
        s_cmp_lt_u32 s{sT1}, s{sT0}
        s_cbranch_scc1 L_probe
        s_branch L_end
        ''')
    k(f'''
    s_mov_b64 exec, 1
    s_mul_i32 s{sT0}, s2, {8*(nst[0]+1)}
    s_add_u32 s{sT0}, s{sT0}, {STAMP_OFF}
    ''')
    for s in range(nst[0]):
        k(f'v_mov_b32 v4, s{ALLST[s]}\nv_mov_b32 v5, s{ALLST[s]+1}\nbuffer_store_dwordx2 v[4:5], off, {sr(S_WS,4)}, s{sT0} offset:{8*s}\ns_nop 1')
    k(f'''
    s_sub_u32 s{sT1}, 0x4000, s{sSPIN}
    s_mul_i32 s{sT1}, s{sT1}, 100
    s_add_u32 s{sT1}, s{sT1}, s{ALLST[0]}
    s_addc_u32 s{sT2}, s{ALLST[0]+1}, 0
    v_mov_b32 v4, s{sT1}
    v_mov_b32 v5, s{sT2}
    buffer_store_dwordx2 v[4:5], off, {sr(S_WS,4)}, s{sT0} offset:{8*nst[0]}
    ''')
k.label('L_end')
k('s_endpgm')

hdr = open('gated_mix__linear_attn_block__dense_activation_gelu__prompt.s.ref').read().split('; @launch')[0]
text = hdr + f'''; @launch grid=(256,1,1) block=(512,1,1) lds={LDS_BYTES}
.amdgcn_target "amdgcn-amd-amdhsa--gfx950"
.text
.globl {KNAME}
.p2align 8
.type {KNAME},@function
{KNAME}:
{k.text()}
{"".join(slow)}
.section .rodata,"a"
.p2align 6
.amdhsa_kernel {KNAME}
  .amdhsa_next_free_vgpr 256
  .amdhsa_next_free_sgpr 102
  .amdhsa_accum_offset 256
  .amdhsa_group_segment_fixed_size 0
  .amdhsa_kernarg_size 96
  .amdhsa_user_sgpr_count 2
  .amdhsa_user_sgpr_kernarg_segment_ptr 1
  .amdhsa_system_sgpr_workgroup_id_x 1
.end_amdhsa_kernel
'''
open(sys.argv[1], 'w').write(text)
print('instructions', k.ninstr, 'nops', k.nnop, 'stamps', nst[0])
```

```python
import sys, struct
from kern import *

KNAME = 'gated_mix__linear_attn_block__dense_activation_gelu__prompt_kernel'
def f32(x): return '0x%08x' % struct.unpack('<I', struct.pack('<f', x))[0]

class Cfg:
    stamps = 0
    clk = 0
    rot = 7
    wrot = 3
    wtouch = 1
    d0 = 2
    nvb = 95
    nva = 95
    gint = 12
    prio = 1
    probe = -1
    pgrp = 0
    ptype = -1
    nocheck = 0
    prio2 = 0
    pk = 1
    ord0 = 8
    ord1 = 6
    lrd0 = 3
    lrd1 = 1
    e0a = 4
    e0b = 4
    e1a = 4
    e1b = 4
    z0 = 4
    q0 = 10
    g4 = 2
    dper = 1
    gint1 = 8
    xo = 2
    q9 = 2
    q10 = 2
    q11 = 0
    wa1 = 0
    we0 = 0
    pe0 = 0
    pe1 = 2
    pp0 = 0
    pp1 = 0
    f0 = 0
    f1 = 0
    afirst = 1
    kve = 0
    slp = 0
    nomv = 0
    nost = 0
    mvb = 0
    m32 = 0
    m32p = 0
    prg1 = 1
    whit = 0
    u3hit = 0
    aoob = 0
    mp = 0
    ssc = 1
    xr = 1
    asc = 1
    awin = 4
cfg = Cfg()
for a in sys.argv[2:]:
    k_, v_ = a.split('='); setattr(cfg, k_, int(v_))

STP, UNT = 2048, 4096
RTS = 30 * UNT
WS_CB = 64 * RTS
OOBU = 0x7f200000
WS_KVP = 0x880000
WS_G = WS_KVP + 512 * 1024
WS_EP = WS_G + 16384
WS_END = WS_EP + 128
STAMP_OFF = 0x8000000
WS_SIZE = 0x10000000
OOB = 0x7f000000
LDS_BYTES = 163840
L_KV = 2*16384 + 12288
L_RED = 5 * 16384

S_X, S_W, S_B1, S_GW, S_WS, S_DBG, S_W2, S_WO, S_OUT, S_B2 = 8, 12, 16, 20, 24, 28, 32, 36, 40, 44
sWAVE, sW, sRB, sGRP, sTYPE, sROT, sSTP, sW4K, sW2K, sSLAB, sCT, sB7, sSPIN, sN, sN2 = range(48, 63)
sEPS = 63
sC1 = 64
sT0, sT1, sT2, sT3, sT4, sT5 = range(66, 72)
sU = 72
sH = 87
sM21 = 91
sGO = 93
sCK = 16
sSEL0, sSEL1 = 64, 65
sN10 = 23
STREG = [94, 96, 98, 100, 4, 6, 44, 46]
sGI = 3

vLANE, vL16 = 1, 2
vDX, vDW = 3, 7
vDP = 13
vXR = 15
vWA = 17
vP2 = 21
vA = 25
vB2 = 28
vL4 = 12
vWR = 32
vAW = 112
vCS = 160
vAC2 = 176
vWF = 208
vE = 240
vDUM = 0

k = Kern()
slow = []
nst = [0]
SETS = {1: ['st', 'B0', 'B8', 'B12', 'P2', 'r2', 'r11', 'end'],
        2: ['st', 'B0', 'B1', 'B2', 'B3', 'B4', 'B5', 'B6'],
        3: ['st', 'B6', 'B7', 'B8', 'B9', 'B10', 'B11', 'B12'],
        4: ['st', 'P2', 'r0', 'r2', 'r4', 'r6', 'r8', 'r10'],
        5: ['st', 'r10', 'r11', 'r13', 'mm', 'red', 'sto', 'end'],
        6: ['st', 'B12', 'e1', 'e2', 'e3', 'e4', 'P2', 'r0']}
def stx(name):
    if cfg.stamps and name in SETS[cfg.stamps]:
        return [f'{"s_memtime" if cfg.clk else "s_memrealtime"} {sr(STREG[SETS[cfg.stamps].index(name)], 2)}']
    return []
def stamp(name):
    if cfg.stamps and name in SETS[cfg.stamps]:
        k(f'{"s_memtime" if cfg.clk else "s_memrealtime"} {sr(STREG[SETS[cfg.stamps].index(name)], 2)}')
    nst[0] = 8

def side(label, cond):
    k(cond + f'\ns_cbranch_scc1 {label}')
    snap = k.snapshot(); k.track = False
    def end():
        k('s_nop 7')
        k.out.append(label + ':'); k.restore(snap); k.track = True
    return end

def mf(d, a, b, c=None):
    return f'v_mfma_f32_16x16x32_bf16 {vr(d,4)}, {vr(a,4)}, {vr(b,4)}, {vr(d,4) if c is None else c}'

def wait_regs(regs):
    regs = {('v', r) for r in regs}
    l = None
    for i, op in enumerate(k.lg):
        if op['wr'] & regs: l = len(k.lg) - 1 - i
    if l is not None:
        if k.smem_pending: l = 0
        k.waitcnt(lgkm=l)

def emit(x):
    return x() if callable(x) else k(x)
def weave(V, F):
    n = len(V); j = 0
    if n == 0:
        for f in F: emit(f)
        return
    for i, v in enumerate(V):
        tgt = ((i + 1) * len(F) + n - 1) // n
        while j < tgt: emit(F[j]); j += 1
        emit(v)
def weave_int(V, F, step, front=0):
    F = list(F)
    use = [set(Ins(v).rd) | set(Ins(v).wr) for v in V]
    last = -step
    while front and F and not any(getattr(F[0], 'regs', set()) & u for u in use):
        emit(F.pop(0)); front -= 1; last = 0
    for i, v in enumerate(V):
        if F and i - last >= step and not any(getattr(F[0], 'regs', set()) & u for u in use[i:]):
            emit(F.pop(0)); last = i
        emit(v)
    for f in F: emit(f)

def merge_vm(*paths):
    order, cnt, ent = [], {}, {}
    for vm in sorted(paths, key=lambda v: -sum(1 for o in v if o.get('key') or o['wr'])):
        ks = []
        for i, o in enumerate(vm):
            key = o.get('key') or (o['text'] if o['wr'] else None)
            if key is None: continue
            ks.append(key); ent[key] = o
            cnt[key] = min(cnt.get(key, 99), len(vm) - 1 - i)
        if not order: order = ks
        else: assert order[len(order) - len(ks):] == ks, (order, ks)
    out = []
    for key in reversed(order):
        assert cnt[key] >= len(out)
        while len(out) < cnt[key]: out.insert(0, {'id': -1, 'wr': set(), 'text': '', 'redo': False})
        out.insert(0, dict(ent[key]))
    return out
def wait_key(key):
    for i, o in enumerate(k.vm):
        if o.get('key') == key:
            k.waitcnt(vm=len(k.vm) - 1 - i); return

uid = [0]
def addchain(kk, t, r):
    r = list(r)
    if len(r) == 2:
        kk(f'v_add_u32 v{t}, v{r[0]}, v{r[1]}'); return
    if len(r) <= 9:
        parts = [r[:3] + r[6:], r[3:6]]
    else:
        h = (len(r) // 2) | 1
        parts = [r[:h], r[h:]]
    first = [True, True]
    tail = []
    while parts[0] or parts[1]:
        for c in range(2):
            q = parts[c]
            if not q: continue
            if first[c]:
                parts[c] = q[3:]; first[c] = False
                kk(f'v_add3_u32 v{t+c}, v{q[0]}, v{q[1]}, v{q[2]}')
            elif len(q) >= 2:
                parts[c] = q[2:]
                kk(f'v_add3_u32 v{t+c}, v{t+c}, v{q[0]}, v{q[1]}')
            else:
                parts[c] = []; tail.append(q[0])
    if len(tail) == 2:
        kk(f'v_add3_u32 v{t}, v{t}, v{tail[0]}, v{tail[1]}'); tail = []
    if tail: kk(f'v_add3_u32 v{t}, v{t}, v{t+1}, v{tail[0]}')
    else: kk(f'v_add_u32 v{t}, v{t}, v{t+1}')
def checked(texts, regs, T, expect, defer=False):
    uid[0] += 1; u = uid[0]
    def check(kk):
        if expect is None:
            kk(f'v_cmp_eq_u32 vcc, 0, v{regs[0]}')
            return
        addchain(kk, T, regs)
        kk(f'v_cmp_ne_u32 vcc, s{expect}, v{T}')
    if cfg.nocheck and expect is not None: return []
    def fin():
        k(f's_cbranch_vccnz L_slow{u}')
        k.label(f'L_back{u}')
        vm = [dict(x) for x in k.vm]
        while vm and not vm[0]['redo']: vm.pop(0)
        s = Kern()
        s.label(f'L_slow{u}')
        s(f's_sub_u32 s{sSPIN}, s{sSPIN}, 1\ns_cbranch_scc1 L_give{u}\ns_nop 7\ns_nop 3')
        if cfg.slp: s(f's_sleep {cfg.slp}')
        for t in texts: s(t)
        s('s_waitcnt vmcnt(0)')
        check(s)
        s(f's_cbranch_vccnz L_slow{u}')
        for op in vm:
            s(op['text'] if op['redo'] else f'buffer_load_dword v{vDUM}, off, {sr(S_DBG,4)}, 0 offset:4080')
            s.vm = []
        s(f's_branch L_back{u}')
        s.label(f'L_give{u}')
        s(f's_mov_b32 s{sSPIN}, 0\ns_waitcnt vmcnt(0)\ns_branch L_back{u}')
        slow.append(s.text())
    L = []
    check(L.append)
    L.append(fin)
    if defer: return L
    for x in L: emit(x)

def srd_tail(base, size):
    k(f's_mov_b32 s{base+2}, {size}\ns_mov_b32 s{base+3}, 0x20000')

MAP = f'''s_lshr_b32 s{sT2}, s2, 5
v_readfirstlane_b32 s{sWAVE}, v{vE}
s_and_b32 s{sT1}, s2, 1
s_lshl3_add_u32 s{sRB}, s{sT1}, s{sT2}
s_bfe_u32 s{sT1}, s2, 0x20003
s_lshl1_add_u32 s{sROT}, s{sT1}, s{sT2}
s_and_b32 s{sROT}, s{sROT}, {cfg.rot}
s_and_b32 s{sT1}, s2, 6
s_bfe_u32 s{sT2}, s2, 0x10004
s_add_u32 s{sGRP}, s{sT1}, s{sT2}
s_and_b32 s{sT1}, s2, 0x1e
s_cmp_eq_u32 s{sT1}, 0x1e
s_cselect_b32 s{sB7}, 1, 0''' if not cfg.mp else f'''s_lshr_b32 s{sT2}, s2, 7
v_readfirstlane_b32 s{sWAVE}, v{vE}
s_and_b32 s{sT1}, s2, 7
s_lshl1_add_u32 s{sRB}, s{sT1}, s{sT2}
s_bfe_u32 s{sGRP}, s2, 0x30004
s_lshl2_add_u32 s{sROT}, s{sT2}, s{sGRP}
s_mul_i32 s{sT1}, s{sT1}, {cfg.xr}
s_add_u32 s{sROT}, s{sROT}, s{sT1}
s_and_b32 s{sROT}, s{sROT}, {cfg.rot}
s_and_b32 s{sT1}, s2, 0x78
s_cmp_eq_u32 s{sT1}, 0x78
s_cselect_b32 s{sB7}, 1, 0'''
stamp('st')
k(f'''
s_cmp_ge_u32 s2, 256
s_cbranch_scc1 L_end
s_load_dwordx2 {sr(S_X,2)}, s[0:1], 0
s_bfe_u32 s{sTYPE}, s2, 0x10003
s_mul_i32 s{sT0}, s{sTYPE}, 24
s_add_u32 s{sT0}, s{sT0}, 8
s_load_dwordx2 {sr(S_W,2)}, s[0:1], s{sT0}
s_load_dwordx2 {sr(S_WS,2)}, s[0:1], 88
s_load_dwordx2 {sr(S_DBG,2)}, s[0:1], 80
s_load_dwordx2 {sr(S_B1,2)}, s[0:1], 40
s_load_dwordx2 {sr(S_GW,2)}, s[0:1], 64
s_load_dwordx2 {sr(S_W2,2)}, s[0:1], 48
s_load_dwordx2 {sr(S_WO,2)}, s[0:1], 16
s_load_dwordx2 {sr(S_B2,2)}, s[0:1], 56
s_load_dwordx2 {sr(S_OUT,2)}, s[0:1], 72
v_lshrrev_b32 v{vE}, 6, v0
v_and_b32 v{vLANE}, 63, v0
{MAP}
s_and_b32 s{sW}, s{sWAVE}, 3
s_lshl_b32 s{sW4K}, s{sW}, 12
s_lshl_b32 s{sW2K}, s{sW}, 11
v_lshlrev_b32 v{vL16}, 4, v{vLANE}
v_lshrrev_b32 v{vE}, 3, v{vLANE}
v_and_b32 v{vE+1}, 7, v{vLANE}
s_mov_b32 s{S_WS+2}, {hex(WS_SIZE) if cfg.stamps else hex(WS_END)}
s_mov_b32 s{S_WS+3}, 0x20000
s_mov_b32 s{S_DBG+2}, 256
s_mov_b32 s{S_DBG+3}, 0x20000
s_cmp_lt_u32 s{sWAVE}, 4
s_cbranch_scc1 L_G0
''')
snapE = k.snapshot(); nstE = nst[0]

def common_setup(grp):
    srd_tail(S_B1, 2752); srd_tail(S_W2, 1376*1024); srd_tail(S_WO, 512*1024)
    srd_tail(S_B2, 1024); srd_tail(S_OUT, 2048*1024)
    k(f'''
    s_and_b32 s{sT0}, s2, 7
    s_lshr_b32 s{sT1}, s2, 6
    s_lshl2_add_u32 s{sSLAB}, s{sT0}, s{sT1}
    s_bfe_u32 s{sCT}, s2, 0x30003
    s_add_u32 s{sT1}, s{sT1}, s{sCT}
    s_and_b32 s{sT1}, s{sT1}, {cfg.wrot}
    s_lshr_b32 s{sT3}, s{sW}, 1
    s_lshl1_add_u32 s{sT1}, s{sT1}, s{sT3}
    s_lshl_b32 s{sU+11}, s{sT1}, 12
    s_cmp_eq_u32 s{sT1}, 7
    s_cselect_b32 s{sT1}, 0, s{sT1}
    s_mul_i32 s{sU}, s{sT1}, 12288
    v_and_b32 v{vE+2}, 6, v{vE}
    v_xor_b32 v{vE+2}, v{vE+2}, v{vE+1}
    v_lshlrev_b32 v{vE+2}, 4, v{vE+2}
    v_lshl_add_u32 v{vDP}, v{vE}, 10, v{vE+2}
    s_lshl_b32 s{sT0}, s{sCT}, 7
    s_and_b32 s{sT2}, s{sW}, 1
    s_lshl_b32 s{sT2}, s{sT2}, 15
    s_add_u32 s{sT2}, s{sT2}, s{sT0}
    v_add_u32 v{vDP}, s{sT2}, v{vDP}
    v_add_u32 v{vDP+1}, 0x2000, v{vDP}
    v_and_b32 v{vE+2}, 15, v{vLANE}
    v_lshrrev_b32 v{vE+3}, 4, v{vLANE}
    v_lshlrev_b32 v{vE+5}, 3, v{vE+3}
    s_and_b32 s{sT2}, s{sW}, 2
    s_lshl_b32 s{sT2}, s{sT2}, 5
    s_add_u32 s{sT0}, s{sT0}, s{sT2}
    buffer_load_dwordx2 {vr(vB2,2)}, v{vE+5}, {sr(S_B2,4)}, s{sT0} offen
    buffer_load_dwordx2 {vr(vB2+2,2)}, v{vE+5}, {sr(S_B2,4)}, s{sT0} offen offset:32
    v_bfe_u32 v{vE+4}, v{vLANE}, 1, 1
    v_and_b32 v{vE+5}, 3, v{vE}
    v_lshl_add_u32 v{vE+4}, v{vE+5}, 1, v{vE+4}
    v_lshlrev_b32 v{vE+4}, 4, v{vE+4}
    v_and_b32 v{vE+5}, 1, v{vLANE}
    v_lshl_add_u32 v{vE+4}, v{vE+5}, 3, v{vE+4}
    v_lshrrev_b32 v{vE+5}, 2, v{vLANE}
    v_lshl_add_u32 v{vE+5}, v{vE+5}, 7, v{vE+4}
    v_add_u32 v{vE+5}, s{sW4K}, v{vE+5}
    v_xor_b32 v{vP2}, s{sT2}, v{vE+5}
    v_xor_b32 v{vP2+1}, 32, v{vP2}
    v_xor_b32 v{vP2+2}, 64, v{vP2}
    v_xor_b32 v{vP2+3}, 0x60, v{vP2}
    s_lshl1_add_u32 s{sT4}, s{sSLAB}, {grp}
    s_mul_i32 s{sT0}, s{sT4}, {RTS}
    s_and_b32 s{sT1}, s{sW}, 1
    s_lshl_b32 s{sT2}, s{sT1}, 11
    s_add_u32 s{sT0}, s{sT0}, s{sT2}
    s_lshl_b32 s{sT2}, s{sT1}, 10
    v_xor_b32 v{vA}, s{sT2}, v{vL16}
    v_xor_b32 v{vA+1}, 0x400, v{vA}
    v_add_u32 v{vA}, s{sT0}, v{vA}
    v_add_u32 v{vA+1}, s{sT0}, v{vA+1}
    s_lshr_b32 s{sT0}, s{sT4}, 3
    s_mul_i32 s{sT0}, s{sT0}, {RTS}
    s_and_b32 s{sT4}, s{sT4}, 7
    s_lshl1_add_u32 s{sT4}, s{sT4}, s{sT1}
    s_lshl_b32 s{sT4}, s{sT4}, 8
    s_add_u32 s{sT0}, s{sT0}, s{sT4}
    s_add_u32 s{sT0}, s{sT0}, {WS_CB}
    v_lshl_add_u32 v{vA+2}, v{vLANE}, 2, s{sT0}
    s_mov_b32 s{sSPIN}, 0x4000
    s_cmp_lt_u32 s{sW}, 3
    s_cselect_b32 s{sM21}, s{sW4K}, 15360
    s_cselect_b32 s{sM21+1}, 1024, 0
    s_mov_b32 s{sGI}, {grp}
    ''')
    for i in range(1, 11):
        k(f's_add_u32 s{sU+i}, s{sU+i-1}, 24576\ns_sub_u32 s{sT0}, s{sU+i}, {7*12288}\ns_cselect_b32 s{sU+i}, s{sU+i}, s{sT0}')
    for i in range(12, 15):
        k(f's_add_u32 s{sU+i}, s{sU+i-1}, 8192\ns_and_b32 s{sU+i}, s{sU+i}, 0x7fff')
    k(f's_lshl_b32 s{sT3}, s{sT3}, 12\ns_add_u32 s{sU+3}, s{sU+3}, s{sT3}')
    for i in range(4, 11): k(f's_add_u32 s{sU+i}, s{sU+i}, {4096 if i < 7 else 8192}')
    for i in range(11, 15): k(f's_add_u32 s{sU+i}, s{sU+i}, {22*4096}')
    k(f's_cmp_ge_u32 s{sW}, 2\ns_cselect_b32 s{sU+10}, {21*4096}, s{sU+10}')
    k(f's_cmp_eq_u32 s{sW}, 3\ns_cselect_b32 s{sU+10}, {hex(OOBU)}, s{sU+10}')

def ck_off(dst, rt):
    k(f'''
    s_lshr_b32 s{sT4}, s{rt}, 3
    s_sub_u32 s{sT4}, s{rt}, s{sT4}
    s_mul_i32 s{sT4}, s{sT4}, {RTS}
    s_and_b32 s{dst}, s{rt}, 7
    s_lshl_b32 s{dst}, s{dst}, 9
    s_add_u32 s{dst}, s{dst}, {WS_CB}
    s_sub_u32 s{dst}, s{dst}, s{sT4}
    ''')

def xw_addr(rowbase_s, tile_s):
    k(f'''
    v_lshrrev_b32 v{vE+5}, 1, v{vE+2}
    v_xor_b32 v{vE+5}, v{vE+5}, v{vE+3}
    v_lshlrev_b32 v{vE+5}, 4, v{vE+5}
    v_lshl_add_u32 v{vE+5}, v{vE+2}, 7, v{vE+5}
    v_add_u32 v{vXR}, {rowbase_s}, v{vE+5}
    v_xor_b32 v{vXR+1}, 64, v{vXR}
    v_bfe_u32 v{vE+5}, v{vLANE}, 2, 2
    v_lshl_add_u32 v{vE+5}, v{vE+3}, 3, v{vE+5}
    v_lshl_add_u32 v{vE+5}, v{vE+5}, 7, v{vE+4}
    v_xor_b32 v{vWA}, {tile_s}, v{vE+5}
    ''')

tokQ = {}
def item(q):
    L = []
    def add(pre, vo, srd_, so, last=False):
        def f():
            t = k(f'buffer_load_dwordx4 v{vo}, {sr(srd_,4)}, s{so} offen lds')
            if last: tokQ[q] = t; k.vm[-1]['key'] = ('W', q)
        pl = pre.split('\n')
        L.append(lambda: k('\n'.join(pl[-1:] + pl[:-1])))
        L.append(f)
    if q < 8:
        base = (q % 5) * 32768
        hdr = f's_add_u32 s{sT0}, s{sROT}, {q}\ns_and_b32 s{sT0}, s{sT0}, 7\ns_lshl_b32 s{sT1}, s{sT0}, 7\ns_mul_i32 s{sT2}, s{sT0}, s{sSTP}\n'
        for i in range(4):
            add((hdr if i == 0 else '') + f's_add_u32 m0, s{sW4K}, {base + 1024*i}', vDX + i, S_X, sT1)
            u, j = i // 2, i % 2
            add(f's_add_u32 m0, s{sW2K}, {base + 16384 + 8192*u + 1024*j}', vDW + 2*u + j, S_W, sT2, i == 3)
    elif q < 10:
        for b in range(4):
            s = 4*(q - 8) + b
            hdr = f's_add_u32 s{sT0}, s{sROT}, {s}\ns_and_b32 s{sT0}, s{sT0}, 7\ns_mul_i32 s{sT2}, s{sT0}, s{sSTP}\n'
            for j in range(2):
                add((hdr if j == 0 else '') + f's_add_u32 m0, s{sW2K}, {98304 + 8192*s + 1024*j}', vDW + (0 if cfg.u3hit else 4) + j, S_W, sT2, b == 3 and j == 1)
    else:
        r = q - 10
        pos = WPOS[r] * 16384
        for j in range(4):
            hdr = {0: f's_lshl4_add_u32 s{sT4}, s{sU + r}, {0 if r < 11 else hex((-22*65536) & 0xffffffff)}\n' if not cfg.whit else f's_mov_b32 s{sT4}, {0 if cfg.whit == 1 else hex(OOB)}\n', 2: f's_add_u32 s{sT4}, s{sT4}, 0x4000\n'}.get(j, '')
            m = f's_add_u32 m0, s{sW4K}, {pos + 1024*j}'
            if r == 10: m = f's_add_u32 m0, s{sM21}, {pos}' if j == 0 else f's_add_u32 m0, m0, s{sM21+1}'
            add(hdr + m, vDP + (j & 1), S_W2 if r < 11 or cfg.whit else S_WO, sT4, j == 3)
    return L

WPOS = [0, 1, 2, 3, 4, 5, 6, 7, 0, 1, 2, 3, 8, 9, 4]
p2w = [0]
def rdP2(dst, r):
    pos = WPOS[r] * 16384
    L = []
    if pos >> 16 != p2w[0]:
        L = [f'v_add_u32 v{vP2+c}, {hex((((pos >> 16) - p2w[0]) << 16) & 0xffffffff)}, v{vP2+c}' for c in range(4)]
        p2w[0] = pos >> 16
    return L + [f'ds_read_b64_tr_b16 {vr(dst + 4*c + 2*h, 2)}, v{vP2+c} offset:{(pos % 65536) + 2048*h}' for c in range(4) for h in range(2)]
def moves(rs):
    L = []
    for r in rs:
        L += rdP2(vWR + 16*r, r)
    return L

Atext = {}
def areg(r, j): return vAW + 8*r + 4*j if r < 6 else (vWR + 8*(r - 6) + 4*j)
def loadA(r):
    L = []
    def mk(t, key):
        Atext[key] = t
        def f():
            k.redo = True; k(t if cfg.asc == 1 else t.replace(' sc1', {0: '', 2: ' nt', 3: ' sc0'}[cfg.asc])); k.redo = False
            k.vm[-1]['key'] = key; k.vm[-1]['text'] = t
        f.regs = set(Ins(t).wr)
        return f
    for j in range(2):
        L.append(mk(f'buffer_load_dwordx4 {vr(areg(r, j), 4)}, v{vA+j}, {sr(S_WS,4)}, s{sU+r if not cfg.aoob else sU+10} offen sc1', (r, j)))
    if cfg.aoob != 3: L.append(mk(f'buffer_load_dword v{vCS+r}, v{vA+2}, {sr(S_WS,4)}, s{sU+r if not cfg.aoob else sU+10} offen sc1', (r, 2)))
    else: Atext[(r, 2)] = ''
    return L

def gelu(acc, out, T, C0, pk):
    L = []
    p = lambda r: vr(r, 2)
    if pk:
        for i in range(0, 16, 2): L.append(f'v_pk_mul_f32 {p(T+i)}, {p(acc+i)}, {p(acc+i)}')
        for i in range(0, 16, 2): L.append(f'v_pk_fma_f32 {p(T+i)}, {p(T+i)}, {sr(sC1,2)}, {vr(C0,2)}')
        for i in range(0, 16, 2): L.append(f'v_pk_mul_f32 {p(T+i)}, {p(acc+i)}, {p(T+i)}')
        for i in range(16): L.append(f'v_exp_f32 v{T+i}, v{T+i}')
        for i in range(0, 16, 2): L.append(f'v_pk_add_f32 {p(T+i)}, {p(T+i)}, 1.0 op_sel_hi:[1,0]')
        for i in range(16): L.append(f'v_rcp_f32 v{T+i}, v{T+i}')
        for i in range(0, 16, 2): L.append(f'v_pk_mul_f32 {p(T+i)}, {p(acc+i)}, {p(T+i)}')
    else:
        for i in range(16): L.append(f'v_mul_f32 v{T+i}, v{acc+i}, v{acc+i}')
        for i in range(16): L.append(f'v_fma_f32 v{T+i}, v{T+i}, s{sC1}, v{C0}')
        for i in range(16): L.append(f'v_mul_f32 v{T+i}, v{acc+i}, v{T+i}')
        for i in range(16): L.append(f'v_exp_f32 v{T+i}, v{T+i}')
        for i in range(16): L.append(f'v_add_f32 v{T+i}, 1.0, v{T+i}')
        for i in range(16): L.append(f'v_rcp_f32 v{T+i}, v{T+i}')
        for i in range(16): L.append(f'v_mul_f32 v{T+i}, v{acc+i}, v{T+i}')
    for i in range(0, 16, 2): L.append(f'v_cvt_pk_bf16_f32 v{out+i//2}, v{T+i}, v{T+i+1}')
    return L

def phi(acc, out, T, C0, pk):
    L = []
    p = lambda r: vr(r, 2)
    if pk:
        for i in range(0, 16, 2): L.append(f'v_pk_fma_f32 {p(T+i)}, {p(acc+i)}, {sr(sC1,2)}, {vr(C0,2)}')
    else:
        for i in range(16): L.append(f'v_fma_f32 v{T+i}, v{acc+i}, s{sC1}, v{C0}')
    for i in range(16): L.append(f'v_exp_f32_e64 v{T+i}, v{T+i} clamp')
    for i in range(16): L.append(f'v_max_f32 v{acc+i}, s{sEPS}, v{acc+i}')
    if pk:
        for i in range(0, 16, 2): L.append(f'v_pk_add_f32 {p(T+i)}, {p(T+i)}, {p(acc+i)}')
    else:
        for i in range(16): L.append(f'v_add_f32 v{T+i}, v{T+i}, v{acc+i}')
    for i in range(0, 16, 2): L.append(f'v_cvt_pk_bf16_f32 v{out+i//2}, v{T+i}, v{T+i+1}')
    return L

def st4(src, s_off, imm):
    return f'buffer_store_dwordx4 {vr(src,4)}, v{vL16}, {sr(S_WS,4)}, s{s_off} offen offset:{imm} sc1'

def strec(src, s_off, imm, T, vck=None):
    L = []
    addchain(L.append, T, range(src, src + 8))
    L.insert(1, st4(src, s_off, imm)); L.insert(3, st4(src + 4, s_off, imm + 1024))
    L.append(f'v_sub_u32 v{T}, s{sN}, v{T}')
    L.append(f'buffer_store_dword v{T}, v{vck or vL4}, {sr(S_WS,4)}, s{s_off} offen offset:{imm // 8} sc1')
    if cfg.nost: L = [x for x in L if not x.startswith('buffer')]
    if not cfg.ssc: L = [x.replace(' sc1', '') for x in L]
    return L

def get_epoch(reg):
    checked([DBTEXT(reg)], [reg], None, None)
    k(f'v_readfirstlane_b32 s{sN}, v{reg}\ns_cmp_eq_u32 s{sW}, 3\ns_cselect_b32 s{sN10}, 0, s{sN}\ns_lshl_b32 s{sN2}, s{sN}, 1')
def DBTEXT(reg): return f'buffer_load_dword v{reg}, off, {sr(S_DBG,4)}, 0 sc1'

def consts(typ, C0):
    if typ == 'A':
        c1, c0 = 1.4426950408889634, -1e-6*1.4426950408889634
    else:
        c1, c0 = -2.302208198*0.044715, -2.302208198
    k(f'''
    s_mov_b32 s{sC1}, {f32(c1)}
    s_mov_b32 s{sC1+1}, {f32(c1)}
    s_mov_b32 s{sEPS}, {f32(1e-6)}
    v_mov_b32 v{C0}, {f32(c0)}
    v_mov_b32 v{C0+1}, {f32(c0)}
    ''')

def unpack4(dst, src):
    return [f'v_and_b32 v{dst+3}, 0xffff0000, v{src+1}', f'v_lshlrev_b32 v{dst+2}, 16, v{src+1}',
            f'v_and_b32 v{dst+1}, 0xffff0000, v{src}', f'v_lshlrev_b32 v{dst}, 16, v{src}']

def phase2(g, vmA, nload, wnext):
    k.label(f'L_P2_{g}')
    k('s_nop 1')
    k.vm = merge_vm(k.vm, vmA); k.lg = []
    stamp('P2')
    ord_, lrd = (cfg.ord0, cfg.lrd0) if g == 0 else (cfg.ord1, cfg.lrd1)
    k(f's_setprio {cfg.pp0 if g == 0 else cfg.pp1}')
    BUF = [vWF + 16, vWF, vAW, vAW + 16, vAW + 32]
    def wreg(r): return vWR + 16*r if r < 5 else BUF[r % 5]
    FREE = {5: -1, 6: -1, 7: 1, 8: 3, 9: 5, 10: 5, 11: 6, 12: 7, 13: 8, 14: 9}
    zr = cfg.z0
    def more(r):
        nonlocal nload, wnext
        L = []
        while nload < 15:
            need = (nload - 6) // 2 if nload >= 6 else -1
            if need > r or nload > r + cfg.awin: break
            if nload >= 11 and r < ord_: break
            if nload >= 7 and r < lrd: break
            L += loadA(nload)
            nload += 1
        for i in range(cfg.dper):
            if wnext < 15:
                L += wpairs(wnext, wnext + 1)
                wnext += 1
        return L
    nrd = [5]
    def reads(r):
        L = []
        while nrd[0] < 15 and FREE[nrd[0]] <= r and (nrd[0] < 8 or r >= zr) and (not L or nrd[0] <= r + 3):
            L += rdP2(wreg(nrd[0]), nrd[0]); nrd[0] += 1
        return L
    def chk(r): return checked([Atext[(r, j)] for j in range(3)], [vCS + r] + list(range(areg(r, 0), areg(r, 0) + 8)), vE + 8, sN10 if r == 10 else sN, True)
    G2 = vE + 12
    BB = vE
    gadr = f'''s_lshl1_add_u32 s{sT0}, s{sSLAB}, {g}
    s_lshl_b32 s{sGO}, s{sT0}, 8
    s_add_u32 s{sGO}, s{sGO}, {WS_G}
    s_and_b32 s{sT1}, s{sW}, 1
    s_lshl_b32 s{sT2}, s{sT1}, 7
    v_and_b32 v3, 15, v{vLANE}
    v_lshlrev_b32 v4, 3, v3
    v_add_u32 v4, s{sT2}, v4
    v_xor_b32 v5, 0x80, v4'''.split('\n')
    gt = [f'buffer_load_dwordx2 {vr(G2+2*j,2)}, v{4+j}, {sr(S_WS,4)}, s{sGO} offen sc1' for j in range(2)]
    def redo(t):
        def f():
            k.redo = True; k(t); k.redo = False
        return f
    late = f'''s_lshl1_add_u32 s{sT0}, s{sT0}, s{sT1}
    s_lshl_b32 s{sT5}, s{sT0}, 14
    s_lshl_b32 s{sT0}, s{sCT}, 7
    s_add_u32 s{sT5}, s{sT5}, s{sT0}
    s_and_b32 s{sT0}, s{sW}, 2
    s_lshl_b32 s{sT0}, s{sT0}, 5
    s_add_u32 s{sT5}, s{sT5}, s{sT0}
    v_lshlrev_b32 v3, 10, v3
    v_and_b32 v6, 16, v{vLANE}
    v_lshl_add_u32 v3, v6, 1, v3
    v_lshrrev_b32 v6, 5, v{vLANE}
    v_lshl_add_u32 v3, v6, 4, v3
    s_xor_b32 s{sT1}, s{sWAVE}, 1
    s_xor_b32 s{sT2}, s{sWAVE}, 2
    s_xor_b32 s{sT3}, s{sWAVE}, 3
    s_mul_i32 s{sT0}, s{sWAVE}, 6144
    s_mul_i32 s{sT1}, s{sT1}, 6144
    s_mul_i32 s{sT2}, s{sT2}, 6144
    s_mul_i32 s{sT3}, s{sT3}, 6144
    v_add_u32 v10, {L_RED}, v{vL16}
    v_add_u32 v6, s{sT0}, v10
    v_add_u32 v7, s{sT1}, v10
    v_add_u32 v8, s{sT2}, v10
    v_add_u32 v9, s{sT3}, v10'''.split('\n')
    order = [(pi, e_) for pi in (1, 2, 3, 0) for e_ in range(2)]
    def scale(i):
        pi, e_ = order[i]
        return [f'v_mul_f32 v{vAC2+8*pi+4*e_+j}, v{G2 + 2*(pi & 1)}, v{vAC2+8*pi+4*e_+j}' for j in range(4)]
    for f in more(-1): emit(f)
    for f in chk(0): emit(f)
    for r in range(15):
        stamp(f'r{r}')
        F = (more(r - 1) if r > 0 else []) + reads(r - 1)
        if r == 0: F = unpack4(BB, vB2) + unpack4(BB + 4, vB2 + 2) + F
        if r == 3: F += gadr + [redo(t) for t in gt]
        if r == 4: F += late[:12]
        if r == 12: F += late[12:]
        if r == 9: F += checked(gt, [G2+1, G2+3], vE + 8, sN2, True)
        if r == 10: F = [f'v_sub_f32 v{G2}, 1.0, v{G2}', f'v_sub_f32 v{G2+2}, 1.0, v{G2+2}'] + F
        if r < 14:
            assert nload > r + 1
            F += chk(r + 1)
        M = []
        for pi, e_ in order:
            c = None
            if r == 0: c = vr(BB + 4*e_, 4) if pi == 0 else '0'
            M.append(mf(vAC2 + 8*pi + 4*e_, wreg(r) + 4*(2*(pi >> 1) + e_), areg(r, pi & 1), c))
        wait_regs([wreg(r) + i for i in range(16)])
        if cfg.m32p:
            M = [x for c in range(4) for x in (f'v_mfma_f32_32x32x16_bf16 {vr(vAC2+16*(1-(c>>1)),16)}, {vr(wreg(r)+4*c,4)}, {vr(areg(r, c&1),4)}, {vr(vAC2+16*(1-(c>>1)),16) if r or c & 1 else 0}', '')]
        j = 0
        for i, m in enumerate(M):
            if cfg.m32p and r in (10, 11):
                k(m)
                tgt = ((i + 1) * len(F) + 7) // 8
                while j < tgt: emit(F[j]); j += 1
                if r == 10 and i >= 6:
                    for t in scale(2*i-10) + scale(2*i-9): k(t)
                if r == 11 and i in (1, 3):
                    for t in scale((i-1)*3) + scale((i-1)*3+1): k(t)
                continue
            if r == 11 and i < 4:
                for t in scale(4 + i): k(t)
            k(m)
            if r == 10 and i >= 4:
                for t in scale(i - 4): k(t)
            tgt = ((i + 1) * len(F) + 7) // 8
            if r == 10: tgt = min(len(F), ((i + 1) * len(F) + 4) // 5) if i < 7 else len(F)
            if r == 11: tgt = 0 if i < 3 else ((i - 2) * len(F) + 4) // 5
            while j < tgt: emit(F[j]); j += 1
        if r == zr:
            assert wnext == 15 and nrd[0] == 8
            for q in range(24, 9, -1): wait_key(('W', q))
            k.wait_lg_all()
            k('s_barrier')
    stamp('mm')
    for pi in range(1, 4):
        for h in range(2):
            k(f'ds_write_b128 v{6+pi}, {vr(vAC2 + 8*pi + 4*h, 4)} offset:{(pi-1)*2048 + 1024*h}')
    k.wait_lg_all()
    k('s_barrier')
    stamp('red')
    R = vAW
    for p in range(3):
        for h in range(2):
            k(f'ds_read_b128 {vr(R + 8*p + 4*h, 4)}, v6 offset:{p*2048 + 1024*h}')
    for p in range(3):
        for i in range(0, 8, 2):
            k(f'v_pk_add_f32 {vr(vAC2+i,2)}, {vr(vAC2+i,2)}, {vr(R+8*p+i,2)}')
    for i in range(4): k(f'v_cvt_pk_bf16_f32 v{vE+i}, v{vAC2+2*i}, v{vAC2+2*i+1}')
    k(f'v_permlane16_swap_b32 v{vE}, v{vE+2}\nv_permlane16_swap_b32 v{vE+1}, v{vE+3}')
    k(f'buffer_store_dwordx4 {vr(vE,4)}, v3, {sr(S_OUT,4)}, s{sT5} offen')
    if g == 1: k('s_branch L_fin' if cfg.stamps else 's_endpgm')

k(f'''
v_lshrrev_b32 v{vE+2}, 1, v{vE}
v_xor_b32 v{vE+2}, v{vE+1}, v{vE+2}
v_lshlrev_b32 v{vE+2}, 4, v{vE+2}
s_lshl2_add_u32 s{sT1}, s{sRB}, s{sW}
s_lshl_b32 s{sT1}, s{sT1}, 15
v_lshl_add_u32 v{vDX}, v{vE}, 10, v{vE+2}
v_add_u32 v{vDX}, s{sT1}, v{vDX}
v_xor_b32 v{vDX+1}, 64, v{vDX}
v_add_u32 v{vDX+1}, 0x2000, v{vDX+1}
v_add_u32 v{vDX+2}, 0x4000, v{vDX}
v_add_u32 v{vDX+3}, 0x4000, v{vDX+1}
v_and_b32 v{vE+2}, 2, v{vE}
v_xor_b32 v{vE+2}, v{vE+1}, v{vE+2}
v_lshlrev_b32 v{vE+2}, 4, v{vE+2}
v_xor_b32 v{vE+3}, 64, v{vE+2}
s_lshl_b32 s{sT3}, s{sGRP}, 7
s_add_u32 s{sT4}, s{sT3}, 1024
s_mul_i32 s{sT3}, s{sT3}, 3
s_movk_i32 s{sT1}, 3072
s_movk_i32 s{sT5}, 0x400
s_cmp_eq_u32 s{sTYPE}, 1
s_cselect_b32 s{sT1}, 2752, s{sT1}
s_cselect_b32 s{sT3}, s{sT3}, s{sT4}
s_cselect_b32 s{sT4}, 0x80, s{sT5}
s_movk_i32 s{sT5}, 0xfc00
s_cselect_b32 s{sT5}, 0x100, s{sT5}
s_mov_b32 s{S_W+2}, 0x180000
s_cselect_b32 s{S_W+2}, {512*2752}, s{S_W+2}
s_cmp_eq_u32 s{sB7}, 1
s_cselect_b32 s{sT4}, {hex(OOB)}, s{sT4}
s_cselect_b32 s{sT5}, {hex(OOB)}, s{sT5}
s_cselect_b32 s{sT2}, 24, 0
s_lshl_b32 s{sT0}, s{sW}, 4
v_add_u32 v{vE+4}, s{sT0}, v{vE}
v_mul_lo_u32 v{vE+4}, v{vE+4}, s{sT1}
s_lshl_b32 s{sSTP}, s{sT1}, 6
s_lshl3_add_u32 s{sT0}, s{sT1}, s{sT3}
v_add3_u32 v{vDW}, v{vE+4}, v{vE+2}, s{sT3}
v_add3_u32 v{vDW+1}, v{vE+4}, v{vE+3}, s{sT0}
v_add_u32 v{vDW+2}, s{sT4}, v{vDW}
v_add_u32 v{vDW+3}, s{sT4}, v{vDW+1}
v_add_u32 v{vDW+4}, s{sT5}, v{vDW}
v_add_u32 v{vDW+5}, s{sT5}, v{vDW+1}
v_and_b32 v{vE+2}, 64, v{vE+2}
v_and_b32 v{vE+3}, 64, v{vE+3}
v_lshlrev_b32 v{vE+2}, s{sT2}, v{vE+2}
v_lshlrev_b32 v{vE+3}, s{sT2}, v{vE+3}
v_and_b32 v{vE+2}, 0x40000000, v{vE+2}
v_and_b32 v{vE+3}, 0x40000000, v{vE+3}
v_add_u32 v{vDW}, v{vE+2}, v{vDW}
v_add_u32 v{vDW+1}, v{vE+3}, v{vDW+1}
s_mov_b32 s{S_X+2}, 0x200000
s_mov_b32 s{S_X+3}, 0x20000
s_mov_b32 s{S_W+3}, 0x20000
''')
for f in item(0): f()
GF = vAC2
GA = vE + 8
e = side('L_nogf', f's_cmp_eq_u32 s{sB7}, 0')
srd_tail(S_GW, 1024)
k(f'v_and_b32 v{vE+2}, 48, v{vLANE}')
for s in range(8):
    k(f's_add_u32 s{sT0}, s{sROT}, {s}\ns_and_b32 s{sT0}, s{sT0}, 7\ns_lshl_b32 s{sT0}, s{sT0}, 7')
    for kk in range(2):
        k(f'buffer_load_dwordx4 {vr(GF + 8*s + 4*kk, 4)}, v{vE+2}, {sr(S_GW,4)}, s{sT0} offen offset:{64*kk}')
e()
for q in range(1, cfg.d0):
    for f in item(q): f()
common_setup(1)
xw_addr(f's{sW4K}', '0')
CI = vAW + 48
k(f'''
v_add_u32 v{vWA}, 0x18000, v{vWA}
v_xor_b32 v{vWA+1}, 32, v{vWA}
v_xor_b32 v{vWA+2}, 64, v{vWA}
v_xor_b32 v{vWA+3}, 0x60, v{vWA}
v_lshlrev_b32 v{vE+5}, 3, v{vE+3}
s_mul_i32 s{sT0}, s{sGRP}, 384
s_cmp_eq_u32 s{sTYPE}, 1
s_cselect_b32 s{sT0}, s{sT0}, {hex(OOB)}
''')
for c in range(4):
    k(f'buffer_load_dwordx2 {vr(CI + 4*c, 2)}, v{vE+5}, {sr(S_B1,4)}, s{sT0} offen offset:{256 + 32*c}')
k(f'''
s_lshl2_add_u32 s{sT0}, s{sRB}, s{sW}
''')
ck_off(sCK, sT0)
k(f'''
s_mul_i32 s{sH}, s{sT0}, {RTS}
s_lshl_b32 s{sGO}, s{sT0}, 8
s_add_u32 s{sGO}, s{sGO}, {WS_G}
s_mul_i32 s{sT0}, s{sGRP}, {3*UNT}
s_add_u32 s{sT0}, s{sT0}, {2*UNT}
s_mul_i32 s{sT1}, s{sGRP}, {UNT}
s_add_u32 s{sT1}, s{sT1}, {22*UNT}
s_cmp_eq_u32 s{sTYPE}, 1
s_cselect_b32 s{sT0}, s{sT0}, s{sT1}
s_add_u32 s{sH}, s{sH}, s{sT0}
s_cmp_eq_u32 s{sB7}, 1
s_cselect_b32 s{sH}, {hex(OOB)}, s{sH}
s_cmp_eq_u32 s{sTYPE}, 1
s_cselect_b32 s{sEPS}, 0, {f32(1e-6)}
''')
def xreg(t, rt): return vWR + 8*t + 4*rt
def gate_mm(s):
    e = side(f'L_ng{s}', f's_cmp_eq_u32 s{sB7}, 0')
    k.wait_lg_all()
    for kk in range(2):
        for rt in range(2):
            k(mf(GA + 4*rt, GF + 8*s + 4*kk, xreg(2*s + kk, rt), '0' if s == 0 and kk == 0 else None))
    e()
STREAM = []
NW1 = 4 + cfg.q9 + cfg.q10 + cfg.q11
assert 4 + cfg.q9 + cfg.q10 >= 8 and cfg.q9 >= 1
for q in range(cfg.d0, 10 + NW1): STREAM += item(q)
done = [8*cfg.d0]
LIM = [40, 40, 48, 56, 64, 72, 80, 88, 96, 108, 120, 132]
def take(i):
    n = min(LIM[i], done[0] + (cfg.q0 if i < 7 else {9: 4*cfg.q9, 10: 4*cfg.q10, 11: 4*cfg.q11}.get(i, 8))) - done[0]
    done[0] += n
    r = STREAM[:2*n]; del STREAM[:2*n]
    return r
win = 0
for s in range(8):
    k.wait_vm_tok(tokQ[s + (s == 7)])
    if cfg.xo >= 2 and s > 0: k.waitcnt(lgkm=4)
    else: k.wait_lg_all()
    k('s_barrier')
    stamp(f'B{s}')
    w = ((s % 5) * 32768) >> 16
    if w != win:
        k(f'v_add_u32 v{vXR}, {hex(((w - win) << 16) & 0xffffffff)}, v{vXR}\nv_add_u32 v{vXR+1}, {hex(((w - win) << 16) & 0xffffffff)}, v{vXR+1}')
        win = w
    if s == 3: k(DBTEXT(vE+7))
    F = take(s)
    R = [f'ds_read_b128 {vr(xreg(2*s+kk, rt), 4)}, v{vXR+kk} offset:{((s % 5) * 32768) % 65536 + 2048*rt}' for kk in range(2) for rt in range(2)]
    if s == 2:
        for c in range(4): R += unpack4(CI + 4*c, CI + 4*c)
    if s == 3: R += [f'v_add_f32 v{CI+i}, s{sEPS}, v{CI+i}' for i in range(16)]
    if cfg.xo == 1:
        for r in R[:4]: k(r)
        weave(F, R[4:])
    elif cfg.xo == 2:
        weave(F, R[4:])
        for r in R[:4]: k(r)
    else:
        for f in F[:2]: f()
        weave(F[2:], R)
    if s >= 1: gate_mm(s - 1)
    if s == 6: get_epoch(vE+7)
gate_mm(7)
e = side('L_nogate', f's_cmp_eq_u32 s{sB7}, 0')
k(f'''
v_cmp_gt_u32 vcc, 16, v{vLANE}
v_cndmask_b32 v{vE}, v{GA+4}, v{GA}, vcc
v_mul_f32 v{vE}, {f32(-1.4426950408889634)}, v{vE}
v_exp_f32 v{vE}, v{vE}
v_lshlrev_b32 v{vE+2}, 3, v{vLANE}
v_add_f32 v{vE}, 1.0, v{vE}
v_mov_b32 v{vE+1}, s{sN}
v_rcp_f32 v{vE}, v{vE}
s_mov_b32 exec_hi, 0
buffer_store_dwordx2 {vr(vE,2)}, v{vE+2}, {sr(S_WS,4)}, s{sGO} offen sc1
s_mov_b32 exec_hi, -1
''')
e()
POOL = [vWF + 4*i for i in range(8)] + [vE + 4*i for i in range(4)]
def wfrag(t, c): return POOL[(4*t + c) % 12]
def w2reads(t):
    return [f'ds_read_b64_tr_b16 {vr(wfrag(t, c) + 2*h, 2)}, v{vWA+c} offset:{4096*t + 512*h}' for c in range(4) for h in range(2)]
k.wait_lg_all()
for r in w2reads(0) + w2reads(1): k(r)
assert done[0] >= 80
k(f'v_lshl_add_u32 v{vL4}, v{vLANE}, 2, s{sCK}')
k('s_barrier')
stamp('B8')
k(f's_setprio {cfg.prg1}')
MV = {0: (), 1: (0, 1), 2: (2, 3), 3: (4,)}
for t in range(16):
    if t in (4, 8, 12):
        k.wait_vm_tok(tokQ[{4: 11, 8: 13, 12: 14}[t]])
        if t > 4: wait_regs(range(vWR + 16*MV[t//4 - 1][0], vWR + 16*MV[t//4 - 1][-1] + 16))
        k('s_barrier')
        stamp(f'B{8 + t//4}')
    if t % 4 == 0:
        D = take(8 + t//4)
        nd = 2*((len(D) + 7) // 8)
        Mv = moves(MV[t//4])
        if cfg.nomv & 2: Mv = [x for x in Mv if not x.startswith('ds_')]
    R = w2reads(t + 2) if t + 2 < 16 else []
    X = D[nd*(t%4):nd*(t%4)+nd]
    nm = (len(Mv) + 2) // 3
    Y = Mv[nm*(t%4):nm*(t%4)+nm]
    Z = []
    for i in range(4): Z += R[2*i:2*i+1] + X[(i*len(X)+3)//4:((i+1)*len(X)+3)//4] + R[2*i+1:2*i+2] + Y[(i*len(Y)+3)//4:((i+1)*len(Y)+3)//4]
    R = Z
    wait_regs([wfrag(t, c) + i for c in range(4) for i in range(4)])
    M = [mf(vAC2 + ((c >> 1)*2 + rt)*8 + (c & 1)*4, wfrag(t, c), xreg(t, rt), vr(CI + 4*c, 4) if t == 0 else None) for c in range(4) for rt in range(2)]
    if cfg.m32: M = [f'v_mfma_f32_32x32x16_bf16 {vr(vAC2+16*(c&1),16)}, {vr(wfrag(t, c),4)}, {vr(xreg(t, c>>1),4)}, {vr(vAC2+16*(c&1),16) if t or c > 1 else 0}' for c in range(4)]
    j = 0
    for i, m in enumerate(M):
        k(m)
        tgt = ((i + 1) * len(R) + len(M) - 1) // len(M)
        while j < tgt: emit(R[j]); j += 1
assert not STREAM
k.wait_vm_tok(tokQ[17])
k.wait_lg_all()
k('s_barrier')
stamp('B12')
k(f's_setprio {cfg.pe1}')
k(f's_cmp_eq_u32 s{sTYPE}, 1\ns_cbranch_scc1 L_G1B')
snap1 = k.snapshot(); nst1 = nst[0]
C0_1 = 8
def early(n): return [f for r in range(n) for f in loadA(r)]
def wpairs(lo, hi):
    L = []
    for r in range(lo, hi):
        it = item(10 + r)
        for i in range(0, 8, 2): L.append(lambda a=it[i], b=it[i+1]: (a(), b()))
    return L
def fill(n, lo, hi): return early(n) + wpairs(lo, hi) if cfg.afirst else wpairs(lo, hi) + early(n)
W0 = NW1 + cfg.wa1
consts('A', C0_1)
GG = 4
gtexts = [f'buffer_load_dwordx2 {vr(GG+2*rt,2)}, v3, {sr(S_WS,4)}, s{sGO} offen offset:{128*rt} sc1' for rt in range(2)]
k(f'v_and_b32 v3, 15, v{vLANE}\nv_lshlrev_b32 v3, 3, v3')
for t in gtexts: k(t)
PQ = vAW + 32
assert cfg.e1a <= 4
V = stx('e1') + phi(vAC2, PQ, vE, C0_1, cfg.pk) + phi(vAC2 + 16, PQ + 8, vE, C0_1, cfg.pk) + stx('e2')
weave_int(V, fill(cfg.e1a, NW1, W0), cfg.gint1, cfg.f1)
k(f'''
v_lshlrev_b32 v10, 3, v{vLANE}
v_lshrrev_b32 v11, 4, v{vLANE}
v_lshlrev_b32 v11, 3, v11
''')
checked(gtexts, [GG+1, GG+3], vE, sN2)
k('s_barrier')
stamp('e3')
KV, ZZ = vE, vE + 8
for c in range(4):
    k(f'ds_read_b64 {vr(ZZ+2*c,2)}, v11 offset:{L_KV + 2048 + 32*c}')
    k(f'ds_read_b64 {vr(KV+2*c,2)}, v10 offset:{L_KV + 512*c}')
DEN = vWF
def idx(c, rt): return ((c >> 1)*2 + rt)*2 + (c & 1)
for c in range(4):
    for rt in range(2):
        i = idx(c, rt)
        k(f'v_mfma_f32_16x16x16_bf16 {vr(DEN+4*i,4)}, {vr(ZZ+2*c,2)}, {vr(PQ+2*i,2)}, 0')
for c in range(4):
    for rt in range(2):
        i = idx(c, rt)
        k(f'v_mfma_f32_16x16x16_bf16 {vr(vAC2+4*i,4)}, {vr(KV+2*c,2)}, {vr(PQ+2*i,2)}, 0')
for i in range(8): k(f'v_add_f32 v{DEN+4*i}, s{sEPS}, v{DEN+4*i}')
for i in range(8): k(f'v_rcp_f32 v{DEN+4*i}, v{DEN+4*i}')
for i in range(8): k(f'v_mul_f32 v{DEN+4*i}, v{DEN+4*i}, v{GG + 2*((i >> 1) & 1)}')
OO = PQ
stamp('e4')
for f in range(4):
    for i in (2*f, 2*f + 1):
        for h in range(2):
            k(f'v_pk_mul_f32 {vr(vAC2+4*i+2*h,2)}, {vr(vAC2+4*i+2*h,2)}, {vr(DEN+4*i,2)} op_sel_hi:[1,0]')
    for j in range(4): k(f'v_cvt_pk_bf16_f32 v{OO+4*f+j}, v{vAC2+8*f+2*j}, v{vAC2+8*f+2*j+1}')
    if f & 1:
        for t in strec(OO + 4*f - 4, sH, STP*(f >> 1), vE + 2*f): k(t)
for r in range(cfg.e1a, max(cfg.e1a, cfg.e1b)):
    for f in loadA(r): f()
k('s_branch L_P2_1')
vmA = [dict(x) for x in k.vm]
k.label('L_G1B')
k.restore(snap1); nst[0] = nst1
consts('B', C0_1)
V = stx('e1') + gelu(vAC2, vWF, vE, C0_1, cfg.pk) + stx('e2') + strec(vWF, sH, 0, vWF + 16) + stx('e3')
V += gelu(vAC2 + 16, vWF + 8, vE, C0_1, cfg.pk) + stx('e4') + strec(vWF + 8, sH, STP, vWF + 18)
weave_int(V, fill(cfg.e1b, NW1, W0), cfg.gint1, cfg.f1)
for r in range(cfg.e1b, max(cfg.e1a, cfg.e1b)):
    for f in loadA(r): f()
phase2(1, vmA, max(cfg.e1a, cfg.e1b), 15)

k.label('L_G0')
k.restore(snapE); nst[0] = nstE; tokQ.clear(); p2w[0] = 0
k(f's_or_b32 s{sT5}, s2, s{sWAVE}')
e = side('L_noclr', f's_cmp_lg_u32 s{sT5}, 0')
k(f'''
s_mov_b32 s{sT0}, {WS_EP}
buffer_load_dword v{vE+8}, off, {sr(S_WS,4)}, s{sT0} sc1
s_waitcnt vmcnt(0)
v_add_u32 v{vE+8}, 2, v{vE+8}
v_or_b32 v{vE+8}, 1, v{vE+8}
s_mov_b64 exec, 1
buffer_store_dword v{vE+8}, off, {sr(S_DBG,4)}, 0 sc1
buffer_store_dword v{vE+8}, off, {sr(S_WS,4)}, s{sT0} sc1
s_mov_b64 exec, -1
''')
e()
common_setup(0)
vEP, C0_0 = 4, 6
def wtouch():
    if not cfg.wtouch: return
    k(f'''
    s_mul_i32 s{sT0}, s2, {43*128}
    s_lshl_b32 s{sT2}, s2, 11
    s_cmp_eq_u32 s{sW}, 1
    s_cselect_b32 s{sT0}, s{sT0}, {hex(OOB)}
    s_cmp_eq_u32 s{sW}, 2
    s_cselect_b32 s{sT2}, s{sT2}, {hex(OOB)}
    v_min_u32 v{vE+6}, 42, v{vLANE}
    v_lshlrev_b32 v{vE+6}, 7, v{vE+6}
    v_and_b32 v{vE+7}, 0x780, v{vE+6}
    buffer_load_dword v10, v{vE+6}, {sr(S_W2,4)}, s{sT0} offen
    buffer_load_dword v11, v{vE+7}, {sr(S_WO,4)}, s{sT2} offen
    ''')
k(f's_cmp_eq_u32 s{sTYPE}, 1\ns_cbranch_scc1 L_G0B')
snap0 = k.snapshot(); nst0 = nst[0]
CI0 = vWF

def pass1(typ):
    nfr = 10 if typ == 'A' else 8
    def fr(t, i): return vWR + 4*(nfr*(t & 1) + i)
    def reads(t):
        s, kk = t >> 1, t & 1
        off = ((s % 5) * 32768) % 65536
        X = lambda i, f: f'ds_read_b128 {vr(fr(t, f), 4)}, v{vXR+kk} offset:{off + 2048*i}'
        W = lambda a, u, f: [f'ds_read_b64_tr_b16 {vr(fr(t, f) + 2*h, 2)}, v{vWA+a} offset:{off + 16384 + 8192*u + 4096*kk + 512*h}' for h in range(2)]
        if typ == 'A':
            return W(0, 0, 8) + [X(0, 0)] + W(0, 1, 9) + [X(i, i) for i in range(1, 8)]
        return W(0, 0, 4) + [X(0, 0), X(1, 1)] + W(1, 0, 5) + [X(2, 2), X(3, 3)] + W(0, 1, 6) + W(1, 1, 7)
    def mms(t):
        if typ == 'A':
            return [(mf(vAW + 32*u + 4*i, fr(t, i), fr(t, 8+u), (vr(CI0, 4) if u == 0 else '0') if t == 0 else None), (i, 8+u)) for i in range(8) for u in range(2)]
        order = [(0,0),(0,1),(1,0),(1,1),(0,2),(0,3),(1,2),(1,3)] + [(w, i) for w in (2, 3) for i in range(4)]
        return [(mf(vAW + (((w >> 1)*4 + i + 6) % 8)*8 + (w & 1)*4, fr(t, 4+w), fr(t, i), vr(CI0 + 4*w, 4) if t == 0 else None), (i, 4+w)) for w, i in order]
    na = 1 if typ == 'A' else 2
    if cfg.prio: k(f's_setprio {cfg.prio}')
    k('s_barrier')
    stamp('B0')
    for r in reads(0): k(r)
    win = 0
    for t in range(16):
        R = []
        if t % 2 == 1:
            s = (t + 1) // 2
            k('s_barrier')
            stamp(f'B{s}')
            w = ((s % 5) * 32768) >> 16
            if s < 8 and w != win:
                d = hex(((w - win) << 16) & 0xffffffff); win = w
                R += [f'v_add_u32 v{vWA+a}, {d}, v{vWA+a}' for a in range(na)] + [f'v_add_u32 v{vXR+a}, {d}, v{vXR+a}' for a in range(2)]
        if t + 1 < 16: R += reads(t + 1)
        if t == 8: R.append(DBTEXT(vEP))
        M = mms(t)
        j = 0
        for i, (m, fs) in enumerate(M):
            if i % 8 == 0:
                wait_regs([fr(t, f) + q for mm in M[i:i+8] for f in mm[1] for q in range(4)])
            k(m)
            tgt = min(len(R), ((i + 1) * len(R) + 11) // 12)
            while j < tgt: k(R[j]); j += 1
    if cfg.prio: k('s_setprio 0')

def pass2(V, nv, extra=[]):
    assert W0 + cfg.g4 <= 13 or cfg.g4 == 0
    V = list(V)
    if cfg.prio2: k(f's_setprio {cfg.prio2}')
    get_epoch(vEP)
    p2w[0] = 0
    for i in range(4):
        F = moves(MV[i])
        if cfg.nomv & 1: F = [x for x in F if not x.startswith('ds_')]
        if cfg.mvb == 1:
            for x in F: k(x)
            F = []
        if i == 3: F += [f for r in range(W0, W0 + cfg.g4) for f in item(10 + r)] + extra
        n = nv - len(F) // 2
        if cfg.mvb == 2:
            weave(V[:n], []); weave([], F)
        else: weave(V[:n], F)
        V = V[n:]
        k.wait_lg_all()
        k('s_barrier')
        stamp(f'B{9+i}')
    k(f's_setprio {cfg.pe0}')
    return V

W1 = W0 + cfg.g4; W2 = min(15, W1 + cfg.we0)
k(f'''
s_lshl2_add_u32 s{sT0}, s{sGRP}, s{sW}
s_lshl4_add_u32 s{sT1}, s{sT0}, s{sRB}
s_lshl_b32 s{sH}, s{sT1}, 10
s_add_u32 s{sH}, s{sH}, {WS_KVP}
v_and_b32 v{vE+5}, 1, v{vLANE}
v_cmp_eq_u32 {sr(sH+1,2)}, 1, v{vE+5}
v_lshlrev_b32 v8, 3, v{vLANE}
s_lshl_b32 s{sT1}, s{sW}, 9
v_add_u32 v8, s{sT1}, v8
v_lshlrev_b32 v9, 2, v{vE+5}
v_lshl_add_u32 v9, v{vE+3}, 3, v9
s_lshl_b32 s{sT0}, s{sW}, 5
v_add_u32 v9, s{sT0}, v9
''')
xw_addr('0', f's{sT0}')
wtouch()
consts('A', C0_0)
for i in range(4): k(f'v_mov_b32 v{CI0+i}, s{sEPS}')
ONES = vWF + 4
for i in range(4): k(f'v_mov_b32 v{ONES+i}, 0x3f803f80')
pass1('A')
PK, VV = vAC2, vAC2 + 16
KVA, ZA = vWF + 8, vWF + 12
V = phi(vAW, PK, vE, C0_0, 0)
V += [f'v_cvt_pk_bf16_f32 v{VV+i}, v{vAW+32+2*i}, v{vAW+32+2*i+1}' for i in range(16)]
V += [mf(KVA, PK, VV, '0'), mf(ZA, PK, ONES, '0'), mf(KVA, PK+4, VV+4), mf(ZA, PK+4, ONES)]
V += phi(vAW + 16, PK + 8, vE, C0_0, 0)
V += [mf(KVA, PK+8, VV+8), mf(ZA, PK+8, ONES), mf(KVA, PK+12, VV+12), mf(ZA, PK+12, ONES)]
V += [f'v_cvt_pk_bf16_f32 v{vE+i}, v{KVA+2*i}, v{KVA+2*i+1}' for i in range(4)]
V += [f'v_cndmask_b32_e64 v{vE+2}, v{vE+2}, v{vE+3}, {sr(sH+1,2)}', f'v_mov_b32 v{vE+3}, s{sN}', st4(vE, sH, 0)]
KB = vAC2
kt = [f'buffer_load_dwordx4 {vr(KB+4*r,4)}, v{vL16}, {sr(S_WS,4)}, s{sH + r//4} offen offset:{1024*(r%4)} sc1' for r in range(16)]
V += [f's_and_b32 s{sH}, s{sH}, 0xffffc000', f's_add_u32 s{sH+1}, s{sH}, 4096', f's_add_u32 s{sH+2}, s{sH}, 8192', f's_add_u32 s{sH+3}, s{sH}, 12288']
if cfg.kve: assert len(V) <= 3*cfg.nva - 40
V = pass2(V, cfg.nva, kt if cfg.kve else [])
for v in V: k(v)
if not cfg.kve:
    for t in kt: k(t)
stamp('e1')
for f in fill(cfg.e0a, W1, W2): f()
stamp('e2')
k(f's_lshl_b32 s{sT5}, s{sN}, 4\ns_mov_b32 s{sSEL0}, 0x00003f80\ns_mov_b32 s{sSEL1}, 0x3f800000')
checked(kt, [KB + 4*r + 3 for r in range(16)], vE, sT5)
stamp('e3')
SUM = vE
V = []
for r in range(16):
    for j in range(3):
        for h in range(2):
            d = SUM + 6*(r & 1) + 2*j + h
            V.append(f'v_dot2_f32_bf16 v{d}, v{KB+4*r+j}, s{sSEL0+h}, {"0" if r < 2 else "v%d" % d}')
for i in range(0, 6, 2): V.append(f'v_pk_add_f32 {vr(SUM+i,2)}, {vr(SUM+i,2)}, {vr(SUM+6+i,2)}')
for i in range(3): V.append(f'v_cvt_pk_bf16_f32 v{vE+12+i}, v{SUM+2*i}, v{SUM+2*i+1}')
weave(V, [f for r in range(cfg.e0a, max(cfg.e0a, cfg.e0b)) for f in loadA(r)])
k(f'ds_write_b64 v8, {vr(vE+12,2)} offset:{L_KV}')
k(f'ds_write_b32 v9, v{vE+14} offset:{L_KV + 2048}')
k.wait_lg_all()
stamp('e4')
k('s_barrier')
k('s_branch L_P2_0')
vmA = [dict(x) for x in k.vm]

k.label('L_G0B')
k.restore(snap0); nst[0] = nst0; tokQ.clear()
k(f'''
s_and_b32 s{sT2}, s{sW}, 1
s_lshl_b32 s{sT2}, s{sT2}, 6
s_mul_i32 s{sT0}, s{sGRP}, 384
s_add_u32 s{sT0}, s{sT0}, s{sT2}
v_lshlrev_b32 v{vE+5}, 3, v{vE+3}
''')
for w in range(4):
    k(f'buffer_load_dwordx2 {vr(CI0 + 4*w, 2)}, v{vE+5}, {sr(S_B1,4)}, s{sT0} offen offset:{128*(w >> 1) + 32*(w & 1)}')
k(f'''
s_mul_i32 s{sT0}, s{sGRP}, {3*UNT}
s_and_b32 s{sT1}, s{sW}, 2
s_lshl2_add_u32 s{sT1}, s{sRB}, s{sT1}
''')
ck_off(sT3, sT1)
k(f'''
s_mul_i32 s{sT4}, s{sT2}, {1792//64}
s_sub_u32 s{sT3}, s{sT3}, s{sT4}
v_lshl_add_u32 v{vL4}, v{vLANE}, 2, s{sT3}
v_subrev_u32 v5, {RTS - 512}, v{vL4}
s_mul_i32 s{sT1}, s{sT1}, {RTS}
s_add_u32 s{sT1}, s{sT1}, s{sT0}
s_mul_i32 s{sT3}, s{sT2}, {STP//64}
s_add_u32 s{sH}, s{sT1}, s{sT3}
s_add_u32 s{sH+1}, s{sH}, {RTS}
s_add_u32 s{sH+2}, s{sH}, {UNT}
s_add_u32 s{sH+3}, s{sH+1}, {UNT}
s_cmp_eq_u32 s{sB7}, 1
s_cselect_b32 s{sH+2}, {hex(OOB)}, s{sH+2}
s_cselect_b32 s{sH+3}, {hex(OOB)}, s{sH+3}
''')
k(f's_and_b32 s{sT1}, s{sW}, 2\ns_lshl_b32 s{sT1}, s{sT1}, 12')
xw_addr(f's{sT1}', f's{sT2}')
k(f'v_xor_b32 v{vWA+1}, 32, v{vWA}')
wtouch()
consts('B', C0_0)
for w in range(4):
    for t in unpack4(CI0 + 4*w, CI0 + 4*w): k(t)
pass1('B')
def btile(i, pk):
    o = vAC2 + 8*i
    return gelu(vAW + 16*((i + 3) % 4), o, vE, C0_0, pk) + strec(o, sH + i, 0, vWF + 2*i, 5 if i & 1 else vL4)
ntile = min(4, -(-(4*cfg.nvb - 16) // 128))
V = []
for i in range(ntile): V += btile(i, 0)
V = pass2(V, cfg.nvb)
V = stx('e1') + V + stx('e2')
for i in range(ntile, 4): V += btile(i, cfg.pk) + stx(f'e{i+1}')
weave_int(V, fill(cfg.e0b, W1, W2), cfg.gint, cfg.f0)
for r in range(cfg.e0b, max(cfg.e0a, cfg.e0b)):
    for f in loadA(r): f()
phase2(0, vmA, max(cfg.e0a, cfg.e0b), W2)
k.label('L_fin')
k('s_nop 1')

if cfg.stamps:
    stamp('sto')
    k('s_waitcnt vmcnt(0)')
    stamp('end')
    k(f'''
    s_waitcnt lgkmcnt(0)
    s_cmp_lg_u32 s{sW}, 0
    s_cbranch_scc1 L_end
    ''')
    if cfg.probe >= 0:
        k(f's_cmp_lg_u32 s{sGI}, {cfg.pgrp}\ns_cbranch_scc1 L_end')
        if cfg.ptype >= 0:
            k(f's_cmp_lg_u32 s{sTYPE}, {cfg.ptype}\ns_cbranch_scc1 L_end')
        k(f'''
        s_sub_u32 s{sT0}, s{STREG[cfg.probe]}, s{STREG[0]}
        s_lshl_b32 s{sT0}, s{sT0}, 2
        s_add_u32 s{sT0}, s{sT0}, 5000
        L_probe:
        s_memrealtime s[72:73]
        s_waitcnt lgkmcnt(0)
        s_sub_u32 s{sT1}, s72, s{STREG[0]}
        s_cmp_lt_u32 s{sT1}, s{sT0}
        s_cbranch_scc1 L_probe
        s_branch L_end
        ''')
    k(f'''
    s_mov_b64 exec, 1
    s_lshl1_add_u32 s{sT0}, s2, s{sGI}
    s_mul_i32 s{sT0}, s{sT0}, {8*(nst[0]+1)}
    s_add_u32 s{sT0}, s{sT0}, {STAMP_OFF}
    ''')
    for s in range(nst[0]):
        k(f'v_mov_b32 v4, s{STREG[s]}\nv_mov_b32 v5, s{STREG[s]+1}\nbuffer_store_dwordx2 v[4:5], off, {sr(S_WS,4)}, s{sT0} offset:{8*s}\ns_nop 1')
    k(f'''
    s_sub_u32 s{sT1}, 0x4000, s{sSPIN}
    s_mul_i32 s{sT1}, s{sT1}, 100
    s_add_u32 s{sT1}, s{sT1}, s{STREG[0]}
    s_addc_u32 s{sT2}, s{STREG[0]+1}, 0
    v_mov_b32 v4, s{sT1}
    v_mov_b32 v5, s{sT2}
    buffer_store_dwordx2 v[4:5], off, {sr(S_WS,4)}, s{sT0} offset:{8*nst[0]}
    ''')
k.label('L_end')
k('s_endpgm')

hdr = open('gated_mix__linear_attn_block__dense_activation_gelu__prompt.s.ref').read().split('; @launch')[0]
text = hdr + f'''; @launch grid=(256,1,1) block=(512,1,1) lds={LDS_BYTES}
.amdgcn_target "amdgcn-amd-amdhsa--gfx950"
.text
.globl {KNAME}
.p2align 8
.type {KNAME},@function
{KNAME}:
{k.text()}
{"".join(slow)}
.section .rodata,"a"
.p2align 6
.amdhsa_kernel {KNAME}
  .amdhsa_next_free_vgpr 256
  .amdhsa_next_free_sgpr 102
  .amdhsa_accum_offset 256
  .amdhsa_group_segment_fixed_size 0
  .amdhsa_kernarg_size 96
  .amdhsa_user_sgpr_count 2
  .amdhsa_user_sgpr_kernarg_segment_ptr 1
  .amdhsa_system_sgpr_workgroup_id_x 1
.end_amdhsa_kernel
'''
open(sys.argv[1], 'w').write(text)
print('instructions', k.ninstr, 'nops', k.nnop, 'stamps', nst[0])
```

```python
import sys, struct
from kern import *

KNAME = 'gated_mix__linear_attn_block__dense_activation_gelu__prompt_kernel'
def f32(x): return '0x%08x' % struct.unpack('<I', struct.pack('<f', x))[0]

class Cfg:
    stamps = 0
    clk = 0
    rot = 7
    wrot = 3
    wtouch = 1
    wtd = -1
    wtd2 = 0
    rmul = 1
    rx = 0
    wts = 0
    wsp = 1
    d0 = 2
    nvb = 95
    nva = 95
    gint = 12
    prio = 1
    probe = -1
    pgrp = 0
    ptype = -1
    nocheck = 0
    prio2 = 0
    pk = 1
    ord0 = 8
    ord1 = 6
    lrd0 = 3
    lrd1 = 1
    e0a = 4
    e0b = 4
    e1a = 4
    e1b = 4
    z0 = 4
    q0 = 10
    g4 = 2
    dper = 1
    gint1 = 8
    xo = 2
    q9 = 2
    q10 = 2
    q11 = 0
    wa1 = 0
    we0 = 0
    pe0 = 0
    pe1 = 2
    pp0 = 0
    pp1 = 0
    f0 = 0
    f1 = 0
    afirst = 1
    kve = 0
    slp = 0
    cm = 0
    nomv = 0
    nost = 0
    mvb = 0
    m32 = 0
    m32p = 0
    prg1 = 1
    whit = 0
    u3hit = 0
    aoob = 0
    mp = 0
    ssc = 1
    xr = 1
    asc = 1
    awin = 4
cfg = Cfg()
for a in sys.argv[2:]:
    k_, v_ = a.split('='); setattr(cfg, k_, int(v_))

STP, UNT = 2048, 4096
RTS = 30 * UNT
WS_CB = 64 * RTS
OOBU = 0x7f200000
WS_KVP = 0x880000
WS_G = WS_KVP + 512 * 1024
WS_EP = WS_G + 16384
WS_END = WS_EP + 128
STAMP_OFF = 0x8000000
WS_SIZE = 0x10000000
OOB = 0x7f000000
LDS_BYTES = 163840
L_KV = 2*16384 + 12288
L_RED = 5 * 16384

S_X, S_W, S_B1, S_GW, S_WS, S_DBG, S_W2, S_WO, S_OUT, S_B2 = 8, 12, 16, 20, 24, 28, 32, 36, 40, 44
sWAVE, sW, sRB, sGRP, sTYPE, sROT, sSTP, sW4K, sW2K, sSLAB, sCT, sB7, sSPIN, sN, sN2 = range(48, 63)
sEPS = 63
sC1 = 64
sT0, sT1, sT2, sT3, sT4, sT5 = range(66, 72)
sU = 72
sH = 87
sM21 = 91
sGO = 93
sCK = 16
sSEL0, sSEL1 = 64, 65
sN10 = 23
STREG = [94, 96, 98, 100, 4, 6, 44, 46]
sGI = 3

vLANE, vL16 = 1, 2
vDX, vDW = 3, 7
vDP = 13
vXR = 15
vWA = 17
vP2 = 21
vA = 25
vB2 = 28
vL4 = 12
vWR = 32
vAW = 112
vCS = 160
vAC2 = 176
vWF = 208
vE = 240
vDUM = 0

k = Kern()
slow = []
nst = [0]
SETS = {1: ['st', 'B0', 'B8', 'B12', 'P2', 'r2', 'r11', 'end'],
        2: ['st', 'B0', 'B1', 'B2', 'B3', 'B4', 'B5', 'B6'],
        3: ['st', 'B6', 'B7', 'B8', 'B9', 'B10', 'B11', 'B12'],
        4: ['st', 'P2', 'r0', 'r2', 'r4', 'r6', 'r8', 'r10'],
        5: ['st', 'r10', 'r11', 'r13', 'mm', 'red', 'sto', 'end'],
        6: ['st', 'B12', 'e1', 'e2', 'e3', 'e4', 'P2', 'r0']}
def stx(name):
    if cfg.stamps and name in SETS[cfg.stamps]:
        return [f'{"s_memtime" if cfg.clk else "s_memrealtime"} {sr(STREG[SETS[cfg.stamps].index(name)], 2)}']
    return []
def stamp(name):
    if cfg.stamps and name in SETS[cfg.stamps]:
        k(f'{"s_memtime" if cfg.clk else "s_memrealtime"} {sr(STREG[SETS[cfg.stamps].index(name)], 2)}')
    nst[0] = 8

def side(label, cond):
    k(cond + f'\ns_cbranch_scc1 {label}')
    snap = k.snapshot(); k.track = False
    def end():
        k('s_nop 7')
        k.out.append(label + ':'); k.restore(snap); k.track = True
    return end

def mf(d, a, b, c=None):
    return f'v_mfma_f32_16x16x32_bf16 {vr(d,4)}, {vr(a,4)}, {vr(b,4)}, {vr(d,4) if c is None else c}'

def wait_regs(regs):
    regs = {('v', r) for r in regs}
    l = None
    for i, op in enumerate(k.lg):
        if op['wr'] & regs: l = len(k.lg) - 1 - i
    if l is not None:
        if k.smem_pending: l = 0
        k.waitcnt(lgkm=l)

def emit(x):
    return x() if callable(x) else k(x)
def weave(V, F):
    n = len(V); j = 0
    if n == 0:
        for f in F: emit(f)
        return
    for i, v in enumerate(V):
        tgt = ((i + 1) * len(F) + n - 1) // n
        while j < tgt: emit(F[j]); j += 1
        emit(v)
def weave_int(V, F, step, front=0):
    F = list(F)
    use = [set(Ins(v).rd) | set(Ins(v).wr) for v in V]
    last = -step
    while front and F and not any(getattr(F[0], 'regs', set()) & u for u in use):
        emit(F.pop(0)); front -= 1; last = 0
    for i, v in enumerate(V):
        if F and i - last >= step and not any(getattr(F[0], 'regs', set()) & u for u in use[i:]):
            emit(F.pop(0)); last = i
        emit(v)
    for f in F: emit(f)

def merge_vm(*paths):
    order, cnt, ent = [], {}, {}
    for vm in sorted(paths, key=lambda v: -sum(1 for o in v if o.get('key') or o['wr'])):
        ks = []
        for i, o in enumerate(vm):
            key = o.get('key') or (o['text'] if o['wr'] else None)
            if key is None: continue
            ks.append(key); ent[key] = o
            cnt[key] = min(cnt.get(key, 99), len(vm) - 1 - i)
        if not order: order = ks
        else: assert order[len(order) - len(ks):] == ks, (order, ks)
    out = []
    for key in reversed(order):
        assert cnt[key] >= len(out)
        while len(out) < cnt[key]: out.insert(0, {'id': -1, 'wr': set(), 'text': '', 'redo': False})
        out.insert(0, dict(ent[key]))
    return out
def wait_key(key):
    for i, o in enumerate(k.vm):
        if o.get('key') == key:
            k.waitcnt(vm=len(k.vm) - 1 - i); return

uid = [0]
def addchain(kk, t, r):
    r = list(r)
    if len(r) == 2:
        kk(f'v_add_u32 v{t}, v{r[0]}, v{r[1]}'); return
    if len(r) <= 9:
        parts = [r[:3] + r[6:], r[3:6]]
    else:
        h = (len(r) // 2) | 1
        parts = [r[:h], r[h:]]
    first = [True, True]
    tail = []
    while parts[0] or parts[1]:
        for c in range(2):
            q = parts[c]
            if not q: continue
            if first[c]:
                parts[c] = q[3:]; first[c] = False
                kk(f'v_add3_u32 v{t+c}, v{q[0]}, v{q[1]}, v{q[2]}')
            elif len(q) >= 2:
                parts[c] = q[2:]
                kk(f'v_add3_u32 v{t+c}, v{t+c}, v{q[0]}, v{q[1]}')
            else:
                parts[c] = []; tail.append(q[0])
    if len(tail) == 2:
        kk(f'v_add3_u32 v{t}, v{t}, v{tail[0]}, v{tail[1]}'); tail = []
    if tail: kk(f'v_add3_u32 v{t}, v{t}, v{t+1}, v{tail[0]}')
    else: kk(f'v_add_u32 v{t}, v{t}, v{t+1}')
def checked(texts, regs, T, expect, defer=False):
    uid[0] += 1; u = uid[0]
    def check(kk):
        if expect is None:
            kk(f'v_cmp_eq_u32 vcc, 0, v{regs[0]}')
            return
        addchain(kk, T, regs)
        kk(f'v_cmp_ne_u32 vcc, s{expect}, v{T}')
    if cfg.nocheck and expect is not None: return []
    def fin():
        k(f's_cbranch_vccnz L_slow{u}')
        k.label(f'L_back{u}')
        vm = [dict(x) for x in k.vm]
        while vm and not vm[0]['redo']: vm.pop(0)
        s = Kern()
        s.label(f'L_slow{u}')
        s(f's_sub_u32 s{sSPIN}, s{sSPIN}, 1\ns_cbranch_scc1 L_give{u}\ns_nop 7\ns_nop 3')
        if cfg.slp: s(f's_sleep {cfg.slp}')
        for t in texts: s(t)
        s('s_waitcnt vmcnt(0)')
        check(s)
        s(f's_cbranch_vccnz L_slow{u}')
        for op in vm:
            s(op['text'] if op['redo'] else f'buffer_load_dword v{vDUM}, off, {sr(S_DBG,4)}, 0 offset:4080')
            s.vm = []
        s(f's_branch L_back{u}')
        s.label(f'L_give{u}')
        s(f's_mov_b32 s{sSPIN}, 0\ns_waitcnt vmcnt(0)\ns_branch L_back{u}')
        slow.append(s.text())
    L = []
    check(L.append)
    L.append(fin)
    if defer: return L
    for x in L: emit(x)

def srd_tail(base, size):
    k(f's_mov_b32 s{base+2}, {size}\ns_mov_b32 s{base+3}, 0x20000')

MAP = f'''s_lshr_b32 s{sT2}, s2, 5
v_readfirstlane_b32 s{sWAVE}, v{vE}
s_and_b32 s{sT1}, s2, 1
s_lshl3_add_u32 s{sRB}, s{sT1}, s{sT2}
s_bfe_u32 s{sT1}, s2, 0x20003
s_lshl1_add_u32 s{sROT}, s{sT1}, s{sT2}
s_and_b32 s{sROT}, s{sROT}, {cfg.rot}
s_mul_i32 s{sROT}, s{sROT}, {cfg.rmul}
s_mul_i32 s{sT1}, s2, {cfg.rx}
s_add_u32 s{sROT}, s{sROT}, s{sT1}
s_and_b32 s{sROT}, s{sROT}, 7
s_and_b32 s{sT1}, s2, 6
s_bfe_u32 s{sT2}, s2, 0x10004
s_add_u32 s{sGRP}, s{sT1}, s{sT2}
s_and_b32 s{sT1}, s2, 0x1e
s_cmp_eq_u32 s{sT1}, 0x1e
s_cselect_b32 s{sB7}, 1, 0''' if not cfg.mp else f'''s_lshr_b32 s{sT2}, s2, 7
v_readfirstlane_b32 s{sWAVE}, v{vE}
s_and_b32 s{sT1}, s2, 7
s_lshl1_add_u32 s{sRB}, s{sT1}, s{sT2}
s_bfe_u32 s{sGRP}, s2, 0x30004
s_lshl2_add_u32 s{sROT}, s{sT2}, s{sGRP}
s_mul_i32 s{sT1}, s{sT1}, {cfg.xr}
s_add_u32 s{sROT}, s{sROT}, s{sT1}
s_and_b32 s{sROT}, s{sROT}, {cfg.rot}
s_and_b32 s{sT1}, s2, 0x78
s_cmp_eq_u32 s{sT1}, 0x78
s_cselect_b32 s{sB7}, 1, 0'''
stamp('st')
k(f'''
s_cmp_ge_u32 s2, 256
s_cbranch_scc1 L_end
s_load_dwordx2 {sr(S_X,2)}, s[0:1], 0
s_bfe_u32 s{sTYPE}, s2, 0x10003
s_mul_i32 s{sT0}, s{sTYPE}, 24
s_add_u32 s{sT0}, s{sT0}, 8
s_load_dwordx2 {sr(S_W,2)}, s[0:1], s{sT0}
s_load_dwordx2 {sr(S_WS,2)}, s[0:1], 88
s_load_dwordx2 {sr(S_DBG,2)}, s[0:1], 80
s_load_dwordx2 {sr(S_B1,2)}, s[0:1], 40
s_load_dwordx2 {sr(S_GW,2)}, s[0:1], 64
s_load_dwordx2 {sr(S_W2,2)}, s[0:1], 48
s_load_dwordx2 {sr(S_WO,2)}, s[0:1], 16
s_load_dwordx2 {sr(S_B2,2)}, s[0:1], 56
s_load_dwordx2 {sr(S_OUT,2)}, s[0:1], 72
v_lshrrev_b32 v{vE}, 6, v0
v_and_b32 v{vLANE}, 63, v0
{MAP}
s_and_b32 s{sW}, s{sWAVE}, 3
s_lshl_b32 s{sW4K}, s{sW}, 12
s_lshl_b32 s{sW2K}, s{sW}, 11
v_lshlrev_b32 v{vL16}, 4, v{vLANE}
v_lshrrev_b32 v{vE}, 3, v{vLANE}
v_and_b32 v{vE+1}, 7, v{vLANE}
s_mov_b32 s{S_WS+2}, {hex(WS_SIZE) if cfg.stamps else hex(WS_END)}
s_mov_b32 s{S_WS+3}, 0x20000
s_mov_b32 s{S_DBG+2}, 256
s_mov_b32 s{S_DBG+3}, 0x20000
s_cmp_lt_u32 s{sWAVE}, 4
s_cbranch_scc1 L_G0
''')
snapE = k.snapshot(); nstE = nst[0]

CMAP = f'''s_lshr_b32 s{sT1}, s2, 6
    s_lshl2_add_u32 s{sSLAB}, s{sT0}, s{sT1}
    s_bfe_u32 s{sCT}, s2, 0x30003
    s_add_u32 s{sT1}, s{sT1}, s{sCT}''' if not cfg.cm else f'''s_bfe_u32 s{sCT}, s2, 0x30004
    s_xor_b32 s{sT1}, s{sCT}, s{sTYPE}
    s_and_b32 s{sT1}, s{sT1}, 1
    s_lshr_b32 s{sT2}, s2, 7
    s_lshl1_add_u32 s{sT1}, s{sT2}, s{sT1}
    s_lshl2_add_u32 s{sSLAB}, s{sT0}, s{sT1}
    s_lshr_b32 s{sT1}, s{sCT}, 1
    s_lshl1_add_u32 s{sT1}, s{sT2}, s{sT1}
    {"s_add_u32 s%d, s%d, s%d" % (sT1, sT1, sTYPE) if cfg.cm == 2 else ""}'''
def common_setup(grp):
    srd_tail(S_B1, 2752); srd_tail(S_W2, 1376*1024); srd_tail(S_WO, 512*1024)
    srd_tail(S_B2, 1024); srd_tail(S_OUT, 2048*1024)
    k(f'''
    s_and_b32 s{sT0}, s2, 7
    {CMAP}
    s_and_b32 s{sT1}, s{sT1}, {cfg.wrot}
    s_lshr_b32 s{sT3}, s{sW}, 1
    s_lshl1_add_u32 s{sT1}, s{sT1}, s{sT3}
    s_lshl_b32 s{sU+11}, s{sT1}, 12
    s_cmp_eq_u32 s{sT1}, 7
    s_cselect_b32 s{sT1}, 0, s{sT1}
    s_mul_i32 s{sU}, s{sT1}, 12288
    v_and_b32 v{vE+2}, 6, v{vE}
    v_xor_b32 v{vE+2}, v{vE+2}, v{vE+1}
    v_lshlrev_b32 v{vE+2}, 4, v{vE+2}
    v_lshl_add_u32 v{vDP}, v{vE}, 10, v{vE+2}
    s_lshl_b32 s{sT0}, s{sCT}, 7
    s_and_b32 s{sT2}, s{sW}, 1
    s_lshl_b32 s{sT2}, s{sT2}, 15
    s_add_u32 s{sT2}, s{sT2}, s{sT0}
    v_add_u32 v{vDP}, s{sT2}, v{vDP}
    v_add_u32 v{vDP+1}, 0x2000, v{vDP}
    v_and_b32 v{vE+2}, 15, v{vLANE}
    v_lshrrev_b32 v{vE+3}, 4, v{vLANE}
    v_lshlrev_b32 v{vE+5}, 3, v{vE+3}
    s_and_b32 s{sT2}, s{sW}, 2
    s_lshl_b32 s{sT2}, s{sT2}, 5
    s_add_u32 s{sT0}, s{sT0}, s{sT2}
    buffer_load_dwordx2 {vr(vB2,2)}, v{vE+5}, {sr(S_B2,4)}, s{sT0} offen
    buffer_load_dwordx2 {vr(vB2+2,2)}, v{vE+5}, {sr(S_B2,4)}, s{sT0} offen offset:32
    v_bfe_u32 v{vE+4}, v{vLANE}, 1, 1
    v_and_b32 v{vE+5}, 3, v{vE}
    v_lshl_add_u32 v{vE+4}, v{vE+5}, 1, v{vE+4}
    v_lshlrev_b32 v{vE+4}, 4, v{vE+4}
    v_and_b32 v{vE+5}, 1, v{vLANE}
    v_lshl_add_u32 v{vE+4}, v{vE+5}, 3, v{vE+4}
    v_lshrrev_b32 v{vE+5}, 2, v{vLANE}
    v_lshl_add_u32 v{vE+5}, v{vE+5}, 7, v{vE+4}
    v_add_u32 v{vE+5}, s{sW4K}, v{vE+5}
    v_xor_b32 v{vP2}, s{sT2}, v{vE+5}
    v_xor_b32 v{vP2+1}, 32, v{vP2}
    v_xor_b32 v{vP2+2}, 64, v{vP2}
    v_xor_b32 v{vP2+3}, 0x60, v{vP2}
    s_lshl1_add_u32 s{sT4}, s{sSLAB}, {grp}
    s_mul_i32 s{sT0}, s{sT4}, {RTS}
    s_and_b32 s{sT1}, s{sW}, 1
    s_lshl_b32 s{sT2}, s{sT1}, 11
    s_add_u32 s{sT0}, s{sT0}, s{sT2}
    s_lshl_b32 s{sT2}, s{sT1}, 10
    v_xor_b32 v{vA}, s{sT2}, v{vL16}
    v_xor_b32 v{vA+1}, 0x400, v{vA}
    v_add_u32 v{vA}, s{sT0}, v{vA}
    v_add_u32 v{vA+1}, s{sT0}, v{vA+1}
    s_lshr_b32 s{sT0}, s{sT4}, 3
    s_mul_i32 s{sT0}, s{sT0}, {RTS}
    s_and_b32 s{sT4}, s{sT4}, 7
    s_lshl1_add_u32 s{sT4}, s{sT4}, s{sT1}
    s_lshl_b32 s{sT4}, s{sT4}, 8
    s_add_u32 s{sT0}, s{sT0}, s{sT4}
    s_add_u32 s{sT0}, s{sT0}, {WS_CB}
    v_lshl_add_u32 v{vA+2}, v{vLANE}, 2, s{sT0}
    s_mov_b32 s{sSPIN}, 0x4000
    s_cmp_lt_u32 s{sW}, 3
    s_cselect_b32 s{sM21}, s{sW4K}, 15360
    s_cselect_b32 s{sM21+1}, 1024, 0
    s_mov_b32 s{sGI}, {grp}
    ''')
    for i in range(1, 11):
        k(f's_add_u32 s{sU+i}, s{sU+i-1}, 24576\ns_sub_u32 s{sT0}, s{sU+i}, {7*12288}\ns_cselect_b32 s{sU+i}, s{sU+i}, s{sT0}')
    for i in range(12, 15):
        k(f's_add_u32 s{sU+i}, s{sU+i-1}, 8192\ns_and_b32 s{sU+i}, s{sU+i}, 0x7fff')
    k(f's_lshl_b32 s{sT3}, s{sT3}, 12\ns_add_u32 s{sU+3}, s{sU+3}, s{sT3}')
    for i in range(4, 11): k(f's_add_u32 s{sU+i}, s{sU+i}, {4096 if i < 7 else 8192}')
    for i in range(11, 15): k(f's_add_u32 s{sU+i}, s{sU+i}, {22*4096}')
    k(f's_cmp_ge_u32 s{sW}, 2\ns_cselect_b32 s{sU+10}, {21*4096}, s{sU+10}')
    k(f's_cmp_eq_u32 s{sW}, 3\ns_cselect_b32 s{sU+10}, {hex(OOBU)}, s{sU+10}')

def ck_off(dst, rt):
    k(f'''
    s_lshr_b32 s{sT4}, s{rt}, 3
    s_sub_u32 s{sT4}, s{rt}, s{sT4}
    s_mul_i32 s{sT4}, s{sT4}, {RTS}
    s_and_b32 s{dst}, s{rt}, 7
    s_lshl_b32 s{dst}, s{dst}, 9
    s_add_u32 s{dst}, s{dst}, {WS_CB}
    s_sub_u32 s{dst}, s{dst}, s{sT4}
    ''')

def xw_addr(rowbase_s, tile_s):
    k(f'''
    v_lshrrev_b32 v{vE+5}, 1, v{vE+2}
    v_xor_b32 v{vE+5}, v{vE+5}, v{vE+3}
    v_lshlrev_b32 v{vE+5}, 4, v{vE+5}
    v_lshl_add_u32 v{vE+5}, v{vE+2}, 7, v{vE+5}
    v_add_u32 v{vXR}, {rowbase_s}, v{vE+5}
    v_xor_b32 v{vXR+1}, 64, v{vXR}
    v_bfe_u32 v{vE+5}, v{vLANE}, 2, 2
    v_lshl_add_u32 v{vE+5}, v{vE+3}, 3, v{vE+5}
    v_lshl_add_u32 v{vE+5}, v{vE+5}, 7, v{vE+4}
    v_xor_b32 v{vWA}, {tile_s}, v{vE+5}
    ''')

tokQ = {}
def item(q):
    L = []
    def add(pre, vo, srd_, so, last=False):
        def f():
            t = k(f'buffer_load_dwordx4 v{vo}, {sr(srd_,4)}, s{so} offen lds')
            if last: tokQ[q] = t; k.vm[-1]['key'] = ('W', q)
        pl = pre.split('\n')
        L.append(lambda: k('\n'.join(pl[-1:] + pl[:-1])))
        L.append(f)
    if q < 8:
        base = (q % 5) * 32768
        hdr = f's_add_u32 s{sT0}, s{sROT}, {q}\ns_and_b32 s{sT0}, s{sT0}, 7\ns_lshl_b32 s{sT1}, s{sT0}, 7\ns_mul_i32 s{sT2}, s{sT0}, s{sSTP}\n'
        for i in range(4):
            add((hdr if i == 0 else '') + f's_add_u32 m0, s{sW4K}, {base + 1024*i}', vDX + i, S_X, sT1)
            u, j = i // 2, i % 2
            add(f's_add_u32 m0, s{sW2K}, {base + 16384 + 8192*u + 1024*j}', vDW + 2*u + j, S_W, sT2, i == 3)
    elif q < 10:
        for b in range(4):
            s = 4*(q - 8) + b
            hdr = f's_add_u32 s{sT0}, s{sROT}, {s}\ns_and_b32 s{sT0}, s{sT0}, 7\ns_mul_i32 s{sT2}, s{sT0}, s{sSTP}\n'
            for j in range(2):
                add((hdr if j == 0 else '') + f's_add_u32 m0, s{sW2K}, {98304 + 8192*s + 1024*j}', vDW + (0 if cfg.u3hit else 4) + j, S_W, sT2, b == 3 and j == 1)
    else:
        r = q - 10
        pos = WPOS[r] * 16384
        for j in range(4):
            hdr = {0: f's_lshl4_add_u32 s{sT4}, s{sU + r}, {0 if r < 11 else hex((-22*65536) & 0xffffffff)}\n' if not cfg.whit else f's_mov_b32 s{sT4}, {0 if cfg.whit == 1 else hex(OOB)}\n', 2: f's_add_u32 s{sT4}, s{sT4}, 0x4000\n'}.get(j, '')
            m = f's_add_u32 m0, s{sW4K}, {pos + 1024*j}'
            if r == 10: m = f's_add_u32 m0, s{sM21}, {pos}' if j == 0 else f's_add_u32 m0, m0, s{sM21+1}'
            add(hdr + m, vDP + (j & 1), S_W2 if r < 11 or cfg.whit else S_WO, sT4, j == 3)
    return L

WPOS = [0, 1, 2, 3, 4, 5, 6, 7, 0, 1, 2, 3, 8, 9, 4]
p2w = [0]
def rdP2(dst, r):
    pos = WPOS[r] * 16384
    L = []
    if pos >> 16 != p2w[0]:
        L = [f'v_add_u32 v{vP2+c}, {hex((((pos >> 16) - p2w[0]) << 16) & 0xffffffff)}, v{vP2+c}' for c in range(4)]
        p2w[0] = pos >> 16
    return L + [f'ds_read_b64_tr_b16 {vr(dst + 4*c + 2*h, 2)}, v{vP2+c} offset:{(pos % 65536) + 2048*h}' for c in range(4) for h in range(2)]
def moves(rs):
    L = []
    for r in rs:
        L += rdP2(vWR + 16*r, r)
    return L

Atext = {}
def areg(r, j): return vAW + 8*r + 4*j if r < 6 else (vWR + 8*(r - 6) + 4*j)
def loadA(r):
    L = []
    def mk(t, key):
        Atext[key] = t
        def f():
            k.redo = True; k(t if cfg.asc == 1 else t.replace(' sc1', {0: '', 2: ' nt', 3: ' sc0'}[cfg.asc])); k.redo = False
            k.vm[-1]['key'] = key; k.vm[-1]['text'] = t
        f.regs = set(Ins(t).wr)
        return f
    for j in range(2):
        L.append(mk(f'buffer_load_dwordx4 {vr(areg(r, j), 4)}, v{vA+j}, {sr(S_WS,4)}, s{sU+r if not cfg.aoob else sU+10} offen sc1', (r, j)))
    if cfg.aoob != 3: L.append(mk(f'buffer_load_dword v{vCS+r}, v{vA+2}, {sr(S_WS,4)}, s{sU+r if not cfg.aoob else sU+10} offen sc1', (r, 2)))
    else: Atext[(r, 2)] = ''
    return L

def gelu(acc, out, T, C0, pk):
    L = []
    p = lambda r: vr(r, 2)
    if pk:
        for i in range(0, 16, 2): L.append(f'v_pk_mul_f32 {p(T+i)}, {p(acc+i)}, {p(acc+i)}')
        for i in range(0, 16, 2): L.append(f'v_pk_fma_f32 {p(T+i)}, {p(T+i)}, {sr(sC1,2)}, {vr(C0,2)}')
        for i in range(0, 16, 2): L.append(f'v_pk_mul_f32 {p(T+i)}, {p(acc+i)}, {p(T+i)}')
        for i in range(16): L.append(f'v_exp_f32 v{T+i}, v{T+i}')
        for i in range(0, 16, 2): L.append(f'v_pk_add_f32 {p(T+i)}, {p(T+i)}, 1.0 op_sel_hi:[1,0]')
        for i in range(16): L.append(f'v_rcp_f32 v{T+i}, v{T+i}')
        for i in range(0, 16, 2): L.append(f'v_pk_mul_f32 {p(T+i)}, {p(acc+i)}, {p(T+i)}')
    else:
        for i in range(16): L.append(f'v_mul_f32 v{T+i}, v{acc+i}, v{acc+i}')
        for i in range(16): L.append(f'v_fma_f32 v{T+i}, v{T+i}, s{sC1}, v{C0}')
        for i in range(16): L.append(f'v_mul_f32 v{T+i}, v{acc+i}, v{T+i}')
        for i in range(16): L.append(f'v_exp_f32 v{T+i}, v{T+i}')
        for i in range(16): L.append(f'v_add_f32 v{T+i}, 1.0, v{T+i}')
        for i in range(16): L.append(f'v_rcp_f32 v{T+i}, v{T+i}')
        for i in range(16): L.append(f'v_mul_f32 v{T+i}, v{acc+i}, v{T+i}')
    for i in range(0, 16, 2): L.append(f'v_cvt_pk_bf16_f32 v{out+i//2}, v{T+i}, v{T+i+1}')
    return L

def phi(acc, out, T, C0, pk):
    L = []
    p = lambda r: vr(r, 2)
    if pk:
        for i in range(0, 16, 2): L.append(f'v_pk_fma_f32 {p(T+i)}, {p(acc+i)}, {sr(sC1,2)}, {vr(C0,2)}')
    else:
        for i in range(16): L.append(f'v_fma_f32 v{T+i}, v{acc+i}, s{sC1}, v{C0}')
    for i in range(16): L.append(f'v_exp_f32_e64 v{T+i}, v{T+i} clamp')
    for i in range(16): L.append(f'v_max_f32 v{acc+i}, s{sEPS}, v{acc+i}')
    if pk:
        for i in range(0, 16, 2): L.append(f'v_pk_add_f32 {p(T+i)}, {p(T+i)}, {p(acc+i)}')
    else:
        for i in range(16): L.append(f'v_add_f32 v{T+i}, v{T+i}, v{acc+i}')
    for i in range(0, 16, 2): L.append(f'v_cvt_pk_bf16_f32 v{out+i//2}, v{T+i}, v{T+i+1}')
    return L

def st4(src, s_off, imm):
    return f'buffer_store_dwordx4 {vr(src,4)}, v{vL16}, {sr(S_WS,4)}, s{s_off} offen offset:{imm} sc1'

def strec(src, s_off, imm, T, vck=None):
    L = []
    addchain(L.append, T, range(src, src + 8))
    L.insert(1, st4(src, s_off, imm)); L.insert(3, st4(src + 4, s_off, imm + 1024))
    L.append(f'v_sub_u32 v{T}, s{sN}, v{T}')
    L.append(f'buffer_store_dword v{T}, v{vck or vL4}, {sr(S_WS,4)}, s{s_off} offen offset:{imm // 8} sc1')
    if cfg.nost: L = [x for x in L if not x.startswith('buffer')]
    if not cfg.ssc: L = [x.replace(' sc1', '') for x in L]
    return L

def get_epoch(reg):
    checked([DBTEXT(reg)], [reg], None, None)
    k(f'v_readfirstlane_b32 s{sN}, v{reg}\ns_cmp_eq_u32 s{sW}, 3\ns_cselect_b32 s{sN10}, 0, s{sN}\ns_lshl_b32 s{sN2}, s{sN}, 1')
def DBTEXT(reg): return f'buffer_load_dword v{reg}, off, {sr(S_DBG,4)}, 0 sc1'

def consts(typ, C0):
    if typ == 'A':
        c1, c0 = 1.4426950408889634, -1e-6*1.4426950408889634
    else:
        c1, c0 = -2.302208198*0.044715, -2.302208198
    k(f'''
    s_mov_b32 s{sC1}, {f32(c1)}
    s_mov_b32 s{sC1+1}, {f32(c1)}
    s_mov_b32 s{sEPS}, {f32(1e-6)}
    v_mov_b32 v{C0}, {f32(c0)}
    v_mov_b32 v{C0+1}, {f32(c0)}
    ''')

def unpack4(dst, src):
    return [f'v_and_b32 v{dst+3}, 0xffff0000, v{src+1}', f'v_lshlrev_b32 v{dst+2}, 16, v{src+1}',
            f'v_and_b32 v{dst+1}, 0xffff0000, v{src}', f'v_lshlrev_b32 v{dst}, 16, v{src}']

def phase2(g, vmA, nload, wnext):
    k.label(f'L_P2_{g}')
    k('s_nop 1')
    k.vm = merge_vm(k.vm, vmA); k.lg = []
    stamp('P2')
    ord_, lrd = (cfg.ord0, cfg.lrd0) if g == 0 else (cfg.ord1, cfg.lrd1)
    k(f's_setprio {cfg.pp0 if g == 0 else cfg.pp1}')
    BUF = [vWF + 16, vWF, vAW, vAW + 16, vAW + 32]
    def wreg(r): return vWR + 16*r if r < 5 else BUF[r % 5]
    FREE = {5: -1, 6: -1, 7: 1, 8: 3, 9: 5, 10: 5, 11: 6, 12: 7, 13: 8, 14: 9}
    zr = cfg.z0
    def more(r):
        nonlocal nload, wnext
        L = []
        while nload < 15:
            need = (nload - 6) // 2 if nload >= 6 else -1
            if need > r or nload > r + cfg.awin: break
            if nload >= 11 and r < ord_: break
            if nload >= 7 and r < lrd: break
            L += loadA(nload)
            nload += 1
        for i in range(cfg.dper):
            if wnext < 15:
                L += wpairs(wnext, wnext + 1)
                wnext += 1
        return L
    nrd = [5]
    def reads(r):
        L = []
        while nrd[0] < 15 and FREE[nrd[0]] <= r and (nrd[0] < 8 or r >= zr) and (not L or nrd[0] <= r + 3):
            L += rdP2(wreg(nrd[0]), nrd[0]); nrd[0] += 1
        return L
    def chk(r): return checked([Atext[(r, j)] for j in range(3)], [vCS + r] + list(range(areg(r, 0), areg(r, 0) + 8)), vE + 8, sN10 if r == 10 else sN, True)
    G2 = vE + 12
    BB = vE
    gadr = f'''s_lshl1_add_u32 s{sT0}, s{sSLAB}, {g}
    s_lshl_b32 s{sGO}, s{sT0}, 8
    s_add_u32 s{sGO}, s{sGO}, {WS_G}
    s_and_b32 s{sT1}, s{sW}, 1
    s_lshl_b32 s{sT2}, s{sT1}, 7
    v_and_b32 v3, 15, v{vLANE}
    v_lshlrev_b32 v4, 3, v3
    v_add_u32 v4, s{sT2}, v4
    v_xor_b32 v5, 0x80, v4'''.split('\n')
    gt = [f'buffer_load_dwordx2 {vr(G2+2*j,2)}, v{4+j}, {sr(S_WS,4)}, s{sGO} offen sc1' for j in range(2)]
    def redo(t):
        def f():
            k.redo = True; k(t); k.redo = False
        return f
    late = f'''s_lshl1_add_u32 s{sT0}, s{sT0}, s{sT1}
    s_lshl_b32 s{sT5}, s{sT0}, 14
    s_lshl_b32 s{sT0}, s{sCT}, 7
    s_add_u32 s{sT5}, s{sT5}, s{sT0}
    s_and_b32 s{sT0}, s{sW}, 2
    s_lshl_b32 s{sT0}, s{sT0}, 5
    s_add_u32 s{sT5}, s{sT5}, s{sT0}
    v_lshlrev_b32 v3, 10, v3
    v_and_b32 v6, 16, v{vLANE}
    v_lshl_add_u32 v3, v6, 1, v3
    v_lshrrev_b32 v6, 5, v{vLANE}
    v_lshl_add_u32 v3, v6, 4, v3
    s_xor_b32 s{sT1}, s{sWAVE}, 1
    s_xor_b32 s{sT2}, s{sWAVE}, 2
    s_xor_b32 s{sT3}, s{sWAVE}, 3
    s_mul_i32 s{sT0}, s{sWAVE}, 6144
    s_mul_i32 s{sT1}, s{sT1}, 6144
    s_mul_i32 s{sT2}, s{sT2}, 6144
    s_mul_i32 s{sT3}, s{sT3}, 6144
    v_add_u32 v10, {L_RED}, v{vL16}
    v_add_u32 v6, s{sT0}, v10
    v_add_u32 v7, s{sT1}, v10
    v_add_u32 v8, s{sT2}, v10
    v_add_u32 v9, s{sT3}, v10'''.split('\n')
    order = [(pi, e_) for pi in (1, 2, 3, 0) for e_ in range(2)]
    def scale(i):
        pi, e_ = order[i]
        return [f'v_mul_f32 v{vAC2+8*pi+4*e_+j}, v{G2 + 2*(pi & 1)}, v{vAC2+8*pi+4*e_+j}' for j in range(4)]
    for f in more(-1): emit(f)
    for f in chk(0): emit(f)
    for r in range(15):
        stamp(f'r{r}')
        F = (more(r - 1) if r > 0 else []) + reads(r - 1)
        if r == 0: F = unpack4(BB, vB2) + unpack4(BB + 4, vB2 + 2) + F
        if r == 3: F += gadr + [redo(t) for t in gt]
        if r == 4: F += late[:12]
        if r == 12: F += late[12:]
        if r == 9: F += checked(gt, [G2+1, G2+3], vE + 8, sN2, True)
        if r == 10: F = [f'v_sub_f32 v{G2}, 1.0, v{G2}', f'v_sub_f32 v{G2+2}, 1.0, v{G2+2}'] + F
        if r < 14:
            assert nload > r + 1
            F += chk(r + 1)
        M = []
        for pi, e_ in order:
            c = None
            if r == 0: c = vr(BB + 4*e_, 4) if pi == 0 else '0'
            M.append(mf(vAC2 + 8*pi + 4*e_, wreg(r) + 4*(2*(pi >> 1) + e_), areg(r, pi & 1), c))
        wait_regs([wreg(r) + i for i in range(16)])
        if cfg.m32p:
            M = [x for c in range(4) for x in (f'v_mfma_f32_32x32x16_bf16 {vr(vAC2+16*(1-(c>>1)),16)}, {vr(wreg(r)+4*c,4)}, {vr(areg(r, c&1),4)}, {vr(vAC2+16*(1-(c>>1)),16) if r or c & 1 else 0}', '')]
        j = 0
        for i, m in enumerate(M):
            if cfg.m32p and r in (10, 11):
                k(m)
                tgt = ((i + 1) * len(F) + 7) // 8
                while j < tgt: emit(F[j]); j += 1
                if r == 10 and i >= 6:
                    for t in scale(2*i-10) + scale(2*i-9): k(t)
                if r == 11 and i in (1, 3):
                    for t in scale((i-1)*3) + scale((i-1)*3+1): k(t)
                continue
            if r == 11 and i < 4:
                for t in scale(4 + i): k(t)
            k(m)
            if r == 10 and i >= 4:
                for t in scale(i - 4): k(t)
            tgt = ((i + 1) * len(F) + 7) // 8
            if r == 10: tgt = min(len(F), ((i + 1) * len(F) + 4) // 5) if i < 7 else len(F)
            if r == 11: tgt = 0 if i < 3 else ((i - 2) * len(F) + 4) // 5
            while j < tgt: emit(F[j]); j += 1
        if r == zr:
            assert wnext == 15 and nrd[0] == 8
            for q in range(24, 9, -1): wait_key(('W', q))
            k.wait_lg_all()
            k('s_barrier')
    stamp('mm')
    for pi in range(1, 4):
        for h in range(2):
            k(f'ds_write_b128 v{6+pi}, {vr(vAC2 + 8*pi + 4*h, 4)} offset:{(pi-1)*2048 + 1024*h}')
    k.wait_lg_all()
    k('s_barrier')
    stamp('red')
    R = vAW
    for p in range(3):
        for h in range(2):
            k(f'ds_read_b128 {vr(R + 8*p + 4*h, 4)}, v6 offset:{p*2048 + 1024*h}')
    for p in range(3):
        for i in range(0, 8, 2):
            k(f'v_pk_add_f32 {vr(vAC2+i,2)}, {vr(vAC2+i,2)}, {vr(R+8*p+i,2)}')
    for i in range(4): k(f'v_cvt_pk_bf16_f32 v{vE+i}, v{vAC2+2*i}, v{vAC2+2*i+1}')
    k(f'v_permlane16_swap_b32 v{vE}, v{vE+2}\nv_permlane16_swap_b32 v{vE+1}, v{vE+3}')
    k(f'buffer_store_dwordx4 {vr(vE,4)}, v3, {sr(S_OUT,4)}, s{sT5} offen')
    if g == 1: k('s_branch L_fin' if cfg.stamps else 's_endpgm')

k(f'''
v_lshrrev_b32 v{vE+2}, 1, v{vE}
v_xor_b32 v{vE+2}, v{vE+1}, v{vE+2}
v_lshlrev_b32 v{vE+2}, 4, v{vE+2}
s_lshl2_add_u32 s{sT1}, s{sRB}, s{sW}
s_lshl_b32 s{sT1}, s{sT1}, 15
v_lshl_add_u32 v{vDX}, v{vE}, 10, v{vE+2}
v_add_u32 v{vDX}, s{sT1}, v{vDX}
v_xor_b32 v{vDX+1}, 64, v{vDX}
v_add_u32 v{vDX+1}, 0x2000, v{vDX+1}
v_add_u32 v{vDX+2}, 0x4000, v{vDX}
v_add_u32 v{vDX+3}, 0x4000, v{vDX+1}
v_and_b32 v{vE+2}, 2, v{vE}
v_xor_b32 v{vE+2}, v{vE+1}, v{vE+2}
v_lshlrev_b32 v{vE+2}, 4, v{vE+2}
v_xor_b32 v{vE+3}, 64, v{vE+2}
s_lshl_b32 s{sT3}, s{sGRP}, 7
s_add_u32 s{sT4}, s{sT3}, 1024
s_mul_i32 s{sT3}, s{sT3}, 3
s_movk_i32 s{sT1}, 3072
s_movk_i32 s{sT5}, 0x400
s_cmp_eq_u32 s{sTYPE}, 1
s_cselect_b32 s{sT1}, 2752, s{sT1}
s_cselect_b32 s{sT3}, s{sT3}, s{sT4}
s_cselect_b32 s{sT4}, 0x80, s{sT5}
s_movk_i32 s{sT5}, 0xfc00
s_cselect_b32 s{sT5}, 0x100, s{sT5}
s_mov_b32 s{S_W+2}, 0x180000
s_cselect_b32 s{S_W+2}, {512*2752}, s{S_W+2}
s_cmp_eq_u32 s{sB7}, 1
s_cselect_b32 s{sT4}, {hex(OOB)}, s{sT4}
s_cselect_b32 s{sT5}, {hex(OOB)}, s{sT5}
s_cselect_b32 s{sT2}, 24, 0
s_lshl_b32 s{sT0}, s{sW}, 4
v_add_u32 v{vE+4}, s{sT0}, v{vE}
v_mul_lo_u32 v{vE+4}, v{vE+4}, s{sT1}
s_lshl_b32 s{sSTP}, s{sT1}, 6
s_lshl3_add_u32 s{sT0}, s{sT1}, s{sT3}
v_add3_u32 v{vDW}, v{vE+4}, v{vE+2}, s{sT3}
v_add3_u32 v{vDW+1}, v{vE+4}, v{vE+3}, s{sT0}
v_add_u32 v{vDW+2}, s{sT4}, v{vDW}
v_add_u32 v{vDW+3}, s{sT4}, v{vDW+1}
v_add_u32 v{vDW+4}, s{sT5}, v{vDW}
v_add_u32 v{vDW+5}, s{sT5}, v{vDW+1}
v_and_b32 v{vE+2}, 64, v{vE+2}
v_and_b32 v{vE+3}, 64, v{vE+3}
v_lshlrev_b32 v{vE+2}, s{sT2}, v{vE+2}
v_lshlrev_b32 v{vE+3}, s{sT2}, v{vE+3}
v_and_b32 v{vE+2}, 0x40000000, v{vE+2}
v_and_b32 v{vE+3}, 0x40000000, v{vE+3}
v_add_u32 v{vDW}, v{vE+2}, v{vDW}
v_add_u32 v{vDW+1}, v{vE+3}, v{vDW+1}
s_mov_b32 s{S_X+2}, 0x200000
s_mov_b32 s{S_X+3}, 0x20000
s_mov_b32 s{S_W+3}, 0x20000
''')
for f in item(0): f()
GF = vAC2
GA = vE + 8
e = side('L_nogf', f's_cmp_eq_u32 s{sB7}, 0')
srd_tail(S_GW, 1024)
k(f'v_and_b32 v{vE+2}, 48, v{vLANE}')
for s in range(8):
    k(f's_add_u32 s{sT0}, s{sROT}, {s}\ns_and_b32 s{sT0}, s{sT0}, 7\ns_lshl_b32 s{sT0}, s{sT0}, 7')
    for kk in range(2):
        k(f'buffer_load_dwordx4 {vr(GF + 8*s + 4*kk, 4)}, v{vE+2}, {sr(S_GW,4)}, s{sT0} offen offset:{64*kk}')
e()
for q in range(1, cfg.d0):
    for f in item(q): f()
common_setup(1)
xw_addr(f's{sW4K}', '0')
CI = vAW + 48
k(f'''
v_add_u32 v{vWA}, 0x18000, v{vWA}
v_xor_b32 v{vWA+1}, 32, v{vWA}
v_xor_b32 v{vWA+2}, 64, v{vWA}
v_xor_b32 v{vWA+3}, 0x60, v{vWA}
v_lshlrev_b32 v{vE+5}, 3, v{vE+3}
s_mul_i32 s{sT0}, s{sGRP}, 384
s_cmp_eq_u32 s{sTYPE}, 1
s_cselect_b32 s{sT0}, s{sT0}, {hex(OOB)}
''')
for c in range(4):
    k(f'buffer_load_dwordx2 {vr(CI + 4*c, 2)}, v{vE+5}, {sr(S_B1,4)}, s{sT0} offen offset:{256 + 32*c}')
k(f'''
s_lshl2_add_u32 s{sT0}, s{sRB}, s{sW}
''')
ck_off(sCK, sT0)
k(f'''
s_mul_i32 s{sH}, s{sT0}, {RTS}
s_lshl_b32 s{sGO}, s{sT0}, 8
s_add_u32 s{sGO}, s{sGO}, {WS_G}
s_mul_i32 s{sT0}, s{sGRP}, {3*UNT}
s_add_u32 s{sT0}, s{sT0}, {2*UNT}
s_mul_i32 s{sT1}, s{sGRP}, {UNT}
s_add_u32 s{sT1}, s{sT1}, {22*UNT}
s_cmp_eq_u32 s{sTYPE}, 1
s_cselect_b32 s{sT0}, s{sT0}, s{sT1}
s_add_u32 s{sH}, s{sH}, s{sT0}
s_cmp_eq_u32 s{sB7}, 1
s_cselect_b32 s{sH}, {hex(OOB)}, s{sH}
s_cmp_eq_u32 s{sTYPE}, 1
s_cselect_b32 s{sEPS}, 0, {f32(1e-6)}
''')
def xreg(t, rt): return vWR + 8*t + 4*rt
def gate_mm(s):
    e = side(f'L_ng{s}', f's_cmp_eq_u32 s{sB7}, 0')
    k.wait_lg_all()
    for kk in range(2):
        for rt in range(2):
            k(mf(GA + 4*rt, GF + 8*s + 4*kk, xreg(2*s + kk, rt), '0' if s == 0 and kk == 0 else None))
    e()
STREAM = []
NW1 = 4 + cfg.q9 + cfg.q10 + cfg.q11
assert 4 + cfg.q9 + cfg.q10 >= 8 and cfg.q9 >= 1
for q in range(cfg.d0, 10 + NW1): STREAM += item(q)
done = [8*cfg.d0]
LIM = [40, 40, 48, 56, 64, 72, 80, 88, 96, 108, 120, 132]
def take(i):
    n = min(LIM[i], done[0] + (cfg.q0 if i < 7 else {9: 4*cfg.q9, 10: 4*cfg.q10, 11: 4*cfg.q11}.get(i, 8))) - done[0]
    done[0] += n
    r = STREAM[:2*n]; del STREAM[:2*n]
    return r
win = 0
for s in range(8):
    k.wait_vm_tok(tokQ[s + (s == 7)])
    if cfg.xo >= 2 and s > 0: k.waitcnt(lgkm=4)
    else: k.wait_lg_all()
    k('s_barrier')
    stamp(f'B{s}')
    w = ((s % 5) * 32768) >> 16
    if w != win:
        k(f'v_add_u32 v{vXR}, {hex(((w - win) << 16) & 0xffffffff)}, v{vXR}\nv_add_u32 v{vXR+1}, {hex(((w - win) << 16) & 0xffffffff)}, v{vXR+1}')
        win = w
    if s == 3: k(DBTEXT(vE+7))
    F = take(s)
    R = [f'ds_read_b128 {vr(xreg(2*s+kk, rt), 4)}, v{vXR+kk} offset:{((s % 5) * 32768) % 65536 + 2048*rt}' for kk in range(2) for rt in range(2)]
    if s == 2:
        for c in range(4): R += unpack4(CI + 4*c, CI + 4*c)
    if s == 3: R += [f'v_add_f32 v{CI+i}, s{sEPS}, v{CI+i}' for i in range(16)]
    if cfg.xo == 1:
        for r in R[:4]: k(r)
        weave(F, R[4:])
    elif cfg.xo == 2:
        weave(F, R[4:])
        for r in R[:4]: k(r)
    else:
        for f in F[:2]: f()
        weave(F[2:], R)
    if s >= 1: gate_mm(s - 1)
    if s == 6: get_epoch(vE+7)
gate_mm(7)
e = side('L_nogate', f's_cmp_eq_u32 s{sB7}, 0')
k(f'''
v_cmp_gt_u32 vcc, 16, v{vLANE}
v_cndmask_b32 v{vE}, v{GA+4}, v{GA}, vcc
v_mul_f32 v{vE}, {f32(-1.4426950408889634)}, v{vE}
v_exp_f32 v{vE}, v{vE}
v_lshlrev_b32 v{vE+2}, 3, v{vLANE}
v_add_f32 v{vE}, 1.0, v{vE}
v_mov_b32 v{vE+1}, s{sN}
v_rcp_f32 v{vE}, v{vE}
s_mov_b32 exec_hi, 0
buffer_store_dwordx2 {vr(vE,2)}, v{vE+2}, {sr(S_WS,4)}, s{sGO} offen sc1
s_mov_b32 exec_hi, -1
''')
e()
POOL = [vWF + 4*i for i in range(8)] + [vE + 4*i for i in range(4)]
def wfrag(t, c): return POOL[(4*t + c) % 12]
def w2reads(t):
    return [f'ds_read_b64_tr_b16 {vr(wfrag(t, c) + 2*h, 2)}, v{vWA+c} offset:{4096*t + 512*h}' for c in range(4) for h in range(2)]
k.wait_lg_all()
for r in w2reads(0) + w2reads(1): k(r)
assert done[0] >= 80
k(f'v_lshl_add_u32 v{vL4}, v{vLANE}, 2, s{sCK}')
k('s_barrier')
stamp('B8')
k(f's_setprio {cfg.prg1}')
MV = {0: (), 1: (0, 1), 2: (2, 3), 3: (4,)}
for t in range(16):
    if t in (4, 8, 12):
        k.wait_vm_tok(tokQ[{4: 11, 8: 13, 12: 14}[t]])
        if t > 4: wait_regs(range(vWR + 16*MV[t//4 - 1][0], vWR + 16*MV[t//4 - 1][-1] + 16))
        k('s_barrier')
        stamp(f'B{8 + t//4}')
    if t % 4 == 0:
        D = take(8 + t//4)
        nd = 2*((len(D) + 7) // 8)
        Mv = moves(MV[t//4])
        if cfg.nomv & 2: Mv = [x for x in Mv if not x.startswith('ds_')]
    R = w2reads(t + 2) if t + 2 < 16 else []
    X = D[nd*(t%4):nd*(t%4)+nd]
    nm = (len(Mv) + 2) // 3
    Y = Mv[nm*(t%4):nm*(t%4)+nm]
    Z = []
    for i in range(4): Z += R[2*i:2*i+1] + X[(i*len(X)+3)//4:((i+1)*len(X)+3)//4] + R[2*i+1:2*i+2] + Y[(i*len(Y)+3)//4:((i+1)*len(Y)+3)//4]
    R = Z
    wait_regs([wfrag(t, c) + i for c in range(4) for i in range(4)])
    M = [mf(vAC2 + ((c >> 1)*2 + rt)*8 + (c & 1)*4, wfrag(t, c), xreg(t, rt), vr(CI + 4*c, 4) if t == 0 else None) for c in range(4) for rt in range(2)]
    if cfg.m32: M = [f'v_mfma_f32_32x32x16_bf16 {vr(vAC2+16*(c&1),16)}, {vr(wfrag(t, c),4)}, {vr(xreg(t, c>>1),4)}, {vr(vAC2+16*(c&1),16) if t or c > 1 else 0}' for c in range(4)]
    j = 0
    for i, m in enumerate(M):
        k(m)
        tgt = ((i + 1) * len(R) + len(M) - 1) // len(M)
        while j < tgt: emit(R[j]); j += 1
assert not STREAM
k.wait_vm_tok(tokQ[17])
k.wait_lg_all()
k('s_barrier')
stamp('B12')
k(f's_setprio {cfg.pe1}')
k(f's_cmp_eq_u32 s{sTYPE}, 1\ns_cbranch_scc1 L_G1B')
snap1 = k.snapshot(); nst1 = nst[0]
C0_1 = 8
def early(n): return [f for r in range(n) for f in loadA(r)]
def wpairs(lo, hi):
    L = []
    for r in range(lo, hi):
        it = item(10 + r)
        for i in range(0, 8, 2): L.append(lambda a=it[i], b=it[i+1]: (a(), b()))
    return L
def fill(n, lo, hi): return early(n) + wpairs(lo, hi) if cfg.afirst else wpairs(lo, hi) + early(n)
W0 = NW1 + cfg.wa1
consts('A', C0_1)
GG = 4
gtexts = [f'buffer_load_dwordx2 {vr(GG+2*rt,2)}, v3, {sr(S_WS,4)}, s{sGO} offen offset:{128*rt} sc1' for rt in range(2)]
k(f'v_and_b32 v3, 15, v{vLANE}\nv_lshlrev_b32 v3, 3, v3')
for t in gtexts: k(t)
PQ = vAW + 32
assert cfg.e1a <= 4
V = stx('e1') + phi(vAC2, PQ, vE, C0_1, cfg.pk) + phi(vAC2 + 16, PQ + 8, vE, C0_1, cfg.pk) + stx('e2')
weave_int(V, fill(cfg.e1a, NW1, W0), cfg.gint1, cfg.f1)
k(f'''
v_lshlrev_b32 v10, 3, v{vLANE}
v_lshrrev_b32 v11, 4, v{vLANE}
v_lshlrev_b32 v11, 3, v11
''')
checked(gtexts, [GG+1, GG+3], vE, sN2)
k('s_barrier')
stamp('e3')
KV, ZZ = vE, vE + 8
for c in range(4):
    k(f'ds_read_b64 {vr(ZZ+2*c,2)}, v11 offset:{L_KV + 2048 + 32*c}')
    k(f'ds_read_b64 {vr(KV+2*c,2)}, v10 offset:{L_KV + 512*c}')
DEN = vWF
def idx(c, rt): return ((c >> 1)*2 + rt)*2 + (c & 1)
for c in range(4):
    for rt in range(2):
        i = idx(c, rt)
        k(f'v_mfma_f32_16x16x16_bf16 {vr(DEN+4*i,4)}, {vr(ZZ+2*c,2)}, {vr(PQ+2*i,2)}, 0')
for c in range(4):
    for rt in range(2):
        i = idx(c, rt)
        k(f'v_mfma_f32_16x16x16_bf16 {vr(vAC2+4*i,4)}, {vr(KV+2*c,2)}, {vr(PQ+2*i,2)}, 0')
for i in range(8): k(f'v_add_f32 v{DEN+4*i}, s{sEPS}, v{DEN+4*i}')
for i in range(8): k(f'v_rcp_f32 v{DEN+4*i}, v{DEN+4*i}')
for i in range(8): k(f'v_mul_f32 v{DEN+4*i}, v{DEN+4*i}, v{GG + 2*((i >> 1) & 1)}')
OO = PQ
stamp('e4')
for f in range(4):
    for i in (2*f, 2*f + 1):
        for h in range(2):
            k(f'v_pk_mul_f32 {vr(vAC2+4*i+2*h,2)}, {vr(vAC2+4*i+2*h,2)}, {vr(DEN+4*i,2)} op_sel_hi:[1,0]')
    for j in range(4): k(f'v_cvt_pk_bf16_f32 v{OO+4*f+j}, v{vAC2+8*f+2*j}, v{vAC2+8*f+2*j+1}')
    if f & 1:
        for t in strec(OO + 4*f - 4, sH, STP*(f >> 1), vE + 2*f): k(t)
for r in range(cfg.e1a, max(cfg.e1a, cfg.e1b)):
    for f in loadA(r): f()
k('s_branch L_P2_1')
vmA = [dict(x) for x in k.vm]
k.label('L_G1B')
k.restore(snap1); nst[0] = nst1
consts('B', C0_1)
V = stx('e1') + gelu(vAC2, vWF, vE, C0_1, cfg.pk) + stx('e2') + strec(vWF, sH, 0, vWF + 16) + stx('e3')
V += gelu(vAC2 + 16, vWF + 8, vE, C0_1, cfg.pk) + stx('e4') + strec(vWF + 8, sH, STP, vWF + 18)
weave_int(V, fill(cfg.e1b, NW1, W0), cfg.gint1, cfg.f1)
for r in range(cfg.e1b, max(cfg.e1a, cfg.e1b)):
    for f in loadA(r): f()
phase2(1, vmA, max(cfg.e1a, cfg.e1b), 15)

WT = [f'buffer_load_dword v10, v{vE+6}, {sr(S_W2,4)}, s{sT0} offen', f'buffer_load_dword v11, v{vE+7}, {sr(S_WO,4)}, s{sT2} offen']
def stouch():
    k(f'''
    s_mul_i32 s{sT0}, s2, {43*128}
    s_mul_i32 s{sT2}, s{sW}, {11*128}
    s_min_u32 s{sT2}, s{sT2}, {32*128}
    s_add_u32 s{sT0}, s{sT0}, s{sT2}
    s_lshl2_add_u32 s{sT2}, s2, s{sW}
    s_lshl_b32 s{sT2}, s{sT2}, 9
    s_mov_b32 s{S_W2+2}, {1376*1024}
    s_mov_b32 s{S_W2+3}, 0x20000
    s_mov_b32 s{S_WO+2}, {512*1024}
    s_mov_b32 s{S_WO+3}, 0x20000
    ''')
    k.wait_lg_all()
    op, dst, o = ('dword', 'vcc_lo', 0) if cfg.wts != 2 else ('dwordx2', 'vcc', 60)
    for i in range(11 if cfg.wts < 3 else 1): k.raw(f'    s_buffer_load_{op} {dst}, {sr(S_W2,4)}, s{sT0} offset:{128*i+o}')
    for i in range(4 if cfg.wts < 3 else 1): k.raw(f'    s_buffer_load_{op} {dst}, {sr(S_WO,4)}, s{sT2} offset:{128*i+o}')
    k.smem_pending.add(('s', 'vcc'))
def wtouch():
    if cfg.wts and cfg.wsp == 1: stouch()
    if not cfg.wtouch: return
    k(f'''
    s_mul_i32 s{sT0}, s2, {43*128}
    s_lshl_b32 s{sT2}, s2, 11
    s_cmp_eq_u32 s{sW}, 1
    s_cselect_b32 s{sT0}, s{sT0}, {hex(OOB)}
    s_cmp_eq_u32 s{sW}, 2
    s_cselect_b32 s{sT2}, s{sT2}, {hex(OOB)}
    v_min_u32 v{vE+6}, 42, v{vLANE}
    v_lshlrev_b32 v{vE+6}, 7, v{vE+6}
    v_and_b32 v{vE+7}, 0x780, v{vE+6}
    ''')
    if cfg.wtd < 0:
        for t in WT: k(t)
k.label('L_G0')
k.restore(snapE); nst[0] = nstE; tokQ.clear(); p2w[0] = 0
k(f's_or_b32 s{sT5}, s2, s{sWAVE}')
e = side('L_noclr', f's_cmp_lg_u32 s{sT5}, 0')
k(f'''
s_mov_b32 s{sT0}, {WS_EP}
buffer_load_dword v{vE+8}, off, {sr(S_WS,4)}, s{sT0} sc1
s_waitcnt vmcnt(0)
v_add_u32 v{vE+8}, 2, v{vE+8}
v_or_b32 v{vE+8}, 1, v{vE+8}
s_mov_b64 exec, 1
buffer_store_dword v{vE+8}, off, {sr(S_DBG,4)}, 0 sc1
buffer_store_dword v{vE+8}, off, {sr(S_WS,4)}, s{sT0} sc1
s_mov_b64 exec, -1
''')
e()
if cfg.wts and cfg.wsp == 0: stouch()
common_setup(0)
vEP, C0_0 = 4, 6
k(f's_cmp_eq_u32 s{sTYPE}, 1\ns_cbranch_scc1 L_G0B')
snap0 = k.snapshot(); nst0 = nst[0]
CI0 = vWF

def pass1(typ):
    nfr = 10 if typ == 'A' else 8
    def fr(t, i): return vWR + 4*(nfr*(t & 1) + i)
    def reads(t):
        s, kk = t >> 1, t & 1
        off = ((s % 5) * 32768) % 65536
        X = lambda i, f: f'ds_read_b128 {vr(fr(t, f), 4)}, v{vXR+kk} offset:{off + 2048*i}'
        W = lambda a, u, f: [f'ds_read_b64_tr_b16 {vr(fr(t, f) + 2*h, 2)}, v{vWA+a} offset:{off + 16384 + 8192*u + 4096*kk + 512*h}' for h in range(2)]
        if typ == 'A':
            return W(0, 0, 8) + [X(0, 0)] + W(0, 1, 9) + [X(i, i) for i in range(1, 8)]
        return W(0, 0, 4) + [X(0, 0), X(1, 1)] + W(1, 0, 5) + [X(2, 2), X(3, 3)] + W(0, 1, 6) + W(1, 1, 7)
    def mms(t):
        if typ == 'A':
            return [(mf(vAW + 32*u + 4*i, fr(t, i), fr(t, 8+u), (vr(CI0, 4) if u == 0 else '0') if t == 0 else None), (i, 8+u)) for i in range(8) for u in range(2)]
        order = [(0,0),(0,1),(1,0),(1,1),(0,2),(0,3),(1,2),(1,3)] + [(w, i) for w in (2, 3) for i in range(4)]
        return [(mf(vAW + (((w >> 1)*4 + i + 6) % 8)*8 + (w & 1)*4, fr(t, 4+w), fr(t, i), vr(CI0 + 4*w, 4) if t == 0 else None), (i, 4+w)) for w, i in order]
    na = 1 if typ == 'A' else 2
    if cfg.prio: k(f's_setprio {cfg.prio}')
    k('s_barrier')
    stamp('B0')
    for r in reads(0): k(r)
    win = 0
    for t in range(16):
        R = []
        if t % 2 == 1:
            s = (t + 1) // 2
            k('s_barrier')
            stamp(f'B{s}')
            w = ((s % 5) * 32768) >> 16
            if s < 8 and w != win:
                d = hex(((w - win) << 16) & 0xffffffff); win = w
                R += [f'v_add_u32 v{vWA+a}, {d}, v{vWA+a}' for a in range(na)] + [f'v_add_u32 v{vXR+a}, {d}, v{vXR+a}' for a in range(2)]
        if t + 1 < 16: R += reads(t + 1)
        if t == 8: R.append(DBTEXT(vEP))
        if cfg.wtouch and t == cfg.wtd: R.append(WT[0])
        if cfg.wtouch and cfg.wtd >= 0 and t == cfg.wtd + cfg.wtd2: R.append(WT[1])
        M = mms(t)
        j = 0
        for i, (m, fs) in enumerate(M):
            if i % 8 == 0:
                wait_regs([fr(t, f) + q for mm in M[i:i+8] for f in mm[1] for q in range(4)])
            k(m)
            tgt = min(len(R), ((i + 1) * len(R) + 11) // 12)
            while j < tgt: k(R[j]); j += 1
    if cfg.prio: k('s_setprio 0')

def pass2(V, nv, extra=[]):
    assert W0 + cfg.g4 <= 13 or cfg.g4 == 0
    V = list(V)
    if cfg.prio2: k(f's_setprio {cfg.prio2}')
    get_epoch(vEP)
    p2w[0] = 0
    for i in range(4):
        F = moves(MV[i])
        if cfg.nomv & 1: F = [x for x in F if not x.startswith('ds_')]
        if cfg.mvb == 1:
            for x in F: k(x)
            F = []
        if i == 3: F += [f for r in range(W0, W0 + cfg.g4) for f in item(10 + r)] + extra
        n = nv - len(F) // 2
        if cfg.mvb == 2:
            weave(V[:n], []); weave([], F)
        else: weave(V[:n], F)
        V = V[n:]
        k.wait_lg_all()
        k('s_barrier')
        stamp(f'B{9+i}')
    k(f's_setprio {cfg.pe0}')
    return V

W1 = W0 + cfg.g4; W2 = min(15, W1 + cfg.we0)
k(f'''
s_lshl2_add_u32 s{sT0}, s{sGRP}, s{sW}
s_lshl4_add_u32 s{sT1}, s{sT0}, s{sRB}
s_lshl_b32 s{sH}, s{sT1}, 10
s_add_u32 s{sH}, s{sH}, {WS_KVP}
v_and_b32 v{vE+5}, 1, v{vLANE}
v_cmp_eq_u32 {sr(sH+1,2)}, 1, v{vE+5}
v_lshlrev_b32 v8, 3, v{vLANE}
s_lshl_b32 s{sT1}, s{sW}, 9
v_add_u32 v8, s{sT1}, v8
v_lshlrev_b32 v9, 2, v{vE+5}
v_lshl_add_u32 v9, v{vE+3}, 3, v9
s_lshl_b32 s{sT0}, s{sW}, 5
v_add_u32 v9, s{sT0}, v9
''')
xw_addr('0', f's{sT0}')
wtouch()
consts('A', C0_0)
for i in range(4): k(f'v_mov_b32 v{CI0+i}, s{sEPS}')
ONES = vWF + 4
for i in range(4): k(f'v_mov_b32 v{ONES+i}, 0x3f803f80')
pass1('A')
PK, VV = vAC2, vAC2 + 16
KVA, ZA = vWF + 8, vWF + 12
V = phi(vAW, PK, vE, C0_0, 0)
V += [f'v_cvt_pk_bf16_f32 v{VV+i}, v{vAW+32+2*i}, v{vAW+32+2*i+1}' for i in range(16)]
V += [mf(KVA, PK, VV, '0'), mf(ZA, PK, ONES, '0'), mf(KVA, PK+4, VV+4), mf(ZA, PK+4, ONES)]
V += phi(vAW + 16, PK + 8, vE, C0_0, 0)
V += [mf(KVA, PK+8, VV+8), mf(ZA, PK+8, ONES), mf(KVA, PK+12, VV+12), mf(ZA, PK+12, ONES)]
V += [f'v_cvt_pk_bf16_f32 v{vE+i}, v{KVA+2*i}, v{KVA+2*i+1}' for i in range(4)]
V += [f'v_cndmask_b32_e64 v{vE+2}, v{vE+2}, v{vE+3}, {sr(sH+1,2)}', f'v_mov_b32 v{vE+3}, s{sN}', st4(vE, sH, 0)]
KB = vAC2
kt = [f'buffer_load_dwordx4 {vr(KB+4*r,4)}, v{vL16}, {sr(S_WS,4)}, s{sH + r//4} offen offset:{1024*(r%4)} sc1' for r in range(16)]
V += [f's_and_b32 s{sH}, s{sH}, 0xffffc000', f's_add_u32 s{sH+1}, s{sH}, 4096', f's_add_u32 s{sH+2}, s{sH}, 8192', f's_add_u32 s{sH+3}, s{sH}, 12288']
if cfg.kve: assert len(V) <= 3*cfg.nva - 40
V = pass2(V, cfg.nva, kt if cfg.kve else [])
for v in V: k(v)
if not cfg.kve:
    for t in kt: k(t)
stamp('e1')
for f in fill(cfg.e0a, W1, W2): f()
stamp('e2')
k(f's_lshl_b32 s{sT5}, s{sN}, 4\ns_mov_b32 s{sSEL0}, 0x00003f80\ns_mov_b32 s{sSEL1}, 0x3f800000')
checked(kt, [KB + 4*r + 3 for r in range(16)], vE, sT5)
stamp('e3')
SUM = vE
V = []
for r in range(16):
    for j in range(3):
        for h in range(2):
            d = SUM + 6*(r & 1) + 2*j + h
            V.append(f'v_dot2_f32_bf16 v{d}, v{KB+4*r+j}, s{sSEL0+h}, {"0" if r < 2 else "v%d" % d}')
for i in range(0, 6, 2): V.append(f'v_pk_add_f32 {vr(SUM+i,2)}, {vr(SUM+i,2)}, {vr(SUM+6+i,2)}')
for i in range(3): V.append(f'v_cvt_pk_bf16_f32 v{vE+12+i}, v{SUM+2*i}, v{SUM+2*i+1}')
weave(V, [f for r in range(cfg.e0a, max(cfg.e0a, cfg.e0b)) for f in loadA(r)])
k(f'ds_write_b64 v8, {vr(vE+12,2)} offset:{L_KV}')
k(f'ds_write_b32 v9, v{vE+14} offset:{L_KV + 2048}')
k.wait_lg_all()
stamp('e4')
k('s_barrier')
k('s_branch L_P2_0')
vmA = [dict(x) for x in k.vm]

k.label('L_G0B')
k.restore(snap0); nst[0] = nst0; tokQ.clear()
k(f'''
s_and_b32 s{sT2}, s{sW}, 1
s_lshl_b32 s{sT2}, s{sT2}, 6
s_mul_i32 s{sT0}, s{sGRP}, 384
s_add_u32 s{sT0}, s{sT0}, s{sT2}
v_lshlrev_b32 v{vE+5}, 3, v{vE+3}
''')
for w in range(4):
    k(f'buffer_load_dwordx2 {vr(CI0 + 4*w, 2)}, v{vE+5}, {sr(S_B1,4)}, s{sT0} offen offset:{128*(w >> 1) + 32*(w & 1)}')
k(f'''
s_mul_i32 s{sT0}, s{sGRP}, {3*UNT}
s_and_b32 s{sT1}, s{sW}, 2
s_lshl2_add_u32 s{sT1}, s{sRB}, s{sT1}
''')
ck_off(sT3, sT1)
k(f'''
s_mul_i32 s{sT4}, s{sT2}, {1792//64}
s_sub_u32 s{sT3}, s{sT3}, s{sT4}
v_lshl_add_u32 v{vL4}, v{vLANE}, 2, s{sT3}
v_subrev_u32 v5, {RTS - 512}, v{vL4}
s_mul_i32 s{sT1}, s{sT1}, {RTS}
s_add_u32 s{sT1}, s{sT1}, s{sT0}
s_mul_i32 s{sT3}, s{sT2}, {STP//64}
s_add_u32 s{sH}, s{sT1}, s{sT3}
s_add_u32 s{sH+1}, s{sH}, {RTS}
s_add_u32 s{sH+2}, s{sH}, {UNT}
s_add_u32 s{sH+3}, s{sH+1}, {UNT}
s_cmp_eq_u32 s{sB7}, 1
s_cselect_b32 s{sH+2}, {hex(OOB)}, s{sH+2}
s_cselect_b32 s{sH+3}, {hex(OOB)}, s{sH+3}
''')
k(f's_and_b32 s{sT1}, s{sW}, 2\ns_lshl_b32 s{sT1}, s{sT1}, 12')
xw_addr(f's{sT1}', f's{sT2}')
k(f'v_xor_b32 v{vWA+1}, 32, v{vWA}')
wtouch()
consts('B', C0_0)
for w in range(4):
    for t in unpack4(CI0 + 4*w, CI0 + 4*w): k(t)
pass1('B')
def btile(i, pk):
    o = vAC2 + 8*i
    return gelu(vAW + 16*((i + 3) % 4), o, vE, C0_0, pk) + strec(o, sH + i, 0, vWF + 2*i, 5 if i & 1 else vL4)
ntile = min(4, -(-(4*cfg.nvb - 16) // 128))
V = []
for i in range(ntile): V += btile(i, 0)
V = pass2(V, cfg.nvb)
V = stx('e1') + V + stx('e2')
for i in range(ntile, 4): V += btile(i, cfg.pk) + stx(f'e{i+1}')
weave_int(V, fill(cfg.e0b, W1, W2), cfg.gint, cfg.f0)
for r in range(cfg.e0b, max(cfg.e0a, cfg.e0b)):
    for f in loadA(r): f()
phase2(0, vmA, max(cfg.e0a, cfg.e0b), W2)
k.label('L_fin')
k('s_nop 1')

if cfg.stamps:
    stamp('sto')
    k('s_waitcnt vmcnt(0)')
    stamp('end')
    k(f'''
    s_waitcnt lgkmcnt(0)
    s_cmp_lg_u32 s{sW}, 0
    s_cbranch_scc1 L_end
    ''')
    if cfg.probe >= 0:
        k(f's_cmp_lg_u32 s{sGI}, {cfg.pgrp}\ns_cbranch_scc1 L_end')
        if cfg.ptype >= 0:
            k(f's_cmp_lg_u32 s{sTYPE}, {cfg.ptype}\ns_cbranch_scc1 L_end')
        k(f'''
        s_sub_u32 s{sT0}, s{STREG[cfg.probe]}, s{STREG[0]}
        s_lshl_b32 s{sT0}, s{sT0}, 2
        s_add_u32 s{sT0}, s{sT0}, 5000
        L_probe:
        s_memrealtime s[72:73]
        s_waitcnt lgkmcnt(0)
        s_sub_u32 s{sT1}, s72, s{STREG[0]}
        s_cmp_lt_u32 s{sT1}, s{sT0}
        s_cbranch_scc1 L_probe
        s_branch L_end
        ''')
    k(f'''
    s_mov_b64 exec, 1
    s_lshl1_add_u32 s{sT0}, s2, s{sGI}
    s_mul_i32 s{sT0}, s{sT0}, {8*(nst[0]+1)}
    s_add_u32 s{sT0}, s{sT0}, {STAMP_OFF}
    ''')
    for s in range(nst[0]):
        k(f'v_mov_b32 v4, s{STREG[s]}\nv_mov_b32 v5, s{STREG[s]+1}\nbuffer_store_dwordx2 v[4:5], off, {sr(S_WS,4)}, s{sT0} offset:{8*s}\ns_nop 1')
    k(f'''
    s_sub_u32 s{sT1}, 0x4000, s{sSPIN}
    s_mul_i32 s{sT1}, s{sT1}, 100
    s_add_u32 s{sT1}, s{sT1}, s{STREG[0]}
    s_addc_u32 s{sT2}, s{STREG[0]+1}, 0
    v_mov_b32 v4, s{sT1}
    v_mov_b32 v5, s{sT2}
    buffer_store_dwordx2 v[4:5], off, {sr(S_WS,4)}, s{sT0} offset:{8*nst[0]}
    ''')
k.label('L_end')
k('s_endpgm')

hdr = open('gated_mix__linear_attn_block__dense_activation_gelu__prompt.s.ref').read().split('; @launch')[0]
text = hdr + f'''; @launch grid=(256,1,1) block=(512,1,1) lds={LDS_BYTES}
.amdgcn_target "amdgcn-amd-amdhsa--gfx950"
.text
.globl {KNAME}
.p2align 8
.type {KNAME},@function
{KNAME}:
{k.text()}
{"".join(slow)}
.section .rodata,"a"
.p2align 6
.amdhsa_kernel {KNAME}
  .amdhsa_next_free_vgpr 256
  .amdhsa_next_free_sgpr 102
  .amdhsa_accum_offset 256
  .amdhsa_group_segment_fixed_size 0
  .amdhsa_kernarg_size 96
  .amdhsa_user_sgpr_count 2
  .amdhsa_user_sgpr_kernarg_segment_ptr 1
  .amdhsa_system_sgpr_workgroup_id_x 1
.end_amdhsa_kernel
'''
open(sys.argv[1], 'w').write(text)
print('instructions', k.ninstr, 'nops', k.nnop, 'stamps', nst[0])
```

```python
import sys, struct
from kern import *

KNAME = 'gated_mix__linear_attn_block__dense_activation_gelu__prompt_kernel'
def f32(x): return '0x%08x' % struct.unpack('<I', struct.pack('<f', x))[0]

class Cfg:
    stamps = 0
    clk = 0
    rot = 7
    wrot = 3
    wtouch = 1
    wtd = -1
    wtd2 = 0
    tx = 0
    c3 = 0
    gx = 0
    wn1 = 7
    lb = 1
    ka = 1
    sp1 = 0
    so = 1
    rmul = 1
    rx = 0
    wts = 0
    wsp = 1
    d0 = 2
    nvb = 95
    nva = 95
    gint = 12
    prio = 1
    probe = -1
    pgrp = 0
    ptype = -1
    nocheck = 0
    prio2 = 0
    pk = 1
    ord0 = 8
    ord1 = 6
    lrd0 = 3
    lrd1 = 1
    e0a = 4
    e0b = 4
    e1a = 4
    e1b = 4
    z0 = 4
    q0 = 10
    g4 = 2
    dper = 1
    gint1 = 8
    xo = 2
    q9 = 2
    q10 = 2
    q11 = 0
    wa1 = 0
    we0 = 0
    pe0 = 0
    pe1 = 2
    pp0 = 0
    pp1 = 0
    f0 = 0
    f1 = 0
    afirst = 1
    kve = 0
    slp = 0
    cm = 0
    nomv = 0
    nost = 0
    mvb = 0
    m32 = 0
    m32p = 0
    prg1 = 1
    whit = 0
    u3hit = 0
    aoob = 0
    mp = 0
    ssc = 1
    xr = 1
    asc = 1
    awin = 4
cfg = Cfg()
for a in sys.argv[2:]:
    k_, v_ = a.split('='); setattr(cfg, k_, int(v_))

STP, UNT = 2048, 4096
RTS = 30 * UNT
WS_CB = 64 * RTS
OOBU = 0x7f200000
WS_KVP = 0x880000
WS_G = WS_KVP + 512 * 1024
WS_EP = WS_G + 16384
WS_END = WS_EP + 128
STAMP_OFF = 0x8000000
WS_SIZE = 0x10000000
OOB = 0x7f000000
LDS_BYTES = 163840
L_KV = 2*16384 + 12288
L_RED = 5 * 16384

S_X, S_W, S_B1, S_GW, S_WS, S_DBG, S_W2, S_WO, S_OUT, S_B2 = 8, 12, 16, 20, 24, 28, 32, 36, 40, 44
sWAVE, sW, sRB, sGRP, sTYPE, sROT, sSTP, sW4K, sW2K, sSLAB, sCT, sB7, sSPIN, sN, sN2 = range(48, 63)
sEPS = 63
sC1 = 64
sT0, sT1, sT2, sT3, sT4, sT5 = range(66, 72)
sU = 72
sH = 87
sM21 = 91
sGO = 93
sCK = 88
sSEL0, sSEL1 = 64, 65
sN10 = 23
STREG = [94, 96, 98, 100, 4, 6, 44, 46]
sGI = 3

vLANE, vL16 = 1, 2
vDX, vDW = 3, 7
vDP = 13
vXR = 15
vWA = 17
vP2 = 21
vA = 25
vB2 = 28
vL4 = 12
vWR = 32
vAW = 112
vCS = 160
vAC2 = 176
vWF = 208
vE = 240
vDUM = 0

k = Kern()
slow = []
nst = [0]
SETS = {1: ['st', 'B0', 'B8', 'B12', 'P2', 'r2', 'r11', 'end'],
        2: ['st', 'B0', 'B1', 'B2', 'B3', 'B4', 'B5', 'B6'],
        3: ['st', 'B6', 'B7', 'B8', 'B9', 'B10', 'B11', 'B12'],
        4: ['st', 'P2', 'r0', 'r2', 'r4', 'r6', 'r8', 'r10'],
        5: ['st', 'r10', 'r11', 'r13', 'mm', 'red', 'sto', 'end'],
        6: ['st', 'B12', 'e1', 'e2', 'e3', 'e4', 'P2', 'r0'],
        7: ['st', 'ka', 'i0', 'i1', 'f0', 'f1', 'B0', 'B1']}
def stx(name):
    if cfg.stamps and name in SETS[cfg.stamps]:
        return [f'{"s_memtime" if cfg.clk else "s_memrealtime"} {sr(STREG[SETS[cfg.stamps].index(name)], 2)}']
    return []
def stamp(name):
    if cfg.stamps and name in SETS[cfg.stamps]:
        k(f'{"s_memtime" if cfg.clk else "s_memrealtime"} {sr(STREG[SETS[cfg.stamps].index(name)], 2)}')
    nst[0] = 8

def side(label, cond):
    k(cond + f'\ns_cbranch_scc1 {label}')
    snap = k.snapshot(); k.track = False
    def end():
        k('s_nop 7')
        k.out.append(label + ':'); k.restore(snap); k.track = True
    return end

def mf(d, a, b, c=None):
    return f'v_mfma_f32_16x16x32_bf16 {vr(d,4)}, {vr(a,4)}, {vr(b,4)}, {vr(d,4) if c is None else c}'

def wait_regs(regs):
    regs = {('v', r) for r in regs}
    l = None
    for i, op in enumerate(k.lg):
        if op['wr'] & regs: l = len(k.lg) - 1 - i
    if l is not None:
        if k.smem_pending: l = 0
        k.waitcnt(lgkm=l)

def emit(x):
    return x() if callable(x) else k(x)
def weave(V, F):
    n = len(V); j = 0
    if n == 0:
        for f in F: emit(f)
        return
    for i, v in enumerate(V):
        tgt = ((i + 1) * len(F) + n - 1) // n
        while j < tgt: emit(F[j]); j += 1
        emit(v)
def weave_int(V, F, step, front=0):
    F = list(F)
    use = [set(Ins(v).rd) | set(Ins(v).wr) for v in V]
    last = -step
    while front and F and not any(getattr(F[0], 'regs', set()) & u for u in use):
        emit(F.pop(0)); front -= 1; last = 0
    for i, v in enumerate(V):
        if F and i - last >= step and not any(getattr(F[0], 'regs', set()) & u for u in use[i:]):
            emit(F.pop(0)); last = i
        emit(v)
    for f in F: emit(f)

def merge_vm(*paths):
    order, cnt, ent = [], {}, {}
    for vm in sorted(paths, key=lambda v: -sum(1 for o in v if o.get('key') or o['wr'])):
        ks = []
        for i, o in enumerate(vm):
            key = o.get('key') or (o['text'] if o['wr'] else None)
            if key is None: continue
            ks.append(key); ent[key] = o
            cnt[key] = min(cnt.get(key, 99), len(vm) - 1 - i)
        if not order: order = ks
        else: assert order[len(order) - len(ks):] == ks, (order, ks)
    out = []
    for key in reversed(order):
        assert cnt[key] >= len(out)
        while len(out) < cnt[key]: out.insert(0, {'id': -1, 'wr': set(), 'text': '', 'redo': False})
        out.insert(0, dict(ent[key]))
    return out
def wait_key(key):
    for i, o in enumerate(k.vm):
        if o.get('key') == key:
            k.waitcnt(vm=len(k.vm) - 1 - i); return

uid = [0]
def addchain(kk, t, r):
    r = list(r)
    if len(r) == 2:
        kk(f'v_add_u32 v{t}, v{r[0]}, v{r[1]}'); return
    if len(r) <= 9:
        parts = [r[:3] + r[6:], r[3:6]]
    else:
        h = (len(r) // 2) | 1
        parts = [r[:h], r[h:]]
    first = [True, True]
    tail = []
    while parts[0] or parts[1]:
        for c in range(2):
            q = parts[c]
            if not q: continue
            if first[c]:
                parts[c] = q[3:]; first[c] = False
                kk(f'v_add3_u32 v{t+c}, v{q[0]}, v{q[1]}, v{q[2]}')
            elif len(q) >= 2:
                parts[c] = q[2:]
                kk(f'v_add3_u32 v{t+c}, v{t+c}, v{q[0]}, v{q[1]}')
            else:
                parts[c] = []; tail.append(q[0])
    if len(tail) == 2:
        kk(f'v_add3_u32 v{t}, v{t}, v{tail[0]}, v{tail[1]}'); tail = []
    if tail: kk(f'v_add3_u32 v{t}, v{t}, v{t+1}, v{tail[0]}')
    else: kk(f'v_add_u32 v{t}, v{t}, v{t+1}')
def checked(texts, regs, T, expect, defer=False):
    uid[0] += 1; u = uid[0]
    def check(kk):
        if expect is None:
            kk(f'v_cmp_eq_u32 vcc, 0, v{regs[0]}')
            return
        addchain(kk, T, regs)
        kk(f'v_cmp_ne_u32 vcc, s{expect}, v{T}')
    if cfg.nocheck and expect is not None: return []
    def fin():
        k(f's_cbranch_vccnz L_slow{u}')
        k.label(f'L_back{u}')
        vm = [dict(x) for x in k.vm]
        while vm and not vm[0]['redo']: vm.pop(0)
        s = Kern()
        s.label(f'L_slow{u}')
        s(f's_sub_u32 s{sSPIN}, s{sSPIN}, 1\ns_cbranch_scc1 L_give{u}\ns_nop 7\ns_nop 3')
        if cfg.slp: s(f's_sleep {cfg.slp}')
        for t in texts: s(t)
        s('s_waitcnt vmcnt(0)')
        check(s)
        s(f's_cbranch_vccnz L_slow{u}')
        for op in vm:
            s(op['text'] if op['redo'] else f'buffer_load_dword v{vDUM}, off, {sr(S_DBG,4)}, 0 offset:4080')
            s.vm = []
        s(f's_branch L_back{u}')
        s.label(f'L_give{u}')
        s(f's_mov_b32 s{sSPIN}, 0\ns_waitcnt vmcnt(0)\ns_branch L_back{u}')
        slow.append(s.text())
    L = []
    check(L.append)
    L.append(fin)
    if defer: return L
    for x in L: emit(x)

def srd_tail(base, size):
    k(f's_mov_b32 s{base+2}, {size}\ns_mov_b32 s{base+3}, 0x20000')

MAP = f'''s_lshr_b32 s{sT2}, s2, 5
v_readfirstlane_b32 s{sWAVE}, v{vE}
s_and_b32 s{sT1}, s2, 1
s_lshl3_add_u32 s{sRB}, s{sT1}, s{sT2}
s_bfe_u32 s{sT1}, s2, 0x20003
s_lshl1_add_u32 s{sROT}, s{sT1}, s{sT2}
s_and_b32 s{sROT}, s{sROT}, {cfg.rot}
s_mul_i32 s{sROT}, s{sROT}, {cfg.rmul}
s_mul_i32 s{sT1}, s2, {cfg.rx}
s_add_u32 s{sROT}, s{sROT}, s{sT1}
s_and_b32 s{sROT}, s{sROT}, 7
s_and_b32 s{sT1}, s2, 6
s_xor_b32 s{sT1}, s{sT1}, {cfg.gx}
s_bfe_u32 s{sT2}, s2, 0x10004
s_add_u32 s{sGRP}, s{sT1}, s{sT2}
s_and_b32 s{sT1}, s2, 0x1e
s_cmp_eq_u32 s{sT1}, {0x1e ^ cfg.gx}
s_cselect_b32 s{sB7}, 1, 0''' if not cfg.mp else f'''s_lshr_b32 s{sT2}, s2, 7
v_readfirstlane_b32 s{sWAVE}, v{vE}
s_and_b32 s{sT1}, s2, 7
s_lshl1_add_u32 s{sRB}, s{sT1}, s{sT2}
s_bfe_u32 s{sGRP}, s2, 0x30004
s_lshl2_add_u32 s{sROT}, s{sT2}, s{sGRP}
s_mul_i32 s{sT1}, s{sT1}, {cfg.xr}
s_add_u32 s{sROT}, s{sROT}, s{sT1}
s_and_b32 s{sROT}, s{sROT}, {cfg.rot}
s_and_b32 s{sT1}, s2, 0x78
s_cmp_eq_u32 s{sT1}, 0x78
s_cselect_b32 s{sB7}, 1, 0'''
KA2 = f'''s_load_dwordx2 {sr(S_B1,2)}, s[0:1], 40
s_load_dwordx2 {sr(S_GW,2)}, s[0:1], 64
s_load_dwordx2 {sr(S_W2,2)}, s[0:1], 48
s_load_dwordx2 {sr(S_WO,2)}, s[0:1], 16
s_load_dwordx2 {sr(S_B2,2)}, s[0:1], 56
s_load_dwordx2 {sr(S_OUT,2)}, s[0:1], 72
'''
stamp('st')
k(f'''
s_cmp_ge_u32 s2, 256
s_cbranch_scc1 L_end
s_load_dwordx2 {sr(S_X,2)}, s[0:1], 0
s_bfe_u32 s{sTYPE}, s2, 0x10003
s_mul_i32 s{sT0}, s{sTYPE}, 24
s_add_u32 s{sT0}, s{sT0}, 8
s_load_dwordx2 {sr(S_W,2)}, s[0:1], s{sT0}
s_load_dwordx2 {sr(S_WS,2)}, s[0:1], 88
s_load_dwordx2 {sr(S_DBG,2)}, s[0:1], 80
{'' if cfg.ka else KA2}
v_lshrrev_b32 v{vE}, 6, v0
v_and_b32 v{vLANE}, 63, v0
{MAP}
s_and_b32 s{sW}, s{sWAVE}, 3
s_lshl_b32 s{sW4K}, s{sW}, 12
s_lshl_b32 s{sW2K}, s{sW}, 11
v_lshlrev_b32 v{vL16}, 4, v{vLANE}
v_lshrrev_b32 v{vE}, 3, v{vLANE}
v_and_b32 v{vE+1}, 7, v{vLANE}
s_mov_b32 s{S_WS+2}, {hex(WS_SIZE) if cfg.stamps else hex(WS_END)}
s_mov_b32 s{S_WS+3}, 0x20000
s_mov_b32 s{S_DBG+2}, 256
s_mov_b32 s{S_DBG+3}, 0x20000
s_cmp_lt_u32 s{sWAVE}, 4
s_cbranch_scc1 L_G0
''')
snapE = k.snapshot(); nstE = nst[0]

CMAP = f'''s_lshr_b32 s{sT1}, s2, 6
    s_lshl2_add_u32 s{sSLAB}, s{sT0}, s{sT1}
    s_bfe_u32 s{sCT}, s2, 0x30003
    s_add_u32 s{sT1}, s{sT1}, s{sCT}''' if not cfg.cm else f'''s_bfe_u32 s{sCT}, s2, 0x30004
    s_xor_b32 s{sT1}, s{sCT}, s{sTYPE}
    s_and_b32 s{sT1}, s{sT1}, 1
    s_lshr_b32 s{sT2}, s2, 7
    s_lshl1_add_u32 s{sT1}, s{sT2}, s{sT1}
    s_lshl2_add_u32 s{sSLAB}, s{sT0}, s{sT1}
    s_lshr_b32 s{sT1}, s{sCT}, 1
    s_lshl1_add_u32 s{sT1}, s{sT2}, s{sT1}
    {"s_add_u32 s%d, s%d, s%d" % (sT1, sT1, sTYPE) if cfg.cm == 2 else ""}'''
LB2 = f'''buffer_load_dwordx2 {vr(vB2+2,2)}, v{vB2}, {sr(S_B2,4)}, 0 offen offset:32
buffer_load_dwordx2 {vr(vB2,2)}, v{vB2}, {sr(S_B2,4)}, 0 offen'''
def common_setup(grp):
    srd_tail(S_B1, 2752); srd_tail(S_W2, 1376*1024); srd_tail(S_WO, 512*1024)
    srd_tail(S_B2, 1024); srd_tail(S_OUT, 2048*1024)
    k(f'''
    s_and_b32 s{sT0}, s2, 7
    {CMAP}
    s_and_b32 s{sT1}, s{sT1}, {cfg.wrot}
    s_lshr_b32 s{sT3}, s{sW}, 1
    s_lshl1_add_u32 s{sT1}, s{sT1}, s{sT3}
    s_lshl_b32 s{sU+11}, s{sT1}, 12
    s_cmp_eq_u32 s{sT1}, 7
    s_cselect_b32 s{sT1}, 0, s{sT1}
    s_mul_i32 s{sU}, s{sT1}, 12288
    v_and_b32 v{vE+2}, 6, v{vE}
    v_xor_b32 v{vE+2}, v{vE+2}, v{vE+1}
    v_lshlrev_b32 v{vE+2}, 4, v{vE+2}
    v_lshl_add_u32 v{vDP}, v{vE}, 10, v{vE+2}
    s_lshl_b32 s{sT0}, s{sCT}, 7
    s_and_b32 s{sT2}, s{sW}, 1
    s_lshl_b32 s{sT2}, s{sT2}, 15
    s_add_u32 s{sT2}, s{sT2}, s{sT0}
    v_add_u32 v{vDP}, s{sT2}, v{vDP}
    v_add_u32 v{vDP+1}, 0x2000, v{vDP}
    v_and_b32 v{vE+2}, 15, v{vLANE}
    v_lshrrev_b32 v{vE+3}, 4, v{vLANE}
    v_lshlrev_b32 v{vE+5}, 3, v{vE+3}
    s_and_b32 s{sT2}, s{sW}, 2
    s_lshl_b32 s{sT2}, s{sT2}, 5
    s_add_u32 s{sT0}, s{sT0}, s{sT2}
    v_add_u32 v{vB2}, s{sT0}, v{vE+5}
    {'' if cfg.lb else LB2}
    v_bfe_u32 v{vE+4}, v{vLANE}, 1, 1
    v_and_b32 v{vE+5}, 3, v{vE}
    v_lshl_add_u32 v{vE+4}, v{vE+5}, 1, v{vE+4}
    v_lshlrev_b32 v{vE+4}, 4, v{vE+4}
    v_and_b32 v{vE+5}, 1, v{vLANE}
    v_lshl_add_u32 v{vE+4}, v{vE+5}, 3, v{vE+4}
    v_lshrrev_b32 v{vE+5}, 2, v{vLANE}
    v_lshl_add_u32 v{vE+5}, v{vE+5}, 7, v{vE+4}
    v_add_u32 v{vE+5}, s{sW4K}, v{vE+5}
    v_xor_b32 v{vP2}, s{sT2}, v{vE+5}
    v_xor_b32 v{vP2+1}, 32, v{vP2}
    v_xor_b32 v{vP2+2}, 64, v{vP2}
    v_xor_b32 v{vP2+3}, 0x60, v{vP2}
    s_lshl1_add_u32 s{sT4}, s{sSLAB}, {grp}
    s_mul_i32 s{sT0}, s{sT4}, {RTS}
    s_and_b32 s{sT1}, s{sW}, 1
    s_lshl_b32 s{sT2}, s{sT1}, 11
    s_add_u32 s{sT0}, s{sT0}, s{sT2}
    s_lshl_b32 s{sT2}, s{sT1}, 10
    v_xor_b32 v{vA}, s{sT2}, v{vL16}
    v_xor_b32 v{vA+1}, 0x400, v{vA}
    v_add_u32 v{vA}, s{sT0}, v{vA}
    v_add_u32 v{vA+1}, s{sT0}, v{vA+1}
    s_lshr_b32 s{sT0}, s{sT4}, 3
    s_mul_i32 s{sT0}, s{sT0}, {RTS}
    s_and_b32 s{sT4}, s{sT4}, 7
    s_lshl1_add_u32 s{sT4}, s{sT4}, s{sT1}
    s_lshl_b32 s{sT4}, s{sT4}, 8
    s_add_u32 s{sT0}, s{sT0}, s{sT4}
    s_add_u32 s{sT0}, s{sT0}, {WS_CB}
    v_lshl_add_u32 v{vA+2}, v{vLANE}, 2, s{sT0}
    s_mov_b32 s{sSPIN}, 0x4000
    s_cmp_lt_u32 s{sW}, 3
    s_cselect_b32 s{sM21}, s{sW4K}, 15360
    s_cselect_b32 s{sM21+1}, 1024, 0
    s_mov_b32 s{sGI}, {grp}
    ''')
    for i in range(1, 11):
        k(f's_add_u32 s{sU+i}, s{sU+i-1}, 24576\ns_sub_u32 s{sT0}, s{sU+i}, {7*12288}\ns_cselect_b32 s{sU+i}, s{sU+i}, s{sT0}')
    for i in range(12, 15):
        k(f's_add_u32 s{sU+i}, s{sU+i-1}, 8192\ns_and_b32 s{sU+i}, s{sU+i}, 0x7fff')
    k(f's_lshl_b32 s{sT3}, s{sT3}, 12\ns_add_u32 s{sU+3}, s{sU+3}, s{sT3}')
    for i in range(4, 11): k(f's_add_u32 s{sU+i}, s{sU+i}, {4096 if i < 7 else 8192}')
    for i in range(11, 15): k(f's_add_u32 s{sU+i}, s{sU+i}, {22*4096}')
    k(f's_cmp_ge_u32 s{sW}, 2\ns_cselect_b32 s{sU+10}, {21*4096}, s{sU+10}')
    k(f's_cmp_eq_u32 s{sW}, 3\ns_cselect_b32 s{sU+10}, {hex(OOBU)}, s{sU+10}')

def ck_off(dst, rt):
    k(f'''
    s_lshr_b32 s{sT4}, s{rt}, 3
    s_sub_u32 s{sT4}, s{rt}, s{sT4}
    s_mul_i32 s{sT4}, s{sT4}, {RTS}
    s_and_b32 s{dst}, s{rt}, 7
    s_lshl_b32 s{dst}, s{dst}, 9
    s_add_u32 s{dst}, s{dst}, {WS_CB}
    s_sub_u32 s{dst}, s{dst}, s{sT4}
    ''')

def xw_addr(rowbase_s, tile_s):
    k(f'''
    v_lshrrev_b32 v{vE+5}, 1, v{vE+2}
    v_xor_b32 v{vE+5}, v{vE+5}, v{vE+3}
    v_lshlrev_b32 v{vE+5}, 4, v{vE+5}
    v_lshl_add_u32 v{vE+5}, v{vE+2}, 7, v{vE+5}
    v_add_u32 v{vXR}, {rowbase_s}, v{vE+5}
    v_xor_b32 v{vXR+1}, 64, v{vXR}
    v_bfe_u32 v{vE+5}, v{vLANE}, 2, 2
    v_lshl_add_u32 v{vE+5}, v{vE+3}, 3, v{vE+5}
    v_lshl_add_u32 v{vE+5}, v{vE+5}, 7, v{vE+4}
    v_xor_b32 v{vWA}, {tile_s}, v{vE+5}
    ''')

tokQ = {}
def item(q):
    L = []
    def add(pre, vo, srd_, so, last=False):
        def f():
            t = k(f'buffer_load_dwordx4 v{vo}, {sr(srd_,4)}, s{so} offen lds')
            if last: tokQ[q] = t; k.vm[-1]['key'] = ('W', q)
        pl = pre.split('\n')
        L.append(lambda: k('\n'.join(pl[-1:] + pl[:-1])))
        L.append(f)
    if q < 8:
        base = (q % 5) * 32768
        hdr = f's_add_u32 s{sT0}, s{sROT}, {q}\ns_and_b32 s{sT0}, s{sT0}, 7\ns_lshl_b32 s{sT1}, s{sT0}, 7\ns_mul_i32 s{sT2}, s{sT0}, s{sSTP}\n'
        for i in range(4):
            add((hdr if i == 0 else '') + f's_add_u32 m0, s{sW4K}, {base + 1024*i}', vDX + i, S_X, sT1)
            u, j = i // 2, i % 2
            add(f's_add_u32 m0, s{sW2K}, {base + 16384 + 8192*u + 1024*j}', vDW + 2*u + j, S_W, sT2, i == 3)
    elif q < 10:
        for b in range(4):
            s = 4*(q - 8) + b
            hdr = f's_add_u32 s{sT0}, s{sROT}, {s}\ns_and_b32 s{sT0}, s{sT0}, 7\ns_mul_i32 s{sT2}, s{sT0}, s{sSTP}\n'
            for j in range(2):
                add((hdr if j == 0 else '') + f's_add_u32 m0, s{sW2K}, {98304 + 8192*s + 1024*j}', vDW + (0 if cfg.u3hit else 4) + j, S_W, sT2, b == 3 and j == 1)
    else:
        r = q - 10
        pos = WPOS[r] * 16384
        for j in range(4):
            hdr = {0: f's_lshl4_add_u32 s{sT4}, s{sU + r}, {0 if r < 11 else hex((-22*65536) & 0xffffffff)}\n' if not cfg.whit else f's_mov_b32 s{sT4}, {0 if cfg.whit == 1 else hex(OOB)}\n', 2: f's_add_u32 s{sT4}, s{sT4}, 0x4000\n'}.get(j, '')
            m = f's_add_u32 m0, s{sW4K}, {pos + 1024*j}'
            if r == 10: m = f's_add_u32 m0, s{sM21}, {pos}' if j == 0 else f's_add_u32 m0, m0, s{sM21+1}'
            add(hdr + m, vDP + (j & 1), S_W2 if r < 11 or cfg.whit else S_WO, sT4, j == 3)
    return L

WPOS = [0, 1, 2, 3, 4, 5, 6, 7, 0, 1, 2, 3, 8, 9, 4]
p2w = [0]
def rdP2(dst, r):
    pos = WPOS[r] * 16384
    L = []
    if pos >> 16 != p2w[0]:
        L = [f'v_add_u32 v{vP2+c}, {hex((((pos >> 16) - p2w[0]) << 16) & 0xffffffff)}, v{vP2+c}' for c in range(4)]
        p2w[0] = pos >> 16
    return L + [f'ds_read_b64_tr_b16 {vr(dst + 4*c + 2*h, 2)}, v{vP2+c} offset:{(pos % 65536) + 2048*h}' for c in range(4) for h in range(2)]
def moves(rs):
    L = []
    for r in rs:
        L += rdP2(vWR + 16*r, r)
    return L

Atext = {}
def areg(r, j): return vAW + 8*r + 4*j if r < 6 else (vWR + 8*(r - 6) + 4*j)
def loadA(r):
    L = []
    def mk(t, key):
        Atext[key] = t
        def f():
            k.redo = True; k(t if cfg.asc == 1 else t.replace(' sc1', {0: '', 2: ' nt', 3: ' sc0'}[cfg.asc])); k.redo = False
            k.vm[-1]['key'] = key; k.vm[-1]['text'] = t
        f.regs = set(Ins(t).wr)
        return f
    for j in range(2):
        L.append(mk(f'buffer_load_dwordx4 {vr(areg(r, j), 4)}, v{vA+j}, {sr(S_WS,4)}, s{sU+r if not cfg.aoob else sU+10} offen sc1', (r, j)))
    if cfg.aoob != 3: L.append(mk(f'buffer_load_dword v{vCS+r}, v{vA+2}, {sr(S_WS,4)}, s{sU+r if not cfg.aoob else sU+10} offen sc1', (r, 2)))
    else: Atext[(r, 2)] = ''
    return L

def gelu(acc, out, T, C0, pk):
    L = []
    p = lambda r: vr(r, 2)
    if pk:
        for i in range(0, 16, 2): L.append(f'v_pk_mul_f32 {p(T+i)}, {p(acc+i)}, {p(acc+i)}')
        for i in range(0, 16, 2): L.append(f'v_pk_fma_f32 {p(T+i)}, {p(T+i)}, {sr(sC1,2)}, {vr(C0,2)}')
        for i in range(0, 16, 2): L.append(f'v_pk_mul_f32 {p(T+i)}, {p(acc+i)}, {p(T+i)}')
        for i in range(16): L.append(f'v_exp_f32 v{T+i}, v{T+i}')
        for i in range(0, 16, 2): L.append(f'v_pk_add_f32 {p(T+i)}, {p(T+i)}, 1.0 op_sel_hi:[1,0]')
        for i in range(16): L.append(f'v_rcp_f32 v{T+i}, v{T+i}')
        for i in range(0, 16, 2): L.append(f'v_pk_mul_f32 {p(T+i)}, {p(acc+i)}, {p(T+i)}')
    else:
        for i in range(16): L.append(f'v_mul_f32 v{T+i}, v{acc+i}, v{acc+i}')
        for i in range(16): L.append(f'v_fma_f32 v{T+i}, v{T+i}, s{sC1}, v{C0}')
        for i in range(16): L.append(f'v_mul_f32 v{T+i}, v{acc+i}, v{T+i}')
        for i in range(16): L.append(f'v_exp_f32 v{T+i}, v{T+i}')
        for i in range(16): L.append(f'v_add_f32 v{T+i}, 1.0, v{T+i}')
        for i in range(16): L.append(f'v_rcp_f32 v{T+i}, v{T+i}')
        for i in range(16): L.append(f'v_mul_f32 v{T+i}, v{acc+i}, v{T+i}')
    for i in range(0, 16, 2): L.append(f'v_cvt_pk_bf16_f32 v{out+i//2}, v{T+i}, v{T+i+1}')
    return L

def phi(acc, out, T, C0, pk):
    L = []
    p = lambda r: vr(r, 2)
    if pk:
        for i in range(0, 16, 2): L.append(f'v_pk_fma_f32 {p(T+i)}, {p(acc+i)}, {sr(sC1,2)}, {vr(C0,2)}')
    else:
        for i in range(16): L.append(f'v_fma_f32 v{T+i}, v{acc+i}, s{sC1}, v{C0}')
    for i in range(16): L.append(f'v_exp_f32_e64 v{T+i}, v{T+i} clamp')
    for i in range(16): L.append(f'v_max_f32 v{acc+i}, s{sEPS}, v{acc+i}')
    if pk:
        for i in range(0, 16, 2): L.append(f'v_pk_add_f32 {p(T+i)}, {p(T+i)}, {p(acc+i)}')
    else:
        for i in range(16): L.append(f'v_add_f32 v{T+i}, v{T+i}, v{acc+i}')
    for i in range(0, 16, 2): L.append(f'v_cvt_pk_bf16_f32 v{out+i//2}, v{T+i}, v{T+i+1}')
    return L

def st4(src, s_off, imm):
    return f'buffer_store_dwordx4 {vr(src,4)}, v{vL16}, {sr(S_WS,4)}, s{s_off} offen offset:{imm} sc1'

def strec(src, s_off, imm, T, vck=None):
    L = []
    addchain(L.append, T, range(src, src + 8))
    L.insert(1, st4(src, s_off, imm)); L.insert(3, st4(src + 4, s_off, imm + 1024))
    L.append(f'v_sub_u32 v{T}, s{sN}, v{T}')
    L.append(f'buffer_store_dword v{T}, v{vck or vL4}, {sr(S_WS,4)}, s{s_off} offen offset:{imm // 8} sc1')
    if cfg.nost: L = [x for x in L if not x.startswith('buffer')]
    if not cfg.ssc: L = [x.replace(' sc1', '') for x in L]
    return L

def get_epoch(reg):
    checked([DBTEXT(reg)], [reg], None, None)
    k(f'v_readfirstlane_b32 s{sN}, v{reg}\ns_cmp_eq_u32 s{sW}, 3\ns_cselect_b32 s{sN10}, 0, s{sN}\ns_lshl_b32 s{sN2}, s{sN}, 1')
def DBTEXT(reg): return f'buffer_load_dword v{reg}, off, {sr(S_DBG,4)}, 0 sc1'

def consts(typ, C0):
    if typ == 'A':
        c1, c0 = 1.4426950408889634, -1e-6*1.4426950408889634
    else:
        c1, c0 = -2.302208198*0.044715, -2.302208198
    k(f'''
    s_mov_b32 s{sC1}, {f32(c1)}
    s_mov_b32 s{sC1+1}, {f32(c1)}
    s_mov_b32 s{sEPS}, {f32(1e-6)}
    v_mov_b32 v{C0}, {f32(c0)}
    v_mov_b32 v{C0+1}, {f32(c0)}
    ''')

def unpack4(dst, src):
    return [f'v_and_b32 v{dst+3}, 0xffff0000, v{src+1}', f'v_lshlrev_b32 v{dst+2}, 16, v{src+1}',
            f'v_and_b32 v{dst+1}, 0xffff0000, v{src}', f'v_lshlrev_b32 v{dst}, 16, v{src}']

def phase2(g, vmA, nload, wnext):
    k.label(f'L_P2_{g}')
    k('s_nop 1')
    k.vm = merge_vm(k.vm, vmA); k.lg = []
    stamp('P2')
    ord_, lrd = (cfg.ord0, cfg.lrd0) if g == 0 else (cfg.ord1, cfg.lrd1)
    k(f's_setprio {cfg.pp0 if g == 0 else cfg.pp1}')
    BUF = [vWF + 16, vWF, vAW, vAW + 16, vAW + 32]
    def wreg(r): return vWR + 16*r if r < 5 else BUF[r % 5]
    FREE = {5: -1, 6: -1, 7: 1, 8: 3, 9: 5, 10: 5, 11: 6, 12: 7, 13: 8, 14: 9}
    zr = cfg.z0
    def more(r):
        nonlocal nload, wnext
        L = []
        while nload < 15:
            need = (nload - 6) // 2 if nload >= 6 else -1
            if need > r or nload > r + cfg.awin: break
            if nload >= 11 and r < ord_: break
            if nload >= 7 and r < lrd: break
            L += loadA(nload)
            nload += 1
        for i in range(cfg.dper):
            if wnext < 15:
                L += wpairs(wnext, wnext + 1)
                wnext += 1
        return L
    nrd = [5]
    def reads(r):
        L = []
        while nrd[0] < 15 and FREE[nrd[0]] <= r and (nrd[0] < 8 or r >= zr) and (not L or nrd[0] <= r + 3):
            L += rdP2(wreg(nrd[0]), nrd[0]); nrd[0] += 1
        return L
    def chk(r): return checked([Atext[(r, j)] for j in range(3)], [vCS + r] + list(range(areg(r, 0), areg(r, 0) + 8)), vE + 8, sN10 if r == 10 else sN, True)
    G2 = vE + 12
    BB = vE
    gadr = f'''s_lshl1_add_u32 s{sT0}, s{sSLAB}, {g}
    s_lshl_b32 s{sGO}, s{sT0}, 8
    s_add_u32 s{sGO}, s{sGO}, {WS_G}
    s_and_b32 s{sT1}, s{sW}, 1
    s_lshl_b32 s{sT2}, s{sT1}, 7
    v_and_b32 v3, 15, v{vLANE}
    v_lshlrev_b32 v4, 3, v3
    v_add_u32 v4, s{sT2}, v4
    v_xor_b32 v5, 0x80, v4'''.split('\n')
    gt = [f'buffer_load_dwordx2 {vr(G2+2*j,2)}, v{4+j}, {sr(S_WS,4)}, s{sGO} offen sc1' for j in range(2)]
    def redo(t):
        def f():
            k.redo = True; k(t); k.redo = False
        return f
    late = f'''s_lshl1_add_u32 s{sT0}, s{sT0}, s{sT1}
    s_lshl_b32 s{sT5}, s{sT0}, 14
    s_lshl_b32 s{sT0}, s{sCT}, 7
    s_add_u32 s{sT5}, s{sT5}, s{sT0}
    s_and_b32 s{sT0}, s{sW}, 2
    s_lshl_b32 s{sT0}, s{sT0}, 5
    s_add_u32 s{sT5}, s{sT5}, s{sT0}
    v_lshlrev_b32 v3, 10, v3
    v_and_b32 v6, 16, v{vLANE}
    v_lshl_add_u32 v3, v6, 1, v3
    v_lshrrev_b32 v6, 5, v{vLANE}
    v_lshl_add_u32 v3, v6, 4, v3
    s_xor_b32 s{sT1}, s{sWAVE}, 1
    s_xor_b32 s{sT2}, s{sWAVE}, 2
    s_xor_b32 s{sT3}, s{sWAVE}, 3
    s_mul_i32 s{sT0}, s{sWAVE}, 6144
    s_mul_i32 s{sT1}, s{sT1}, 6144
    s_mul_i32 s{sT2}, s{sT2}, 6144
    s_mul_i32 s{sT3}, s{sT3}, 6144
    v_add_u32 v10, {L_RED}, v{vL16}
    v_add_u32 v6, s{sT0}, v10
    v_add_u32 v7, s{sT1}, v10
    v_add_u32 v8, s{sT2}, v10
    v_add_u32 v9, s{sT3}, v10'''.split('\n')
    order = [(pi, e_) for pi in (1, 2, 3, 0) for e_ in range(2)]
    def scale(i):
        pi, e_ = order[i]
        return [f'v_mul_f32 v{vAC2+8*pi+4*e_+j}, v{G2 + 2*(pi & 1)}, v{vAC2+8*pi+4*e_+j}' for j in range(4)]
    for f in more(-1): emit(f)
    for f in chk(0): emit(f)
    for r in range(15):
        stamp(f'r{r}')
        F = (more(r - 1) if r > 0 else []) + reads(r - 1)
        if r == 0: F = unpack4(BB, vB2) + unpack4(BB + 4, vB2 + 2) + F
        if r == 3: F += gadr + [redo(t) for t in gt]
        if r == 4: F += late[:12]
        if r == 12: F += late[12:]
        if r == 9: F += checked(gt, [G2+1, G2+3], vE + 8, sN2, True)
        if r == 10: F = [f'v_sub_f32 v{G2}, 1.0, v{G2}', f'v_sub_f32 v{G2+2}, 1.0, v{G2+2}'] + F
        if r < 14:
            assert nload > r + 1
            F += chk(r + 1)
        M = []
        for pi, e_ in order:
            c = None
            if r == 0: c = vr(BB + 4*e_, 4) if pi == 0 else '0'
            M.append(mf(vAC2 + 8*pi + 4*e_, wreg(r) + 4*(2*(pi >> 1) + e_), areg(r, pi & 1), c))
        wait_regs([wreg(r) + i for i in range(16)])
        if cfg.m32p:
            M = [x for c in range(4) for x in (f'v_mfma_f32_32x32x16_bf16 {vr(vAC2+16*(1-(c>>1)),16)}, {vr(wreg(r)+4*c,4)}, {vr(areg(r, c&1),4)}, {vr(vAC2+16*(1-(c>>1)),16) if r or c & 1 else 0}', '')]
        j = 0
        for i, m in enumerate(M):
            if cfg.m32p and r in (10, 11):
                k(m)
                tgt = ((i + 1) * len(F) + 7) // 8
                while j < tgt: emit(F[j]); j += 1
                if r == 10 and i >= 6:
                    for t in scale(2*i-10) + scale(2*i-9): k(t)
                if r == 11 and i in (1, 3):
                    for t in scale((i-1)*3) + scale((i-1)*3+1): k(t)
                continue
            if r == 11 and i < 4:
                for t in scale(4 + i): k(t)
            k(m)
            if r == 10 and i >= 4:
                for t in scale(i - 4): k(t)
            tgt = ((i + 1) * len(F) + 7) // 8
            if r == 10: tgt = min(len(F), ((i + 1) * len(F) + 4) // 5) if i < 7 else len(F)
            if r == 11: tgt = 0 if i < 3 else ((i - 2) * len(F) + 4) // 5
            while j < tgt: emit(F[j]); j += 1
        if r == zr:
            assert wnext == 15 and nrd[0] == 8
            for q in range(24, 9, -1): wait_key(('W', q))
            k.wait_lg_all()
            k('s_barrier')
    stamp('mm')
    for pi in range(1, 4):
        for h in range(2):
            k(f'ds_write_b128 v{6+pi}, {vr(vAC2 + 8*pi + 4*h, 4)} offset:{(pi-1)*2048 + 1024*h}')
    k.wait_lg_all()
    k('s_barrier')
    stamp('red')
    R = vAW
    for p in range(3):
        for h in range(2):
            k(f'ds_read_b128 {vr(R + 8*p + 4*h, 4)}, v6 offset:{p*2048 + 1024*h}')
    for p in range(3):
        for i in range(0, 8, 2):
            k(f'v_pk_add_f32 {vr(vAC2+i,2)}, {vr(vAC2+i,2)}, {vr(R+8*p+i,2)}')
    for i in range(4): k(f'v_cvt_pk_bf16_f32 v{vE+i}, v{vAC2+2*i}, v{vAC2+2*i+1}')
    k(f'v_permlane16_swap_b32 v{vE}, v{vE+2}\nv_permlane16_swap_b32 v{vE+1}, v{vE+3}')
    k(f'buffer_store_dwordx4 {vr(vE,4)}, v3, {sr(S_OUT,4)}, s{sT5} offen')
    if g == 1: k('s_branch L_fin' if cfg.stamps else 's_endpgm')

if cfg.sp1: k(f's_setprio {cfg.sp1}')
k(f'''
v_lshrrev_b32 v{vE+2}, 1, v{vE}
v_xor_b32 v{vE+2}, v{vE+1}, v{vE+2}
v_lshlrev_b32 v{vE+2}, 4, v{vE+2}
s_lshl2_add_u32 s{sT1}, s{sRB}, s{sW}
s_lshl_b32 s{sT1}, s{sT1}, 15
v_lshl_add_u32 v{vDX}, v{vE}, 10, v{vE+2}
v_add_u32 v{vDX}, s{sT1}, v{vDX}
v_xor_b32 v{vDX+1}, 64, v{vDX}
v_add_u32 v{vDX+1}, 0x2000, v{vDX+1}
v_add_u32 v{vDX+2}, 0x4000, v{vDX}
v_add_u32 v{vDX+3}, 0x4000, v{vDX+1}
v_and_b32 v{vE+2}, 2, v{vE}
v_xor_b32 v{vE+2}, v{vE+1}, v{vE+2}
v_lshlrev_b32 v{vE+2}, 4, v{vE+2}
v_xor_b32 v{vE+3}, 64, v{vE+2}
s_lshl_b32 s{sT3}, s{sGRP}, 7
s_add_u32 s{sT4}, s{sT3}, 1024
s_mul_i32 s{sT3}, s{sT3}, 3
s_movk_i32 s{sT1}, 3072
s_movk_i32 s{sT5}, 0x400
s_cmp_eq_u32 s{sTYPE}, 1
s_cselect_b32 s{sT1}, 2752, s{sT1}
s_cselect_b32 s{sT3}, s{sT3}, s{sT4}
s_cselect_b32 s{sT4}, 0x80, s{sT5}
s_movk_i32 s{sT5}, 0xfc00
s_cselect_b32 s{sT5}, 0x100, s{sT5}
s_mov_b32 s{S_W+2}, 0x180000
s_cselect_b32 s{S_W+2}, {512*2752}, s{S_W+2}
s_cmp_eq_u32 s{sB7}, 1
s_cselect_b32 s{sT4}, {hex(OOB)}, s{sT4}
s_cselect_b32 s{sT5}, {hex(OOB)}, s{sT5}
s_cselect_b32 s{sT2}, 24, 0
s_lshl_b32 s{sT0}, s{sW}, 4
v_add_u32 v{vE+4}, s{sT0}, v{vE}
v_mul_lo_u32 v{vE+4}, v{vE+4}, s{sT1}
s_lshl_b32 s{sSTP}, s{sT1}, 6
s_lshl3_add_u32 s{sT0}, s{sT1}, s{sT3}
v_add3_u32 v{vDW}, v{vE+4}, v{vE+2}, s{sT3}
v_add3_u32 v{vDW+1}, v{vE+4}, v{vE+3}, s{sT0}
v_add_u32 v{vDW+2}, s{sT4}, v{vDW}
v_add_u32 v{vDW+3}, s{sT4}, v{vDW+1}
v_add_u32 v{vDW+4}, s{sT5}, v{vDW}
v_add_u32 v{vDW+5}, s{sT5}, v{vDW+1}
v_and_b32 v{vE+2}, 64, v{vE+2}
v_and_b32 v{vE+3}, 64, v{vE+3}
v_lshlrev_b32 v{vE+2}, s{sT2}, v{vE+2}
v_lshlrev_b32 v{vE+3}, s{sT2}, v{vE+3}
v_and_b32 v{vE+2}, 0x40000000, v{vE+2}
v_and_b32 v{vE+3}, 0x40000000, v{vE+3}
v_add_u32 v{vDW}, v{vE+2}, v{vDW}
v_add_u32 v{vDW+1}, v{vE+3}, v{vDW+1}
s_mov_b32 s{S_X+2}, 0x200000
s_mov_b32 s{S_X+3}, 0x20000
s_mov_b32 s{S_W+3}, 0x20000
''')
if cfg.stamps == 7: k.wait_lg_all()
stamp('ka')
for f in item(0): f()
stamp('i0')
if cfg.ka: k(KA2)
GF = vAC2
GA = vE + 8
e = side('L_nogf', f's_cmp_eq_u32 s{sB7}, 0')
srd_tail(S_GW, 1024)
k(f'v_and_b32 v{vE+2}, 48, v{vLANE}')
for s in range(8):
    k(f's_add_u32 s{sT0}, s{sROT}, {s}\ns_and_b32 s{sT0}, s{sT0}, 7\ns_lshl_b32 s{sT0}, s{sT0}, 7')
    for kk in range(2):
        k(f'buffer_load_dwordx4 {vr(GF + 8*s + 4*kk, 4)}, v{vE+2}, {sr(S_GW,4)}, s{sT0} offen offset:{64*kk}')
e()
if not cfg.so:
    for q in range(1, cfg.d0):
        for f in item(q): f()
common_setup(1)
xw_addr(f's{sW4K}', '0')
CI = vAW + 48
k(f'''
v_add_u32 v{vWA}, 0x18000, v{vWA}
v_xor_b32 v{vWA+1}, 32, v{vWA}
v_xor_b32 v{vWA+2}, 64, v{vWA}
v_xor_b32 v{vWA+3}, 0x60, v{vWA}
v_lshlrev_b32 v{vE+5}, 3, v{vE+3}
s_mul_i32 s{sT0}, s{sGRP}, 384
s_cmp_eq_u32 s{sTYPE}, 1
s_cselect_b32 s{sT0}, s{sT0}, {hex(OOB)}
v_add_u32 v{CI+3}, s{sT0}, v{vE+5}
''')
LB1 = [f'buffer_load_dwordx2 {vr(CI + 4*c, 2)}, v{CI+3}, {sr(S_B1,4)}, 0 offen offset:{256 + 32*c}' for c in range(4)]
if not cfg.lb:
    for t in LB1: k(t)
k(f'''
s_lshl2_add_u32 s{sT0}, s{sRB}, s{sW}
''')
ck_off(sCK, sT0)
k(f'''
s_mul_i32 s{sH}, s{sT0}, {RTS}
s_lshl_b32 s{sGO}, s{sT0}, 8
s_add_u32 s{sGO}, s{sGO}, {WS_G}
s_mul_i32 s{sT0}, s{sGRP}, {3*UNT}
s_add_u32 s{sT0}, s{sT0}, {2*UNT}
s_mul_i32 s{sT1}, s{sGRP}, {UNT}
s_add_u32 s{sT1}, s{sT1}, {22*UNT}
s_cmp_eq_u32 s{sTYPE}, 1
s_cselect_b32 s{sT0}, s{sT0}, s{sT1}
s_add_u32 s{sH}, s{sH}, s{sT0}
s_cmp_eq_u32 s{sB7}, 1
s_cselect_b32 s{sH}, {hex(OOB)}, s{sH}
s_cmp_eq_u32 s{sTYPE}, 1
s_cselect_b32 s{sEPS}, 0, {f32(1e-6)}
''')
def xreg(t, rt): return vWR + 8*t + 4*rt
def gate_mm(s):
    e = side(f'L_ng{s}', f's_cmp_eq_u32 s{sB7}, 0')
    k.wait_lg_all()
    for kk in range(2):
        for rt in range(2):
            k(mf(GA + 4*rt, GF + 8*s + 4*kk, xreg(2*s + kk, rt), '0' if s == 0 and kk == 0 else None))
    e()
STREAM = []
NW1 = 4 + cfg.q9 + cfg.q10 + cfg.q11
assert 4 + cfg.q9 + cfg.q10 >= 8 and cfg.q9 >= 1
for q in range(cfg.d0, 10 + NW1): STREAM += item(q)
done = [8*cfg.d0]
LIM = [40, 40, 48, 56, 64, 72, 80, 88, 96, 108, 120, 132]
def take(i):
    n = min(LIM[i], done[0] + (cfg.q0 if i < 7 else {9: 4*cfg.q9, 10: 4*cfg.q10, 11: 4*cfg.q11}.get(i, 8))) - done[0]
    done[0] += n
    r = STREAM[:2*n]; del STREAM[:2*n]
    return r
win = 0
if cfg.so:
    for q in range(1, cfg.d0):
        for f in item(q): f()
if cfg.lb:
    for t in LB1: k(t)
    k(LB2)
stamp('i1')
if cfg.sp1: k('s_setprio 0')
if cfg.stamps == 7:
    k.raw(f'    s_waitcnt vmcnt({len(k.vm)-1})'); stamp('f0'); k.raw(f'    s_waitcnt vmcnt({len(k.vm)-2})'); stamp('f1')
for s in range(8):
    k.wait_vm_tok(tokQ[s + (s == 7)])
    if cfg.xo >= 2 and s > 0: k.waitcnt(lgkm=4)
    else: k.wait_lg_all()
    k('s_barrier')
    stamp(f'B{s}')
    w = ((s % 5) * 32768) >> 16
    if w != win:
        k(f'v_add_u32 v{vXR}, {hex(((w - win) << 16) & 0xffffffff)}, v{vXR}\nv_add_u32 v{vXR+1}, {hex(((w - win) << 16) & 0xffffffff)}, v{vXR+1}')
        win = w
    if s == 3: k(DBTEXT(vE+7))
    F = take(s)
    R = [f'ds_read_b128 {vr(xreg(2*s+kk, rt), 4)}, v{vXR+kk} offset:{((s % 5) * 32768) % 65536 + 2048*rt}' for kk in range(2) for rt in range(2)]
    if s == 2:
        for c in range(4): R += unpack4(CI + 4*c, CI + 4*c)
    if s == 3: R += [f'v_add_f32 v{CI+i}, s{sEPS}, v{CI+i}' for i in range(16)]
    if cfg.xo == 1:
        for r in R[:4]: k(r)
        weave(F, R[4:])
    elif cfg.xo == 2:
        weave(F, R[4:])
        for r in R[:4]: k(r)
    else:
        for f in F[:2]: f()
        weave(F[2:], R)
    if s >= 1: gate_mm(s - 1)
    if s == 6: get_epoch(vE+7)
gate_mm(7)
e = side('L_nogate', f's_cmp_eq_u32 s{sB7}, 0')
k(f'''
v_cmp_gt_u32 vcc, 16, v{vLANE}
v_cndmask_b32 v{vE}, v{GA+4}, v{GA}, vcc
v_mul_f32 v{vE}, {f32(-1.4426950408889634)}, v{vE}
v_exp_f32 v{vE}, v{vE}
v_lshlrev_b32 v{vE+2}, 3, v{vLANE}
v_add_f32 v{vE}, 1.0, v{vE}
v_mov_b32 v{vE+1}, s{sN}
v_rcp_f32 v{vE}, v{vE}
s_mov_b32 exec_hi, 0
buffer_store_dwordx2 {vr(vE,2)}, v{vE+2}, {sr(S_WS,4)}, s{sGO} offen sc1
s_mov_b32 exec_hi, -1
''')
e()
POOL = [vWF + 4*i for i in range(8)] + [vE + 4*i for i in range(4)]
def wfrag(t, c): return POOL[(4*t + c) % 12]
def w2reads(t):
    return [f'ds_read_b64_tr_b16 {vr(wfrag(t, c) + 2*h, 2)}, v{vWA+c} offset:{4096*t + 512*h}' for c in range(4) for h in range(2)]
k.wait_lg_all()
for r in w2reads(0) + w2reads(1): k(r)
assert done[0] >= 80
k(f'v_lshl_add_u32 v{vL4}, v{vLANE}, 2, s{sCK}')
k('s_barrier')
stamp('B8')
k(f's_setprio {cfg.prg1}')
MV = {0: (), 1: (0, 1), 2: (2, 3), 3: (4,)}
for t in range(16):
    if t in (4, 8, 12):
        k.wait_vm_tok(tokQ[{4: 11, 8: 13, 12: 14}[t]])
        if t > 4: wait_regs(range(vWR + 16*MV[t//4 - 1][0], vWR + 16*MV[t//4 - 1][-1] + 16))
        k('s_barrier')
        stamp(f'B{8 + t//4}')
    if t % 4 == 0:
        D = take(8 + t//4)
        nd = 2*((len(D) + 7) // 8)
        Mv = moves(MV[t//4])
        if cfg.nomv & 2: Mv = [x for x in Mv if not x.startswith('ds_')]
    R = w2reads(t + 2) if t + 2 < 16 else []
    X = D[nd*(t%4):nd*(t%4)+nd]
    nm = (len(Mv) + 2) // 3
    Y = Mv[nm*(t%4):nm*(t%4)+nm]
    Z = []
    for i in range(4): Z += R[2*i:2*i+1] + X[(i*len(X)+3)//4:((i+1)*len(X)+3)//4] + R[2*i+1:2*i+2] + Y[(i*len(Y)+3)//4:((i+1)*len(Y)+3)//4]
    R = Z
    wait_regs([wfrag(t, c) + i for c in range(4) for i in range(4)])
    M = [mf(vAC2 + ((c >> 1)*2 + rt)*8 + (c & 1)*4, wfrag(t, c), xreg(t, rt), vr(CI + 4*c, 4) if t == 0 else None) for c in range(4) for rt in range(2)]
    if cfg.m32: M = [f'v_mfma_f32_32x32x16_bf16 {vr(vAC2+16*(c&1),16)}, {vr(wfrag(t, c),4)}, {vr(xreg(t, c>>1),4)}, {vr(vAC2+16*(c&1),16) if t or c > 1 else 0}' for c in range(4)]
    j = 0
    for i, m in enumerate(M):
        k(m)
        tgt = ((i + 1) * len(R) + len(M) - 1) // len(M)
        while j < tgt: emit(R[j]); j += 1
assert not STREAM
k.wait_vm_tok(tokQ[17])
k.wait_lg_all()
k('s_barrier')
stamp('B12')
k(f's_setprio {cfg.pe1}')
k(f's_cmp_eq_u32 s{sTYPE}, 1\ns_cbranch_scc1 L_G1B')
snap1 = k.snapshot(); nst1 = nst[0]
C0_1 = 8
def early(n): return [f for r in range(n) for f in loadA(r)]
def wpairs(lo, hi):
    L = []
    for r in range(lo, hi):
        it = item(10 + r)
        for i in range(0, 8, 2): L.append(lambda a=it[i], b=it[i+1]: (a(), b()))
    return L
def fill(n, lo, hi): return early(n) + wpairs(lo, hi) if cfg.afirst else wpairs(lo, hi) + early(n)
W0 = NW1 + cfg.wa1
consts('A', C0_1)
GG = 4
gtexts = [f'buffer_load_dwordx2 {vr(GG+2*rt,2)}, v3, {sr(S_WS,4)}, s{sGO} offen offset:{128*rt} sc1' for rt in range(2)]
k(f'v_and_b32 v3, 15, v{vLANE}\nv_lshlrev_b32 v3, 3, v3')
for t in gtexts: k(t)
PQ = vAW + 32
assert cfg.e1a <= 4
V = stx('e1') + phi(vAC2, PQ, vE, C0_1, cfg.pk) + phi(vAC2 + 16, PQ + 8, vE, C0_1, cfg.pk) + stx('e2')
weave_int(V, fill(cfg.e1a, NW1, W0), cfg.gint1, cfg.f1)
k(f'''
v_lshlrev_b32 v10, 3, v{vLANE}
v_lshrrev_b32 v11, 4, v{vLANE}
v_lshlrev_b32 v11, 3, v11
''')
checked(gtexts, [GG+1, GG+3], vE, sN2)
k('s_barrier')
stamp('e3')
KV, ZZ = vE, vE + 8
for c in range(4):
    k(f'ds_read_b64 {vr(ZZ+2*c,2)}, v11 offset:{L_KV + 2048 + 32*c}')
    k(f'ds_read_b64 {vr(KV+2*c,2)}, v10 offset:{L_KV + 512*c}')
DEN = vWF
def idx(c, rt): return ((c >> 1)*2 + rt)*2 + (c & 1)
for c in range(4):
    for rt in range(2):
        i = idx(c, rt)
        k(f'v_mfma_f32_16x16x16_bf16 {vr(DEN+4*i,4)}, {vr(ZZ+2*c,2)}, {vr(PQ+2*i,2)}, 0')
for c in range(4):
    for rt in range(2):
        i = idx(c, rt)
        k(f'v_mfma_f32_16x16x16_bf16 {vr(vAC2+4*i,4)}, {vr(KV+2*c,2)}, {vr(PQ+2*i,2)}, 0')
for i in range(8): k(f'v_add_f32 v{DEN+4*i}, s{sEPS}, v{DEN+4*i}')
for i in range(8): k(f'v_rcp_f32 v{DEN+4*i}, v{DEN+4*i}')
for i in range(8): k(f'v_mul_f32 v{DEN+4*i}, v{DEN+4*i}, v{GG + 2*((i >> 1) & 1)}')
OO = PQ
stamp('e4')
for f in range(4):
    for i in (2*f, 2*f + 1):
        for h in range(2):
            k(f'v_pk_mul_f32 {vr(vAC2+4*i+2*h,2)}, {vr(vAC2+4*i+2*h,2)}, {vr(DEN+4*i,2)} op_sel_hi:[1,0]')
    for j in range(4): k(f'v_cvt_pk_bf16_f32 v{OO+4*f+j}, v{vAC2+8*f+2*j}, v{vAC2+8*f+2*j+1}')
    if f & 1:
        for t in strec(OO + 4*f - 4, sH, STP*(f >> 1), vE + 2*f): k(t)
for r in range(cfg.e1a, max(cfg.e1a, cfg.e1b)):
    for f in loadA(r): f()
k('s_branch L_P2_1')
vmA = [dict(x) for x in k.vm]
k.label('L_G1B')
k.restore(snap1); nst[0] = nst1
consts('B', C0_1)
V = stx('e1') + gelu(vAC2, vWF, vE, C0_1, cfg.pk) + stx('e2') + strec(vWF, sH, 0, vWF + 16) + stx('e3')
V += gelu(vAC2 + 16, vWF + 8, vE, C0_1, cfg.pk) + stx('e4') + strec(vWF + 8, sH, STP, vWF + 18)
weave_int(V, fill(cfg.e1b, NW1, W0), cfg.gint1, cfg.f1)
for r in range(cfg.e1b, max(cfg.e1a, cfg.e1b)):
    for f in loadA(r): f()
phase2(1, vmA, max(cfg.e1a, cfg.e1b), 15)

WT = [f'buffer_load_dword v10, v{vE+6}, {sr(S_W2,4)}, s{sT0} offen', f'buffer_load_dword v11, v{vE+7}, {sr(S_WO,4)}, s{sT2} offen']
def stouch(part=0):
    k(f'''
    s_mul_i32 s{sT0}, s2, {43*128}
    s_mul_i32 s{sT2}, s{sW}, {11*128}
    s_min_u32 s{sT2}, s{sT2}, {32*128}
    s_add_u32 s{sT0}, s{sT0}, s{sT2}
    s_lshl2_add_u32 s{sT2}, s2, s{sW}
    s_lshl_b32 s{sT2}, s{sT2}, 9
    s_mov_b32 s{S_W2+2}, {1376*1024}
    s_mov_b32 s{S_W2+3}, 0x20000
    s_mov_b32 s{S_WO+2}, {512*1024}
    s_mov_b32 s{S_WO+3}, 0x20000
    ''')
    if part < 2: k.wait_lg_all()
    op, dst, o = ('dword', 'vcc_lo', 0) if cfg.wts in (1, 3) else ('dwordx2', 'vcc', 60)
    L = [f'    s_buffer_load_{op} {dst}, {sr(S_W2,4)}, s{sT0} offset:{128*i+o}' for i in range(11 if cfg.wts != 3 else 1)]
    L += [f'    s_buffer_load_{op} {dst}, {sr(S_WO,4)}, s{sT2} offset:{128*i+o}' for i in range(4 if cfg.wts != 3 else 1)]
    if part == 1: L = L[:cfg.wn1]
    if part == 2: L = L[cfg.wn1:]
    for t in L: k.raw(t)
    k.smem_pending.add(('s', 'vcc'))
def wtouch():
    if cfg.wts == 5: stouch(2)
    elif cfg.wts and cfg.wsp == 1: stouch()
    if not cfg.wtouch: return
    if cfg.tx:
        G = f'''
        s_lshr_b32 s{sT3}, s2, 3
        s_and_b32 s{sT4}, s2, 3
        s_lshl2_add_u32 s{sT4}, s{sT3}, s{sT4}
        s_lshl1_add_u32 s{sT0}, s{sT4}, s{sW}
        s_sub_u32 s{sT0}, s{sT0}, 1
        s_mul_i32 s{sT0}, s{sT0}, {43*128}
        s_lshl_b32 s{sT2}, s{sT4}, 12
        s_sub_u32 s{sT4}, s{sW}, 1
        s_cmp_le_u32 s{sT4}, 1
        s_cselect_b32 s{sT0}, s{sT0}, {hex(OOB)}
        s_cmp_eq_u32 s{sW}, 2
        s_cselect_b32 s{sT2}, s{sT2}, {hex(OOB)}
        s_bitcmp1_b32 s2, 2
        s_cselect_b32 s{sT0}, {hex(OOB)}, s{sT0}
        s_cselect_b32 s{sT2}, {hex(OOB)}, s{sT2}
        s_movk_i32 s{sT5}, 31
        '''
    else:
        G = f'''
        s_lshr_b32 s{sT3}, s2, 3
        s_mul_i32 s{sT0}, s2, {43*128}
        s_lshl_b32 s{sT2}, s2, 11
        s_cmp_eq_u32 s{sW}, 1
        s_cselect_b32 s{sT0}, s{sT0}, {hex(OOB)}
        s_cmp_eq_u32 s{sW}, 2
        s_cselect_b32 s{sT2}, s{sT2}, {hex(OOB)}
        s_movk_i32 s{sT5}, 15
        '''
    k(G)
    k(f's_movk_i32 s{sT1}, 7')
    if cfg.c3: k(f'''
        s_mul_i32 s{sT4}, s{sT3}, {43*1024}
        s_add_u32 s{sT4}, s{sT4}, 384
        s_cmp_eq_u32 s{sW}, 0
        s_cselect_b32 s{sT0}, s{sT4}, s{sT0}
        s_cselect_b32 s{sT1}, 10, s{sT1}
        s_lshl_b32 s{sT4}, s{sT3}, 14
        s_add_u32 s{sT4}, s{sT4}, 384
        s_cmp_eq_u32 s{sW}, 3
        s_cselect_b32 s{sT2}, s{sT4}, s{sT2}
        s_cselect_b32 s{sT1}, 10, s{sT1}
        s_cselect_b32 s{sT5}, 15, s{sT5}
        ''')
    k(f'''
    v_min_u32 v{vE+6}, 42, v{vLANE}
    v_and_b32 v{vE+7}, s{sT5}, v{vLANE}
    v_lshlrev_b32 v{vE+6}, s{sT1}, v{vE+6}
    v_lshlrev_b32 v{vE+7}, s{sT1}, v{vE+7}
    ''')
    if cfg.wtd < 0:
        for t in WT: k(t)
k.label('L_G0')
k.restore(snapE); nst[0] = nstE; tokQ.clear(); p2w[0] = 0
if cfg.ka: k(KA2)
k(f's_or_b32 s{sT5}, s2, s{sWAVE}')
e = side('L_noclr', f's_cmp_lg_u32 s{sT5}, 0')
k(f'''
s_mov_b32 s{sT0}, {WS_EP}
buffer_load_dword v{vE+8}, off, {sr(S_WS,4)}, s{sT0} sc1
s_waitcnt vmcnt(0)
v_add_u32 v{vE+8}, 2, v{vE+8}
v_or_b32 v{vE+8}, 1, v{vE+8}
s_mov_b64 exec, 1
buffer_store_dword v{vE+8}, off, {sr(S_DBG,4)}, 0 sc1
buffer_store_dword v{vE+8}, off, {sr(S_WS,4)}, s{sT0} sc1
s_mov_b64 exec, -1
''')
e()
if cfg.stamps == 7:
    k.wait_lg_all()
    for nm in ('ka', 'i0', 'i1', 'f0', 'f1'): stamp(nm)
if cfg.wts and cfg.wsp == 0 and cfg.wts != 5: stouch()
if not cfg.lb: common_setup(0)
vEP, C0_0 = 4, 6
k(f's_cmp_eq_u32 s{sTYPE}, 1\ns_cbranch_scc1 L_G0B')
snap0 = k.snapshot(); nst0 = nst[0]
CI0 = vWF

def pass1(typ):
    nfr = 10 if typ == 'A' else 8
    def fr(t, i): return vWR + 4*(nfr*(t & 1) + i)
    def reads(t):
        s, kk = t >> 1, t & 1
        off = ((s % 5) * 32768) % 65536
        X = lambda i, f: f'ds_read_b128 {vr(fr(t, f), 4)}, v{vXR+kk} offset:{off + 2048*i}'
        W = lambda a, u, f: [f'ds_read_b64_tr_b16 {vr(fr(t, f) + 2*h, 2)}, v{vWA+a} offset:{off + 16384 + 8192*u + 4096*kk + 512*h}' for h in range(2)]
        if typ == 'A':
            return W(0, 0, 8) + [X(0, 0)] + W(0, 1, 9) + [X(i, i) for i in range(1, 8)]
        return W(0, 0, 4) + [X(0, 0), X(1, 1)] + W(1, 0, 5) + [X(2, 2), X(3, 3)] + W(0, 1, 6) + W(1, 1, 7)
    def mms(t):
        if typ == 'A':
            return [(mf(vAW + 32*u + 4*i, fr(t, i), fr(t, 8+u), (vr(CI0, 4) if u == 0 else '0') if t == 0 else None), (i, 8+u)) for i in range(8) for u in range(2)]
        order = [(0,0),(0,1),(1,0),(1,1),(0,2),(0,3),(1,2),(1,3)] + [(w, i) for w in (2, 3) for i in range(4)]
        return [(mf(vAW + (((w >> 1)*4 + i + 6) % 8)*8 + (w & 1)*4, fr(t, 4+w), fr(t, i), vr(CI0 + 4*w, 4) if t == 0 else None), (i, 4+w)) for w, i in order]
    na = 1 if typ == 'A' else 2
    if cfg.lb and cfg.stamps == 7: k(LB2)
    if cfg.prio: k(f's_setprio {cfg.prio}')
    k('s_barrier')
    stamp('B0')
    for r in reads(0): k(r)
    win = 0
    for t in range(16):
        R = []
        if t % 2 == 1:
            s = (t + 1) // 2
            k('s_barrier')
            stamp(f'B{s}')
            w = ((s % 5) * 32768) >> 16
            if s < 8 and w != win:
                d = hex(((w - win) << 16) & 0xffffffff); win = w
                R += [f'v_add_u32 v{vWA+a}, {d}, v{vWA+a}' for a in range(na)] + [f'v_add_u32 v{vXR+a}, {d}, v{vXR+a}' for a in range(2)]
        if t + 1 < 16: R += reads(t + 1)
        if t == 8: R.append(DBTEXT(vEP))
        if cfg.lb and cfg.stamps != 7 and t == 4: R += LB2.split('\n')
        if cfg.wtouch and t == cfg.wtd: R.append(WT[0])
        if cfg.wtouch and cfg.wtd >= 0 and t == cfg.wtd + cfg.wtd2: R.append(WT[1])
        M = mms(t)
        j = 0
        for i, (m, fs) in enumerate(M):
            if i % 8 == 0:
                wait_regs([fr(t, f) + q for mm in M[i:i+8] for f in mm[1] for q in range(4)])
            k(m)
            tgt = min(len(R), ((i + 1) * len(R) + 11) // 12)
            while j < tgt: k(R[j]); j += 1
    if cfg.prio: k('s_setprio 0')

def pass2(V, nv, extra=[]):
    assert W0 + cfg.g4 <= 13 or cfg.g4 == 0
    V = list(V)
    if cfg.prio2: k(f's_setprio {cfg.prio2}')
    get_epoch(vEP)
    p2w[0] = 0
    for i in range(4):
        F = moves(MV[i])
        if cfg.nomv & 1: F = [x for x in F if not x.startswith('ds_')]
        if cfg.mvb == 1:
            for x in F: k(x)
            F = []
        if i == 3: F += [f for r in range(W0, W0 + cfg.g4) for f in item(10 + r)] + extra
        n = nv - len(F) // 2
        if cfg.mvb == 2:
            weave(V[:n], []); weave([], F)
        else: weave(V[:n], F)
        V = V[n:]
        k.wait_lg_all()
        k('s_barrier')
        stamp(f'B{9+i}')
    k(f's_setprio {cfg.pe0}')
    return V

W1 = W0 + cfg.g4; W2 = min(15, W1 + cfg.we0)
if cfg.wts == 5: stouch(1)
if cfg.lb: common_setup(0)
k(f'''
s_lshl2_add_u32 s{sT0}, s{sGRP}, s{sW}
s_lshl4_add_u32 s{sT1}, s{sT0}, s{sRB}
s_lshl_b32 s{sH}, s{sT1}, 10
s_add_u32 s{sH}, s{sH}, {WS_KVP}
v_and_b32 v{vE+5}, 1, v{vLANE}
v_cmp_eq_u32 {sr(sH+1,2)}, 1, v{vE+5}
v_lshlrev_b32 v8, 3, v{vLANE}
s_lshl_b32 s{sT1}, s{sW}, 9
v_add_u32 v8, s{sT1}, v8
v_lshlrev_b32 v9, 2, v{vE+5}
v_lshl_add_u32 v9, v{vE+3}, 3, v9
s_lshl_b32 s{sT0}, s{sW}, 5
v_add_u32 v9, s{sT0}, v9
''')
xw_addr('0', f's{sT0}')
wtouch()
consts('A', C0_0)
for i in range(4): k(f'v_mov_b32 v{CI0+i}, s{sEPS}')
ONES = vWF + 4
for i in range(4): k(f'v_mov_b32 v{ONES+i}, 0x3f803f80')
pass1('A')
PK, VV = vAC2, vAC2 + 16
KVA, ZA = vWF + 8, vWF + 12
V = phi(vAW, PK, vE, C0_0, 0)
V += [f'v_cvt_pk_bf16_f32 v{VV+i}, v{vAW+32+2*i}, v{vAW+32+2*i+1}' for i in range(16)]
V += [mf(KVA, PK, VV, '0'), mf(ZA, PK, ONES, '0'), mf(KVA, PK+4, VV+4), mf(ZA, PK+4, ONES)]
V += phi(vAW + 16, PK + 8, vE, C0_0, 0)
V += [mf(KVA, PK+8, VV+8), mf(ZA, PK+8, ONES), mf(KVA, PK+12, VV+12), mf(ZA, PK+12, ONES)]
V += [f'v_cvt_pk_bf16_f32 v{vE+i}, v{KVA+2*i}, v{KVA+2*i+1}' for i in range(4)]
V += [f'v_cndmask_b32_e64 v{vE+2}, v{vE+2}, v{vE+3}, {sr(sH+1,2)}', f'v_mov_b32 v{vE+3}, s{sN}', st4(vE, sH, 0)]
KB = vAC2
kt = [f'buffer_load_dwordx4 {vr(KB+4*r,4)}, v{vL16}, {sr(S_WS,4)}, s{sH + r//4} offen offset:{1024*(r%4)} sc1' for r in range(16)]
V += [f's_and_b32 s{sH}, s{sH}, 0xffffc000', f's_add_u32 s{sH+1}, s{sH}, 4096', f's_add_u32 s{sH+2}, s{sH}, 8192', f's_add_u32 s{sH+3}, s{sH}, 12288']
if cfg.kve: assert len(V) <= 3*cfg.nva - 40
V = pass2(V, cfg.nva, kt if cfg.kve else [])
for v in V: k(v)
if not cfg.kve:
    for t in kt: k(t)
stamp('e1')
for f in fill(cfg.e0a, W1, W2): f()
stamp('e2')
k(f's_lshl_b32 s{sT5}, s{sN}, 4\ns_mov_b32 s{sSEL0}, 0x00003f80\ns_mov_b32 s{sSEL1}, 0x3f800000')
checked(kt, [KB + 4*r + 3 for r in range(16)], vE, sT5)
stamp('e3')
SUM = vE
V = []
for r in range(16):
    for j in range(3):
        for h in range(2):
            d = SUM + 6*(r & 1) + 2*j + h
            V.append(f'v_dot2_f32_bf16 v{d}, v{KB+4*r+j}, s{sSEL0+h}, {"0" if r < 2 else "v%d" % d}')
for i in range(0, 6, 2): V.append(f'v_pk_add_f32 {vr(SUM+i,2)}, {vr(SUM+i,2)}, {vr(SUM+6+i,2)}')
for i in range(3): V.append(f'v_cvt_pk_bf16_f32 v{vE+12+i}, v{SUM+2*i}, v{SUM+2*i+1}')
weave(V, [f for r in range(cfg.e0a, max(cfg.e0a, cfg.e0b)) for f in loadA(r)])
k(f'ds_write_b64 v8, {vr(vE+12,2)} offset:{L_KV}')
k(f'ds_write_b32 v9, v{vE+14} offset:{L_KV + 2048}')
k.wait_lg_all()
stamp('e4')
k('s_barrier')
k('s_branch L_P2_0')
vmA = [dict(x) for x in k.vm]

k.label('L_G0B')
k.restore(snap0); nst[0] = nst0; tokQ.clear()
k(f'''
s_and_b32 s{sT2}, s{sW}, 1
s_lshl_b32 s{sT2}, s{sT2}, 6
s_mul_i32 s{sT0}, s{sGRP}, 384
s_add_u32 s{sT0}, s{sT0}, s{sT2}
v_lshrrev_b32 v{vE+5}, 4, v{vLANE}
v_lshlrev_b32 v{vE+5}, 3, v{vE+5}
''')
srd_tail(S_B1, 2752)
for w in range(4):
    k(f'buffer_load_dwordx2 {vr(CI0 + 4*w, 2)}, v{vE+5}, {sr(S_B1,4)}, s{sT0} offen offset:{128*(w >> 1) + 32*(w & 1)}')
if cfg.wts == 5: stouch(1)
if cfg.lb:
    common_setup(0)
    k(f's_and_b32 s{sT2}, s{sW}, 1\ns_lshl_b32 s{sT2}, s{sT2}, 6')
k(f'''
s_mul_i32 s{sT0}, s{sGRP}, {3*UNT}
s_and_b32 s{sT1}, s{sW}, 2
s_lshl2_add_u32 s{sT1}, s{sRB}, s{sT1}
''')
ck_off(sT3, sT1)
k(f'''
s_mul_i32 s{sT4}, s{sT2}, {1792//64}
s_sub_u32 s{sT3}, s{sT3}, s{sT4}
v_lshl_add_u32 v{vL4}, v{vLANE}, 2, s{sT3}
v_subrev_u32 v5, {RTS - 512}, v{vL4}
s_mul_i32 s{sT1}, s{sT1}, {RTS}
s_add_u32 s{sT1}, s{sT1}, s{sT0}
s_mul_i32 s{sT3}, s{sT2}, {STP//64}
s_add_u32 s{sH}, s{sT1}, s{sT3}
s_add_u32 s{sH+1}, s{sH}, {RTS}
s_add_u32 s{sH+2}, s{sH}, {UNT}
s_add_u32 s{sH+3}, s{sH+1}, {UNT}
s_cmp_eq_u32 s{sB7}, 1
s_cselect_b32 s{sH+2}, {hex(OOB)}, s{sH+2}
s_cselect_b32 s{sH+3}, {hex(OOB)}, s{sH+3}
''')
k(f's_and_b32 s{sT1}, s{sW}, 2\ns_lshl_b32 s{sT1}, s{sT1}, 12')
xw_addr(f's{sT1}', f's{sT2}')
k(f'v_xor_b32 v{vWA+1}, 32, v{vWA}')
wtouch()
consts('B', C0_0)
for w in range(4):
    for t in unpack4(CI0 + 4*w, CI0 + 4*w): k(t)
pass1('B')
def btile(i, pk):
    o = vAC2 + 8*i
    return gelu(vAW + 16*((i + 3) % 4), o, vE, C0_0, pk) + strec(o, sH + i, 0, vWF + 2*i, 5 if i & 1 else vL4)
ntile = min(4, -(-(4*cfg.nvb - 16) // 128))
V = []
for i in range(ntile): V += btile(i, 0)
V = pass2(V, cfg.nvb)
V = stx('e1') + V + stx('e2')
for i in range(ntile, 4): V += btile(i, cfg.pk) + stx(f'e{i+1}')
weave_int(V, fill(cfg.e0b, W1, W2), cfg.gint, cfg.f0)
for r in range(cfg.e0b, max(cfg.e0a, cfg.e0b)):
    for f in loadA(r): f()
phase2(0, vmA, max(cfg.e0a, cfg.e0b), W2)
k.label('L_fin')
k('s_nop 1')

if cfg.stamps:
    stamp('sto')
    k('s_waitcnt vmcnt(0)')
    stamp('end')
    k(f'''
    s_waitcnt lgkmcnt(0)
    s_cmp_lg_u32 s{sW}, 0
    s_cbranch_scc1 L_end
    ''')
    if cfg.probe >= 0:
        k(f's_cmp_lg_u32 s{sGI}, {cfg.pgrp}\ns_cbranch_scc1 L_end')
        if cfg.ptype >= 0:
            k(f's_cmp_lg_u32 s{sTYPE}, {cfg.ptype}\ns_cbranch_scc1 L_end')
        k(f'''
        s_sub_u32 s{sT0}, s{STREG[cfg.probe]}, s{STREG[0]}
        s_lshl_b32 s{sT0}, s{sT0}, 2
        s_add_u32 s{sT0}, s{sT0}, 5000
        L_probe:
        s_memrealtime s[72:73]
        s_waitcnt lgkmcnt(0)
        s_sub_u32 s{sT1}, s72, s{STREG[0]}
        s_cmp_lt_u32 s{sT1}, s{sT0}
        s_cbranch_scc1 L_probe
        s_branch L_end
        ''')
    k(f'''
    s_mov_b64 exec, 1
    s_lshl1_add_u32 s{sT0}, s2, s{sGI}
    s_mul_i32 s{sT0}, s{sT0}, {8*(nst[0]+1)}
    s_add_u32 s{sT0}, s{sT0}, {STAMP_OFF}
    ''')
    for s in range(nst[0]):
        k(f'v_mov_b32 v4, s{STREG[s]}\nv_mov_b32 v5, s{STREG[s]+1}\nbuffer_store_dwordx2 v[4:5], off, {sr(S_WS,4)}, s{sT0} offset:{8*s}\ns_nop 1')
    k(f'''
    s_sub_u32 s{sT1}, 0x4000, s{sSPIN}
    s_mul_i32 s{sT1}, s{sT1}, 100
    s_add_u32 s{sT1}, s{sT1}, s{STREG[0]}
    s_addc_u32 s{sT2}, s{STREG[0]+1}, 0
    v_mov_b32 v4, s{sT1}
    v_mov_b32 v5, s{sT2}
    buffer_store_dwordx2 v[4:5], off, {sr(S_WS,4)}, s{sT0} offset:{8*nst[0]}
    ''')
k.label('L_end')
k('s_endpgm')

hdr = open('gated_mix__linear_attn_block__dense_activation_gelu__prompt.s.ref').read().split('; @launch')[0]
text = hdr + f'''; @launch grid=(256,1,1) block=(512,1,1) lds={LDS_BYTES}
.amdgcn_target "amdgcn-amd-amdhsa--gfx950"
.text
.globl {KNAME}
.p2align 8
.type {KNAME},@function
{KNAME}:
{k.text()}
{"".join(slow)}
.section .rodata,"a"
.p2align 6
.amdhsa_kernel {KNAME}
  .amdhsa_next_free_vgpr 256
  .amdhsa_next_free_sgpr 102
  .amdhsa_accum_offset 256
  .amdhsa_group_segment_fixed_size 0
  .amdhsa_kernarg_size 96
  .amdhsa_user_sgpr_count 2
  .amdhsa_user_sgpr_kernarg_segment_ptr 1
  .amdhsa_system_sgpr_workgroup_id_x 1
.end_amdhsa_kernel
'''
open(sys.argv[1], 'w').write(text)
print('instructions', k.ninstr, 'nops', k.nnop, 'stamps', nst[0])
```

```python
import sys, struct
from kern import *

KNAME = 'gated_mix__linear_attn_block__dense_activation_gelu__prompt_kernel'
def f32(x): return '0x%08x' % struct.unpack('<I', struct.pack('<f', x))[0]

class Cfg:
    stamps = 0
    clk = 0
    rot = 7
    wrot = 3
    wtouch = 1
    wtd = -1
    wtd2 = 0
    kv2 = 0
    aw2 = 0
    amax = 9
    z1 = -1
    sq = 0
    sql = 0
    c3o = 0
    e1l = 0
    e1la = 0
    e0p = 0
    e0q = 30
    nog0 = 0
    nox = 0
    sp2 = 0
    tx = 0
    c3 = 0
    gx = 0
    wn1 = 7
    lb = 1
    ka = 1
    sp1 = 0
    so = 1
    rmul = 1
    rx = 0
    wts = 0
    wsp = 1
    d0 = 2
    nvb = 95
    nva = 95
    gint = 12
    prio = 1
    probe = -1
    pgrp = 0
    ptype = -1
    nocheck = 0
    prio2 = 0
    pk = 1
    ord0 = 8
    ord1 = 6
    lrd0 = 3
    lrd1 = 1
    e0a = 4
    e0b = 4
    e1a = 4
    e1b = 4
    z0 = 4
    q0 = 10
    g4 = 2
    dper = 1
    gint1 = 8
    xo = 2
    q9 = 2
    q10 = 2
    q11 = 0
    wa1 = 0
    we0 = 0
    pe0 = 0
    pe1 = 2
    pp0 = 0
    pp1 = 0
    f0 = 0
    f1 = 0
    afirst = 1
    kve = 0
    slp = 0
    cm = 0
    nomv = 0
    nost = 0
    mvb = 0
    m32 = 0
    m32p = 0
    prg1 = 1
    whit = 0
    u3hit = 0
    aoob = 0
    mp = 0
    ssc = 1
    xr = 1
    asc = 1
    awin = 4
cfg = Cfg()
for a in sys.argv[2:]:
    k_, v_ = a.split('='); setattr(cfg, k_, int(v_))

STP, UNT = 2048, 4096
RTS = 30 * UNT
WS_CB = 64 * RTS
OOBU = 0x7f200000
WS_KVP = 0x880000
WS_G = WS_KVP + 512 * 1024
WS_EP = WS_G + 16384
WS_END = WS_EP + 128
STAMP_OFF = 0x8000000
WS_SIZE = 0x10000000
OOB = 0x7f000000
LDS_BYTES = 163840
L_KV = 2*16384 + 12288
L_RED = 5 * 16384

S_X, S_W, S_B1, S_GW, S_WS, S_DBG, S_W2, S_WO, S_OUT, S_B2 = 8, 12, 16, 20, 24, 28, 32, 36, 40, 44
sWAVE, sW, sRB, sGRP, sTYPE, sROT, sSTP, sW4K, sW2K, sSLAB, sCT, sB7, sSPIN, sN, sN2 = range(48, 63)
sEPS = 63
sC1 = 64
sT0, sT1, sT2, sT3, sT4, sT5 = range(66, 72)
sU = 72
sH = 87
sM21 = 91
sGO = 93
sCK = 88
sSEL0, sSEL1 = 64, 65
sN10 = 23
STREG = [94, 96, 98, 100, 4, 6, 44, 46]
sGI = 3

vLANE, vL16 = 1, 2
vDX, vDW = 3, 7
vDP = 13
vXR = 15
vWA = 17
vP2 = 21
vA = 25
vB2 = 28
vL4 = 12
vWR = 32
vAW = 112
vCS = 160
vAC2 = 176
vWF = 208
vE = 240
vDUM = 0

k = Kern()
slow = []
nst = [0]
SETS = {1: ['st', 'B0', 'B8', 'B12', 'P2', 'r2', 'r11', 'end'],
        2: ['st', 'B0', 'B1', 'B2', 'B3', 'B4', 'B5', 'B6'],
        3: ['st', 'B6', 'B7', 'B8', 'B9', 'B10', 'B11', 'B12'],
        4: ['st', 'P2', 'r0', 'r2', 'r4', 'r6', 'r8', 'r10'],
        5: ['st', 'r10', 'r11', 'r13', 'mm', 'red', 'sto', 'end'],
        6: ['st', 'B12', 'e1', 'e2', 'e3', 'e4', 'P2', 'r0'],
        7: ['st', 'ka', 'i0', 'i1', 'f0', 'f1', 'B0', 'B1']}
def stx(name):
    if cfg.stamps and name in SETS[cfg.stamps]:
        return [f'{"s_memtime" if cfg.clk else "s_memrealtime"} {sr(STREG[SETS[cfg.stamps].index(name)], 2)}']
    return []
def stamp(name):
    if cfg.stamps and name in SETS[cfg.stamps]:
        k(f'{"s_memtime" if cfg.clk else "s_memrealtime"} {sr(STREG[SETS[cfg.stamps].index(name)], 2)}')
    nst[0] = 8

def side(label, cond):
    k(cond + f'\ns_cbranch_scc1 {label}')
    snap = k.snapshot(); k.track = False
    def end():
        k('s_nop 7')
        k.out.append(label + ':'); k.restore(snap); k.track = True
    return end

def mf(d, a, b, c=None):
    return f'v_mfma_f32_16x16x32_bf16 {vr(d,4)}, {vr(a,4)}, {vr(b,4)}, {vr(d,4) if c is None else c}'

def wait_regs(regs):
    regs = {('v', r) for r in regs}
    l = None
    for i, op in enumerate(k.lg):
        if op['wr'] & regs: l = len(k.lg) - 1 - i
    if l is not None:
        if k.smem_pending: l = 0
        k.waitcnt(lgkm=l)

def emit(x):
    return x() if callable(x) else k(x)
def weave(V, F):
    n = len(V); j = 0
    if n == 0:
        for f in F: emit(f)
        return
    for i, v in enumerate(V):
        tgt = ((i + 1) * len(F) + n - 1) // n
        while j < tgt: emit(F[j]); j += 1
        emit(v)
def weave_int(V, F, step, front=0):
    F = list(F)
    use = [set(Ins(v).rd) | set(Ins(v).wr) for v in V]
    last = -step
    while front and F and not any(getattr(F[0], 'regs', set()) & u for u in use):
        emit(F.pop(0)); front -= 1; last = 0
    for i, v in enumerate(V):
        if F and i - last >= step and not any(getattr(F[0], 'regs', set()) & u for u in use[i:]):
            emit(F.pop(0)); last = i
        emit(v)
    for f in F: emit(f)

def merge_vm(*paths):
    order, cnt, ent = [], {}, {}
    for vm in sorted(paths, key=lambda v: -sum(1 for o in v if o.get('key') or o['wr'])):
        ks = []
        for i, o in enumerate(vm):
            key = o.get('key') or (o['text'] if o['wr'] else None)
            if key is None: continue
            ks.append(key); ent[key] = o
            cnt[key] = min(cnt.get(key, 99), len(vm) - 1 - i)
        if not order: order = ks
        else: assert order[len(order) - len(ks):] == ks, (order, ks)
    out = []
    for key in reversed(order):
        assert cnt[key] >= len(out)
        while len(out) < cnt[key]: out.insert(0, {'id': -1, 'wr': set(), 'text': '', 'redo': False})
        out.insert(0, dict(ent[key]))
    return out
def wait_key(key):
    for i, o in enumerate(k.vm):
        if o.get('key') == key:
            k.waitcnt(vm=len(k.vm) - 1 - i); return

uid = [0]
def addchain(kk, t, r):
    r = list(r)
    if len(r) == 2:
        kk(f'v_add_u32 v{t}, v{r[0]}, v{r[1]}'); return
    if len(r) <= 9:
        parts = [r[:3] + r[6:], r[3:6]]
    else:
        h = (len(r) // 2) | 1
        parts = [r[:h], r[h:]]
    first = [True, True]
    tail = []
    while parts[0] or parts[1]:
        for c in range(2):
            q = parts[c]
            if not q: continue
            if first[c]:
                parts[c] = q[3:]; first[c] = False
                kk(f'v_add3_u32 v{t+c}, v{q[0]}, v{q[1]}, v{q[2]}')
            elif len(q) >= 2:
                parts[c] = q[2:]
                kk(f'v_add3_u32 v{t+c}, v{t+c}, v{q[0]}, v{q[1]}')
            else:
                parts[c] = []; tail.append(q[0])
    if len(tail) == 2:
        kk(f'v_add3_u32 v{t}, v{t}, v{tail[0]}, v{tail[1]}'); tail = []
    if tail: kk(f'v_add3_u32 v{t}, v{t}, v{t+1}, v{tail[0]}')
    else: kk(f'v_add_u32 v{t}, v{t}, v{t+1}')
def checked(texts, regs, T, expect, defer=False):
    uid[0] += 1; u = uid[0]
    def check(kk):
        if expect is None:
            kk(f'v_cmp_eq_u32 vcc, 0, v{regs[0]}')
            return
        addchain(kk, T, regs)
        kk(f'v_cmp_ne_u32 vcc, s{expect}, v{T}')
    if cfg.nocheck and expect is not None: return []
    def fin():
        k(f's_cbranch_vccnz L_slow{u}')
        k.label(f'L_back{u}')
        vm = [dict(x) for x in k.vm]
        while vm and not vm[0]['redo']: vm.pop(0)
        s = Kern()
        s.label(f'L_slow{u}')
        s(f's_sub_u32 s{sSPIN}, s{sSPIN}, 1\ns_cbranch_scc1 L_give{u}\ns_nop 7\ns_nop 3')
        if cfg.slp: s(f's_sleep {cfg.slp}')
        for t in texts: s(t)
        s('s_waitcnt vmcnt(0)')
        check(s)
        s(f's_cbranch_vccnz L_slow{u}')
        for op in vm:
            s(op['text'] if op['redo'] else f'buffer_load_dword v{vDUM}, off, {sr(S_DBG,4)}, 0 offset:4080')
            s.vm = []
        s(f's_branch L_back{u}')
        s.label(f'L_give{u}')
        s(f's_mov_b32 s{sSPIN}, 0\ns_waitcnt vmcnt(0)\ns_branch L_back{u}')
        slow.append(s.text())
    L = []
    check(L.append)
    L.append(fin)
    if defer: return L
    for x in L: emit(x)

def srd_tail(base, size):
    k(f's_mov_b32 s{base+2}, {size}\ns_mov_b32 s{base+3}, 0x20000')

MAP = f'''s_lshr_b32 s{sT2}, s2, 5
v_readfirstlane_b32 s{sWAVE}, v{vE}
s_and_b32 s{sT1}, s2, 1
s_lshl3_add_u32 s{sRB}, s{sT1}, s{sT2}
s_bfe_u32 s{sT1}, s2, 0x20003
s_lshl1_add_u32 s{sROT}, s{sT1}, s{sT2}
s_and_b32 s{sROT}, s{sROT}, {cfg.rot}
s_mul_i32 s{sROT}, s{sROT}, {cfg.rmul}
s_mul_i32 s{sT1}, s2, {cfg.rx}
s_add_u32 s{sROT}, s{sROT}, s{sT1}
s_and_b32 s{sROT}, s{sROT}, 7
s_and_b32 s{sT1}, s2, 6
s_xor_b32 s{sT1}, s{sT1}, {cfg.gx}
s_bfe_u32 s{sT2}, s2, 0x10004
s_add_u32 s{sGRP}, s{sT1}, s{sT2}
s_and_b32 s{sT1}, s2, 0x1e
s_cmp_eq_u32 s{sT1}, {0x1e ^ cfg.gx}
s_cselect_b32 s{sB7}, 1, 0''' if not cfg.mp else f'''s_lshr_b32 s{sT2}, s2, 7
v_readfirstlane_b32 s{sWAVE}, v{vE}
s_and_b32 s{sT1}, s2, 7
s_lshl1_add_u32 s{sRB}, s{sT1}, s{sT2}
s_bfe_u32 s{sGRP}, s2, 0x30004
s_lshl2_add_u32 s{sROT}, s{sT2}, s{sGRP}
s_mul_i32 s{sT1}, s{sT1}, {cfg.xr}
s_add_u32 s{sROT}, s{sROT}, s{sT1}
s_and_b32 s{sROT}, s{sROT}, {cfg.rot}
s_and_b32 s{sT1}, s2, 0x78
s_cmp_eq_u32 s{sT1}, 0x78
s_cselect_b32 s{sB7}, 1, 0'''
KA2 = f'''s_load_dwordx2 {sr(S_B1,2)}, s[0:1], 40
s_load_dwordx2 {sr(S_GW,2)}, s[0:1], 64
s_load_dwordx2 {sr(S_W2,2)}, s[0:1], 48
s_load_dwordx2 {sr(S_WO,2)}, s[0:1], 16
s_load_dwordx2 {sr(S_B2,2)}, s[0:1], 56
s_load_dwordx2 {sr(S_OUT,2)}, s[0:1], 72
'''
stamp('st')
k(f'''
s_cmp_ge_u32 s2, 256
s_cbranch_scc1 L_end
s_load_dwordx2 {sr(S_X,2)}, s[0:1], 0
s_bfe_u32 s{sTYPE}, s2, 0x10003
s_mul_i32 s{sT0}, s{sTYPE}, 24
s_add_u32 s{sT0}, s{sT0}, 8
s_load_dwordx2 {sr(S_W,2)}, s[0:1], s{sT0}
s_load_dwordx2 {sr(S_WS,2)}, s[0:1], 88
s_load_dwordx2 {sr(S_DBG,2)}, s[0:1], 80
{'' if cfg.ka else KA2}
v_lshrrev_b32 v{vE}, 6, v0
v_and_b32 v{vLANE}, 63, v0
{MAP}
s_and_b32 s{sW}, s{sWAVE}, 3
s_lshl_b32 s{sW4K}, s{sW}, 12
s_lshl_b32 s{sW2K}, s{sW}, 11
v_lshlrev_b32 v{vL16}, 4, v{vLANE}
v_lshrrev_b32 v{vE}, 3, v{vLANE}
v_and_b32 v{vE+1}, 7, v{vLANE}
s_mov_b32 s{S_WS+2}, {hex(WS_SIZE) if cfg.stamps else hex(WS_END)}
s_mov_b32 s{S_WS+3}, 0x20000
s_mov_b32 s{S_DBG+2}, 256
s_mov_b32 s{S_DBG+3}, 0x20000
s_cmp_lt_u32 s{sWAVE}, 4
s_cbranch_scc1 L_G0
''')
snapE = k.snapshot(); nstE = nst[0]

CMAP = f'''s_lshr_b32 s{sT1}, s2, 6
    s_lshl2_add_u32 s{sSLAB}, s{sT0}, s{sT1}
    s_bfe_u32 s{sCT}, s2, 0x30003
    s_add_u32 s{sT1}, s{sT1}, s{sCT}''' if not cfg.cm else f'''s_bfe_u32 s{sCT}, s2, 0x30004
    s_xor_b32 s{sT1}, s{sCT}, s{sTYPE}
    s_and_b32 s{sT1}, s{sT1}, 1
    s_lshr_b32 s{sT2}, s2, 7
    s_lshl1_add_u32 s{sT1}, s{sT2}, s{sT1}
    s_lshl2_add_u32 s{sSLAB}, s{sT0}, s{sT1}
    s_lshr_b32 s{sT1}, s{sCT}, 1
    s_lshl1_add_u32 s{sT1}, s{sT2}, s{sT1}
    {"s_add_u32 s%d, s%d, s%d" % (sT1, sT1, sTYPE) if cfg.cm == 2 else ""}'''
LB2 = f'''buffer_load_dwordx2 {vr(vB2+2,2)}, v{vB2}, {sr(S_B2,4)}, 0 offen offset:32
buffer_load_dwordx2 {vr(vB2,2)}, v{vB2}, {sr(S_B2,4)}, 0 offen'''
def common_setup(grp):
    srd_tail(S_B1, 2752); srd_tail(S_W2, 1376*1024); srd_tail(S_WO, 512*1024)
    srd_tail(S_B2, 1024); srd_tail(S_OUT, 2048*1024)
    k(f'''
    s_and_b32 s{sT0}, s2, 7
    {CMAP}
    s_and_b32 s{sT1}, s{sT1}, {cfg.wrot}
    s_lshr_b32 s{sT3}, s{sW}, 1
    s_lshl1_add_u32 s{sT1}, s{sT1}, s{sT3}
    s_lshl_b32 s{sU+11}, s{sT1}, 12
    s_cmp_eq_u32 s{sT1}, 7
    s_cselect_b32 s{sT1}, 0, s{sT1}
    s_mul_i32 s{sU}, s{sT1}, 12288
    v_and_b32 v{vE+2}, 6, v{vE}
    v_xor_b32 v{vE+2}, v{vE+2}, v{vE+1}
    v_lshlrev_b32 v{vE+2}, 4, v{vE+2}
    v_lshl_add_u32 v{vDP}, v{vE}, 10, v{vE+2}
    s_lshl_b32 s{sT0}, s{sCT}, 7
    s_and_b32 s{sT2}, s{sW}, 1
    s_lshl_b32 s{sT2}, s{sT2}, 15
    s_add_u32 s{sT2}, s{sT2}, s{sT0}
    v_add_u32 v{vDP}, s{sT2}, v{vDP}
    v_add_u32 v{vDP+1}, 0x2000, v{vDP}
    v_and_b32 v{vE+2}, 15, v{vLANE}
    v_lshrrev_b32 v{vE+3}, 4, v{vLANE}
    v_lshlrev_b32 v{vE+5}, 3, v{vE+3}
    s_and_b32 s{sT2}, s{sW}, 2
    s_lshl_b32 s{sT2}, s{sT2}, 5
    s_add_u32 s{sT0}, s{sT0}, s{sT2}
    v_add_u32 v{vB2}, s{sT0}, v{vE+5}
    {'' if cfg.lb else LB2}
    v_bfe_u32 v{vE+4}, v{vLANE}, 1, 1
    v_and_b32 v{vE+5}, 3, v{vE}
    v_lshl_add_u32 v{vE+4}, v{vE+5}, 1, v{vE+4}
    v_lshlrev_b32 v{vE+4}, 4, v{vE+4}
    v_and_b32 v{vE+5}, 1, v{vLANE}
    v_lshl_add_u32 v{vE+4}, v{vE+5}, 3, v{vE+4}
    v_lshrrev_b32 v{vE+5}, 2, v{vLANE}
    v_lshl_add_u32 v{vE+5}, v{vE+5}, 7, v{vE+4}
    v_add_u32 v{vE+5}, s{sW4K}, v{vE+5}
    v_xor_b32 v{vP2}, s{sT2}, v{vE+5}
    v_xor_b32 v{vP2+1}, 32, v{vP2}
    v_xor_b32 v{vP2+2}, 64, v{vP2}
    v_xor_b32 v{vP2+3}, 0x60, v{vP2}
    s_lshl1_add_u32 s{sT4}, s{sSLAB}, {grp}
    s_mul_i32 s{sT0}, s{sT4}, {RTS}
    s_and_b32 s{sT1}, s{sW}, 1
    s_lshl_b32 s{sT2}, s{sT1}, 11
    s_add_u32 s{sT0}, s{sT0}, s{sT2}
    s_lshl_b32 s{sT2}, s{sT1}, 10
    v_xor_b32 v{vA}, s{sT2}, v{vL16}
    v_xor_b32 v{vA+1}, 0x400, v{vA}
    v_add_u32 v{vA}, s{sT0}, v{vA}
    v_add_u32 v{vA+1}, s{sT0}, v{vA+1}
    s_lshr_b32 s{sT0}, s{sT4}, 3
    s_mul_i32 s{sT0}, s{sT0}, {RTS}
    s_and_b32 s{sT4}, s{sT4}, 7
    s_lshl1_add_u32 s{sT4}, s{sT4}, s{sT1}
    s_lshl_b32 s{sT4}, s{sT4}, 8
    s_add_u32 s{sT0}, s{sT0}, s{sT4}
    s_add_u32 s{sT0}, s{sT0}, {WS_CB}
    v_lshl_add_u32 v{vA+2}, v{vLANE}, 2, s{sT0}
    s_mov_b32 s{sSPIN}, 0x4000
    s_cmp_lt_u32 s{sW}, 3
    s_cselect_b32 s{sM21}, s{sW4K}, 15360
    s_cselect_b32 s{sM21+1}, 1024, 0
    s_mov_b32 s{sGI}, {grp}
    ''')
    for i in range(1, 11):
        k(f's_add_u32 s{sU+i}, s{sU+i-1}, 24576\ns_sub_u32 s{sT0}, s{sU+i}, {7*12288}\ns_cselect_b32 s{sU+i}, s{sU+i}, s{sT0}')
    for i in range(12, 15):
        k(f's_add_u32 s{sU+i}, s{sU+i-1}, 8192\ns_and_b32 s{sU+i}, s{sU+i}, 0x7fff')
    k(f's_lshl_b32 s{sT3}, s{sT3}, 12\ns_add_u32 s{sU+3}, s{sU+3}, s{sT3}')
    for i in range(4, 11): k(f's_add_u32 s{sU+i}, s{sU+i}, {4096 if i < 7 else 8192}')
    for i in range(11, 15): k(f's_add_u32 s{sU+i}, s{sU+i}, {22*4096}')
    k(f's_cmp_ge_u32 s{sW}, 2\ns_cselect_b32 s{sU+10}, {21*4096}, s{sU+10}')
    k(f's_cmp_eq_u32 s{sW}, 3\ns_cselect_b32 s{sU+10}, {hex(OOBU)}, s{sU+10}')

def ck_off(dst, rt):
    k(f'''
    s_lshr_b32 s{sT4}, s{rt}, 3
    s_sub_u32 s{sT4}, s{rt}, s{sT4}
    s_mul_i32 s{sT4}, s{sT4}, {RTS}
    s_and_b32 s{dst}, s{rt}, 7
    s_lshl_b32 s{dst}, s{dst}, 9
    s_add_u32 s{dst}, s{dst}, {WS_CB}
    s_sub_u32 s{dst}, s{dst}, s{sT4}
    ''')

def xw_addr(rowbase_s, tile_s):
    k(f'''
    v_lshrrev_b32 v{vE+5}, 1, v{vE+2}
    v_xor_b32 v{vE+5}, v{vE+5}, v{vE+3}
    v_lshlrev_b32 v{vE+5}, 4, v{vE+5}
    v_lshl_add_u32 v{vE+5}, v{vE+2}, 7, v{vE+5}
    v_add_u32 v{vXR}, {rowbase_s}, v{vE+5}
    v_xor_b32 v{vXR+1}, 64, v{vXR}
    v_bfe_u32 v{vE+5}, v{vLANE}, 2, 2
    v_lshl_add_u32 v{vE+5}, v{vE+3}, 3, v{vE+5}
    v_lshl_add_u32 v{vE+5}, v{vE+5}, 7, v{vE+4}
    v_xor_b32 v{vWA}, {tile_s}, v{vE+5}
    ''')

tokQ = {}
def item(q):
    L = []
    def add(pre, vo, srd_, so, last=False):
        def f():
            t = k(f'buffer_load_dwordx4 v{vo}, {sr(srd_,4)}, s{so} offen lds')
            if last: tokQ[q] = t; k.vm[-1]['key'] = ('W', q)
        pl = pre.split('\n')
        L.append(lambda: k('\n'.join(pl[-1:] + pl[:-1])))
        L.append(f)
    if q < 8:
        base = (q % 5) * 32768
        hdr = f's_add_u32 s{sT0}, s{sROT}, {q}\ns_and_b32 s{sT0}, s{sT0}, 7\ns_lshl_b32 s{sT1}, s{sT0}, 7\ns_mul_i32 s{sT2}, s{sT0}, s{sSTP}\n'
        for i in range(4):
            add((hdr if i == 0 else '') + f's_add_u32 m0, s{sW4K}, {base + 1024*i}', vDX + i, S_X, sT1)
            u, j = i // 2, i % 2
            add(f's_add_u32 m0, s{sW2K}, {base + 16384 + 8192*u + 1024*j}', vDW + 2*u + j, S_W, sT2, i == 3)
    elif q < 10:
        for b in range(4):
            s = 4*(q - 8) + b
            hdr = f's_add_u32 s{sT0}, s{sROT}, {s}\ns_and_b32 s{sT0}, s{sT0}, 7\ns_mul_i32 s{sT2}, s{sT0}, s{sSTP}\n'
            for j in range(2):
                add((hdr if j == 0 else '') + f's_add_u32 m0, s{sW2K}, {98304 + 8192*s + 1024*j}', vDW + (0 if cfg.u3hit else 4) + j, S_W, sT2, b == 3 and j == 1)
    else:
        r = q - 10
        pos = WPOS[r] * 16384
        for j in range(4):
            hdr = {0: f's_lshl4_add_u32 s{sT4}, s{sU + r}, {0 if r < 11 else hex((-22*65536) & 0xffffffff)}\n' if not cfg.whit else f's_mov_b32 s{sT4}, {0 if cfg.whit == 1 else hex(OOB)}\n', 2: f's_add_u32 s{sT4}, s{sT4}, 0x4000\n'}.get(j, '')
            m = f's_add_u32 m0, s{sW4K}, {pos + 1024*j}'
            if r == 10: m = f's_add_u32 m0, s{sM21}, {pos}' if j == 0 else f's_add_u32 m0, m0, s{sM21+1}'
            add(hdr + m, vDP + (j & 1), S_W2 if r < 11 or cfg.whit else S_WO, sT4, j == 3)
    return L

WPOS = [0, 1, 2, 3, 4, 5, 6, 7, 0, 1, 2, 3, 8, 9, 4]
p2w = [0]
def rdP2(dst, r):
    pos = WPOS[r] * 16384
    L = []
    if pos >> 16 != p2w[0]:
        L = [f'v_add_u32 v{vP2+c}, {hex((((pos >> 16) - p2w[0]) << 16) & 0xffffffff)}, v{vP2+c}' for c in range(4)]
        p2w[0] = pos >> 16
    return L + [f'ds_read_b64_tr_b16 {vr(dst + 4*c + 2*h, 2)}, v{vP2+c} offset:{(pos % 65536) + 2048*h}' for c in range(4) for h in range(2)]
def moves(rs):
    L = []
    for r in rs:
        L += rdP2(vWR + 16*r, r)
    return L

Atext = {}
def areg(r, j): return vAW + 8*r + 4*j if r < 6 else (vWR + 8*(r - 6) + 4*j)
def loadA(r):
    L = []
    def mk(t, key):
        Atext[key] = t
        def f():
            k.redo = True; k(t if cfg.asc == 1 else t.replace(' sc1', {0: '', 2: ' nt', 3: ' sc0'}[cfg.asc])); k.redo = False
            k.vm[-1]['key'] = key; k.vm[-1]['text'] = t
        f.regs = set(Ins(t).wr)
        return f
    for j in range(2):
        L.append(mk(f'buffer_load_dwordx4 {vr(areg(r, j), 4)}, v{vA+j}, {sr(S_WS,4)}, s{sU+r if not cfg.aoob else sU+10} offen sc1', (r, j)))
    if cfg.aoob != 3: L.append(mk(f'buffer_load_dword v{vCS+r}, v{vA+2}, {sr(S_WS,4)}, s{sU+r if not cfg.aoob else sU+10} offen sc1', (r, 2)))
    else: Atext[(r, 2)] = ''
    return L

def gelu(acc, out, T, C0, pk):
    L = []
    p = lambda r: vr(r, 2)
    if pk:
        for i in range(0, 16, 2): L.append(f'v_pk_mul_f32 {p(T+i)}, {p(acc+i)}, {p(acc+i)}')
        for i in range(0, 16, 2): L.append(f'v_pk_fma_f32 {p(T+i)}, {p(T+i)}, {sr(sC1,2)}, {vr(C0,2)}')
        for i in range(0, 16, 2): L.append(f'v_pk_mul_f32 {p(T+i)}, {p(acc+i)}, {p(T+i)}')
        for i in range(16): L.append(f'v_exp_f32 v{T+i}, v{T+i}')
        for i in range(0, 16, 2): L.append(f'v_pk_add_f32 {p(T+i)}, {p(T+i)}, 1.0 op_sel_hi:[1,0]')
        for i in range(16): L.append(f'v_rcp_f32 v{T+i}, v{T+i}')
        for i in range(0, 16, 2): L.append(f'v_pk_mul_f32 {p(T+i)}, {p(acc+i)}, {p(T+i)}')
    else:
        for i in range(16): L.append(f'v_mul_f32 v{T+i}, v{acc+i}, v{acc+i}')
        for i in range(16): L.append(f'v_fma_f32 v{T+i}, v{T+i}, s{sC1}, v{C0}')
        for i in range(16): L.append(f'v_mul_f32 v{T+i}, v{acc+i}, v{T+i}')
        for i in range(16): L.append(f'v_exp_f32 v{T+i}, v{T+i}')
        for i in range(16): L.append(f'v_add_f32 v{T+i}, 1.0, v{T+i}')
        for i in range(16): L.append(f'v_rcp_f32 v{T+i}, v{T+i}')
        for i in range(16): L.append(f'v_mul_f32 v{T+i}, v{acc+i}, v{T+i}')
    for i in range(0, 16, 2): L.append(f'v_cvt_pk_bf16_f32 v{out+i//2}, v{T+i}, v{T+i+1}')
    return L

def phi(acc, out, T, C0, pk):
    L = []
    p = lambda r: vr(r, 2)
    if pk:
        for i in range(0, 16, 2): L.append(f'v_pk_fma_f32 {p(T+i)}, {p(acc+i)}, {sr(sC1,2)}, {vr(C0,2)}')
    else:
        for i in range(16): L.append(f'v_fma_f32 v{T+i}, v{acc+i}, s{sC1}, v{C0}')
    for i in range(16): L.append(f'v_exp_f32_e64 v{T+i}, v{T+i} clamp')
    for i in range(16): L.append(f'v_max_f32 v{acc+i}, s{sEPS}, v{acc+i}')
    if pk:
        for i in range(0, 16, 2): L.append(f'v_pk_add_f32 {p(T+i)}, {p(T+i)}, {p(acc+i)}')
    else:
        for i in range(16): L.append(f'v_add_f32 v{T+i}, v{T+i}, v{acc+i}')
    for i in range(0, 16, 2): L.append(f'v_cvt_pk_bf16_f32 v{out+i//2}, v{T+i}, v{T+i+1}')
    return L

def st4(src, s_off, imm):
    return f'buffer_store_dwordx4 {vr(src,4)}, v{vL16}, {sr(S_WS,4)}, s{s_off} offen offset:{imm} sc1'

def strec(src, s_off, imm, T, vck=None):
    L = []
    addchain(L.append, T, range(src, src + 8))
    L.insert(1, st4(src, s_off, imm)); L.insert(3, st4(src + 4, s_off, imm + 1024))
    L.append(f'v_sub_u32 v{T}, s{sN}, v{T}')
    L.append(f'buffer_store_dword v{T}, v{vck or vL4}, {sr(S_WS,4)}, s{s_off} offen offset:{imm // 8} sc1')
    if cfg.nost: L = [x for x in L if not x.startswith('buffer')]
    if not cfg.ssc: L = [x.replace(' sc1', '') for x in L]
    return L

def get_epoch(reg):
    checked([DBTEXT(reg)], [reg], None, None)
    k(f'v_readfirstlane_b32 s{sN}, v{reg}\ns_cmp_eq_u32 s{sW}, 3\ns_cselect_b32 s{sN10}, 0, s{sN}\ns_lshl_b32 s{sN2}, s{sN}, 1')
def DBTEXT(reg): return f'buffer_load_dword v{reg}, off, {sr(S_DBG,4)}, 0 sc1'

def consts(typ, C0):
    if typ == 'A':
        c1, c0 = 1.4426950408889634, -1e-6*1.4426950408889634
    else:
        c1, c0 = -2.302208198*0.044715, -2.302208198
    k(f'''
    s_mov_b32 s{sC1}, {f32(c1)}
    s_mov_b32 s{sC1+1}, {f32(c1)}
    s_mov_b32 s{sEPS}, {f32(1e-6)}
    v_mov_b32 v{C0}, {f32(c0)}
    v_mov_b32 v{C0+1}, {f32(c0)}
    ''')

def unpack4(dst, src):
    return [f'v_and_b32 v{dst+3}, 0xffff0000, v{src+1}', f'v_lshlrev_b32 v{dst+2}, 16, v{src+1}',
            f'v_and_b32 v{dst+1}, 0xffff0000, v{src}', f'v_lshlrev_b32 v{dst}, 16, v{src}']

def phase2(g, vmA, nload, wnext):
    k.label(f'L_P2_{g}')
    k('s_nop 1')
    k.vm = merge_vm(k.vm, vmA); k.lg = []
    stamp('P2')
    ord_, lrd = (cfg.ord0, cfg.lrd0) if g == 0 else (cfg.ord1, cfg.lrd1)
    k(f's_setprio {cfg.pp0 if g == 0 else cfg.pp1}')
    BUF = [vWF + 16, vWF, vAW, vAW + 16, vAW + 32]
    def wreg(r): return vWR + 16*r if r < 5 else BUF[r % 5]
    FREE = {5: -1, 6: -1, 7: 1, 8: 3, 9: 5, 10: 5, 11: 6, 12: 7, 13: 8, 14: 9}
    zr = cfg.z0 if g == 0 or cfg.z1 < 0 else cfg.z1
    def more(r):
        nonlocal nload, wnext
        L = []
        while nload < 15:
            need = (nload - 6) // 2 if nload >= 6 else -1
            if need > r or nload > r + (cfg.aw2 if cfg.aw2 and r >= zr else cfg.awin) or (r >= 0 and len(L) >= 3*cfg.amax): break
            if nload >= 11 and r < ord_: break
            if nload >= 7 and r < lrd: break
            L += loadA(nload)
            nload += 1
        for i in range(cfg.dper):
            if wnext < 15:
                L += wpairs(wnext, wnext + 1)
                wnext += 1
        return L
    nrd = [5]
    def reads(r):
        L = []
        while nrd[0] < 15 and FREE[nrd[0]] <= r and (nrd[0] < 8 or r >= zr) and (not L or nrd[0] <= r + 3):
            L += rdP2(wreg(nrd[0]), nrd[0]); nrd[0] += 1
        return L
    def chk(r): return checked([Atext[(r, j)] for j in range(3)], [vCS + r] + list(range(areg(r, 0), areg(r, 0) + 8)), vE + 8, sN10 if r == 10 else sN, True)
    G2 = vE + 12
    BB = vE
    gadr = f'''s_lshl1_add_u32 s{sT0}, s{sSLAB}, {g}
    s_lshl_b32 s{sGO}, s{sT0}, 8
    s_add_u32 s{sGO}, s{sGO}, {WS_G}
    s_and_b32 s{sT1}, s{sW}, 1
    s_lshl_b32 s{sT2}, s{sT1}, 7
    v_and_b32 v3, 15, v{vLANE}
    v_lshlrev_b32 v4, 3, v3
    v_add_u32 v4, s{sT2}, v4
    v_xor_b32 v5, 0x80, v4'''.split('\n')
    gt = [f'buffer_load_dwordx2 {vr(G2+2*j,2)}, v{4+j}, {sr(S_WS,4)}, s{sGO} offen sc1' for j in range(2)]
    def redo(t):
        def f():
            k.redo = True; k(t); k.redo = False
        return f
    late = f'''s_lshl1_add_u32 s{sT0}, s{sT0}, s{sT1}
    s_lshl_b32 s{sT5}, s{sT0}, 14
    s_lshl_b32 s{sT0}, s{sCT}, 7
    s_add_u32 s{sT5}, s{sT5}, s{sT0}
    s_and_b32 s{sT0}, s{sW}, 2
    s_lshl_b32 s{sT0}, s{sT0}, 5
    s_add_u32 s{sT5}, s{sT5}, s{sT0}
    v_lshlrev_b32 v3, 10, v3
    v_and_b32 v6, 16, v{vLANE}
    v_lshl_add_u32 v3, v6, 1, v3
    v_lshrrev_b32 v6, 5, v{vLANE}
    v_lshl_add_u32 v3, v6, 4, v3
    s_xor_b32 s{sT1}, s{sWAVE}, 1
    s_xor_b32 s{sT2}, s{sWAVE}, 2
    s_xor_b32 s{sT3}, s{sWAVE}, 3
    s_mul_i32 s{sT0}, s{sWAVE}, 6144
    s_mul_i32 s{sT1}, s{sT1}, 6144
    s_mul_i32 s{sT2}, s{sT2}, 6144
    s_mul_i32 s{sT3}, s{sT3}, 6144
    v_add_u32 v10, {L_RED}, v{vL16}
    v_add_u32 v6, s{sT0}, v10
    v_add_u32 v7, s{sT1}, v10
    v_add_u32 v8, s{sT2}, v10
    v_add_u32 v9, s{sT3}, v10'''.split('\n')
    order = [(pi, e_) for pi in (1, 2, 3, 0) for e_ in range(2)]
    def scale(i):
        pi, e_ = order[i]
        return [f'v_mul_f32 v{vAC2+8*pi+4*e_+j}, v{G2 + 2*(pi & 1)}, v{vAC2+8*pi+4*e_+j}' for j in range(4)]
    for f in more(-1): emit(f)
    for f in chk(0): emit(f)
    for r in range(15):
        stamp(f'r{r}')
        F = (more(r - 1) if r > 0 else []) + reads(r - 1)
        if r == 0: F = unpack4(BB, vB2) + unpack4(BB + 4, vB2 + 2) + F
        if r == 3: F += gadr + [redo(t) for t in gt]
        if r == 4: F += late[:12]
        if r == 12: F += late[12:]
        if r == 9: F += checked(gt, [G2+1, G2+3], vE + 8, sN2, True)
        if r == 10: F = [f'v_sub_f32 v{G2}, 1.0, v{G2}', f'v_sub_f32 v{G2+2}, 1.0, v{G2+2}'] + F
        if r < 14:
            assert nload > r + 1
            F += chk(r + 1)
        M = []
        for pi, e_ in order:
            c = None
            if r == 0: c = vr(BB + 4*e_, 4) if pi == 0 else '0'
            M.append(mf(vAC2 + 8*pi + 4*e_, wreg(r) + 4*(2*(pi >> 1) + e_), areg(r, pi & 1), c))
        wait_regs([wreg(r) + i for i in range(16)])
        if cfg.m32p:
            M = [x for c in range(4) for x in (f'v_mfma_f32_32x32x16_bf16 {vr(vAC2+16*(1-(c>>1)),16)}, {vr(wreg(r)+4*c,4)}, {vr(areg(r, c&1),4)}, {vr(vAC2+16*(1-(c>>1)),16) if r or c & 1 else 0}', '')]
        j = 0
        for i, m in enumerate(M):
            if cfg.m32p and r in (10, 11):
                k(m)
                tgt = ((i + 1) * len(F) + 7) // 8
                while j < tgt: emit(F[j]); j += 1
                if r == 10 and i >= 6:
                    for t in scale(2*i-10) + scale(2*i-9): k(t)
                if r == 11 and i in (1, 3):
                    for t in scale((i-1)*3) + scale((i-1)*3+1): k(t)
                continue
            if r == 11 and i < 4:
                for t in scale(4 + i): k(t)
            k(m)
            if r == 10 and i >= 4:
                for t in scale(i - 4): k(t)
            tgt = ((i + 1) * len(F) + 7) // 8
            if r == 10: tgt = min(len(F), ((i + 1) * len(F) + 4) // 5) if i < 7 else len(F)
            if r == 11: tgt = 0 if i < 3 else ((i - 2) * len(F) + 4) // 5
            while j < tgt: emit(F[j]); j += 1
        if r == zr:
            assert wnext == 15 and nrd[0] == 8
            for q in range(24, 9, -1): wait_key(('W', q))
            k.wait_lg_all()
            k('s_barrier')
    stamp('mm')
    for pi in range(1, 4):
        for h in range(2):
            k(f'ds_write_b128 v{6+pi}, {vr(vAC2 + 8*pi + 4*h, 4)} offset:{(pi-1)*2048 + 1024*h}')
    k.wait_lg_all()
    k('s_barrier')
    stamp('red')
    R = vAW
    for p in range(3):
        for h in range(2):
            k(f'ds_read_b128 {vr(R + 8*p + 4*h, 4)}, v6 offset:{p*2048 + 1024*h}')
    for p in range(3):
        for i in range(0, 8, 2):
            k(f'v_pk_add_f32 {vr(vAC2+i,2)}, {vr(vAC2+i,2)}, {vr(R+8*p+i,2)}')
    for i in range(4): k(f'v_cvt_pk_bf16_f32 v{vE+i}, v{vAC2+2*i}, v{vAC2+2*i+1}')
    k(f'v_permlane16_swap_b32 v{vE}, v{vE+2}\nv_permlane16_swap_b32 v{vE+1}, v{vE+3}')
    k(f'buffer_store_dwordx4 {vr(vE,4)}, v3, {sr(S_OUT,4)}, s{sT5} offen')
    if g == 1: k('s_branch L_fin' if cfg.stamps else 's_endpgm')

if cfg.sp1: k(f's_setprio {cfg.sp1}')
k(f'''
v_lshrrev_b32 v{vE+2}, 1, v{vE}
v_xor_b32 v{vE+2}, v{vE+1}, v{vE+2}
v_lshlrev_b32 v{vE+2}, 4, v{vE+2}
s_lshl2_add_u32 s{sT1}, s{sRB}, s{sW}
s_lshl_b32 s{sT1}, s{sT1}, 15
v_lshl_add_u32 v{vDX}, v{vE}, 10, v{vE+2}
v_add_u32 v{vDX}, s{sT1}, v{vDX}
v_xor_b32 v{vDX+1}, 64, v{vDX}
v_add_u32 v{vDX+1}, 0x2000, v{vDX+1}
v_add_u32 v{vDX+2}, 0x4000, v{vDX}
v_add_u32 v{vDX+3}, 0x4000, v{vDX+1}
v_and_b32 v{vE+2}, 2, v{vE}
v_xor_b32 v{vE+2}, v{vE+1}, v{vE+2}
v_lshlrev_b32 v{vE+2}, 4, v{vE+2}
v_xor_b32 v{vE+3}, 64, v{vE+2}
s_lshl_b32 s{sT3}, s{sGRP}, 7
s_add_u32 s{sT4}, s{sT3}, 1024
s_mul_i32 s{sT3}, s{sT3}, 3
s_movk_i32 s{sT1}, 3072
s_movk_i32 s{sT5}, 0x400
s_cmp_eq_u32 s{sTYPE}, 1
s_cselect_b32 s{sT1}, 2752, s{sT1}
s_cselect_b32 s{sT3}, s{sT3}, s{sT4}
s_cselect_b32 s{sT4}, 0x80, s{sT5}
s_movk_i32 s{sT5}, 0xfc00
s_cselect_b32 s{sT5}, 0x100, s{sT5}
s_mov_b32 s{S_W+2}, 0x180000
s_cselect_b32 s{S_W+2}, {512*2752}, s{S_W+2}
s_cmp_eq_u32 s{sB7}, 1
s_cselect_b32 s{sT4}, {hex(OOB)}, s{sT4}
s_cselect_b32 s{sT5}, {hex(OOB)}, s{sT5}
s_cselect_b32 s{sT2}, 24, 0
s_lshl_b32 s{sT0}, s{sW}, 4
v_add_u32 v{vE+4}, s{sT0}, v{vE}
v_mul_lo_u32 v{vE+4}, v{vE+4}, s{sT1}
s_lshl_b32 s{sSTP}, s{sT1}, 6
s_lshl3_add_u32 s{sT0}, s{sT1}, s{sT3}
v_add3_u32 v{vDW}, v{vE+4}, v{vE+2}, s{sT3}
v_add3_u32 v{vDW+1}, v{vE+4}, v{vE+3}, s{sT0}
v_add_u32 v{vDW+2}, s{sT4}, v{vDW}
v_add_u32 v{vDW+3}, s{sT4}, v{vDW+1}
v_add_u32 v{vDW+4}, s{sT5}, v{vDW}
v_add_u32 v{vDW+5}, s{sT5}, v{vDW+1}
v_and_b32 v{vE+2}, 64, v{vE+2}
v_and_b32 v{vE+3}, 64, v{vE+3}
v_lshlrev_b32 v{vE+2}, s{sT2}, v{vE+2}
v_lshlrev_b32 v{vE+3}, s{sT2}, v{vE+3}
v_and_b32 v{vE+2}, 0x40000000, v{vE+2}
v_and_b32 v{vE+3}, 0x40000000, v{vE+3}
v_add_u32 v{vDW}, v{vE+2}, v{vDW}
v_add_u32 v{vDW+1}, v{vE+3}, v{vDW+1}
s_mov_b32 s{S_X+2}, 0x200000
s_mov_b32 s{S_X+3}, 0x20000
s_mov_b32 s{S_W+3}, 0x20000
''')
if cfg.stamps == 7: k.wait_lg_all()
stamp('ka')
for f in item(0): f()
stamp('i0')
if cfg.ka: k(KA2)
GF = vAC2
GA = vE + 8
e = side('L_nogf', f's_cmp_eq_u32 s{sB7}, 0')
srd_tail(S_GW, 1024)
k(f'v_and_b32 v{vE+2}, 48, v{vLANE}')
for s in range(8):
    k(f's_add_u32 s{sT0}, s{sROT}, {s}\ns_and_b32 s{sT0}, s{sT0}, 7\ns_lshl_b32 s{sT0}, s{sT0}, 7')
    for kk in range(2):
        k(f'buffer_load_dwordx4 {vr(GF + 8*s + 4*kk, 4)}, v{vE+2}, {sr(S_GW,4)}, s{sT0} offen offset:{64*kk}')
e()
if not cfg.so:
    for q in range(1, cfg.d0):
        for f in item(q): f()
common_setup(1)
xw_addr(f's{sW4K}', '0')
CI = vAW + 48
k(f'''
v_add_u32 v{vWA}, 0x18000, v{vWA}
v_xor_b32 v{vWA+1}, 32, v{vWA}
v_xor_b32 v{vWA+2}, 64, v{vWA}
v_xor_b32 v{vWA+3}, 0x60, v{vWA}
v_lshlrev_b32 v{vE+5}, 3, v{vE+3}
s_mul_i32 s{sT0}, s{sGRP}, 384
s_cmp_eq_u32 s{sTYPE}, 1
s_cselect_b32 s{sT0}, s{sT0}, {hex(OOB)}
v_add_u32 v{CI+3}, s{sT0}, v{vE+5}
''')
LB1 = [f'buffer_load_dwordx2 {vr(CI + 4*c, 2)}, v{CI+3}, {sr(S_B1,4)}, 0 offen offset:{256 + 32*c}' for c in range(4)]
if not cfg.lb:
    for t in LB1: k(t)
k(f'''
s_lshl2_add_u32 s{sT0}, s{sRB}, s{sW}
''')
ck_off(sCK, sT0)
k(f'''
s_mul_i32 s{sH}, s{sT0}, {RTS}
s_lshl_b32 s{sGO}, s{sT0}, 8
s_add_u32 s{sGO}, s{sGO}, {WS_G}
s_mul_i32 s{sT0}, s{sGRP}, {3*UNT}
s_add_u32 s{sT0}, s{sT0}, {2*UNT}
s_mul_i32 s{sT1}, s{sGRP}, {UNT}
s_add_u32 s{sT1}, s{sT1}, {22*UNT}
s_cmp_eq_u32 s{sTYPE}, 1
s_cselect_b32 s{sT0}, s{sT0}, s{sT1}
s_add_u32 s{sH}, s{sH}, s{sT0}
s_cmp_eq_u32 s{sB7}, 1
s_cselect_b32 s{sH}, {hex(OOB)}, s{sH}
s_cmp_eq_u32 s{sTYPE}, 1
s_cselect_b32 s{sEPS}, 0, {f32(1e-6)}
''')
def xreg(t, rt): return vWR + 8*t + 4*rt
def gate_mm(s):
    e = side(f'L_ng{s}', f's_cmp_eq_u32 s{sB7}, 0')
    if cfg.sq and s < 7 and cfg.xo == 2: k.waitcnt(lgkm=4)
    else: k.wait_lg_all()
    for kk in range(2):
        for rt in range(2):
            k(mf(GA + 4*rt, GF + 8*s + 4*kk, xreg(2*s + kk, rt), '0' if s == 0 and kk == 0 else None))
    e()
STREAM = []
NW1 = 4 + cfg.q9 + cfg.q10 + cfg.q11
assert 4 + cfg.q9 + cfg.q10 >= 8 and cfg.q9 >= 1
for q in range(cfg.d0, 10 + NW1): STREAM += item(q)
done = [8*cfg.d0]
LIM = [40, 40, 48, 56, 64, 72, 80, 88, 96, 108, 120, 132]
def take(i):
    n = min(LIM[i], done[0] + (cfg.q0 if i < 7 else {9: 4*cfg.q9, 10: 4*cfg.q10, 11: 4*cfg.q11}.get(i, 8))) - done[0]
    done[0] += n
    r = STREAM[:2*n]; del STREAM[:2*n]
    return r
win = 0
if cfg.so:
    for q in range(1, cfg.d0):
        for f in item(q): f()
if cfg.lb:
    for t in LB1: k(t)
    k(LB2)
SQ = [int(c_) for c_ in str(cfg.sq)] if cfg.sq else []
SPF = [f'    s_buffer_load_dwordx2 s[0:1], {sr(S_W2,4)}, s{sT3} offset:{128*i+60}' for i in range(11)]
SPF += [f'    s_buffer_load_dwordx2 s[0:1], {sr(S_WO,4)}, s{sT5} offset:{128*i+60}' for i in range(4)]
def spf(i):
    n = SQ[i] if i < len(SQ) else 0
    for t in SPF[:n]: k.raw(t)
    del SPF[:n]
if cfg.sq:
    k(f'''
    s_mul_i32 s{sT3}, s2, {43*128}
    s_mul_i32 s{sT5}, s{sW}, {11*128}
    s_min_u32 s{sT5}, s{sT5}, {32*128}
    s_add_u32 s{sT3}, s{sT3}, s{sT5}
    s_lshl2_add_u32 s{sT5}, s2, s{sW}
    s_lshl_b32 s{sT5}, s{sT5}, 9
    ''')
    k.wait_lg_all()
    spf(0)
stamp('i1')
if cfg.sp1 or cfg.sp2: k(f's_setprio {cfg.sp2}')
if cfg.stamps == 7:
    k.raw(f'    s_waitcnt vmcnt({len(k.vm)-1})'); stamp('f0'); k.raw(f'    s_waitcnt vmcnt({len(k.vm)-2})'); stamp('f1')
for s in range(8):
    k.wait_vm_tok(tokQ[s + (s == 7)])
    if cfg.xo >= 2 and s > 0: k.waitcnt(lgkm=4)
    else: k.wait_lg_all()
    k('s_barrier')
    stamp(f'B{s}')
    w = ((s % 5) * 32768) >> 16
    if w != win:
        k(f'v_add_u32 v{vXR}, {hex(((w - win) << 16) & 0xffffffff)}, v{vXR}\nv_add_u32 v{vXR+1}, {hex(((w - win) << 16) & 0xffffffff)}, v{vXR+1}')
        win = w
    if s == 3: k(DBTEXT(vE+7))
    F = take(s)
    if cfg.sql:
        for f in F[:2*cfg.sql]: f()
        F = F[2*cfg.sql:]
    spf(s + 1)
    R = [f'ds_read_b128 {vr(xreg(2*s+kk, rt), 4)}, v{vXR+kk} offset:{((s % 5) * 32768) % 65536 + 2048*rt}' for kk in range(2) for rt in range(2)]
    if cfg.nox: R = ['s_nop 0'] * 4
    if s == 2:
        for c in range(4): R += unpack4(CI + 4*c, CI + 4*c)
    if s == 3: R += [f'v_add_f32 v{CI+i}, s{sEPS}, v{CI+i}' for i in range(16)]
    if cfg.xo == 1:
        for r in R[:4]: k(r)
        weave(F, R[4:])
    elif cfg.xo == 2:
        weave(F, R[4:])
        for r in R[:4]: k(r)
    else:
        for f in F[:2]: f()
        weave(F[2:], R)
    if s >= 1: gate_mm(s - 1)
    if s == 6: get_epoch(vE+7)
gate_mm(7)
assert not cfg.sq or not SPF
e = side('L_nogate', f's_cmp_eq_u32 s{sB7}, 0')
k(f'''
v_cmp_gt_u32 vcc, 16, v{vLANE}
v_cndmask_b32 v{vE}, v{GA+4}, v{GA}, vcc
v_mul_f32 v{vE}, {f32(-1.4426950408889634)}, v{vE}
v_exp_f32 v{vE}, v{vE}
v_lshlrev_b32 v{vE+2}, 3, v{vLANE}
v_add_f32 v{vE}, 1.0, v{vE}
v_mov_b32 v{vE+1}, s{sN}
v_rcp_f32 v{vE}, v{vE}
s_mov_b32 exec_hi, 0
buffer_store_dwordx2 {vr(vE,2)}, v{vE+2}, {sr(S_WS,4)}, s{sGO} offen sc1
s_mov_b32 exec_hi, -1
''')
e()
POOL = [vWF + 4*i for i in range(8)] + [vE + 4*i for i in range(4)]
def wfrag(t, c): return POOL[(4*t + c) % 12]
def w2reads(t):
    return [f'ds_read_b64_tr_b16 {vr(wfrag(t, c) + 2*h, 2)}, v{vWA+c} offset:{4096*t + 512*h}' for c in range(4) for h in range(2)]
k.wait_lg_all()
for r in w2reads(0) + w2reads(1): k(r)
assert done[0] >= 80
k(f'v_lshl_add_u32 v{vL4}, v{vLANE}, 2, s{sCK}')
k('s_barrier')
stamp('B8')
k(f's_setprio {cfg.prg1}')
MV = {0: (), 1: (0, 1), 2: (2, 3), 3: (4,)}
for t in range(16):
    if t in (4, 8, 12):
        k.wait_vm_tok(tokQ[{4: 11, 8: 13, 12: 14}[t]])
        if t > 4: wait_regs(range(vWR + 16*MV[t//4 - 1][0], vWR + 16*MV[t//4 - 1][-1] + 16))
        k('s_barrier')
        stamp(f'B{8 + t//4}')
    if t % 4 == 0:
        D = take(8 + t//4)
        nd = 2*((len(D) + 7) // 8)
        Mv = moves(MV[t//4])
        if cfg.nomv & 2: Mv = [x for x in Mv if not x.startswith('ds_')]
    R = w2reads(t + 2) if t + 2 < 16 else []
    X = D[nd*(t%4):nd*(t%4)+nd]
    nm = (len(Mv) + 2) // 3
    Y = Mv[nm*(t%4):nm*(t%4)+nm]
    Z = []
    for i in range(4): Z += R[2*i:2*i+1] + X[(i*len(X)+3)//4:((i+1)*len(X)+3)//4] + R[2*i+1:2*i+2] + Y[(i*len(Y)+3)//4:((i+1)*len(Y)+3)//4]
    R = Z
    wait_regs([wfrag(t, c) + i for c in range(4) for i in range(4)])
    M = [mf(vAC2 + ((c >> 1)*2 + rt)*8 + (c & 1)*4, wfrag(t, c), xreg(t, rt), vr(CI + 4*c, 4) if t == 0 else None) for c in range(4) for rt in range(2)]
    if cfg.m32: M = [f'v_mfma_f32_32x32x16_bf16 {vr(vAC2+16*(c&1),16)}, {vr(wfrag(t, c),4)}, {vr(xreg(t, c>>1),4)}, {vr(vAC2+16*(c&1),16) if t or c > 1 else 0}' for c in range(4)]
    j = 0
    for i, m in enumerate(M):
        k(m)
        tgt = ((i + 1) * len(R) + len(M) - 1) // len(M)
        while j < tgt: emit(R[j]); j += 1
assert not STREAM
k.wait_vm_tok(tokQ[17])
k.wait_lg_all()
k('s_barrier')
stamp('B12')
k(f's_setprio {cfg.pe1}')
k(f's_cmp_eq_u32 s{sTYPE}, 1\ns_cbranch_scc1 L_G1B')
snap1 = k.snapshot(); nst1 = nst[0]
C0_1 = 8
def early(n): return [f for r in range(n) for f in loadA(r)]
def wpairs(lo, hi):
    L = []
    for r in range(lo, hi):
        it = item(10 + r)
        for i in range(0, 8, 2): L.append(lambda a=it[i], b=it[i+1]: (a(), b()))
    return L
def fill(n, lo, hi): return early(n) + wpairs(lo, hi) if cfg.afirst else wpairs(lo, hi) + early(n)
W0 = NW1 + cfg.wa1
consts('A', C0_1)
GG = 4
gtexts = [f'buffer_load_dwordx2 {vr(GG+2*rt,2)}, v3, {sr(S_WS,4)}, s{sGO} offen offset:{128*rt} sc1' for rt in range(2)]
k(f'v_and_b32 v3, 15, v{vLANE}\nv_lshlrev_b32 v3, 3, v3')
for t in gtexts: k(t)
PQ = vAW + 32
assert cfg.e1a <= 4
V = stx('e1') + phi(vAC2, PQ, vE, C0_1, cfg.pk) + phi(vAC2 + 16, PQ + 8, vE, C0_1, cfg.pk) + stx('e2')
if cfg.e1la:
    for v in V: k(v)
    if cfg.e1la == 1:
        for f in early(cfg.e1a): f()
else: weave_int(V, fill(cfg.e1a, NW1, W0), cfg.gint1, cfg.f1)
k(f'''
v_lshlrev_b32 v10, 3, v{vLANE}
v_lshrrev_b32 v11, 4, v{vLANE}
v_lshlrev_b32 v11, 3, v11
''')
checked(gtexts, [GG+1, GG+3], vE, sN2)
k('s_barrier')
stamp('e3')
KV, ZZ = vE, vE + 8
for c in range(4):
    k(f'ds_read_b64 {vr(ZZ+2*c,2)}, v11 offset:{L_KV + 2048 + 32*c}')
    k(f'ds_read_b64 {vr(KV+2*c,2)}, v10 offset:{L_KV + 512*c}')
if cfg.e1la == 2:
    for f in early(cfg.e1a): f()
DEN = vWF
def idx(c, rt): return ((c >> 1)*2 + rt)*2 + (c & 1)
for c in range(4):
    for rt in range(2):
        i = idx(c, rt)
        k(f'v_mfma_f32_16x16x16_bf16 {vr(DEN+4*i,4)}, {vr(ZZ+2*c,2)}, {vr(PQ+2*i,2)}, 0')
for c in range(4):
    for rt in range(2):
        i = idx(c, rt)
        k(f'v_mfma_f32_16x16x16_bf16 {vr(vAC2+4*i,4)}, {vr(KV+2*c,2)}, {vr(PQ+2*i,2)}, 0')
for i in range(8): k(f'v_add_f32 v{DEN+4*i}, s{sEPS}, v{DEN+4*i}')
for i in range(8): k(f'v_rcp_f32 v{DEN+4*i}, v{DEN+4*i}')
for i in range(8): k(f'v_mul_f32 v{DEN+4*i}, v{DEN+4*i}, v{GG + 2*((i >> 1) & 1)}')
OO = PQ
stamp('e4')
for f in range(4):
    for i in (2*f, 2*f + 1):
        for h in range(2):
            k(f'v_pk_mul_f32 {vr(vAC2+4*i+2*h,2)}, {vr(vAC2+4*i+2*h,2)}, {vr(DEN+4*i,2)} op_sel_hi:[1,0]')
    for j in range(4): k(f'v_cvt_pk_bf16_f32 v{OO+4*f+j}, v{vAC2+8*f+2*j}, v{vAC2+8*f+2*j+1}')
    if f & 1:
        for t in strec(OO + 4*f - 4, sH, STP*(f >> 1), vE + 2*f): k(t)
for r in range(cfg.e1a, max(cfg.e1a, cfg.e1b)):
    for f in loadA(r): f()
k('s_branch L_P2_1')
vmA = [dict(x) for x in k.vm]
k.label('L_G1B')
k.restore(snap1); nst[0] = nst1
consts('B', C0_1)
V = stx('e1') + gelu(vAC2, vWF, vE, C0_1, cfg.pk) + stx('e2') + strec(vWF, sH, 0, vWF + 16) + stx('e3')
if cfg.e1l:
    for v in V: k(v)
    V = gelu(vAC2 + 16, vWF + 8, vE, C0_1, cfg.pk) + stx('e4')
    n0 = {1: 0, 2: len(V) // 2, 3: len(V) - 10}[cfg.e1l]
    for v in V[:n0]: k(v)
    weave(V[n0:], early(cfg.e1b))
    for v in strec(vWF + 8, sH, STP, vWF + 18): k(v)
else:
    V += gelu(vAC2 + 16, vWF + 8, vE, C0_1, cfg.pk) + stx('e4') + strec(vWF + 8, sH, STP, vWF + 18)
    weave_int(V, fill(cfg.e1b, NW1, W0), cfg.gint1, cfg.f1)
for r in range(cfg.e1b, max(cfg.e1a, cfg.e1b)):
    for f in loadA(r): f()
phase2(1, vmA, max(cfg.e1a, cfg.e1b), 15)

WT = [f'buffer_load_dword v10, v{vE+6}, {sr(S_W2,4)}, s{sT0} offen', f'buffer_load_dword v11, v{vE+7}, {sr(S_WO,4)}, s{sT2} offen']
def stouch(part=0):
    k(f'''
    s_mul_i32 s{sT0}, s2, {43*128}
    s_mul_i32 s{sT2}, s{sW}, {11*128}
    s_min_u32 s{sT2}, s{sT2}, {32*128}
    s_add_u32 s{sT0}, s{sT0}, s{sT2}
    s_lshl2_add_u32 s{sT2}, s2, s{sW}
    s_lshl_b32 s{sT2}, s{sT2}, 9
    s_mov_b32 s{S_W2+2}, {1376*1024}
    s_mov_b32 s{S_W2+3}, 0x20000
    s_mov_b32 s{S_WO+2}, {512*1024}
    s_mov_b32 s{S_WO+3}, 0x20000
    ''')
    if part < 2: k.wait_lg_all()
    op, dst, o = ('dword', 'vcc_lo', 0) if cfg.wts in (1, 3) else ('dwordx2', 'vcc', 60)
    L = [f'    s_buffer_load_{op} {dst}, {sr(S_W2,4)}, s{sT0} offset:{128*i+o}' for i in range(11 if cfg.wts != 3 else 1)]
    L += [f'    s_buffer_load_{op} {dst}, {sr(S_WO,4)}, s{sT2} offset:{128*i+o}' for i in range(4 if cfg.wts != 3 else 1)]
    if part == 1: L = L[:cfg.wn1]
    if part == 2: L = L[cfg.wn1:]
    for t in L: k.raw(t)
    k.smem_pending.add(('s', 'vcc'))
def wtouch():
    if cfg.wts == 5: stouch(2)
    elif cfg.wts and cfg.wsp == 1: stouch()
    if not cfg.wtouch: return
    if cfg.tx:
        G = f'''
        s_lshr_b32 s{sT3}, s2, 3
        s_and_b32 s{sT4}, s2, 3
        s_lshl2_add_u32 s{sT4}, s{sT3}, s{sT4}
        s_lshl1_add_u32 s{sT0}, s{sT4}, s{sW}
        s_sub_u32 s{sT0}, s{sT0}, 1
        s_mul_i32 s{sT0}, s{sT0}, {43*128}
        s_lshl_b32 s{sT2}, s{sT4}, 12
        s_sub_u32 s{sT4}, s{sW}, 1
        s_cmp_le_u32 s{sT4}, 1
        s_cselect_b32 s{sT0}, s{sT0}, {hex(OOB)}
        s_cmp_eq_u32 s{sW}, 2
        s_cselect_b32 s{sT2}, s{sT2}, {hex(OOB)}
        s_bitcmp1_b32 s2, 2
        s_cselect_b32 s{sT0}, {hex(OOB)}, s{sT0}
        s_cselect_b32 s{sT2}, {hex(OOB)}, s{sT2}
        s_movk_i32 s{sT5}, 31
        '''
    else:
        G = f'''
        s_lshr_b32 s{sT3}, s2, 3
        s_mul_i32 s{sT0}, s2, {43*128}
        s_lshl_b32 s{sT2}, s2, 11
        s_cmp_eq_u32 s{sW}, 1
        s_cselect_b32 s{sT0}, s{sT0}, {hex(OOB)}
        s_cmp_eq_u32 s{sW}, 2
        s_cselect_b32 s{sT2}, s{sT2}, {hex(OOB)}
        s_movk_i32 s{sT5}, 15
        '''
    k(G)
    if cfg.c3o: k(f's_mov_b32 s{sT0}, {hex(OOB)}\ns_mov_b32 s{sT2}, {hex(OOB)}')
    k(f's_movk_i32 s{sT1}, 7')
    if cfg.c3: k(f'''
        s_mul_i32 s{sT4}, s{sT3}, {43*1024}
        s_add_u32 s{sT4}, s{sT4}, 384
        s_cmp_eq_u32 s{sW}, 0
        s_cselect_b32 s{sT0}, s{sT4}, s{sT0}
        s_cselect_b32 s{sT1}, 10, s{sT1}
        s_lshl_b32 s{sT4}, s{sT3}, 14
        s_add_u32 s{sT4}, s{sT4}, 384
        s_cmp_eq_u32 s{sW}, 3
        s_cselect_b32 s{sT2}, s{sT4}, s{sT2}
        s_cselect_b32 s{sT1}, 10, s{sT1}
        s_cselect_b32 s{sT5}, 15, s{sT5}
        ''')
    k(f'''
    v_min_u32 v{vE+6}, 42, v{vLANE}
    v_and_b32 v{vE+7}, s{sT5}, v{vLANE}
    v_lshlrev_b32 v{vE+6}, s{sT1}, v{vE+6}
    v_lshlrev_b32 v{vE+7}, s{sT1}, v{vE+7}
    ''')
    if cfg.wtd < 0:
        for t in WT: k(t)
k.label('L_G0')
k.restore(snapE); nst[0] = nstE; tokQ.clear(); p2w[0] = 0
if cfg.ka: k(KA2)
k(f's_or_b32 s{sT5}, s2, s{sWAVE}')
e = side('L_noclr', f's_cmp_lg_u32 s{sT5}, 0')
k(f'''
s_mov_b32 s{sT0}, {WS_EP}
buffer_load_dword v{vE+8}, off, {sr(S_WS,4)}, s{sT0} sc1
s_waitcnt vmcnt(0)
v_add_u32 v{vE+8}, 2, v{vE+8}
v_or_b32 v{vE+8}, 1, v{vE+8}
s_mov_b64 exec, 1
buffer_store_dword v{vE+8}, off, {sr(S_DBG,4)}, 0 sc1
buffer_store_dword v{vE+8}, off, {sr(S_WS,4)}, s{sT0} sc1
s_mov_b64 exec, -1
''')
e()
if cfg.stamps == 7:
    k.wait_lg_all()
    for nm in ('ka', 'i0', 'i1', 'f0', 'f1'): stamp(nm)
if cfg.wts and cfg.wsp == 0 and cfg.wts != 5: stouch()
if not cfg.lb: common_setup(0)
vEP, C0_0 = 4, 6
k(f's_cmp_eq_u32 s{sTYPE}, 1\ns_cbranch_scc1 L_G0B')
snap0 = k.snapshot(); nst0 = nst[0]
CI0 = vWF

def pass1(typ):
    nfr = 10 if typ == 'A' else 8
    def fr(t, i): return vWR + 4*(nfr*(t & 1) + i)
    def reads(t):
        s, kk = t >> 1, t & 1
        off = ((s % 5) * 32768) % 65536
        X = lambda i, f: f'ds_read_b128 {vr(fr(t, f), 4)}, v{vXR+kk} offset:{off + 2048*i}'
        W = lambda a, u, f: [f'ds_read_b64_tr_b16 {vr(fr(t, f) + 2*h, 2)}, v{vWA+a} offset:{off + 16384 + 8192*u + 4096*kk + 512*h}' for h in range(2)]
        if typ == 'A':
            return W(0, 0, 8) + [X(0, 0)] + W(0, 1, 9) + [X(i, i) for i in range(1, 8)]
        return W(0, 0, 4) + [X(0, 0), X(1, 1)] + W(1, 0, 5) + [X(2, 2), X(3, 3)] + W(0, 1, 6) + W(1, 1, 7)
    def mms(t):
        if typ == 'A':
            return [(mf(vAW + 32*u + 4*i, fr(t, i), fr(t, 8+u), (vr(CI0, 4) if u == 0 else '0') if t == 0 else None), (i, 8+u)) for i in range(8) for u in range(2)]
        order = [(0,0),(0,1),(1,0),(1,1),(0,2),(0,3),(1,2),(1,3)] + [(w, i) for w in (2, 3) for i in range(4)]
        return [(mf(vAW + (((w >> 1)*4 + i + 6) % 8)*8 + (w & 1)*4, fr(t, 4+w), fr(t, i), vr(CI0 + 4*w, 4) if t == 0 else None), (i, 4+w)) for w, i in order]
    na = 1 if typ == 'A' else 2
    if cfg.lb and cfg.stamps == 7: k(LB2)
    if cfg.prio: k(f's_setprio {cfg.prio}')
    k('s_barrier')
    stamp('B0')
    for r in reads(0): k(r)
    win = 0
    for t in range(16):
        R = []
        if t % 2 == 1:
            s = (t + 1) // 2
            k('s_barrier')
            stamp(f'B{s}')
            w = ((s % 5) * 32768) >> 16
            if s < 8 and w != win:
                d = hex(((w - win) << 16) & 0xffffffff); win = w
                R += [f'v_add_u32 v{vWA+a}, {d}, v{vWA+a}' for a in range(na)] + [f'v_add_u32 v{vXR+a}, {d}, v{vXR+a}' for a in range(2)]
        if t + 1 < 16: R += reads(t + 1)
        if t == 8: R.append(DBTEXT(vEP))
        if cfg.lb and cfg.stamps != 7 and t == 4: R += LB2.split('\n')
        if cfg.wtouch and t == cfg.wtd: R.append(WT[0])
        if cfg.wtouch and cfg.wtd >= 0 and t == cfg.wtd + cfg.wtd2: R.append(WT[1])
        M = mms(t)
        if cfg.nog0 & 1: R = [x for x in R if not x.startswith('ds_')]
        if cfg.nog0 & 2: M = [('s_nop 0', f) for m, f in M]
        j = 0
        for i, (m, fs) in enumerate(M):
            if i % 8 == 0:
                wait_regs([fr(t, f) + q for mm in M[i:i+8] for f in mm[1] for q in range(4)])
            k(m)
            tgt = min(len(R), ((i + 1) * len(R) + 11) // 12)
            while j < tgt: k(R[j]); j += 1
    if cfg.prio: k('s_setprio 0')

def pass2(V, nv, extra=[]):
    assert W0 + cfg.g4 <= 13 or cfg.g4 == 0
    V = list(V)
    if cfg.prio2: k(f's_setprio {cfg.prio2}')
    get_epoch(vEP)
    p2w[0] = 0
    for i in range(4):
        F = moves(MV[i])
        if cfg.nomv & 1: F = [x for x in F if not x.startswith('ds_')]
        if cfg.mvb == 1:
            for x in F: k(x)
            F = []
        if i == 3: F += [f for r in range(W0, W0 + cfg.g4) for f in item(10 + r)] + extra
        n = nv - len(F) // 2
        if cfg.mvb == 2:
            weave(V[:n], []); weave([], F)
        else: weave(V[:n], F)
        V = V[n:]
        k.wait_lg_all()
        k('s_barrier')
        stamp(f'B{9+i}')
    k(f's_setprio {cfg.pe0}')
    return V

W1 = W0 + cfg.g4; W2 = min(15, W1 + cfg.we0)
if cfg.wts == 5: stouch(1)
if cfg.lb: common_setup(0)
if not cfg.kv2: k(f'''
s_lshl2_add_u32 s{sT0}, s{sGRP}, s{sW}
s_lshl4_add_u32 s{sT1}, s{sT0}, s{sRB}
s_lshl_b32 s{sH}, s{sT1}, 10
s_add_u32 s{sH}, s{sH}, {WS_KVP}
v_and_b32 v{vE+5}, 1, v{vLANE}
v_cmp_eq_u32 {sr(sH+1,2)}, 1, v{vE+5}
v_lshlrev_b32 v8, 3, v{vLANE}
s_lshl_b32 s{sT1}, s{sW}, 9
v_add_u32 v8, s{sT1}, v8
v_lshlrev_b32 v9, 2, v{vE+5}
v_lshl_add_u32 v9, v{vE+3}, 3, v9
s_lshl_b32 s{sT0}, s{sW}, 5
v_add_u32 v9, s{sT0}, v9
''')
SEL, SD = vWF + 16, vWF + 20
if cfg.kv2:
    k(f'''
    s_lshl2_add_u32 s{sT0}, s{sGRP}, s{sW}
    s_lshl4_add_u32 s{sT1}, s{sT0}, s{sRB}
    s_lshl_b32 s{sH}, s{sT1}, 9
    s_add_u32 s{sH}, s{sH}, {WS_KVP}
    s_lshl_b32 s{sH+1}, s{sT1}, 6
    s_add_u32 s{sH+1}, s{sH+1}, {WS_KVP + 0x40000}
    v_lshlrev_b32 v8, 3, v{vLANE}
    s_lshl_b32 s{sT1}, s{sW}, 9
    v_add_u32 v8, s{sT1}, v8
    s_lshl_b32 s{sT0}, s{sW}, 5
    v_lshl_add_u32 v9, v{vE+3}, 3, s{sT0}
    v_lshrrev_b32 v{vE+8}, 1, v{vE+3}
    v_lshl_add_u32 v{vE+8}, v{vE+8}, 4, v{vE+2}
    v_and_b32 v{vE+9}, 1, v{vE+3}
    v_lshl_add_u32 v{vE+8}, v{vE+8}, 1, v{vE+9}
    v_lshlrev_b32 v3, 3, v{vE+8}
    v_lshlrev_b32 v5, 4, v{vE+3}
    v_lshl_add_u32 v12, v{vE+2}, 6, v5
    v_lshl_add_u32 v5, v{vE+2}, 26, v5
    v_lshrrev_b32 v{vE+8}, 1, v{vE+2}
    v_lshlrev_b32 v{vE+9}, 2, v{vE+9}
    v_xor_b32 v{vE+8}, v{vE+8}, v{vE+9}
    v_and_b32 v{vE+9}, 1, v{vE+2}
    v_lshlrev_b32 v{vE+9}, 4, v{vE+9}
    v_mov_b32 v{vE+10}, 0x3f80
    v_lshlrev_b32 v{vE+10}, v{vE+9}, v{vE+10}
    ''')
    for r in range(4): k(f'v_cmp_eq_u32 vcc, {r}, v{vE+8}\nv_cndmask_b32 v{SEL+r}, 0, v{vE+10}, vcc')
xw_addr('0', f's{sT0}')
wtouch()
consts('A', C0_0)
for i in range(4): k(f'v_mov_b32 v{CI0+i}, s{sEPS}')
ONES = vWF + 4
for i in range(4): k(f'v_mov_b32 v{ONES+i}, 0x3f803f80')
pass1('A')
PK, VV = vAC2, vAC2 + 16
KVA, ZA = vWF + 8, vWF + 12
V = phi(vAW, PK, vE, C0_0, 0)
V += [f'v_cvt_pk_bf16_f32 v{VV+i}, v{vAW+32+2*i}, v{vAW+32+2*i+1}' for i in range(16)]
V += [mf(KVA, PK, VV, '0'), mf(ZA, PK, ONES, '0'), mf(KVA, PK+4, VV+4), mf(ZA, PK+4, ONES)]
V += phi(vAW + 16, PK + 8, vE, C0_0, 0)
V += [mf(KVA, PK+8, VV+8), mf(ZA, PK+8, ONES), mf(KVA, PK+12, VV+12), mf(ZA, PK+12, ONES)]
V += [f'v_cvt_pk_bf16_f32 v{vE+i}, v{KVA+2*i}, v{KVA+2*i+1}' for i in range(4)]
if not cfg.kv2:
    V += [f'v_cndmask_b32_e64 v{vE+2}, v{vE+2}, v{vE+3}, {sr(sH+1,2)}', f'v_mov_b32 v{vE+3}, s{sN}', st4(vE, sH, 0)]
    KB = vAC2
    kt = [f'buffer_load_dwordx4 {vr(KB+4*r,4)}, v{vL16}, {sr(S_WS,4)}, s{sH + r//4} offen offset:{1024*(r%4)} sc1' for r in range(16)]
    V += [f's_and_b32 s{sH}, s{sH}, 0xffffc000', f's_add_u32 s{sH+1}, s{sH}, 4096', f's_add_u32 s{sH+2}, s{sH}, 8192', f's_add_u32 s{sH+3}, s{sH}, 12288']
ROR = lambda op, r, n: f'{op}_dpp v{r}, v{r}, v{r} row_ror:{n} row_mask:0xf bank_mask:0xf'
if cfg.kv2:
    V += [f'v_add_u32 v{vE+4}, v{vE}, v{vE+1}', f'buffer_store_dwordx2 {vr(vE,2)}, v3, {sr(S_WS,4)}, s{sH} offen sc1']
    V += [ROR('v_add_u32', vE + 4, n) for n in (8, 4, 2, 1)]
    V += [f'v_add3_u32 v{vE+4}, v{vE+4}, v{vE+2}, v{vE+3}', f'v_sub_u32 v{vE+4}, s{sN}, v{vE+4}',
          f'buffer_store_dwordx3 {vr(vE+2,3)}, v5, {sr(S_WS,4)}, s{sH+1} offen sc1']
    KB = vAC2
    kt = [f'buffer_load_dwordx3 {vr(SD,3)}, v12, {sr(S_WS,4)}, s{sH+1} offen sc1']
    kt += [f'buffer_load_dwordx4 {vr(KB+4*r,4)}, v{vL16}, {sr(S_WS,4)}, s{sH + 2*(r//4)} offen offset:{1024*(r%4)} sc1' for r in range(8)]
    V += [f's_and_b32 s{sH}, s{sH}, 0xffffe000', f's_add_u32 s{sH+2}, s{sH}, 4096', f's_and_b32 s{sH+1}, s{sH+1}, 0xfffffc00', f's_lshl_b32 s{sH+3}, s{sN}, 6']
if cfg.kve: assert len(V) <= 3*cfg.nva - 40
V = pass2(V, cfg.nva, kt if cfg.kve else [])
for v in V: k(v)
if not cfg.kve:
    for t in kt: k(t)
stamp('e1')
for f in fill(cfg.e0a, W1, W2): f()
stamp('e2')
if not cfg.kv2:
    k(f's_lshl_b32 s{sT5}, s{sN}, 4\ns_mov_b32 s{sSEL0}, 0x00003f80\ns_mov_b32 s{sSEL1}, 0x3f800000')
    checked(kt, [KB + 4*r + 3 for r in range(16)], vE, sT5)
    stamp('e3')
    SUM = vE
    V = []
    for r in range(16):
        for j in range(3):
            for h in range(2):
                d = SUM + 6*(r & 1) + 2*j + h
                V.append(f'v_dot2_f32_bf16 v{d}, v{KB+4*r+j}, s{sSEL0+h}, {"0" if r < 2 else "v%d" % d}')
    for i in range(0, 6, 2): V.append(f'v_pk_add_f32 {vr(SUM+i,2)}, {vr(SUM+i,2)}, {vr(SUM+6+i,2)}')
    for i in range(3): V.append(f'v_cvt_pk_bf16_f32 v{vE+12+i}, v{SUM+2*i}, v{SUM+2*i+1}')
    weave(V, [f for r in range(cfg.e0a, max(cfg.e0a, cfg.e0b)) for f in loadA(r)])
    k(f'ds_write_b64 v8, {vr(vE+12,2)} offset:{L_KV}')
    k(f'ds_write_b32 v9, v{vE+14} offset:{L_KV + 2048}')
else:
    k.label('L_kvc')
    k('s_nop 1')
    Z, T, D = vE, vE + 4, vE + 8
    V = unpack4(Z, SD) + [f'v_add3_u32 v{T}, v{SD}, v{SD+1}, v{SD+2}']
    V += [ROR('v_add_f32', Z + i, n) for n in (8, 4, 2, 1) for i in range(4)]
    V += [f'v_cvt_pk_bf16_f32 v{Z+i}, v{Z+2*i}, v{Z+2*i+1}' for i in range(2)] + [f'ds_write_b64 v9, {vr(Z,2)} offset:{L_KV + 2048}']
    V += stx('e3')
    for r in range(8):
        V += [mf(D, SEL, KB + 4*r, '0' if r == 0 else None), f'v_add3_u32 v{T}, v{T}, v{KB+4*r}, v{KB+4*r+1}']
        V += [f'v_add3_u32 v{T+1}, v{T+1}, v{KB+4*r+2}, v{KB+4*r+3}' if r else f'v_add_u32 v{T+1}, v{KB+2}, v{KB+3}']
    for v in V: k(v)
    V = [f'v_add_u32 v{T}, v{T}, v{T+1}'] + [ROR('v_add_u32', T, n) for n in (8, 4, 2, 1)]
    V.insert(3, f'v_cvt_pk_bf16_f32 v{D}, v{D}, v{D+1}'); V.insert(5, f'v_cvt_pk_bf16_f32 v{D+1}, v{D+2}, v{D+3}')
    V += [f'v_mov_b32 v{T+1}, v{T}', f'ds_write_b64 v8, {vr(D,2)} offset:{L_KV}', f'v_permlane16_swap_b32 v{T}, v{T+1}', f'v_add_u32 v{T}, v{T}, v{T+1}',
          f'v_mov_b32 v{T+1}, v{T}', f'v_permlane32_swap_b32 v{T}, v{T+1}', f'v_add_u32 v{T}, v{T}, v{T+1}', f'v_cmp_ne_u32 vcc, s{sH+3}, v{T}']
    weave(V, [f for r in range(cfg.e0a, max(cfg.e0a, cfg.e0b)) for f in loadA(r)] if cfg.kv2 == 1 else [])
    if not cfg.nocheck: k('s_cbranch_vccnz L_kvs')
    k.label('L_kvd')
    s_ = Kern()
    s_.label('L_kvs')
    s_(f's_sub_u32 s{sSPIN}, s{sSPIN}, 1\ns_cbranch_scc1 L_kvg\ns_nop 7\ns_nop 3')
    for t in kt: s_(t)
    s_('s_waitcnt vmcnt(0) lgkmcnt(0)\ns_branch L_kvc')
    s_.label('L_kvg')
    s_(f's_mov_b32 s{sSPIN}, 0\ns_branch L_kvd')
    slow.append(s_.text())
k.wait_lg_all()
stamp('e4')
k('s_barrier')
if cfg.kv2 == 2:
    for r in range(cfg.e0a, max(cfg.e0a, cfg.e0b)):
        for f in loadA(r): f()
k('s_branch L_P2_0')
vmA = [dict(x) for x in k.vm]

k.label('L_G0B')
k.restore(snap0); nst[0] = nst0; tokQ.clear()
k(f'''
s_and_b32 s{sT2}, s{sW}, 1
s_lshl_b32 s{sT2}, s{sT2}, 6
s_mul_i32 s{sT0}, s{sGRP}, 384
s_add_u32 s{sT0}, s{sT0}, s{sT2}
v_lshrrev_b32 v{vE+5}, 4, v{vLANE}
v_lshlrev_b32 v{vE+5}, 3, v{vE+5}
''')
srd_tail(S_B1, 2752)
for w in range(4):
    k(f'buffer_load_dwordx2 {vr(CI0 + 4*w, 2)}, v{vE+5}, {sr(S_B1,4)}, s{sT0} offen offset:{128*(w >> 1) + 32*(w & 1)}')
if cfg.wts == 5: stouch(1)
if cfg.lb:
    common_setup(0)
    k(f's_and_b32 s{sT2}, s{sW}, 1\ns_lshl_b32 s{sT2}, s{sT2}, 6')
k(f'''
s_mul_i32 s{sT0}, s{sGRP}, {3*UNT}
s_and_b32 s{sT1}, s{sW}, 2
s_lshl2_add_u32 s{sT1}, s{sRB}, s{sT1}
''')
ck_off(sT3, sT1)
k(f'''
s_mul_i32 s{sT4}, s{sT2}, {1792//64}
s_sub_u32 s{sT3}, s{sT3}, s{sT4}
v_lshl_add_u32 v{vL4}, v{vLANE}, 2, s{sT3}
v_subrev_u32 v5, {RTS - 512}, v{vL4}
s_mul_i32 s{sT1}, s{sT1}, {RTS}
s_add_u32 s{sT1}, s{sT1}, s{sT0}
s_mul_i32 s{sT3}, s{sT2}, {STP//64}
s_add_u32 s{sH}, s{sT1}, s{sT3}
s_add_u32 s{sH+1}, s{sH}, {RTS}
s_add_u32 s{sH+2}, s{sH}, {UNT}
s_add_u32 s{sH+3}, s{sH+1}, {UNT}
s_cmp_eq_u32 s{sB7}, 1
s_cselect_b32 s{sH+2}, {hex(OOB)}, s{sH+2}
s_cselect_b32 s{sH+3}, {hex(OOB)}, s{sH+3}
''')
k(f's_and_b32 s{sT1}, s{sW}, 2\ns_lshl_b32 s{sT1}, s{sT1}, 12')
xw_addr(f's{sT1}', f's{sT2}')
k(f'v_xor_b32 v{vWA+1}, 32, v{vWA}')
wtouch()
consts('B', C0_0)
for w in range(4):
    for t in unpack4(CI0 + 4*w, CI0 + 4*w): k(t)
pass1('B')
def btile(i, pk):
    o = vAC2 + 8*i
    return gelu(vAW + 16*((i + 3) % 4), o, vE, C0_0, pk) + strec(o, sH + i, 0, vWF + 2*i, 5 if i & 1 else vL4)
ntile = min(4, -(-(4*cfg.nvb - 16) // 128))
V = []
for i in range(ntile): V += btile(i, 0)
if cfg.e0p:
    assert ntile == 4
    pos = len(V) - 8 - cfg.e0q
    E = early(cfg.e0p)
    step = max(1, cfg.e0q // len(E))
    for i, f in enumerate(E): V.insert(pos + i * (step + 1), f)
V = pass2(V, cfg.nvb)
if cfg.e0p:
    for v in V: emit(v)
    V = []
V = stx('e1') + V + stx('e2')
for i in range(ntile, 4): V += btile(i, cfg.pk) + stx(f'e{i+1}')
weave_int(V, fill(cfg.e0b, W1, W2)[3*cfg.e0p:], cfg.gint, cfg.f0)
for r in range(cfg.e0b, max(cfg.e0a, cfg.e0b)):
    for f in loadA(r): f()
phase2(0, vmA, max(cfg.e0a, cfg.e0b), W2)
k.label('L_fin')
k('s_nop 1')

if cfg.stamps:
    stamp('sto')
    k('s_waitcnt vmcnt(0)')
    stamp('end')
    k(f'''
    s_waitcnt lgkmcnt(0)
    s_cmp_lg_u32 s{sW}, 0
    s_cbranch_scc1 L_end
    ''')
    if cfg.probe >= 0:
        k(f's_cmp_lg_u32 s{sGI}, {cfg.pgrp}\ns_cbranch_scc1 L_end')
        if cfg.ptype >= 0:
            k(f's_cmp_lg_u32 s{sTYPE}, {cfg.ptype}\ns_cbranch_scc1 L_end')
        k(f'''
        s_sub_u32 s{sT0}, s{STREG[cfg.probe]}, s{STREG[0]}
        s_lshl_b32 s{sT0}, s{sT0}, 2
        s_add_u32 s{sT0}, s{sT0}, 5000
        L_probe:
        s_memrealtime s[72:73]
        s_waitcnt lgkmcnt(0)
        s_sub_u32 s{sT1}, s72, s{STREG[0]}
        s_cmp_lt_u32 s{sT1}, s{sT0}
        s_cbranch_scc1 L_probe
        s_branch L_end
        ''')
    k(f'''
    s_mov_b64 exec, 1
    s_lshl1_add_u32 s{sT0}, s2, s{sGI}
    s_mul_i32 s{sT0}, s{sT0}, {8*(nst[0]+1)}
    s_add_u32 s{sT0}, s{sT0}, {STAMP_OFF}
    ''')
    for s in range(nst[0]):
        k(f'v_mov_b32 v4, s{STREG[s]}\nv_mov_b32 v5, s{STREG[s]+1}\nbuffer_store_dwordx2 v[4:5], off, {sr(S_WS,4)}, s{sT0} offset:{8*s}\ns_nop 1')
    k(f'''
    s_sub_u32 s{sT1}, 0x4000, s{sSPIN}
    s_mul_i32 s{sT1}, s{sT1}, 100
    s_add_u32 s{sT1}, s{sT1}, s{STREG[0]}
    s_addc_u32 s{sT2}, s{STREG[0]+1}, 0
    v_mov_b32 v4, s{sT1}
    v_mov_b32 v5, s{sT2}
    buffer_store_dwordx2 v[4:5], off, {sr(S_WS,4)}, s{sT0} offset:{8*nst[0]}
    ''')
k.label('L_end')
k('s_endpgm')

hdr = open('gated_mix__linear_attn_block__dense_activation_gelu__prompt.s.ref').read().split('; @launch')[0]
text = hdr + f'''; @launch grid=(256,1,1) block=(512,1,1) lds={LDS_BYTES}
.amdgcn_target "amdgcn-amd-amdhsa--gfx950"
.text
.globl {KNAME}
.p2align 8
.type {KNAME},@function
{KNAME}:
{k.text()}
{"".join(slow)}
.section .rodata,"a"
.p2align 6
.amdhsa_kernel {KNAME}
  .amdhsa_next_free_vgpr 256
  .amdhsa_next_free_sgpr 102
  .amdhsa_accum_offset 256
  .amdhsa_group_segment_fixed_size 0
  .amdhsa_kernarg_size 96
  .amdhsa_user_sgpr_count 2
  .amdhsa_user_sgpr_kernarg_segment_ptr 1
  .amdhsa_system_sgpr_workgroup_id_x 1
.end_amdhsa_kernel
'''
open(sys.argv[1], 'w').write(text)
print('instructions', k.ninstr, 'nops', k.nnop, 'stamps', nst[0])
```

```python
import sys, struct
from kern import *

KNAME = 'gated_mix__linear_attn_block__dense_activation_gelu__prompt_kernel'
def f32(x): return '0x%08x' % struct.unpack('<I', struct.pack('<f', x))[0]

class Cfg:
    stamps = 0
    pad = 0
    q7 = 8
    q8 = 8
    xo7 = 0
    u3p = 0
    gpk = 0
    gpk0 = -1
    nv0 = 0
    pst = -1
    pmv = -1
    aw1 = -1
    l8 = 0
    clk = 0
    rot = 7
    wrot = 3
    wtouch = 1
    wtd = -1
    wtd2 = 0
    kv2 = 0
    aw2 = 0
    amax = 9
    z1 = -1
    sq = 0
    sql = 0
    c3o = 0
    e1l = 0
    e1la = 0
    e0p = 0
    e0q = 30
    nog0 = 0
    nox = 0
    sp2 = 0
    tx = 0
    c3 = 0
    gx = 0
    wn1 = 7
    lb = 1
    ka = 1
    sp1 = 0
    so = 1
    rmul = 1
    rx = 0
    wts = 0
    wsp = 1
    d0 = 2
    nvb = 95
    nva = 95
    gint = 12
    prio = 1
    probe = -1
    pgrp = 0
    ptype = -1
    nocheck = 0
    prio2 = 0
    pk = 1
    ord0 = 8
    ord1 = 6
    lrd0 = 3
    lrd1 = 1
    e0a = 4
    e0b = 4
    e1a = 4
    e1b = 4
    z0 = 4
    q0 = 10
    g4 = 2
    dper = 1
    gint1 = 8
    xo = 2
    q9 = 2
    q10 = 2
    q11 = 0
    wa1 = 0
    we0 = 0
    pe0 = 0
    pe1 = 2
    pp0 = 0
    pp1 = 0
    f0 = 0
    f1 = 0
    afirst = 1
    kve = 0
    slp = 0
    cm = 0
    nomv = 0
    nost = 0
    mvb = 0
    m32 = 0
    m32p = 0
    prg1 = 1
    whit = 0
    u3hit = 0
    aoob = 0
    mp = 0
    ssc = 1
    xr = 1
    asc = 1
    awin = 4
cfg = Cfg()
for a in sys.argv[2:]:
    k_, v_ = a.split('='); setattr(cfg, k_, int(v_))

STP, UNT = 2048, 4096
RTS = 30 * UNT
WS_CB = 64 * RTS
OOBU = 0x7f200000
WS_KVP = 0x880000
WS_G = WS_KVP + 512 * 1024
WS_EP = WS_G + 16384
WS_END = WS_EP + 128
STAMP_OFF = 0x8000000
WS_SIZE = 0x10000000
OOB = 0x7f000000
LDS_BYTES = 163840
L_KV = 2*16384 + 12288
L_RED = 5 * 16384

S_X, S_W, S_B1, S_GW, S_WS, S_DBG, S_W2, S_WO, S_OUT, S_B2 = 8, 12, 16, 20, 24, 28, 32, 36, 40, 44
sWAVE, sW, sRB, sGRP, sTYPE, sROT, sSTP, sW4K, sW2K, sSLAB, sCT, sB7, sSPIN, sN, sN2 = range(48, 63)
sEPS = 63
sC1 = 64
sT0, sT1, sT2, sT3, sT4, sT5 = range(66, 72)
sU = 72
sH = 87
sM21 = 91
sGO = 93
sCK = 88
sSEL0, sSEL1 = 64, 65
sN10 = 23
STREG = [94, 96, 98, 100, 4, 6, 44, 46]
sGI = 3

vLANE, vL16 = 1, 2
vDX, vDW = 3, 7
vDP = 13
vXR = 15
vWA = 17
vP2 = 21
vA = 25
vB2 = 28
vL4 = 12
vWR = 32
vAW = 112
vCS = 160
vAC2 = 176
vWF = 208
vE = 240
vDUM = 0

k = Kern()
slow = []
nst = [0]
SETS = {1: ['st', 'B0', 'B8', 'B12', 'P2', 'r2', 'r11', 'end'],
        2: ['st', 'B0', 'B1', 'B2', 'B3', 'B4', 'B5', 'B6'],
        3: ['st', 'B6', 'B7', 'B8', 'B9', 'B10', 'B11', 'B12'],
        4: ['st', 'P2', 'r0', 'r2', 'r4', 'r6', 'r8', 'r10'],
        5: ['st', 'r10', 'r11', 'r13', 'mm', 'red', 'sto', 'end'],
        6: ['st', 'B12', 'e1', 'e2', 'e3', 'e4', 'P2', 'r0'],
        7: ['st', 'ka', 'i0', 'i1', 'f0', 'f1', 'B0', 'B1']}
def stx(name):
    if cfg.stamps and name in SETS[cfg.stamps]:
        return [f'{"s_memtime" if cfg.clk else "s_memrealtime"} {sr(STREG[SETS[cfg.stamps].index(name)], 2)}']
    return []
def stamp(name):
    if cfg.stamps and name in SETS[cfg.stamps]:
        k(f'{"s_memtime" if cfg.clk else "s_memrealtime"} {sr(STREG[SETS[cfg.stamps].index(name)], 2)}')
    nst[0] = 8

def side(label, cond):
    k(cond + f'\ns_cbranch_scc1 {label}')
    snap = k.snapshot(); k.track = False
    def end():
        k('s_nop 7')
        k.out.append(label + ':'); k.restore(snap); k.track = True
    return end

def mf(d, a, b, c=None):
    return f'v_mfma_f32_16x16x32_bf16 {vr(d,4)}, {vr(a,4)}, {vr(b,4)}, {vr(d,4) if c is None else c}'

def wait_regs(regs):
    regs = {('v', r) for r in regs}
    l = None
    for i, op in enumerate(k.lg):
        if op['wr'] & regs: l = len(k.lg) - 1 - i
    if l is not None:
        if k.smem_pending: l = 0
        k.waitcnt(lgkm=l)

def emit(x):
    return x() if callable(x) else k(x)
def weave(V, F):
    n = len(V); j = 0
    if n == 0:
        for f in F: emit(f)
        return
    for i, v in enumerate(V):
        tgt = ((i + 1) * len(F) + n - 1) // n
        while j < tgt: emit(F[j]); j += 1
        emit(v)
def weave_int(V, F, step, front=0):
    F = list(F)
    use = [set(Ins(v).rd) | set(Ins(v).wr) for v in V]
    last = -step
    while front and F and not any(getattr(F[0], 'regs', set()) & u for u in use):
        emit(F.pop(0)); front -= 1; last = 0
    for i, v in enumerate(V):
        if F and i - last >= step and not any(getattr(F[0], 'regs', set()) & u for u in use[i:]):
            emit(F.pop(0)); last = i
        emit(v)
    for f in F: emit(f)

def merge_vm(*paths):
    order, cnt, ent = [], {}, {}
    for vm in sorted(paths, key=lambda v: -sum(1 for o in v if o.get('key') or o['wr'])):
        ks = []
        for i, o in enumerate(vm):
            key = o.get('key') or (o['text'] if o['wr'] else None)
            if key is None: continue
            ks.append(key); ent[key] = o
            cnt[key] = min(cnt.get(key, 99), len(vm) - 1 - i)
        if not order: order = ks
        else: assert order[len(order) - len(ks):] == ks, (order, ks)
    out = []
    for key in reversed(order):
        assert cnt[key] >= len(out)
        while len(out) < cnt[key]: out.insert(0, {'id': -1, 'wr': set(), 'text': '', 'redo': False})
        out.insert(0, dict(ent[key]))
    return out
def wait_key(key):
    for i, o in enumerate(k.vm):
        if o.get('key') == key:
            k.waitcnt(vm=len(k.vm) - 1 - i); return

uid = [0]
def addchain(kk, t, r):
    r = list(r)
    if len(r) == 2:
        kk(f'v_add_u32 v{t}, v{r[0]}, v{r[1]}'); return
    if len(r) <= 9:
        parts = [r[:3] + r[6:], r[3:6]]
    else:
        h = (len(r) // 2) | 1
        parts = [r[:h], r[h:]]
    first = [True, True]
    tail = []
    while parts[0] or parts[1]:
        for c in range(2):
            q = parts[c]
            if not q: continue
            if first[c]:
                parts[c] = q[3:]; first[c] = False
                kk(f'v_add3_u32 v{t+c}, v{q[0]}, v{q[1]}, v{q[2]}')
            elif len(q) >= 2:
                parts[c] = q[2:]
                kk(f'v_add3_u32 v{t+c}, v{t+c}, v{q[0]}, v{q[1]}')
            else:
                parts[c] = []; tail.append(q[0])
    if len(tail) == 2:
        kk(f'v_add3_u32 v{t}, v{t}, v{tail[0]}, v{tail[1]}'); tail = []
    if tail: kk(f'v_add3_u32 v{t}, v{t}, v{t+1}, v{tail[0]}')
    else: kk(f'v_add_u32 v{t}, v{t}, v{t+1}')
def checked(texts, regs, T, expect, defer=False):
    uid[0] += 1; u = uid[0]
    def check(kk):
        if expect is None:
            kk(f'v_cmp_eq_u32 vcc, 0, v{regs[0]}')
            return
        addchain(kk, T, regs)
        kk(f'v_cmp_ne_u32 vcc, s{expect}, v{T}')
    if cfg.nocheck and expect is not None: return []
    def fin():
        k(f's_cbranch_vccnz L_slow{u}')
        k.label(f'L_back{u}')
        vm = [dict(x) for x in k.vm]
        while vm and not vm[0]['redo']: vm.pop(0)
        s = Kern()
        s.label(f'L_slow{u}')
        s(f's_sub_u32 s{sSPIN}, s{sSPIN}, 1\ns_cbranch_scc1 L_give{u}\ns_nop 7\ns_nop 3')
        if cfg.slp: s(f's_sleep {cfg.slp}')
        for t in texts: s(t)
        s('s_waitcnt vmcnt(0)')
        check(s)
        s(f's_cbranch_vccnz L_slow{u}')
        for op in vm:
            s(op['text'] if op['redo'] else f'buffer_load_dword v{vDUM}, off, {sr(S_DBG,4)}, 0 offset:4080')
            s.vm = []
        s(f's_branch L_back{u}')
        s.label(f'L_give{u}')
        s(f's_mov_b32 s{sSPIN}, 0\ns_waitcnt vmcnt(0)\ns_branch L_back{u}')
        slow.append(s.text())
    L = []
    check(L.append)
    L.append(fin)
    if defer: return L
    for x in L: emit(x)

def srd_tail(base, size):
    k(f's_mov_b32 s{base+2}, {size}\ns_mov_b32 s{base+3}, 0x20000')

MAP = f'''s_lshr_b32 s{sT2}, s2, 5
v_readfirstlane_b32 s{sWAVE}, v{vE}
s_and_b32 s{sT1}, s2, 1
s_lshl3_add_u32 s{sRB}, s{sT1}, s{sT2}
s_bfe_u32 s{sT1}, s2, 0x20003
s_lshl1_add_u32 s{sROT}, s{sT1}, s{sT2}
s_and_b32 s{sROT}, s{sROT}, {cfg.rot}
s_mul_i32 s{sROT}, s{sROT}, {cfg.rmul}
s_mul_i32 s{sT1}, s2, {cfg.rx}
s_add_u32 s{sROT}, s{sROT}, s{sT1}
s_and_b32 s{sROT}, s{sROT}, 7
s_and_b32 s{sT1}, s2, 6
s_xor_b32 s{sT1}, s{sT1}, {cfg.gx}
s_bfe_u32 s{sT2}, s2, 0x10004
s_add_u32 s{sGRP}, s{sT1}, s{sT2}
s_and_b32 s{sT1}, s2, 0x1e
s_cmp_eq_u32 s{sT1}, {0x1e ^ cfg.gx}
s_cselect_b32 s{sB7}, 1, 0''' if not cfg.mp else f'''s_lshr_b32 s{sT2}, s2, 7
v_readfirstlane_b32 s{sWAVE}, v{vE}
s_and_b32 s{sT1}, s2, 7
s_lshl1_add_u32 s{sRB}, s{sT1}, s{sT2}
s_bfe_u32 s{sGRP}, s2, 0x30004
s_lshl2_add_u32 s{sROT}, s{sT2}, s{sGRP}
s_mul_i32 s{sT1}, s{sT1}, {cfg.xr}
s_add_u32 s{sROT}, s{sROT}, s{sT1}
s_and_b32 s{sROT}, s{sROT}, {cfg.rot}
s_and_b32 s{sT1}, s2, 0x78
s_cmp_eq_u32 s{sT1}, 0x78
s_cselect_b32 s{sB7}, 1, 0'''
KA2 = f'''s_load_dwordx2 {sr(S_B1,2)}, s[0:1], 40
s_load_dwordx2 {sr(S_GW,2)}, s[0:1], 64
s_load_dwordx2 {sr(S_W2,2)}, s[0:1], 48
s_load_dwordx2 {sr(S_WO,2)}, s[0:1], 16
s_load_dwordx2 {sr(S_B2,2)}, s[0:1], 56
s_load_dwordx2 {sr(S_OUT,2)}, s[0:1], 72
'''
stamp('st')
k(f'''
s_cmp_ge_u32 s2, 256
s_cbranch_scc1 L_end
s_load_dwordx2 {sr(S_X,2)}, s[0:1], 0
s_bfe_u32 s{sTYPE}, s2, 0x10003
s_mul_i32 s{sT0}, s{sTYPE}, 24
s_add_u32 s{sT0}, s{sT0}, 8
s_load_dwordx2 {sr(S_W,2)}, s[0:1], s{sT0}
s_load_dwordx2 {sr(S_WS,2)}, s[0:1], 88
s_load_dwordx2 {sr(S_DBG,2)}, s[0:1], 80
{'' if cfg.ka else KA2}
v_lshrrev_b32 v{vE}, 6, v0
v_and_b32 v{vLANE}, 63, v0
{MAP}
s_and_b32 s{sW}, s{sWAVE}, 3
s_lshl_b32 s{sW4K}, s{sW}, 12
s_lshl_b32 s{sW2K}, s{sW}, 11
v_lshlrev_b32 v{vL16}, 4, v{vLANE}
v_lshrrev_b32 v{vE}, 3, v{vLANE}
v_and_b32 v{vE+1}, 7, v{vLANE}
s_mov_b32 s{S_WS+2}, {hex(WS_SIZE) if cfg.stamps else hex(WS_END)}
s_mov_b32 s{S_WS+3}, 0x20000
s_mov_b32 s{S_DBG+2}, 256
s_mov_b32 s{S_DBG+3}, 0x20000
s_cmp_lt_u32 s{sWAVE}, 4
s_cbranch_scc1 L_G0
''')
snapE = k.snapshot(); nstE = nst[0]

CMAP = f'''s_lshr_b32 s{sT1}, s2, 6
    s_lshl2_add_u32 s{sSLAB}, s{sT0}, s{sT1}
    s_bfe_u32 s{sCT}, s2, 0x30003
    s_add_u32 s{sT1}, s{sT1}, s{sCT}''' if not cfg.cm else f'''s_bfe_u32 s{sCT}, s2, 0x30004
    s_xor_b32 s{sT1}, s{sCT}, s{sTYPE}
    s_and_b32 s{sT1}, s{sT1}, 1
    s_lshr_b32 s{sT2}, s2, 7
    s_lshl1_add_u32 s{sT1}, s{sT2}, s{sT1}
    s_lshl2_add_u32 s{sSLAB}, s{sT0}, s{sT1}
    s_lshr_b32 s{sT1}, s{sCT}, 1
    s_lshl1_add_u32 s{sT1}, s{sT2}, s{sT1}
    {"s_add_u32 s%d, s%d, s%d" % (sT1, sT1, sTYPE) if cfg.cm == 2 else ""}'''
LB2 = f'''buffer_load_dwordx2 {vr(vB2+2,2)}, v{vB2}, {sr(S_B2,4)}, 0 offen offset:32
buffer_load_dwordx2 {vr(vB2,2)}, v{vB2}, {sr(S_B2,4)}, 0 offen'''
def common_setup(grp):
    srd_tail(S_B1, 2752); srd_tail(S_W2, 1376*1024); srd_tail(S_WO, 512*1024)
    srd_tail(S_B2, 1024); srd_tail(S_OUT, 2048*1024)
    k(f'''
    s_and_b32 s{sT0}, s2, 7
    {CMAP}
    s_and_b32 s{sT1}, s{sT1}, {cfg.wrot}
    s_lshr_b32 s{sT3}, s{sW}, 1
    s_lshl1_add_u32 s{sT1}, s{sT1}, s{sT3}
    s_lshl_b32 s{sU+11}, s{sT1}, 12
    s_cmp_eq_u32 s{sT1}, 7
    s_cselect_b32 s{sT1}, 0, s{sT1}
    s_mul_i32 s{sU}, s{sT1}, 12288
    v_and_b32 v{vE+2}, 6, v{vE}
    v_xor_b32 v{vE+2}, v{vE+2}, v{vE+1}
    v_lshlrev_b32 v{vE+2}, 4, v{vE+2}
    v_lshl_add_u32 v{vDP}, v{vE}, 10, v{vE+2}
    s_lshl_b32 s{sT0}, s{sCT}, 7
    s_and_b32 s{sT2}, s{sW}, 1
    s_lshl_b32 s{sT2}, s{sT2}, 15
    s_add_u32 s{sT2}, s{sT2}, s{sT0}
    v_add_u32 v{vDP}, s{sT2}, v{vDP}
    v_add_u32 v{vDP+1}, 0x2000, v{vDP}
    v_and_b32 v{vE+2}, 15, v{vLANE}
    v_lshrrev_b32 v{vE+3}, 4, v{vLANE}
    v_lshlrev_b32 v{vE+5}, 3, v{vE+3}
    s_and_b32 s{sT2}, s{sW}, 2
    s_lshl_b32 s{sT2}, s{sT2}, 5
    s_add_u32 s{sT0}, s{sT0}, s{sT2}
    v_add_u32 v{vB2}, s{sT0}, v{vE+5}
    {'' if cfg.lb else LB2}
    v_bfe_u32 v{vE+4}, v{vLANE}, 1, 1
    v_and_b32 v{vE+5}, 3, v{vE}
    v_lshl_add_u32 v{vE+4}, v{vE+5}, 1, v{vE+4}
    v_lshlrev_b32 v{vE+4}, 4, v{vE+4}
    v_and_b32 v{vE+5}, 1, v{vLANE}
    v_lshl_add_u32 v{vE+4}, v{vE+5}, 3, v{vE+4}
    v_lshrrev_b32 v{vE+5}, 2, v{vLANE}
    v_lshl_add_u32 v{vE+5}, v{vE+5}, 7, v{vE+4}
    v_add_u32 v{vE+5}, s{sW4K}, v{vE+5}
    v_xor_b32 v{vP2}, s{sT2}, v{vE+5}
    v_xor_b32 v{vP2+1}, 32, v{vP2}
    v_xor_b32 v{vP2+2}, 64, v{vP2}
    v_xor_b32 v{vP2+3}, 0x60, v{vP2}
    s_lshl1_add_u32 s{sT4}, s{sSLAB}, {grp}
    s_mul_i32 s{sT0}, s{sT4}, {RTS}
    s_and_b32 s{sT1}, s{sW}, 1
    s_lshl_b32 s{sT2}, s{sT1}, 11
    s_add_u32 s{sT0}, s{sT0}, s{sT2}
    s_lshl_b32 s{sT2}, s{sT1}, 10
    v_xor_b32 v{vA}, s{sT2}, v{vL16}
    v_xor_b32 v{vA+1}, 0x400, v{vA}
    v_add_u32 v{vA}, s{sT0}, v{vA}
    v_add_u32 v{vA+1}, s{sT0}, v{vA+1}
    s_lshr_b32 s{sT0}, s{sT4}, 3
    s_mul_i32 s{sT0}, s{sT0}, {RTS}
    s_and_b32 s{sT4}, s{sT4}, 7
    s_lshl1_add_u32 s{sT4}, s{sT4}, s{sT1}
    s_lshl_b32 s{sT4}, s{sT4}, 8
    s_add_u32 s{sT0}, s{sT0}, s{sT4}
    s_add_u32 s{sT0}, s{sT0}, {WS_CB}
    v_lshl_add_u32 v{vA+2}, v{vLANE}, 2, s{sT0}
    s_mov_b32 s{sSPIN}, 0x4000
    s_cmp_lt_u32 s{sW}, 3
    s_cselect_b32 s{sM21}, s{sW4K}, 15360
    s_cselect_b32 s{sM21+1}, 1024, 0
    s_mov_b32 s{sGI}, {grp}
    ''')
    for i in range(1, 11):
        k(f's_add_u32 s{sU+i}, s{sU+i-1}, 24576\ns_sub_u32 s{sT0}, s{sU+i}, {7*12288}\ns_cselect_b32 s{sU+i}, s{sU+i}, s{sT0}')
    for i in range(12, 15):
        k(f's_add_u32 s{sU+i}, s{sU+i-1}, 8192\ns_and_b32 s{sU+i}, s{sU+i}, 0x7fff')
    k(f's_lshl_b32 s{sT3}, s{sT3}, 12\ns_add_u32 s{sU+3}, s{sU+3}, s{sT3}')
    for i in range(4, 11): k(f's_add_u32 s{sU+i}, s{sU+i}, {4096 if i < 7 else 8192}')
    for i in range(11, 15): k(f's_add_u32 s{sU+i}, s{sU+i}, {22*4096}')
    k(f's_cmp_ge_u32 s{sW}, 2\ns_cselect_b32 s{sU+10}, {21*4096}, s{sU+10}')
    k(f's_cmp_eq_u32 s{sW}, 3\ns_cselect_b32 s{sU+10}, {hex(OOBU)}, s{sU+10}')

def ck_off(dst, rt):
    k(f'''
    s_lshr_b32 s{sT4}, s{rt}, 3
    s_sub_u32 s{sT4}, s{rt}, s{sT4}
    s_mul_i32 s{sT4}, s{sT4}, {RTS}
    s_and_b32 s{dst}, s{rt}, 7
    s_lshl_b32 s{dst}, s{dst}, 9
    s_add_u32 s{dst}, s{dst}, {WS_CB}
    s_sub_u32 s{dst}, s{dst}, s{sT4}
    ''')

def xw_addr(rowbase_s, tile_s):
    k(f'''
    v_lshrrev_b32 v{vE+5}, 1, v{vE+2}
    v_xor_b32 v{vE+5}, v{vE+5}, v{vE+3}
    v_lshlrev_b32 v{vE+5}, 4, v{vE+5}
    v_lshl_add_u32 v{vE+5}, v{vE+2}, 7, v{vE+5}
    v_add_u32 v{vXR}, {rowbase_s}, v{vE+5}
    v_xor_b32 v{vXR+1}, 64, v{vXR}
    v_bfe_u32 v{vE+5}, v{vLANE}, 2, 2
    v_lshl_add_u32 v{vE+5}, v{vE+3}, 3, v{vE+5}
    v_lshl_add_u32 v{vE+5}, v{vE+5}, 7, v{vE+4}
    v_xor_b32 v{vWA}, {tile_s}, v{vE+5}
    ''')

tokQ = {}
def item(q):
    L = []
    def add(pre, vo, srd_, so, last=False):
        def f():
            t = k(f'buffer_load_dwordx4 v{vo}, {sr(srd_,4)}, s{so} offen lds')
            if last: tokQ[q] = t; k.vm[-1]['key'] = ('W', q)
        pl = pre.split('\n')
        L.append(lambda: k('\n'.join(pl[-1:] + pl[:-1])))
        L.append(f)
    if q < 8:
        base = (q % 5) * 32768
        hdr = f's_add_u32 s{sT0}, s{sROT}, {q}\ns_and_b32 s{sT0}, s{sT0}, 7\ns_lshl_b32 s{sT1}, s{sT0}, 7\ns_mul_i32 s{sT2}, s{sT0}, s{sSTP}\n'
        for i in range(4):
            add((hdr if i == 0 else '') + f's_add_u32 m0, s{sW4K}, {base + 1024*i}', vDX + i, S_X, sT1)
            u, j = i // 2, i % 2
            add(f's_add_u32 m0, s{sW2K}, {base + 16384 + 8192*u + 1024*j}', vDW + 2*u + j, S_W, sT2, i == 3)
    elif q < 10:
        for b in range(4):
            s = 4*(q - 8) + b
            hdr = f's_add_u32 s{sT0}, s{sROT}, {s}\ns_and_b32 s{sT0}, s{sT0}, 7\ns_mul_i32 s{sT2}, s{sT0}, s{sSTP}\n'
            for j in range(2):
                add((hdr if j == 0 else '') + f's_add_u32 m0, s{sW2K}, {98304 + 8192*s + 1024*j}', vDW + (0 if cfg.u3hit else 4) + j, S_W, sT2, b == 3 and j == 1)
    else:
        r = q - 10
        pos = WPOS[r] * 16384
        for j in range(4):
            hdr = {0: f's_lshl4_add_u32 s{sT4}, s{sU + r}, {0 if r < 11 else hex((-22*65536) & 0xffffffff)}\n' if not cfg.whit else f's_mov_b32 s{sT4}, {0 if cfg.whit == 1 else hex(OOB)}\n', 2: f's_add_u32 s{sT4}, s{sT4}, 0x4000\n'}.get(j, '')
            m = f's_add_u32 m0, s{sW4K}, {pos + 1024*j}'
            if r == 10: m = f's_add_u32 m0, s{sM21}, {pos}' if j == 0 else f's_add_u32 m0, m0, s{sM21+1}'
            add(hdr + m, vDP + (j & 1), S_W2 if r < 11 or cfg.whit else S_WO, sT4, j == 3)
    return L

WPOS = [0, 1, 2, 3, 4, 5, 6, 7, 0, 1, 2, 3, 8, 9, 4]
p2w = [0]
def rdP2(dst, r):
    pos = WPOS[r] * 16384
    L = []
    if pos >> 16 != p2w[0]:
        L = [f'v_add_u32 v{vP2+c}, {hex((((pos >> 16) - p2w[0]) << 16) & 0xffffffff)}, v{vP2+c}' for c in range(4)]
        p2w[0] = pos >> 16
    return L + [f'ds_read_b64_tr_b16 {vr(dst + 4*c + 2*h, 2)}, v{vP2+c} offset:{(pos % 65536) + 2048*h}' for c in range(4) for h in range(2)]
def moves(rs):
    L = []
    for r in rs:
        L += rdP2(vWR + 16*r, r)
    return L

Atext = {}
def areg(r, j): return vAW + 8*r + 4*j if r < 6 else (vWR + 8*(r - 6) + 4*j)
def loadA(r):
    L = []
    def mk(t, key):
        Atext[key] = t
        def f():
            k.redo = True; k(t if cfg.asc == 1 else t.replace(' sc1', {0: '', 2: ' nt', 3: ' sc0'}[cfg.asc])); k.redo = False
            k.vm[-1]['key'] = key; k.vm[-1]['text'] = t
        f.regs = set(Ins(t).wr)
        return f
    for j in range(2):
        L.append(mk(f'buffer_load_dwordx4 {vr(areg(r, j), 4)}, v{vA+j}, {sr(S_WS,4)}, s{sU+r if not cfg.aoob else sU+10} offen sc1', (r, j)))
    if cfg.aoob != 3: L.append(mk(f'buffer_load_dword v{vCS+r}, v{vA+2}, {sr(S_WS,4)}, s{sU+r if not cfg.aoob else sU+10} offen sc1', (r, 2)))
    else: Atext[(r, 2)] = ''
    return L

def gelu(acc, out, T, C0, pk):
    L = []
    p = lambda r: vr(r, 2)
    if pk == 1: pk = 7
    if pk == 9: pk = 1
    if pk & 1:
        for i in range(0, 16, 2): L.append(f'v_pk_mul_f32 {p(T+i)}, {p(acc+i)}, {p(acc+i)}')
        for i in range(0, 16, 2): L.append(f'v_pk_fma_f32 {p(T+i)}, {p(T+i)}, {sr(sC1,2)}, {vr(C0,2)}')
        for i in range(0, 16, 2): L.append(f'v_pk_mul_f32 {p(T+i)}, {p(acc+i)}, {p(T+i)}')
    else:
        for i in range(16): L.append(f'v_mul_f32 v{T+i}, v{acc+i}, v{acc+i}')
        for i in range(16): L.append(f'v_fma_f32 v{T+i}, v{T+i}, s{sC1}, v{C0}')
        for i in range(16): L.append(f'v_mul_f32 v{T+i}, v{acc+i}, v{T+i}')
    for i in range(16): L.append(f'v_exp_f32 v{T+i}, v{T+i}')
    if pk & 2:
        for i in range(0, 16, 2): L.append(f'v_pk_add_f32 {p(T+i)}, {p(T+i)}, 1.0 op_sel_hi:[1,0]')
    else:
        for i in range(16): L.append(f'v_add_f32 v{T+i}, 1.0, v{T+i}')
    for i in range(16): L.append(f'v_rcp_f32 v{T+i}, v{T+i}')
    if pk & 4:
        for i in range(0, 16, 2): L.append(f'v_pk_mul_f32 {p(T+i)}, {p(acc+i)}, {p(T+i)}')
    else:
        for i in range(16): L.append(f'v_mul_f32 v{T+i}, v{acc+i}, v{T+i}')
    for i in range(0, 16, 2): L.append(f'v_cvt_pk_bf16_f32 v{out+i//2}, v{T+i}, v{T+i+1}')
    return L

def phi(acc, out, T, C0, pk):
    L = []
    p = lambda r: vr(r, 2)
    if pk:
        for i in range(0, 16, 2): L.append(f'v_pk_fma_f32 {p(T+i)}, {p(acc+i)}, {sr(sC1,2)}, {vr(C0,2)}')
    else:
        for i in range(16): L.append(f'v_fma_f32 v{T+i}, v{acc+i}, s{sC1}, v{C0}')
    for i in range(16): L.append(f'v_exp_f32_e64 v{T+i}, v{T+i} clamp')
    for i in range(16): L.append(f'v_max_f32 v{acc+i}, s{sEPS}, v{acc+i}')
    if pk:
        for i in range(0, 16, 2): L.append(f'v_pk_add_f32 {p(T+i)}, {p(T+i)}, {p(acc+i)}')
    else:
        for i in range(16): L.append(f'v_add_f32 v{T+i}, v{T+i}, v{acc+i}')
    for i in range(0, 16, 2): L.append(f'v_cvt_pk_bf16_f32 v{out+i//2}, v{T+i}, v{T+i+1}')
    return L

def st4(src, s_off, imm):
    return f'buffer_store_dwordx4 {vr(src,4)}, v{vL16}, {sr(S_WS,4)}, s{s_off} offen offset:{imm} sc1'

def strec(src, s_off, imm, T, vck=None):
    L = []
    addchain(L.append, T, range(src, src + 8))
    L.insert(1, st4(src, s_off, imm)); L.insert(3, st4(src + 4, s_off, imm + 1024))
    L.append(f'v_sub_u32 v{T}, s{sN}, v{T}')
    L.append(f'buffer_store_dword v{T}, v{vck or vL4}, {sr(S_WS,4)}, s{s_off} offen offset:{imm // 8} sc1')
    if cfg.nost: L = [x for x in L if not x.startswith('buffer')]
    if not cfg.ssc: L = [x.replace(' sc1', '') for x in L]
    return L

def get_epoch(reg):
    checked([DBTEXT(reg)], [reg], None, None)
    k(f'v_readfirstlane_b32 s{sN}, v{reg}\ns_cmp_eq_u32 s{sW}, 3\ns_cselect_b32 s{sN10}, 0, s{sN}\ns_lshl_b32 s{sN2}, s{sN}, 1')
def DBTEXT(reg): return f'buffer_load_dword v{reg}, off, {sr(S_DBG,4)}, 0 sc1'

def consts(typ, C0):
    if typ == 'A':
        c1, c0 = 1.4426950408889634, -1e-6*1.4426950408889634
    else:
        c1, c0 = -2.302208198*0.044715, -2.302208198
    k(f'''
    s_mov_b32 s{sC1}, {f32(c1)}
    s_mov_b32 s{sC1+1}, {f32(c1)}
    s_mov_b32 s{sEPS}, {f32(1e-6)}
    v_mov_b32 v{C0}, {f32(c0)}
    v_mov_b32 v{C0+1}, {f32(c0)}
    ''')

def unpack4(dst, src):
    return [f'v_and_b32 v{dst+3}, 0xffff0000, v{src+1}', f'v_lshlrev_b32 v{dst+2}, 16, v{src+1}',
            f'v_and_b32 v{dst+1}, 0xffff0000, v{src}', f'v_lshlrev_b32 v{dst}, 16, v{src}']

def phase2(g, vmA, nload, wnext):
    k.label(f'L_P2_{g}')
    k('s_nop 1')
    k.vm = merge_vm(k.vm, vmA); k.lg = []
    stamp('P2')
    ord_, lrd = (cfg.ord0, cfg.lrd0) if g == 0 else (cfg.ord1, cfg.lrd1)
    k(f's_setprio {cfg.pp0 if g == 0 else cfg.pp1}')
    BUF = [vWF + 16, vWF, vAW, vAW + 16, vAW + 32]
    def wreg(r): return vWR + 16*r if r < 5 else BUF[r % 5]
    FREE = {5: -1, 6: -1, 7: 1, 8: 3, 9: 5, 10: 5, 11: 6, 12: 7, 13: 8, 14: 9}
    zr = cfg.z0 if g == 0 or cfg.z1 < 0 else cfg.z1
    def more(r):
        nonlocal nload, wnext
        L = []
        while nload < 15:
            need = (nload - 6) // 2 if nload >= 6 else -1
            if need > r or nload > r + (cfg.aw2 if cfg.aw2 and r >= zr else cfg.awin) or (r >= 0 and len(L) >= 3*cfg.amax): break
            if nload >= 11 and r < ord_: break
            if nload >= 7 and r < lrd: break
            L += loadA(nload)
            nload += 1
        for i in range(cfg.dper):
            if wnext < 15:
                L += wpairs(wnext, wnext + 1)
                wnext += 1
        return L
    nrd = [5]
    def reads(r):
        L = []
        while nrd[0] < 15 and FREE[nrd[0]] <= r and (nrd[0] < 8 or r >= zr) and (not L or nrd[0] <= r + 3):
            L += rdP2(wreg(nrd[0]), nrd[0]); nrd[0] += 1
        return L
    def chk(r): return checked([Atext[(r, j)] for j in range(3)], [vCS + r] + list(range(areg(r, 0), areg(r, 0) + 8)), vE + 8, sN10 if r == 10 else sN, True)
    G2 = vE + 12
    BB = vE
    gadr = f'''s_lshl1_add_u32 s{sT0}, s{sSLAB}, {g}
    s_lshl_b32 s{sGO}, s{sT0}, 8
    s_add_u32 s{sGO}, s{sGO}, {WS_G}
    s_and_b32 s{sT1}, s{sW}, 1
    s_lshl_b32 s{sT2}, s{sT1}, 7
    v_and_b32 v3, 15, v{vLANE}
    v_lshlrev_b32 v4, 3, v3
    v_add_u32 v4, s{sT2}, v4
    v_xor_b32 v5, 0x80, v4'''.split('\n')
    gt = [f'buffer_load_dwordx2 {vr(G2+2*j,2)}, v{4+j}, {sr(S_WS,4)}, s{sGO} offen sc1' for j in range(2)]
    def redo(t):
        def f():
            k.redo = True; k(t); k.redo = False
        return f
    late = f'''s_lshl1_add_u32 s{sT0}, s{sT0}, s{sT1}
    s_lshl_b32 s{sT5}, s{sT0}, 14
    s_lshl_b32 s{sT0}, s{sCT}, 7
    s_add_u32 s{sT5}, s{sT5}, s{sT0}
    s_and_b32 s{sT0}, s{sW}, 2
    s_lshl_b32 s{sT0}, s{sT0}, 5
    s_add_u32 s{sT5}, s{sT5}, s{sT0}
    v_lshlrev_b32 v3, 10, v3
    v_and_b32 v6, 16, v{vLANE}
    v_lshl_add_u32 v3, v6, 1, v3
    v_lshrrev_b32 v6, 5, v{vLANE}
    v_lshl_add_u32 v3, v6, 4, v3
    s_xor_b32 s{sT1}, s{sWAVE}, 1
    s_xor_b32 s{sT2}, s{sWAVE}, 2
    s_xor_b32 s{sT3}, s{sWAVE}, 3
    s_mul_i32 s{sT0}, s{sWAVE}, 6144
    s_mul_i32 s{sT1}, s{sT1}, 6144
    s_mul_i32 s{sT2}, s{sT2}, 6144
    s_mul_i32 s{sT3}, s{sT3}, 6144
    v_add_u32 v10, {L_RED}, v{vL16}
    v_add_u32 v6, s{sT0}, v10
    v_add_u32 v7, s{sT1}, v10
    v_add_u32 v8, s{sT2}, v10
    v_add_u32 v9, s{sT3}, v10'''.split('\n')
    order = [(pi, e_) for pi in (1, 2, 3, 0) for e_ in range(2)]
    def scale(i):
        pi, e_ = order[i]
        return [f'v_mul_f32 v{vAC2+8*pi+4*e_+j}, v{G2 + 2*(pi & 1)}, v{vAC2+8*pi+4*e_+j}' for j in range(4)]
    for f in more(-1): emit(f)
    for f in chk(0): emit(f)
    for r in range(15):
        stamp(f'r{r}')
        F = (more(r - 1) if r > 0 else []) + reads(r - 1)
        if r == 0: F = unpack4(BB, vB2) + unpack4(BB + 4, vB2 + 2) + F
        if r == 3: F += gadr + [redo(t) for t in gt]
        if r == 4: F += late[:12]
        if r == 12: F += late[12:]
        if r == 9: F += checked(gt, [G2+1, G2+3], vE + 8, sN2, True)
        if r == 10: F = [f'v_sub_f32 v{G2}, 1.0, v{G2}', f'v_sub_f32 v{G2+2}, 1.0, v{G2+2}'] + F
        if r < 14:
            assert nload > r + 1
            F += chk(r + 1)
        M = []
        for pi, e_ in order:
            c = None
            if r == 0: c = vr(BB + 4*e_, 4) if pi == 0 else '0'
            M.append(mf(vAC2 + 8*pi + 4*e_, wreg(r) + 4*(2*(pi >> 1) + e_), areg(r, pi & 1), c))
        wait_regs([wreg(r) + i for i in range(16)])
        if cfg.m32p:
            M = [x for c in range(4) for x in (f'v_mfma_f32_32x32x16_bf16 {vr(vAC2+16*(1-(c>>1)),16)}, {vr(wreg(r)+4*c,4)}, {vr(areg(r, c&1),4)}, {vr(vAC2+16*(1-(c>>1)),16) if r or c & 1 else 0}', '')]
        j = 0
        for i, m in enumerate(M):
            if cfg.m32p and r in (10, 11):
                k(m)
                tgt = ((i + 1) * len(F) + 7) // 8
                while j < tgt: emit(F[j]); j += 1
                if r == 10 and i >= 6:
                    for t in scale(2*i-10) + scale(2*i-9): k(t)
                if r == 11 and i in (1, 3):
                    for t in scale((i-1)*3) + scale((i-1)*3+1): k(t)
                continue
            if r == 11 and i < 4:
                for t in scale(4 + i): k(t)
            k(m)
            if r == 10 and i >= 4:
                for t in scale(i - 4): k(t)
            tgt = ((i + 1) * len(F) + 7) // 8
            if r == 10: tgt = min(len(F), ((i + 1) * len(F) + 4) // 5) if i < 7 else len(F)
            if r == 11: tgt = 0 if i < 3 else ((i - 2) * len(F) + 4) // 5
            while j < tgt: emit(F[j]); j += 1
        if r == zr:
            assert wnext == 15 and nrd[0] == 8
            for q in range(24, 9, -1): wait_key(('W', q))
            k.wait_lg_all()
            k('s_barrier')
    stamp('mm')
    for pi in range(1, 4):
        for h in range(2):
            k(f'ds_write_b128 v{6+pi}, {vr(vAC2 + 8*pi + 4*h, 4)} offset:{(pi-1)*2048 + 1024*h}')
    k.wait_lg_all()
    k('s_barrier')
    stamp('red')
    R = vAW
    for p in range(3):
        for h in range(2):
            k(f'ds_read_b128 {vr(R + 8*p + 4*h, 4)}, v6 offset:{p*2048 + 1024*h}')
    for p in range(3):
        for i in range(0, 8, 2):
            k(f'v_pk_add_f32 {vr(vAC2+i,2)}, {vr(vAC2+i,2)}, {vr(R+8*p+i,2)}')
    for i in range(4): k(f'v_cvt_pk_bf16_f32 v{vE+i}, v{vAC2+2*i}, v{vAC2+2*i+1}')
    k(f'v_permlane16_swap_b32 v{vE}, v{vE+2}\nv_permlane16_swap_b32 v{vE+1}, v{vE+3}')
    k(f'buffer_store_dwordx4 {vr(vE,4)}, v3, {sr(S_OUT,4)}, s{sT5} offen')
    if g == 1: k('s_branch L_fin' if cfg.stamps else 's_endpgm')

if cfg.sp1: k(f's_setprio {cfg.sp1}')
k(f'''
v_lshrrev_b32 v{vE+2}, 1, v{vE}
v_xor_b32 v{vE+2}, v{vE+1}, v{vE+2}
v_lshlrev_b32 v{vE+2}, 4, v{vE+2}
s_lshl2_add_u32 s{sT1}, s{sRB}, s{sW}
s_lshl_b32 s{sT1}, s{sT1}, 15
v_lshl_add_u32 v{vDX}, v{vE}, 10, v{vE+2}
v_add_u32 v{vDX}, s{sT1}, v{vDX}
v_xor_b32 v{vDX+1}, 64, v{vDX}
v_add_u32 v{vDX+1}, 0x2000, v{vDX+1}
v_add_u32 v{vDX+2}, 0x4000, v{vDX}
v_add_u32 v{vDX+3}, 0x4000, v{vDX+1}
v_and_b32 v{vE+2}, 2, v{vE}
v_xor_b32 v{vE+2}, v{vE+1}, v{vE+2}
v_lshlrev_b32 v{vE+2}, 4, v{vE+2}
v_xor_b32 v{vE+3}, 64, v{vE+2}
s_lshl_b32 s{sT3}, s{sGRP}, 7
s_add_u32 s{sT4}, s{sT3}, 1024
s_mul_i32 s{sT3}, s{sT3}, 3
s_movk_i32 s{sT1}, 3072
s_movk_i32 s{sT5}, 0x400
s_cmp_eq_u32 s{sTYPE}, 1
s_cselect_b32 s{sT1}, 2752, s{sT1}
s_cselect_b32 s{sT3}, s{sT3}, s{sT4}
s_cselect_b32 s{sT4}, 0x80, s{sT5}
s_movk_i32 s{sT5}, 0xfc00
s_cselect_b32 s{sT5}, 0x100, s{sT5}
s_mov_b32 s{S_W+2}, 0x180000
s_cselect_b32 s{S_W+2}, {512*2752}, s{S_W+2}
s_cmp_eq_u32 s{sB7}, 1
s_cselect_b32 s{sT4}, {hex(OOB)}, s{sT4}
s_cselect_b32 s{sT5}, {hex(OOB)}, s{sT5}
s_cselect_b32 s{sT2}, 24, 0
s_lshl_b32 s{sT0}, s{sW}, 4
v_add_u32 v{vE+4}, s{sT0}, v{vE}
v_mul_lo_u32 v{vE+4}, v{vE+4}, s{sT1}
s_lshl_b32 s{sSTP}, s{sT1}, 6
s_lshl3_add_u32 s{sT0}, s{sT1}, s{sT3}
v_add3_u32 v{vDW}, v{vE+4}, v{vE+2}, s{sT3}
v_add3_u32 v{vDW+1}, v{vE+4}, v{vE+3}, s{sT0}
v_add_u32 v{vDW+2}, s{sT4}, v{vDW}
v_add_u32 v{vDW+3}, s{sT4}, v{vDW+1}
v_add_u32 v{vDW+4}, s{sT5}, v{vDW}
v_add_u32 v{vDW+5}, s{sT5}, v{vDW+1}
v_and_b32 v{vE+2}, 64, v{vE+2}
v_and_b32 v{vE+3}, 64, v{vE+3}
v_lshlrev_b32 v{vE+2}, s{sT2}, v{vE+2}
v_lshlrev_b32 v{vE+3}, s{sT2}, v{vE+3}
v_and_b32 v{vE+2}, 0x40000000, v{vE+2}
v_and_b32 v{vE+3}, 0x40000000, v{vE+3}
v_add_u32 v{vDW}, v{vE+2}, v{vDW}
v_add_u32 v{vDW+1}, v{vE+3}, v{vDW+1}
s_mov_b32 s{S_X+2}, 0x200000
s_mov_b32 s{S_X+3}, 0x20000
s_mov_b32 s{S_W+3}, 0x20000
''')
if cfg.stamps == 7: k.wait_lg_all()
stamp('ka')
for f in item(0): f()
stamp('i0')
if cfg.ka: k(KA2)
GF = vAC2
GA = vE + 8
e = side('L_nogf', f's_cmp_eq_u32 s{sB7}, 0')
srd_tail(S_GW, 1024)
k(f'v_and_b32 v{vE+2}, 48, v{vLANE}')
for s in range(8):
    k(f's_add_u32 s{sT0}, s{sROT}, {s}\ns_and_b32 s{sT0}, s{sT0}, 7\ns_lshl_b32 s{sT0}, s{sT0}, 7')
    for kk in range(2):
        k(f'buffer_load_dwordx4 {vr(GF + 8*s + 4*kk, 4)}, v{vE+2}, {sr(S_GW,4)}, s{sT0} offen offset:{64*kk}')
e()
if not cfg.so:
    for q in range(1, cfg.d0):
        for f in item(q): f()
common_setup(1)
xw_addr(f's{sW4K}', '0')
CI = vAW + 48
k(f'''
v_add_u32 v{vWA}, 0x18000, v{vWA}
v_xor_b32 v{vWA+1}, 32, v{vWA}
v_xor_b32 v{vWA+2}, 64, v{vWA}
v_xor_b32 v{vWA+3}, 0x60, v{vWA}
v_lshlrev_b32 v{vE+5}, 3, v{vE+3}
s_mul_i32 s{sT0}, s{sGRP}, 384
s_cmp_eq_u32 s{sTYPE}, 1
s_cselect_b32 s{sT0}, s{sT0}, {hex(OOB)}
v_add_u32 v{CI+3}, s{sT0}, v{vE+5}
''')
LB1 = [f'buffer_load_dwordx2 {vr(CI + 4*c, 2)}, v{CI+3}, {sr(S_B1,4)}, 0 offen offset:{256 + 32*c}' for c in range(4)]
if not cfg.lb:
    for t in LB1: k(t)
k(f'''
s_lshl2_add_u32 s{sT0}, s{sRB}, s{sW}
''')
ck_off(sCK, sT0)
k(f'''
s_mul_i32 s{sH}, s{sT0}, {RTS}
s_lshl_b32 s{sGO}, s{sT0}, 8
s_add_u32 s{sGO}, s{sGO}, {WS_G}
s_mul_i32 s{sT0}, s{sGRP}, {3*UNT}
s_add_u32 s{sT0}, s{sT0}, {2*UNT}
s_mul_i32 s{sT1}, s{sGRP}, {UNT}
s_add_u32 s{sT1}, s{sT1}, {22*UNT}
s_cmp_eq_u32 s{sTYPE}, 1
s_cselect_b32 s{sT0}, s{sT0}, s{sT1}
s_add_u32 s{sH}, s{sH}, s{sT0}
s_cmp_eq_u32 s{sB7}, 1
s_cselect_b32 s{sH}, {hex(OOB)}, s{sH}
s_cmp_eq_u32 s{sTYPE}, 1
s_cselect_b32 s{sEPS}, 0, {f32(1e-6)}
''')
def xreg(t, rt): return vWR + 8*t + 4*rt
def gate_mm(s):
    e = side(f'L_ng{s}', f's_cmp_eq_u32 s{sB7}, 0')
    if cfg.sq and s < 6 and cfg.xo == 2: k.waitcnt(lgkm=4 + 2*cfg.pad)
    elif cfg.sq and s < 7 and cfg.xo == 2: k.waitcnt(lgkm=4 + cfg.pad)
    else: k.wait_lg_all()
    for kk in range(2):
        for rt in range(2):
            k(mf(GA + 4*rt, GF + 8*s + 4*kk, xreg(2*s + kk, rt), '0' if s == 0 and kk == 0 else None))
    e()
STREAM = []
NW1 = 4 + cfg.q9 + cfg.q10 + cfg.q11
assert 4 + cfg.q9 + cfg.q10 >= 8 and cfg.q9 >= 1
for q in range(cfg.d0, 10 + NW1): STREAM += item(q)
done = [8*cfg.d0]
LIM = [40, 40, 48, 56, 64, 72, 80, 88, 96, 108, 120, 132]
def take(i):
    n = min(LIM[i], done[0] + (cfg.q0 if i < 7 else {7: cfg.q7, 8: cfg.q8, 9: 4*cfg.q9, 10: 4*cfg.q10, 11: 4*cfg.q11}[i])) - done[0]
    done[0] += n
    r = STREAM[:2*n]; del STREAM[:2*n]
    return r
win = 0
if cfg.aw1 >= 0:
    k.raw(f'    s_cmp_eq_u32 s{sTYPE}, 1\n    s_cbranch_scc1 L_aw1\n    s_waitcnt vmcnt({cfg.aw1})\nL_aw1:')
if cfg.so:
    for q in range(1, cfg.d0):
        for f in item(q): f()
if cfg.lb:
    for t in LB1: k(t)
    k(LB2)
SQ = [int(c_) for c_ in str(cfg.sq)] if cfg.sq else []
SPF = [f'    s_buffer_load_dwordx2 s[0:1], {sr(S_W2,4)}, s{sT3} offset:{128*i+60}' for i in range(11)]
SPF += [f'    s_buffer_load_dwordx2 s[0:1], {sr(S_WO,4)}, s{sT5} offset:{128*i+60}' for i in range(4)]
U3 = [f'    s_buffer_load_dwordx2 s[0:1], {sr(S_W,4)}, s{sT4} offset:60\n    s_add_u32 s{sT4}, s{sT4}, s{sH+2}' for i in range(8)]
if cfg.u3p: SPF = SPF[:cfg.u3p - 1] + U3 + SPF[cfg.u3p - 1:]
def spf(i):
    n = SQ[i] if i < len(SQ) else 0
    for t in SPF[:n]: k.raw(t)
    del SPF[:n]
if cfg.sq:
    k(f'''
    s_mul_i32 s{sT3}, s2, {43*128}
    s_mul_i32 s{sT5}, s{sW}, {11*128}
    s_min_u32 s{sT5}, s{sT5}, {32*128}
    s_add_u32 s{sT3}, s{sT3}, s{sT5}
    s_lshl2_add_u32 s{sT5}, s2, s{sW}
    s_lshl_b32 s{sT5}, s{sT5}, 9
    ''')
    if cfg.u3p: k(f'''
    s_lshr_b32 s{sH+2}, s{sSTP}, 6
    s_lshl2_add_u32 s{sT4}, s{sRB}, s{sW}
    s_lshl_b32 s{sT4}, s{sT4}, 3
    s_mul_i32 s{sT4}, s{sT4}, s{sH+2}
    s_lshl_b32 s{sH+3}, s{sGRP}, 7
    s_add_u32 s{sT4}, s{sT4}, s{sH+3}
    s_lshl1_add_u32 s{sH+3}, s{sH+3}, 0x100
    s_mul_i32 s{sH+3}, s{sH+3}, s{sTYPE}
    s_add_u32 s{sT4}, s{sT4}, s{sH+3}
    s_cmp_eq_u32 s{sB7}, 1
    s_cselect_b32 s{sT4}, 0, s{sT4}
    ''')
    k.wait_lg_all()
    spf(0)
stamp('i1')
if cfg.sp1 or cfg.sp2: k(f's_setprio {cfg.sp2}')
if cfg.stamps == 7:
    k.raw(f'    s_waitcnt vmcnt({len(k.vm)-1})'); stamp('f0'); k.raw(f'    s_waitcnt vmcnt({len(k.vm)-2})'); stamp('f1')
for s in range(8):
    k.wait_vm_tok(tokQ[s + (s == 7 and not cfg.l8)])
    if cfg.xo >= 2 and s > 0: k.waitcnt(lgkm=4 + 2*cfg.pad)
    else: k.wait_lg_all()
    k('s_barrier')
    stamp(f'B{s}')
    w = ((s % 5) * 32768) >> 16
    if w != win:
        k(f'v_add_u32 v{vXR}, {hex(((w - win) << 16) & 0xffffffff)}, v{vXR}\nv_add_u32 v{vXR+1}, {hex(((w - win) << 16) & 0xffffffff)}, v{vXR+1}')
        win = w
    if s == 3: k(DBTEXT(vE+7))
    F = take(s)
    if cfg.sql:
        for f in F[:2*cfg.sql]: f()
        F = F[2*cfg.sql:]
    spf(s + 1)
    R = [f'ds_read_b128 {vr(xreg(2*s+kk, rt), 4)}, v{vXR+kk} offset:{((s % 5) * 32768) % 65536 + 2048*rt}' for kk in range(2) for rt in range(2)]
    if cfg.nox: R = ['s_nop 0'] * 4
    if s == 2:
        for c in range(4): R += unpack4(CI + 4*c, CI + 4*c)
    if s == 3: R += [f'v_add_f32 v{CI+i}, s{sEPS}, v{CI+i}' for i in range(16)]
    if s == 7 and cfg.xo7:
        for r in R[:4]: k(r)
        F7 = F; F = []
    elif cfg.xo == 1:
        for r in R[:4]: k(r)
        weave(F, R[4:])
    elif cfg.xo == 2:
        weave(F, R[4:])
        for r in R[:4]: k(r)
        if s < 7:
            for i in range(cfg.pad):
                k.raw(f'    ds_read_u8 v{vE+6}, v{vLANE}'); k.lg.append({'id': -1, 'wr': {('v', vE+6)}})
    else:
        for f in F[:2]: f()
        weave(F[2:], R)
    if s >= 1: gate_mm(s - 1)
    if s == 6: get_epoch(vE+7)
gate_mm(7)
assert not cfg.sq or not SPF
e = side('L_nogate', f's_cmp_eq_u32 s{sB7}, 0')
k(f'''
v_cmp_gt_u32 vcc, 16, v{vLANE}
v_cndmask_b32 v{vE}, v{GA+4}, v{GA}, vcc
v_mul_f32 v{vE}, {f32(-1.4426950408889634)}, v{vE}
v_exp_f32 v{vE}, v{vE}
v_lshlrev_b32 v{vE+2}, 3, v{vLANE}
v_add_f32 v{vE}, 1.0, v{vE}
v_mov_b32 v{vE+1}, s{sN}
v_rcp_f32 v{vE}, v{vE}
s_mov_b32 exec_hi, 0
buffer_store_dwordx2 {vr(vE,2)}, v{vE+2}, {sr(S_WS,4)}, s{sGO} offen sc1
s_mov_b32 exec_hi, -1
''')
e()
POOL = [vWF + 4*i for i in range(8)] + [vE + 4*i for i in range(4)]
def wfrag(t, c): return POOL[(4*t + c) % 12]
def w2reads(t):
    return [f'ds_read_b64_tr_b16 {vr(wfrag(t, c) + 2*h, 2)}, v{vWA+c} offset:{4096*t + 512*h}' for c in range(4) for h in range(2)]
k.wait_lg_all()
if not cfg.l8:
    for r in w2reads(0) + w2reads(1): k(r)
assert done[0] >= 80
if cfg.xo7:
    for f in F7: f()
k(f'v_lshl_add_u32 v{vL4}, v{vLANE}, 2, s{sCK}')
if cfg.l8: k.wait_vm_tok(tokQ[8])
k('s_barrier')
stamp('B8')
if cfg.l8:
    for r in w2reads(0) + w2reads(1): k(r)
k(f's_setprio {cfg.prg1}')
MV = {0: (), 1: (0, 1), 2: (2, 3), 3: (4,)}
for t in range(16):
    if t in (4, 8, 12):
        k.wait_vm_tok(tokQ[{4: 11, 8: 13, 12: 14}[t]])
        if t > 4: wait_regs(range(vWR + 16*MV[t//4 - 1][0], vWR + 16*MV[t//4 - 1][-1] + 16))
        k('s_barrier')
        stamp(f'B{8 + t//4}')
    if t % 4 == 0:
        D = take(8 + t//4)
        nd = 2*((len(D) + 7) // 8)
        Mv = moves(MV[t//4])
        if cfg.nomv & 2: Mv = [x for x in Mv if not x.startswith('ds_')]
    R = w2reads(t + 2) if t + 2 < 16 else []
    X = D[nd*(t%4):nd*(t%4)+nd]
    nm = (len(Mv) + 2) // 3
    Y = Mv[nm*(t%4):nm*(t%4)+nm]
    Z = []
    for i in range(4): Z += R[2*i:2*i+1] + X[(i*len(X)+3)//4:((i+1)*len(X)+3)//4] + R[2*i+1:2*i+2] + Y[(i*len(Y)+3)//4:((i+1)*len(Y)+3)//4]
    R = Z
    wait_regs([wfrag(t, c) + i for c in range(4) for i in range(4)])
    M = [mf(vAC2 + ((c >> 1)*2 + rt)*8 + (c & 1)*4, wfrag(t, c), xreg(t, rt), vr(CI + 4*c, 4) if t == 0 else None) for c in range(4) for rt in range(2)]
    if cfg.m32: M = [f'v_mfma_f32_32x32x16_bf16 {vr(vAC2+16*(c&1),16)}, {vr(wfrag(t, c),4)}, {vr(xreg(t, c>>1),4)}, {vr(vAC2+16*(c&1),16) if t or c > 1 else 0}' for c in range(4)]
    j = 0
    for i, m in enumerate(M):
        k(m)
        tgt = ((i + 1) * len(R) + len(M) - 1) // len(M)
        while j < tgt: emit(R[j]); j += 1
assert not STREAM
k.wait_vm_tok(tokQ[17])
k.wait_lg_all()
k('s_barrier')
stamp('B12')
k(f's_setprio {cfg.pe1}')
k(f's_cmp_eq_u32 s{sTYPE}, 1\ns_cbranch_scc1 L_G1B')
snap1 = k.snapshot(); nst1 = nst[0]
C0_1 = 8
def early(n): return [f for r in range(n) for f in loadA(r)]
def wpairs(lo, hi):
    L = []
    for r in range(lo, hi):
        it = item(10 + r)
        for i in range(0, 8, 2): L.append(lambda a=it[i], b=it[i+1]: (a(), b()))
    return L
def fill(n, lo, hi): return early(n) + wpairs(lo, hi) if cfg.afirst else wpairs(lo, hi) + early(n)
W0 = NW1 + cfg.wa1
consts('A', C0_1)
GG = 4
gtexts = [f'buffer_load_dwordx2 {vr(GG+2*rt,2)}, v3, {sr(S_WS,4)}, s{sGO} offen offset:{128*rt} sc1' for rt in range(2)]
k(f'v_and_b32 v3, 15, v{vLANE}\nv_lshlrev_b32 v3, 3, v3')
for t in gtexts: k(t)
PQ = vAW + 32
assert cfg.e1a <= 4
V = stx('e1') + phi(vAC2, PQ, vE, C0_1, cfg.pk) + phi(vAC2 + 16, PQ + 8, vE, C0_1, cfg.pk) + stx('e2')
if cfg.e1la:
    for v in V: k(v)
    if cfg.e1la == 1:
        for f in early(cfg.e1a): f()
else: weave_int(V, fill(cfg.e1a, NW1, W0), cfg.gint1, cfg.f1)
k(f'''
v_lshlrev_b32 v10, 3, v{vLANE}
v_lshrrev_b32 v11, 4, v{vLANE}
v_lshlrev_b32 v11, 3, v11
''')
checked(gtexts, [GG+1, GG+3], vE, sN2)
k('s_barrier')
stamp('e3')
KV, ZZ = vE, vE + 8
for c in range(4):
    k(f'ds_read_b64 {vr(ZZ+2*c,2)}, v11 offset:{L_KV + 2048 + 32*c}')
    k(f'ds_read_b64 {vr(KV+2*c,2)}, v10 offset:{L_KV + 512*c}')
if cfg.e1la == 2:
    for f in early(cfg.e1a): f()
DEN = vWF
def idx(c, rt): return ((c >> 1)*2 + rt)*2 + (c & 1)
for c in range(4):
    for rt in range(2):
        i = idx(c, rt)
        k(f'v_mfma_f32_16x16x16_bf16 {vr(DEN+4*i,4)}, {vr(ZZ+2*c,2)}, {vr(PQ+2*i,2)}, 0')
for c in range(4):
    for rt in range(2):
        i = idx(c, rt)
        k(f'v_mfma_f32_16x16x16_bf16 {vr(vAC2+4*i,4)}, {vr(KV+2*c,2)}, {vr(PQ+2*i,2)}, 0')
for i in range(8): k(f'v_add_f32 v{DEN+4*i}, s{sEPS}, v{DEN+4*i}')
for i in range(8): k(f'v_rcp_f32 v{DEN+4*i}, v{DEN+4*i}')
for i in range(8): k(f'v_mul_f32 v{DEN+4*i}, v{DEN+4*i}, v{GG + 2*((i >> 1) & 1)}')
OO = PQ
stamp('e4')
for f in range(4):
    for i in (2*f, 2*f + 1):
        for h in range(2):
            k(f'v_pk_mul_f32 {vr(vAC2+4*i+2*h,2)}, {vr(vAC2+4*i+2*h,2)}, {vr(DEN+4*i,2)} op_sel_hi:[1,0]')
    for j in range(4): k(f'v_cvt_pk_bf16_f32 v{OO+4*f+j}, v{vAC2+8*f+2*j}, v{vAC2+8*f+2*j+1}')
    if f & 1:
        for t in strec(OO + 4*f - 4, sH, STP*(f >> 1), vE + 2*f): k(t)
for r in range(cfg.e1a, max(cfg.e1a, cfg.e1b)):
    for f in loadA(r): f()
k('s_branch L_P2_1')
vmA = [dict(x) for x in k.vm]
k.label('L_G1B')
k.restore(snap1); nst[0] = nst1
consts('B', C0_1)
V = stx('e1') + gelu(vAC2, vWF, vE, C0_1, cfg.pk) + stx('e2') + strec(vWF, sH, 0, vWF + 16) + stx('e3')
if cfg.e1l:
    for v in V: k(v)
    V = gelu(vAC2 + 16, vWF + 8, vE, C0_1, cfg.pk) + stx('e4')
    n0 = {1: 0, 2: len(V) // 2, 3: len(V) - 10}[cfg.e1l]
    for v in V[:n0]: k(v)
    weave(V[n0:], early(cfg.e1b))
    for v in strec(vWF + 8, sH, STP, vWF + 18): k(v)
else:
    V += gelu(vAC2 + 16, vWF + 8, vE, C0_1, cfg.pk) + stx('e4') + strec(vWF + 8, sH, STP, vWF + 18)
    weave_int(V, fill(cfg.e1b, NW1, W0), cfg.gint1, cfg.f1)
for r in range(cfg.e1b, max(cfg.e1a, cfg.e1b)):
    for f in loadA(r): f()
phase2(1, vmA, max(cfg.e1a, cfg.e1b), 15)

WT = [f'buffer_load_dword v10, v{vE+6}, {sr(S_W2,4)}, s{sT0} offen', f'buffer_load_dword v11, v{vE+7}, {sr(S_WO,4)}, s{sT2} offen']
def stouch(part=0):
    k(f'''
    s_mul_i32 s{sT0}, s2, {43*128}
    s_mul_i32 s{sT2}, s{sW}, {11*128}
    s_min_u32 s{sT2}, s{sT2}, {32*128}
    s_add_u32 s{sT0}, s{sT0}, s{sT2}
    s_lshl2_add_u32 s{sT2}, s2, s{sW}
    s_lshl_b32 s{sT2}, s{sT2}, 9
    s_mov_b32 s{S_W2+2}, {1376*1024}
    s_mov_b32 s{S_W2+3}, 0x20000
    s_mov_b32 s{S_WO+2}, {512*1024}
    s_mov_b32 s{S_WO+3}, 0x20000
    ''')
    if part < 2: k.wait_lg_all()
    op, dst, o = ('dword', 'vcc_lo', 0) if cfg.wts in (1, 3) else ('dwordx2', 'vcc', 60)
    L = [f'    s_buffer_load_{op} {dst}, {sr(S_W2,4)}, s{sT0} offset:{128*i+o}' for i in range(11 if cfg.wts != 3 else 1)]
    L += [f'    s_buffer_load_{op} {dst}, {sr(S_WO,4)}, s{sT2} offset:{128*i+o}' for i in range(4 if cfg.wts != 3 else 1)]
    if part == 1: L = L[:cfg.wn1]
    if part == 2: L = L[cfg.wn1:]
    for t in L: k.raw(t)
    k.smem_pending.add(('s', 'vcc'))
def wtouch():
    if cfg.wts == 5: stouch(2)
    elif cfg.wts and cfg.wsp == 1: stouch()
    if not cfg.wtouch: return
    if cfg.tx:
        G = f'''
        s_lshr_b32 s{sT3}, s2, 3
        s_and_b32 s{sT4}, s2, 3
        s_lshl2_add_u32 s{sT4}, s{sT3}, s{sT4}
        s_lshl1_add_u32 s{sT0}, s{sT4}, s{sW}
        s_sub_u32 s{sT0}, s{sT0}, 1
        s_mul_i32 s{sT0}, s{sT0}, {43*128}
        s_lshl_b32 s{sT2}, s{sT4}, 12
        s_sub_u32 s{sT4}, s{sW}, 1
        s_cmp_le_u32 s{sT4}, 1
        s_cselect_b32 s{sT0}, s{sT0}, {hex(OOB)}
        s_cmp_eq_u32 s{sW}, 2
        s_cselect_b32 s{sT2}, s{sT2}, {hex(OOB)}
        s_bitcmp1_b32 s2, 2
        s_cselect_b32 s{sT0}, {hex(OOB)}, s{sT0}
        s_cselect_b32 s{sT2}, {hex(OOB)}, s{sT2}
        s_movk_i32 s{sT5}, 31
        '''
    else:
        G = f'''
        s_lshr_b32 s{sT3}, s2, 3
        s_mul_i32 s{sT0}, s2, {43*128}
        s_lshl_b32 s{sT2}, s2, 11
        s_cmp_eq_u32 s{sW}, 1
        s_cselect_b32 s{sT0}, s{sT0}, {hex(OOB)}
        s_cmp_eq_u32 s{sW}, 2
        s_cselect_b32 s{sT2}, s{sT2}, {hex(OOB)}
        s_movk_i32 s{sT5}, 15
        '''
    k(G)
    if cfg.c3o: k(f's_mov_b32 s{sT0}, {hex(OOB)}\ns_mov_b32 s{sT2}, {hex(OOB)}')
    k(f's_movk_i32 s{sT1}, 7')
    if cfg.c3: k(f'''
        s_mul_i32 s{sT4}, s{sT3}, {43*1024}
        s_add_u32 s{sT4}, s{sT4}, 384
        s_cmp_eq_u32 s{sW}, 0
        s_cselect_b32 s{sT0}, s{sT4}, s{sT0}
        s_cselect_b32 s{sT1}, 10, s{sT1}
        s_lshl_b32 s{sT4}, s{sT3}, 14
        s_add_u32 s{sT4}, s{sT4}, 384
        s_cmp_eq_u32 s{sW}, 3
        s_cselect_b32 s{sT2}, s{sT4}, s{sT2}
        s_cselect_b32 s{sT1}, 10, s{sT1}
        s_cselect_b32 s{sT5}, 15, s{sT5}
        ''')
    k(f'''
    v_min_u32 v{vE+6}, 42, v{vLANE}
    v_and_b32 v{vE+7}, s{sT5}, v{vLANE}
    v_lshlrev_b32 v{vE+6}, s{sT1}, v{vE+6}
    v_lshlrev_b32 v{vE+7}, s{sT1}, v{vE+7}
    ''')
    if cfg.wtd < 0:
        for t in WT: k(t)
k.label('L_G0')
k.restore(snapE); nst[0] = nstE; tokQ.clear(); p2w[0] = 0
if cfg.ka: k(KA2)
k(f's_or_b32 s{sT5}, s2, s{sWAVE}')
e = side('L_noclr', f's_cmp_lg_u32 s{sT5}, 0')
k(f'''
s_mov_b32 s{sT0}, {WS_EP}
buffer_load_dword v{vE+8}, off, {sr(S_WS,4)}, s{sT0} sc1
s_waitcnt vmcnt(0)
v_add_u32 v{vE+8}, 2, v{vE+8}
v_or_b32 v{vE+8}, 1, v{vE+8}
s_mov_b64 exec, 1
buffer_store_dword v{vE+8}, off, {sr(S_DBG,4)}, 0 sc1
buffer_store_dword v{vE+8}, off, {sr(S_WS,4)}, s{sT0} sc1
s_mov_b64 exec, -1
''')
e()
if cfg.stamps == 7:
    k.wait_lg_all()
    for nm in ('ka', 'i0', 'i1', 'f0', 'f1'): stamp(nm)
if cfg.wts and cfg.wsp == 0 and cfg.wts != 5: stouch()
if not cfg.lb: common_setup(0)
vEP, C0_0 = 4, 6
k(f's_cmp_eq_u32 s{sTYPE}, 1\ns_cbranch_scc1 L_G0B')
snap0 = k.snapshot(); nst0 = nst[0]
CI0 = vWF

def pass1(typ):
    nfr = 10 if typ == 'A' else 8
    def fr(t, i): return vWR + 4*(nfr*(t & 1) + i)
    def reads(t):
        s, kk = t >> 1, t & 1
        off = ((s % 5) * 32768) % 65536
        X = lambda i, f: f'ds_read_b128 {vr(fr(t, f), 4)}, v{vXR+kk} offset:{off + 2048*i}'
        W = lambda a, u, f: [f'ds_read_b64_tr_b16 {vr(fr(t, f) + 2*h, 2)}, v{vWA+a} offset:{off + 16384 + 8192*u + 4096*kk + 512*h}' for h in range(2)]
        if typ == 'A':
            return W(0, 0, 8) + [X(0, 0)] + W(0, 1, 9) + [X(i, i) for i in range(1, 8)]
        return W(0, 0, 4) + [X(0, 0), X(1, 1)] + W(1, 0, 5) + [X(2, 2), X(3, 3)] + W(0, 1, 6) + W(1, 1, 7)
    def mms(t):
        if typ == 'A':
            return [(mf(vAW + 32*u + 4*i, fr(t, i), fr(t, 8+u), (vr(CI0, 4) if u == 0 else '0') if t == 0 else None), (i, 8+u)) for i in range(8) for u in range(2)]
        order = [(0,0),(0,1),(1,0),(1,1),(0,2),(0,3),(1,2),(1,3)] + [(w, i) for w in (2, 3) for i in range(4)]
        return [(mf(vAW + (((w >> 1)*4 + i + 6) % 8)*8 + (w & 1)*4, fr(t, 4+w), fr(t, i), vr(CI0 + 4*w, 4) if t == 0 else None), (i, 4+w)) for w, i in order]
    na = 1 if typ == 'A' else 2
    if cfg.lb and cfg.stamps == 7: k(LB2)
    if cfg.prio: k(f's_setprio {cfg.prio}')
    k('s_barrier')
    stamp('B0')
    for r in reads(0): k(r)
    win = 0
    for t in range(16):
        R = []
        if t % 2 == 1:
            s = (t + 1) // 2
            k('s_barrier')
            stamp(f'B{s}')
            w = ((s % 5) * 32768) >> 16
            if s < 8 and w != win:
                d = hex(((w - win) << 16) & 0xffffffff); win = w
                R += [f'v_add_u32 v{vWA+a}, {d}, v{vWA+a}' for a in range(na)] + [f'v_add_u32 v{vXR+a}, {d}, v{vXR+a}' for a in range(2)]
        if t + 1 < 16: R += reads(t + 1)
        if t == 8: R.append(DBTEXT(vEP))
        if cfg.lb and cfg.stamps != 7 and t == 4: R += LB2.split('\n')
        if cfg.wtouch and t == cfg.wtd: R.append(WT[0])
        if cfg.wtouch and cfg.wtd >= 0 and t == cfg.wtd + cfg.wtd2: R.append(WT[1])
        M = mms(t)
        if cfg.nog0 & 1: R = [x for x in R if not x.startswith('ds_')]
        if cfg.nog0 & 2: M = [('s_nop 0', f) for m, f in M]
        j = 0
        for i, (m, fs) in enumerate(M):
            if i % 8 == 0:
                wait_regs([fr(t, f) + q for mm in M[i:i+8] for f in mm[1] for q in range(4)])
            k(m)
            tgt = min(len(R), ((i + 1) * len(R) + 11) // 12)
            while j < tgt: k(R[j]); j += 1
    if cfg.prio: k('s_setprio 0')

def pass2(V, nv, extra=[]):
    assert W0 + cfg.g4 <= 13 or cfg.g4 == 0
    V = list(V)
    if cfg.prio2: k(f's_setprio {cfg.prio2}')
    get_epoch(vEP)
    p2w[0] = 0
    for i in range(4):
        F = moves(MV[i])
        if cfg.nomv & 1: F = [x for x in F if not x.startswith('ds_')]
        if cfg.mvb == 1:
            for x in F: k(x)
            F = []
        if i == 3: F += [f for r in range(W0, W0 + cfg.g4) for f in item(10 + r)] + extra
        n = nv - len(F) // 2
        if cfg.nv0 and nv == cfg.nvb: n = cfg.nv0 if i == 0 else nv if i < 3 else 999
        if cfg.mvb == 2:
            weave(V[:n], []); weave([], F)
        else: weave(V[:n], F)
        V = V[n:]
        k.wait_lg_all()
        k('s_barrier')
        stamp(f'B{9+i}')
    k(f's_setprio {cfg.pe0}')
    return V

W1 = W0 + cfg.g4; W2 = min(15, W1 + cfg.we0)
if cfg.wts == 5: stouch(1)
if cfg.lb: common_setup(0)
if not cfg.kv2: k(f'''
s_lshl2_add_u32 s{sT0}, s{sGRP}, s{sW}
s_lshl4_add_u32 s{sT1}, s{sT0}, s{sRB}
s_lshl_b32 s{sH}, s{sT1}, 10
s_add_u32 s{sH}, s{sH}, {WS_KVP}
v_and_b32 v{vE+5}, 1, v{vLANE}
v_cmp_eq_u32 {sr(sH+1,2)}, 1, v{vE+5}
v_lshlrev_b32 v8, 3, v{vLANE}
s_lshl_b32 s{sT1}, s{sW}, 9
v_add_u32 v8, s{sT1}, v8
v_lshlrev_b32 v9, 2, v{vE+5}
v_lshl_add_u32 v9, v{vE+3}, 3, v9
s_lshl_b32 s{sT0}, s{sW}, 5
v_add_u32 v9, s{sT0}, v9
''')
SEL, SD = vWF + 16, vWF + 20
if cfg.kv2:
    k(f'''
    s_lshl2_add_u32 s{sT0}, s{sGRP}, s{sW}
    s_lshl4_add_u32 s{sT1}, s{sT0}, s{sRB}
    s_lshl_b32 s{sH}, s{sT1}, 9
    s_add_u32 s{sH}, s{sH}, {WS_KVP}
    s_lshl_b32 s{sH+1}, s{sT1}, 6
    s_add_u32 s{sH+1}, s{sH+1}, {WS_KVP + 0x40000}
    v_lshlrev_b32 v8, 3, v{vLANE}
    s_lshl_b32 s{sT1}, s{sW}, 9
    v_add_u32 v8, s{sT1}, v8
    s_lshl_b32 s{sT0}, s{sW}, 5
    v_lshl_add_u32 v9, v{vE+3}, 3, s{sT0}
    v_lshrrev_b32 v{vE+8}, 1, v{vE+3}
    v_lshl_add_u32 v{vE+8}, v{vE+8}, 4, v{vE+2}
    v_and_b32 v{vE+9}, 1, v{vE+3}
    v_lshl_add_u32 v{vE+8}, v{vE+8}, 1, v{vE+9}
    v_lshlrev_b32 v3, 3, v{vE+8}
    v_lshlrev_b32 v5, 4, v{vE+3}
    v_lshl_add_u32 v12, v{vE+2}, 6, v5
    v_lshl_add_u32 v5, v{vE+2}, 26, v5
    v_lshrrev_b32 v{vE+8}, 1, v{vE+2}
    v_lshlrev_b32 v{vE+9}, 2, v{vE+9}
    v_xor_b32 v{vE+8}, v{vE+8}, v{vE+9}
    v_and_b32 v{vE+9}, 1, v{vE+2}
    v_lshlrev_b32 v{vE+9}, 4, v{vE+9}
    v_mov_b32 v{vE+10}, 0x3f80
    v_lshlrev_b32 v{vE+10}, v{vE+9}, v{vE+10}
    ''')
    for r in range(4): k(f'v_cmp_eq_u32 vcc, {r}, v{vE+8}\nv_cndmask_b32 v{SEL+r}, 0, v{vE+10}, vcc')
xw_addr('0', f's{sT0}')
wtouch()
consts('A', C0_0)
for i in range(4): k(f'v_mov_b32 v{CI0+i}, s{sEPS}')
ONES = vWF + 4
for i in range(4): k(f'v_mov_b32 v{ONES+i}, 0x3f803f80')
pass1('A')
PK, VV = vAC2, vAC2 + 16
KVA, ZA = vWF + 8, vWF + 12
V = phi(vAW, PK, vE, C0_0, 0)
V += [f'v_cvt_pk_bf16_f32 v{VV+i}, v{vAW+32+2*i}, v{vAW+32+2*i+1}' for i in range(16)]
V += [mf(KVA, PK, VV, '0'), mf(ZA, PK, ONES, '0'), mf(KVA, PK+4, VV+4), mf(ZA, PK+4, ONES)]
V += phi(vAW + 16, PK + 8, vE, C0_0, 0)
V += [mf(KVA, PK+8, VV+8), mf(ZA, PK+8, ONES), mf(KVA, PK+12, VV+12), mf(ZA, PK+12, ONES)]
V += [f'v_cvt_pk_bf16_f32 v{vE+i}, v{KVA+2*i}, v{KVA+2*i+1}' for i in range(4)]
if not cfg.kv2:
    V += [f'v_cndmask_b32_e64 v{vE+2}, v{vE+2}, v{vE+3}, {sr(sH+1,2)}', f'v_mov_b32 v{vE+3}, s{sN}', st4(vE, sH, 0)]
    KB = vAC2
    kt = [f'buffer_load_dwordx4 {vr(KB+4*r,4)}, v{vL16}, {sr(S_WS,4)}, s{sH + r//4} offen offset:{1024*(r%4)} sc1' for r in range(16)]
    V += [f's_and_b32 s{sH}, s{sH}, 0xffffc000', f's_add_u32 s{sH+1}, s{sH}, 4096', f's_add_u32 s{sH+2}, s{sH}, 8192', f's_add_u32 s{sH+3}, s{sH}, 12288']
ROR = lambda op, r, n: f'{op}_dpp v{r}, v{r}, v{r} row_ror:{n} row_mask:0xf bank_mask:0xf'
if cfg.kv2:
    V += [f'v_add_u32 v{vE+4}, v{vE}, v{vE+1}', f'buffer_store_dwordx2 {vr(vE,2)}, v3, {sr(S_WS,4)}, s{sH} offen sc1']
    V += [ROR('v_add_u32', vE + 4, n) for n in (8, 4, 2, 1)]
    V += [f'v_add3_u32 v{vE+4}, v{vE+4}, v{vE+2}, v{vE+3}', f'v_sub_u32 v{vE+4}, s{sN}, v{vE+4}',
          f'buffer_store_dwordx3 {vr(vE+2,3)}, v5, {sr(S_WS,4)}, s{sH+1} offen sc1']
    KB = vAC2
    kt = [f'buffer_load_dwordx3 {vr(SD,3)}, v12, {sr(S_WS,4)}, s{sH+1} offen sc1']
    kt += [f'buffer_load_dwordx4 {vr(KB+4*r,4)}, v{vL16}, {sr(S_WS,4)}, s{sH + 2*(r//4)} offen offset:{1024*(r%4)} sc1' for r in range(8)]
    V += [f's_and_b32 s{sH}, s{sH}, 0xffffe000', f's_add_u32 s{sH+2}, s{sH}, 4096', f's_and_b32 s{sH+1}, s{sH+1}, 0xfffffc00', f's_lshl_b32 s{sH+3}, s{sN}, 6']
if cfg.kve: assert len(V) <= 3*cfg.nva - 40
V = pass2(V, cfg.nva, kt if cfg.kve else [])
for v in V: k(v)
if not cfg.kve:
    for t in kt: k(t)
stamp('e1')
for f in fill(cfg.e0a, W1, W2): f()
stamp('e2')
if not cfg.kv2:
    k(f's_lshl_b32 s{sT5}, s{sN}, 4\ns_mov_b32 s{sSEL0}, 0x00003f80\ns_mov_b32 s{sSEL1}, 0x3f800000')
    checked(kt, [KB + 4*r + 3 for r in range(16)], vE, sT5)
    stamp('e3')
    SUM = vE
    V = []
    for r in range(16):
        for j in range(3):
            for h in range(2):
                d = SUM + 6*(r & 1) + 2*j + h
                V.append(f'v_dot2_f32_bf16 v{d}, v{KB+4*r+j}, s{sSEL0+h}, {"0" if r < 2 else "v%d" % d}')
    for i in range(0, 6, 2): V.append(f'v_pk_add_f32 {vr(SUM+i,2)}, {vr(SUM+i,2)}, {vr(SUM+6+i,2)}')
    for i in range(3): V.append(f'v_cvt_pk_bf16_f32 v{vE+12+i}, v{SUM+2*i}, v{SUM+2*i+1}')
    weave(V, [f for r in range(cfg.e0a, max(cfg.e0a, cfg.e0b)) for f in loadA(r)])
    k(f'ds_write_b64 v8, {vr(vE+12,2)} offset:{L_KV}')
    k(f'ds_write_b32 v9, v{vE+14} offset:{L_KV + 2048}')
else:
    k.label('L_kvc')
    k('s_nop 1')
    Z, T, D = vE, vE + 4, vE + 8
    V = unpack4(Z, SD) + [f'v_add3_u32 v{T}, v{SD}, v{SD+1}, v{SD+2}']
    V += [ROR('v_add_f32', Z + i, n) for n in (8, 4, 2, 1) for i in range(4)]
    V += [f'v_cvt_pk_bf16_f32 v{Z+i}, v{Z+2*i}, v{Z+2*i+1}' for i in range(2)] + [f'ds_write_b64 v9, {vr(Z,2)} offset:{L_KV + 2048}']
    V += stx('e3')
    for r in range(8):
        V += [mf(D, SEL, KB + 4*r, '0' if r == 0 else None), f'v_add3_u32 v{T}, v{T}, v{KB+4*r}, v{KB+4*r+1}']
        V += [f'v_add3_u32 v{T+1}, v{T+1}, v{KB+4*r+2}, v{KB+4*r+3}' if r else f'v_add_u32 v{T+1}, v{KB+2}, v{KB+3}']
    for v in V: k(v)
    V = [f'v_add_u32 v{T}, v{T}, v{T+1}'] + [ROR('v_add_u32', T, n) for n in (8, 4, 2, 1)]
    V.insert(3, f'v_cvt_pk_bf16_f32 v{D}, v{D}, v{D+1}'); V.insert(5, f'v_cvt_pk_bf16_f32 v{D+1}, v{D+2}, v{D+3}')
    V += [f'v_mov_b32 v{T+1}, v{T}', f'ds_write_b64 v8, {vr(D,2)} offset:{L_KV}', f'v_permlane16_swap_b32 v{T}, v{T+1}', f'v_add_u32 v{T}, v{T}, v{T+1}',
          f'v_mov_b32 v{T+1}, v{T}', f'v_permlane32_swap_b32 v{T}, v{T+1}', f'v_add_u32 v{T}, v{T}, v{T+1}', f'v_cmp_ne_u32 vcc, s{sH+3}, v{T}']
    weave(V, [f for r in range(cfg.e0a, max(cfg.e0a, cfg.e0b)) for f in loadA(r)] if cfg.kv2 == 1 else [])
    if not cfg.nocheck: k('s_cbranch_vccnz L_kvs')
    k.label('L_kvd')
    s_ = Kern()
    s_.label('L_kvs')
    s_(f's_sub_u32 s{sSPIN}, s{sSPIN}, 1\ns_cbranch_scc1 L_kvg\ns_nop 7\ns_nop 3')
    for t in kt: s_(t)
    s_('s_waitcnt vmcnt(0) lgkmcnt(0)\ns_branch L_kvc')
    s_.label('L_kvg')
    s_(f's_mov_b32 s{sSPIN}, 0\ns_branch L_kvd')
    slow.append(s_.text())
k.wait_lg_all()
stamp('e4')
k('s_barrier')
if cfg.kv2 == 2:
    for r in range(cfg.e0a, max(cfg.e0a, cfg.e0b)):
        for f in loadA(r): f()
k('s_branch L_P2_0')
vmA = [dict(x) for x in k.vm]

k.label('L_G0B')
k.restore(snap0); nst[0] = nst0; tokQ.clear()
k(f'''
s_and_b32 s{sT2}, s{sW}, 1
s_lshl_b32 s{sT2}, s{sT2}, 6
s_mul_i32 s{sT0}, s{sGRP}, 384
s_add_u32 s{sT0}, s{sT0}, s{sT2}
v_lshrrev_b32 v{vE+5}, 4, v{vLANE}
v_lshlrev_b32 v{vE+5}, 3, v{vE+5}
''')
srd_tail(S_B1, 2752)
for w in range(4):
    k(f'buffer_load_dwordx2 {vr(CI0 + 4*w, 2)}, v{vE+5}, {sr(S_B1,4)}, s{sT0} offen offset:{128*(w >> 1) + 32*(w & 1)}')
if cfg.wts == 5: stouch(1)
if cfg.lb:
    common_setup(0)
    k(f's_and_b32 s{sT2}, s{sW}, 1\ns_lshl_b32 s{sT2}, s{sT2}, 6')
k(f'''
s_mul_i32 s{sT0}, s{sGRP}, {3*UNT}
s_and_b32 s{sT1}, s{sW}, 2
s_lshl2_add_u32 s{sT1}, s{sRB}, s{sT1}
''')
ck_off(sT3, sT1)
k(f'''
s_mul_i32 s{sT4}, s{sT2}, {1792//64}
s_sub_u32 s{sT3}, s{sT3}, s{sT4}
v_lshl_add_u32 v{vL4}, v{vLANE}, 2, s{sT3}
v_subrev_u32 v5, {RTS - 512}, v{vL4}
s_mul_i32 s{sT1}, s{sT1}, {RTS}
s_add_u32 s{sT1}, s{sT1}, s{sT0}
s_mul_i32 s{sT3}, s{sT2}, {STP//64}
s_add_u32 s{sH}, s{sT1}, s{sT3}
s_add_u32 s{sH+1}, s{sH}, {RTS}
s_add_u32 s{sH+2}, s{sH}, {UNT}
s_add_u32 s{sH+3}, s{sH+1}, {UNT}
s_cmp_eq_u32 s{sB7}, 1
s_cselect_b32 s{sH+2}, {hex(OOB)}, s{sH+2}
s_cselect_b32 s{sH+3}, {hex(OOB)}, s{sH+3}
''')
k(f's_and_b32 s{sT1}, s{sW}, 2\ns_lshl_b32 s{sT1}, s{sT1}, 12')
xw_addr(f's{sT1}', f's{sT2}')
k(f'v_xor_b32 v{vWA+1}, 32, v{vWA}')
wtouch()
consts('B', C0_0)
for w in range(4):
    for t in unpack4(CI0 + 4*w, CI0 + 4*w): k(t)
pass1('B')
def btile(i, pk):
    o = vAC2 + 8*i
    S = strec(o, sH + i, 0, vWF + 2*i, 5 if i & 1 else vL4)
    if cfg.pst >= 0: S = [f's_setprio {cfg.pst}'] + S + [f's_setprio {cfg.prio2}']
    return gelu(vAW + 16*((i + 3) % 4), o, vE, C0_0, pk) + S
ntile = min(4, -(-(4*cfg.nvb - 16) // 128)) if not cfg.nv0 else 4
V = []
for i in range(ntile): V += btile(i, cfg.gpk if i or cfg.gpk0 < 0 else cfg.gpk0)
if cfg.e0p:
    assert ntile == 4
    pos = len(V) - 8 - cfg.e0q
    E = early(cfg.e0p)
    step = max(1, cfg.e0q // len(E))
    for i, f in enumerate(E): V.insert(pos + i * (step + 1), f)
V = pass2(V, cfg.nvb)
if cfg.e0p:
    for v in V: emit(v)
    V = []
V = stx('e1') + V + stx('e2')
for i in range(ntile, 4): V += btile(i, cfg.pk) + stx(f'e{i+1}')
weave_int(V, fill(cfg.e0b, W1, W2)[3*cfg.e0p:], cfg.gint, cfg.f0)
for r in range(cfg.e0b, max(cfg.e0a, cfg.e0b)):
    for f in loadA(r): f()
phase2(0, vmA, max(cfg.e0a, cfg.e0b), W2)
k.label('L_fin')
k('s_nop 1')

if cfg.stamps:
    stamp('sto')
    k('s_waitcnt vmcnt(0)')
    stamp('end')
    k(f'''
    s_waitcnt lgkmcnt(0)
    s_cmp_lg_u32 s{sW}, 0
    s_cbranch_scc1 L_end
    ''')
    if cfg.probe >= 0:
        k(f's_cmp_lg_u32 s{sGI}, {cfg.pgrp}\ns_cbranch_scc1 L_end')
        if cfg.ptype >= 0:
            k(f's_cmp_lg_u32 s{sTYPE}, {cfg.ptype}\ns_cbranch_scc1 L_end')
        k(f'''
        s_sub_u32 s{sT0}, s{STREG[cfg.probe]}, s{STREG[0]}
        s_lshl_b32 s{sT0}, s{sT0}, 2
        s_add_u32 s{sT0}, s{sT0}, 5000
        L_probe:
        s_memrealtime s[72:73]
        s_waitcnt lgkmcnt(0)
        s_sub_u32 s{sT1}, s72, s{STREG[0]}
        s_cmp_lt_u32 s{sT1}, s{sT0}
        s_cbranch_scc1 L_probe
        s_branch L_end
        ''')
    k(f'''
    s_mov_b64 exec, 1
    s_lshl1_add_u32 s{sT0}, s2, s{sGI}
    s_mul_i32 s{sT0}, s{sT0}, {8*(nst[0]+1)}
    s_add_u32 s{sT0}, s{sT0}, {STAMP_OFF}
    ''')
    for s in range(nst[0]):
        k(f'v_mov_b32 v4, s{STREG[s]}\nv_mov_b32 v5, s{STREG[s]+1}\nbuffer_store_dwordx2 v[4:5], off, {sr(S_WS,4)}, s{sT0} offset:{8*s}\ns_nop 1')
    k(f'''
    s_sub_u32 s{sT1}, 0x4000, s{sSPIN}
    s_mul_i32 s{sT1}, s{sT1}, 100
    s_add_u32 s{sT1}, s{sT1}, s{STREG[0]}
    s_addc_u32 s{sT2}, s{STREG[0]+1}, 0
    v_mov_b32 v4, s{sT1}
    v_mov_b32 v5, s{sT2}
    buffer_store_dwordx2 v[4:5], off, {sr(S_WS,4)}, s{sT0} offset:{8*nst[0]}
    ''')
k.label('L_end')
k('s_endpgm')

hdr = open('gated_mix__linear_attn_block__dense_activation_gelu__prompt.s.ref').read().split('; @launch')[0]
text = hdr + f'''; @launch grid=(256,1,1) block=(512,1,1) lds={LDS_BYTES}
.amdgcn_target "amdgcn-amd-amdhsa--gfx950"
.text
.globl {KNAME}
.p2align 8
.type {KNAME},@function
{KNAME}:
{k.text()}
{"".join(slow)}
.section .rodata,"a"
.p2align 6
.amdhsa_kernel {KNAME}
  .amdhsa_next_free_vgpr 256
  .amdhsa_next_free_sgpr 102
  .amdhsa_accum_offset 256
  .amdhsa_group_segment_fixed_size 0
  .amdhsa_kernarg_size 96
  .amdhsa_user_sgpr_count 2
  .amdhsa_user_sgpr_kernarg_segment_ptr 1
  .amdhsa_system_sgpr_workgroup_id_x 1
.end_amdhsa_kernel
'''
open(sys.argv[1], 'w').write(text)
print('instructions', k.ninstr, 'nops', k.nnop, 'stamps', nst[0])
```

```python
import sys, struct
from kern import *

KNAME = 'gated_mix__linear_attn_block__dense_activation_gelu__prompt_kernel'
def f32(x): return '0x%08x' % struct.unpack('<I', struct.pack('<f', x))[0]

class Cfg:
    stamps = 0
    tl = -1
    tlm = 7
    pad = 0
    q7 = 8
    q8 = 8
    xo7 = 0
    u3p = 0
    gpk = 0
    gpk0 = -1
    nv0 = 0
    pst = -1
    pmv = -1
    aw1 = -1
    l8 = 0
    clk = 0
    rot = 7
    wrot = 3
    wtouch = 1
    wtd = -1
    wtd2 = 0
    kv2 = 0
    aw2 = 0
    amax = 9
    z1 = -1
    sq = 0
    sql = 0
    c3o = 0
    e1l = 0
    e1la = 0
    e0p = 0
    e0q = 30
    nog0 = 0
    nox = 0
    sp2 = 0
    tx = 0
    c3 = 0
    gx = 0
    wn1 = 7
    lb = 1
    ka = 1
    sp1 = 0
    so = 1
    rmul = 1
    rx = 0
    wts = 0
    wsp = 1
    d0 = 2
    nvb = 95
    nva = 95
    gint = 12
    prio = 1
    probe = -1
    pgrp = 0
    ptype = -1
    nocheck = 0
    prio2 = 0
    pk = 1
    ord0 = 8
    ord1 = 6
    lrd0 = 3
    lrd1 = 1
    e0a = 4
    e0b = 4
    e1a = 4
    e1b = 4
    z0 = 4
    q0 = 10
    g4 = 2
    dper = 1
    gint1 = 8
    xo = 2
    q9 = 2
    q10 = 2
    q11 = 0
    wa1 = 0
    we0 = 0
    pe0 = 0
    pe1 = 2
    pp0 = 0
    pp1 = 0
    f0 = 0
    f1 = 0
    afirst = 1
    kve = 0
    slp = 0
    cm = 0
    nomv = 0
    nost = 0
    mvb = 0
    m32 = 0
    m32p = 0
    prg1 = 1
    whit = 0
    u3hit = 0
    aoob = 0
    mp = 0
    ssc = 1
    xr = 1
    asc = 1
    awin = 4
cfg = Cfg()
for a in sys.argv[2:]:
    k_, v_ = a.split('='); setattr(cfg, k_, int(v_))

STP, UNT = 2048, 4096
RTS = 30 * UNT
WS_CB = 64 * RTS
OOBU = 0x7f200000
WS_KVP = 0x880000
WS_G = WS_KVP + 512 * 1024
WS_EP = WS_G + 16384
WS_END = WS_EP + 128
STAMP_OFF = 0x8000000
WS_SIZE = 0x10000000
OOB = 0x7f000000
LDS_BYTES = 163840
L_KV = 2*16384 + 12288
L_RED = 5 * 16384

S_X, S_W, S_B1, S_GW, S_WS, S_DBG, S_W2, S_WO, S_OUT, S_B2 = 8, 12, 16, 20, 24, 28, 32, 36, 40, 44
sWAVE, sW, sRB, sGRP, sTYPE, sROT, sSTP, sW4K, sW2K, sSLAB, sCT, sB7, sSPIN, sN, sN2 = range(48, 63)
sEPS = 63
sC1 = 64
sT0, sT1, sT2, sT3, sT4, sT5 = range(66, 72)
sU = 72
sH = 87
sM21 = 91
sGO = 93
sCK = 88
sSEL0, sSEL1 = 64, 65
sN10 = 23
STREG = [94, 96, 98, 100, 4, 6, 44, 46]
sGI = 3

vLANE, vL16 = 1, 2
vDX, vDW = 3, 7
vDP = 13
vXR = 15
vWA = 17
vP2 = 21
vA = 25
vB2 = 28
vL4 = 12
vWR = 32
vAW = 112
vCS = 160
vAC2 = 176
vWF = 208
vE = 240
vDUM = 0

k = Kern()
slow = []
nst = [0]
SETS = {1: ['st', 'B0', 'B8', 'B12', 'P2', 'r2', 'r11', 'end'],
        2: ['st', 'B0', 'B1', 'B2', 'B3', 'B4', 'B5', 'B6'],
        3: ['st', 'B6', 'B7', 'B8', 'B9', 'B10', 'B11', 'B12'],
        4: ['st', 'P2', 'r0', 'r2', 'r4', 'r6', 'r8', 'r10'],
        5: ['st', 'r10', 'r11', 'r13', 'mm', 'red', 'sto', 'end'],
        6: ['st', 'B12', 'e1', 'e2', 'e3', 'e4', 'P2', 'r0'],
        7: ['st', 'ka', 'i0', 'i1', 'f0', 'f1', 'B0', 'B1']}
def stx(name):
    if cfg.stamps and name in SETS[cfg.stamps]:
        return [f'{"s_memtime" if cfg.clk else "s_memrealtime"} {sr(STREG[SETS[cfg.stamps].index(name)], 2)}']
    return []
def stamp(name):
    if cfg.stamps and name in SETS[cfg.stamps]:
        k(f'{"s_memtime" if cfg.clk else "s_memrealtime"} {sr(STREG[SETS[cfg.stamps].index(name)], 2)}')
    nst[0] = 8

def side(label, cond):
    k(cond + f'\ns_cbranch_scc1 {label}')
    snap = k.snapshot(); k.track = False
    def end():
        k('s_nop 7')
        k.out.append(label + ':'); k.restore(snap); k.track = True
    return end

def mf(d, a, b, c=None):
    return f'v_mfma_f32_16x16x32_bf16 {vr(d,4)}, {vr(a,4)}, {vr(b,4)}, {vr(d,4) if c is None else c}'

def wait_regs(regs):
    regs = {('v', r) for r in regs}
    l = None
    for i, op in enumerate(k.lg):
        if op['wr'] & regs: l = len(k.lg) - 1 - i
    if l is not None:
        if k.smem_pending: l = 0
        k.waitcnt(lgkm=l)

def emit(x):
    return x() if callable(x) else k(x)
def weave(V, F):
    n = len(V); j = 0
    if n == 0:
        for f in F: emit(f)
        return
    for i, v in enumerate(V):
        tgt = ((i + 1) * len(F) + n - 1) // n
        while j < tgt: emit(F[j]); j += 1
        emit(v)
def weave_int(V, F, step, front=0):
    F = list(F)
    use = [set(Ins(v).rd) | set(Ins(v).wr) for v in V]
    last = -step
    while front and F and not any(getattr(F[0], 'regs', set()) & u for u in use):
        emit(F.pop(0)); front -= 1; last = 0
    for i, v in enumerate(V):
        if F and i - last >= step and not any(getattr(F[0], 'regs', set()) & u for u in use[i:]):
            emit(F.pop(0)); last = i
        emit(v)
    for f in F: emit(f)

def merge_vm(*paths):
    order, cnt, ent = [], {}, {}
    for vm in sorted(paths, key=lambda v: -sum(1 for o in v if o.get('key') or o['wr'])):
        ks = []
        for i, o in enumerate(vm):
            key = o.get('key') or (o['text'] if o['wr'] else None)
            if key is None: continue
            ks.append(key); ent[key] = o
            cnt[key] = min(cnt.get(key, 99), len(vm) - 1 - i)
        if not order: order = ks
        else: assert order[len(order) - len(ks):] == ks, (order, ks)
    out = []
    for key in reversed(order):
        assert cnt[key] >= len(out)
        while len(out) < cnt[key]: out.insert(0, {'id': -1, 'wr': set(), 'text': '', 'redo': False})
        out.insert(0, dict(ent[key]))
    return out
def wait_key(key):
    for i, o in enumerate(k.vm):
        if o.get('key') == key:
            k.waitcnt(vm=len(k.vm) - 1 - i); return

uid = [0]
def addchain(kk, t, r):
    r = list(r)
    if len(r) == 2:
        kk(f'v_add_u32 v{t}, v{r[0]}, v{r[1]}'); return
    if len(r) <= 9:
        parts = [r[:3] + r[6:], r[3:6]]
    else:
        h = (len(r) // 2) | 1
        parts = [r[:h], r[h:]]
    first = [True, True]
    tail = []
    while parts[0] or parts[1]:
        for c in range(2):
            q = parts[c]
            if not q: continue
            if first[c]:
                parts[c] = q[3:]; first[c] = False
                kk(f'v_add3_u32 v{t+c}, v{q[0]}, v{q[1]}, v{q[2]}')
            elif len(q) >= 2:
                parts[c] = q[2:]
                kk(f'v_add3_u32 v{t+c}, v{t+c}, v{q[0]}, v{q[1]}')
            else:
                parts[c] = []; tail.append(q[0])
    if len(tail) == 2:
        kk(f'v_add3_u32 v{t}, v{t}, v{tail[0]}, v{tail[1]}'); tail = []
    if tail: kk(f'v_add3_u32 v{t}, v{t}, v{t+1}, v{tail[0]}')
    else: kk(f'v_add_u32 v{t}, v{t}, v{t+1}')
def checked(texts, regs, T, expect, defer=False):
    uid[0] += 1; u = uid[0]
    def check(kk):
        if expect is None:
            kk(f'v_cmp_eq_u32 vcc, 0, v{regs[0]}')
            return
        addchain(kk, T, regs)
        kk(f'v_cmp_ne_u32 vcc, s{expect}, v{T}')
    if cfg.nocheck and expect is not None: return []
    def fin():
        k(f's_cbranch_vccnz L_slow{u}')
        k.label(f'L_back{u}')
        vm = [dict(x) for x in k.vm]
        while vm and not vm[0]['redo']: vm.pop(0)
        s = Kern()
        s.label(f'L_slow{u}')
        s(f's_sub_u32 s{sSPIN}, s{sSPIN}, 1\ns_cbranch_scc1 L_give{u}\ns_nop 7\ns_nop 3')
        if cfg.slp: s(f's_sleep {cfg.slp}')
        for t in texts: s(t)
        s('s_waitcnt vmcnt(0)')
        check(s)
        s(f's_cbranch_vccnz L_slow{u}')
        for op in vm:
            s(op['text'] if op['redo'] else f'buffer_load_dword v{vDUM}, off, {sr(S_DBG,4)}, 0 offset:4080')
            s.vm = []
        s(f's_branch L_back{u}')
        s.label(f'L_give{u}')
        s(f's_mov_b32 s{sSPIN}, 0\ns_waitcnt vmcnt(0)\ns_branch L_back{u}')
        slow.append(s.text())
    L = []
    check(L.append)
    L.append(fin)
    if defer: return L
    for x in L: emit(x)

def srd_tail(base, size):
    k(f's_mov_b32 s{base+2}, {size}\ns_mov_b32 s{base+3}, 0x20000')

MAP = f'''s_lshr_b32 s{sT2}, s2, 5
v_readfirstlane_b32 s{sWAVE}, v{vE}
s_and_b32 s{sT1}, s2, 1
s_lshl3_add_u32 s{sRB}, s{sT1}, s{sT2}
s_bfe_u32 s{sT1}, s2, 0x20003
s_lshl1_add_u32 s{sROT}, s{sT1}, s{sT2}
s_and_b32 s{sROT}, s{sROT}, {cfg.rot}
s_mul_i32 s{sROT}, s{sROT}, {cfg.rmul}
s_mul_i32 s{sT1}, s2, {cfg.rx}
s_add_u32 s{sROT}, s{sROT}, s{sT1}
s_and_b32 s{sROT}, s{sROT}, 7
s_and_b32 s{sT1}, s2, 6
s_xor_b32 s{sT1}, s{sT1}, {cfg.gx}
s_bfe_u32 s{sT2}, s2, 0x10004
s_add_u32 s{sGRP}, s{sT1}, s{sT2}
s_and_b32 s{sT1}, s2, 0x1e
s_cmp_eq_u32 s{sT1}, {0x1e ^ cfg.gx}
s_cselect_b32 s{sB7}, 1, 0''' if not cfg.mp else f'''s_lshr_b32 s{sT2}, s2, 7
v_readfirstlane_b32 s{sWAVE}, v{vE}
s_and_b32 s{sT1}, s2, 7
s_lshl1_add_u32 s{sRB}, s{sT1}, s{sT2}
s_bfe_u32 s{sGRP}, s2, 0x30004
s_lshl2_add_u32 s{sROT}, s{sT2}, s{sGRP}
s_mul_i32 s{sT1}, s{sT1}, {cfg.xr}
s_add_u32 s{sROT}, s{sROT}, s{sT1}
s_and_b32 s{sROT}, s{sROT}, {cfg.rot}
s_and_b32 s{sT1}, s2, 0x78
s_cmp_eq_u32 s{sT1}, 0x78
s_cselect_b32 s{sB7}, 1, 0'''
KA2 = f'''s_load_dwordx2 {sr(S_B1,2)}, s[0:1], 40
s_load_dwordx2 {sr(S_GW,2)}, s[0:1], 64
s_load_dwordx2 {sr(S_W2,2)}, s[0:1], 48
s_load_dwordx2 {sr(S_WO,2)}, s[0:1], 16
s_load_dwordx2 {sr(S_B2,2)}, s[0:1], 56
s_load_dwordx2 {sr(S_OUT,2)}, s[0:1], 72
'''
stamp('st')
k(f'''
s_cmp_ge_u32 s2, 256
s_cbranch_scc1 L_end
s_load_dwordx2 {sr(S_X,2)}, s[0:1], 0
s_bfe_u32 s{sTYPE}, s2, 0x10003
s_mul_i32 s{sT0}, s{sTYPE}, 24
s_add_u32 s{sT0}, s{sT0}, 8
s_load_dwordx2 {sr(S_W,2)}, s[0:1], s{sT0}
s_load_dwordx2 {sr(S_WS,2)}, s[0:1], 88
s_load_dwordx2 {sr(S_DBG,2)}, s[0:1], 80
{'' if cfg.ka else KA2}
v_lshrrev_b32 v{vE}, 6, v0
v_and_b32 v{vLANE}, 63, v0
{MAP}
s_and_b32 s{sW}, s{sWAVE}, 3
s_lshl_b32 s{sW4K}, s{sW}, 12
s_lshl_b32 s{sW2K}, s{sW}, 11
v_lshlrev_b32 v{vL16}, 4, v{vLANE}
v_lshrrev_b32 v{vE}, 3, v{vLANE}
v_and_b32 v{vE+1}, 7, v{vLANE}
s_mov_b32 s{S_WS+2}, {hex(WS_SIZE) if cfg.stamps else hex(WS_END)}
s_mov_b32 s{S_WS+3}, 0x20000
s_mov_b32 s{S_DBG+2}, 256
s_mov_b32 s{S_DBG+3}, 0x20000
s_cmp_lt_u32 s{sWAVE}, 4
s_cbranch_scc1 L_G0
''')
snapE = k.snapshot(); nstE = nst[0]

CMAP = f'''s_lshr_b32 s{sT1}, s2, 6
    s_lshl2_add_u32 s{sSLAB}, s{sT0}, s{sT1}
    s_bfe_u32 s{sCT}, s2, 0x30003
    s_add_u32 s{sT1}, s{sT1}, s{sCT}''' if not cfg.cm else f'''s_bfe_u32 s{sCT}, s2, 0x30004
    s_xor_b32 s{sT1}, s{sCT}, s{sTYPE}
    s_and_b32 s{sT1}, s{sT1}, 1
    s_lshr_b32 s{sT2}, s2, 7
    s_lshl1_add_u32 s{sT1}, s{sT2}, s{sT1}
    s_lshl2_add_u32 s{sSLAB}, s{sT0}, s{sT1}
    s_lshr_b32 s{sT1}, s{sCT}, 1
    s_lshl1_add_u32 s{sT1}, s{sT2}, s{sT1}
    {"s_add_u32 s%d, s%d, s%d" % (sT1, sT1, sTYPE) if cfg.cm == 2 else ""}'''
LB2 = f'''buffer_load_dwordx2 {vr(vB2+2,2)}, v{vB2}, {sr(S_B2,4)}, 0 offen offset:32
buffer_load_dwordx2 {vr(vB2,2)}, v{vB2}, {sr(S_B2,4)}, 0 offen'''
def common_setup(grp):
    srd_tail(S_B1, 2752); srd_tail(S_W2, 1376*1024); srd_tail(S_WO, 512*1024)
    srd_tail(S_B2, 1024); srd_tail(S_OUT, 2048*1024)
    k(f'''
    s_and_b32 s{sT0}, s2, 7
    {CMAP}
    s_and_b32 s{sT1}, s{sT1}, {cfg.wrot}
    s_lshr_b32 s{sT3}, s{sW}, 1
    s_lshl1_add_u32 s{sT1}, s{sT1}, s{sT3}
    s_lshl_b32 s{sU+11}, s{sT1}, 12
    s_cmp_eq_u32 s{sT1}, 7
    s_cselect_b32 s{sT1}, 0, s{sT1}
    s_mul_i32 s{sU}, s{sT1}, 12288
    v_and_b32 v{vE+2}, 6, v{vE}
    v_xor_b32 v{vE+2}, v{vE+2}, v{vE+1}
    v_lshlrev_b32 v{vE+2}, 4, v{vE+2}
    v_lshl_add_u32 v{vDP}, v{vE}, 10, v{vE+2}
    s_lshl_b32 s{sT0}, s{sCT}, 7
    s_and_b32 s{sT2}, s{sW}, 1
    s_lshl_b32 s{sT2}, s{sT2}, 15
    s_add_u32 s{sT2}, s{sT2}, s{sT0}
    v_add_u32 v{vDP}, s{sT2}, v{vDP}
    v_add_u32 v{vDP+1}, 0x2000, v{vDP}
    v_and_b32 v{vE+2}, 15, v{vLANE}
    v_lshrrev_b32 v{vE+3}, 4, v{vLANE}
    v_lshlrev_b32 v{vE+5}, 3, v{vE+3}
    s_and_b32 s{sT2}, s{sW}, 2
    s_lshl_b32 s{sT2}, s{sT2}, 5
    s_add_u32 s{sT0}, s{sT0}, s{sT2}
    v_add_u32 v{vB2}, s{sT0}, v{vE+5}
    {'' if cfg.lb else LB2}
    v_bfe_u32 v{vE+4}, v{vLANE}, 1, 1
    v_and_b32 v{vE+5}, 3, v{vE}
    v_lshl_add_u32 v{vE+4}, v{vE+5}, 1, v{vE+4}
    v_lshlrev_b32 v{vE+4}, 4, v{vE+4}
    v_and_b32 v{vE+5}, 1, v{vLANE}
    v_lshl_add_u32 v{vE+4}, v{vE+5}, 3, v{vE+4}
    v_lshrrev_b32 v{vE+5}, 2, v{vLANE}
    v_lshl_add_u32 v{vE+5}, v{vE+5}, 7, v{vE+4}
    v_add_u32 v{vE+5}, s{sW4K}, v{vE+5}
    v_xor_b32 v{vP2}, s{sT2}, v{vE+5}
    v_xor_b32 v{vP2+1}, 32, v{vP2}
    v_xor_b32 v{vP2+2}, 64, v{vP2}
    v_xor_b32 v{vP2+3}, 0x60, v{vP2}
    s_lshl1_add_u32 s{sT4}, s{sSLAB}, {grp}
    s_mul_i32 s{sT0}, s{sT4}, {RTS}
    s_and_b32 s{sT1}, s{sW}, 1
    s_lshl_b32 s{sT2}, s{sT1}, 11
    s_add_u32 s{sT0}, s{sT0}, s{sT2}
    s_lshl_b32 s{sT2}, s{sT1}, 10
    v_xor_b32 v{vA}, s{sT2}, v{vL16}
    v_xor_b32 v{vA+1}, 0x400, v{vA}
    v_add_u32 v{vA}, s{sT0}, v{vA}
    v_add_u32 v{vA+1}, s{sT0}, v{vA+1}
    s_lshr_b32 s{sT0}, s{sT4}, 3
    s_mul_i32 s{sT0}, s{sT0}, {RTS}
    s_and_b32 s{sT4}, s{sT4}, 7
    s_lshl1_add_u32 s{sT4}, s{sT4}, s{sT1}
    s_lshl_b32 s{sT4}, s{sT4}, 8
    s_add_u32 s{sT0}, s{sT0}, s{sT4}
    s_add_u32 s{sT0}, s{sT0}, {WS_CB}
    v_lshl_add_u32 v{vA+2}, v{vLANE}, 2, s{sT0}
    s_mov_b32 s{sSPIN}, 0x4000
    s_cmp_lt_u32 s{sW}, 3
    s_cselect_b32 s{sM21}, s{sW4K}, 15360
    s_cselect_b32 s{sM21+1}, 1024, 0
    s_mov_b32 s{sGI}, {grp}
    ''')
    for i in range(1, 11):
        k(f's_add_u32 s{sU+i}, s{sU+i-1}, 24576\ns_sub_u32 s{sT0}, s{sU+i}, {7*12288}\ns_cselect_b32 s{sU+i}, s{sU+i}, s{sT0}')
    for i in range(12, 15):
        k(f's_add_u32 s{sU+i}, s{sU+i-1}, 8192\ns_and_b32 s{sU+i}, s{sU+i}, 0x7fff')
    k(f's_lshl_b32 s{sT3}, s{sT3}, 12\ns_add_u32 s{sU+3}, s{sU+3}, s{sT3}')
    for i in range(4, 11): k(f's_add_u32 s{sU+i}, s{sU+i}, {4096 if i < 7 else 8192}')
    for i in range(11, 15): k(f's_add_u32 s{sU+i}, s{sU+i}, {22*4096}')
    k(f's_cmp_ge_u32 s{sW}, 2\ns_cselect_b32 s{sU+10}, {21*4096}, s{sU+10}')
    k(f's_cmp_eq_u32 s{sW}, 3\ns_cselect_b32 s{sU+10}, {hex(OOBU)}, s{sU+10}')

def ck_off(dst, rt):
    k(f'''
    s_lshr_b32 s{sT4}, s{rt}, 3
    s_sub_u32 s{sT4}, s{rt}, s{sT4}
    s_mul_i32 s{sT4}, s{sT4}, {RTS}
    s_and_b32 s{dst}, s{rt}, 7
    s_lshl_b32 s{dst}, s{dst}, 9
    s_add_u32 s{dst}, s{dst}, {WS_CB}
    s_sub_u32 s{dst}, s{dst}, s{sT4}
    ''')

def xw_addr(rowbase_s, tile_s):
    k(f'''
    v_lshrrev_b32 v{vE+5}, 1, v{vE+2}
    v_xor_b32 v{vE+5}, v{vE+5}, v{vE+3}
    v_lshlrev_b32 v{vE+5}, 4, v{vE+5}
    v_lshl_add_u32 v{vE+5}, v{vE+2}, 7, v{vE+5}
    v_add_u32 v{vXR}, {rowbase_s}, v{vE+5}
    v_xor_b32 v{vXR+1}, 64, v{vXR}
    v_bfe_u32 v{vE+5}, v{vLANE}, 2, 2
    v_lshl_add_u32 v{vE+5}, v{vE+3}, 3, v{vE+5}
    v_lshl_add_u32 v{vE+5}, v{vE+5}, 7, v{vE+4}
    v_xor_b32 v{vWA}, {tile_s}, v{vE+5}
    ''')

tokQ = {}
def item(q):
    L = []
    def add(pre, vo, srd_, so, last=False):
        def f():
            t = k(f'buffer_load_dwordx4 v{vo}, {sr(srd_,4)}, s{so} offen lds')
            if last: tokQ[q] = t; k.vm[-1]['key'] = ('W', q)
        pl = pre.split('\n')
        L.append(lambda: k('\n'.join(pl[-1:] + pl[:-1])))
        L.append(f)
    if q < 8:
        base = (q % 5) * 32768
        hdr = f's_add_u32 s{sT0}, s{sROT}, {q}\ns_and_b32 s{sT0}, s{sT0}, 7\ns_lshl_b32 s{sT1}, s{sT0}, 7\ns_mul_i32 s{sT2}, s{sT0}, s{sSTP}\n'
        for i in range(4):
            add((hdr if i == 0 else '') + f's_add_u32 m0, s{sW4K}, {base + 1024*i}', vDX + i, S_X, sT1)
            u, j = i // 2, i % 2
            add(f's_add_u32 m0, s{sW2K}, {base + 16384 + 8192*u + 1024*j}', vDW + 2*u + j, S_W, sT2, i == 3)
    elif q < 10:
        for b in range(4):
            s = 4*(q - 8) + b
            hdr = f's_add_u32 s{sT0}, s{sROT}, {s}\ns_and_b32 s{sT0}, s{sT0}, 7\ns_mul_i32 s{sT2}, s{sT0}, s{sSTP}\n'
            for j in range(2):
                add((hdr if j == 0 else '') + f's_add_u32 m0, s{sW2K}, {98304 + 8192*s + 1024*j}', vDW + (0 if cfg.u3hit else 4) + j, S_W, sT2, b == 3 and j == 1)
    else:
        r = q - 10
        pos = WPOS[r] * 16384
        for j in range(4):
            hdr = {0: f's_lshl4_add_u32 s{sT4}, s{sU + r}, {0 if r < 11 else hex((-22*65536) & 0xffffffff)}\n' if not cfg.whit else f's_mov_b32 s{sT4}, {0 if cfg.whit == 1 else hex(OOB)}\n', 2: f's_add_u32 s{sT4}, s{sT4}, 0x4000\n'}.get(j, '')
            m = f's_add_u32 m0, s{sW4K}, {pos + 1024*j}'
            if r == 10: m = f's_add_u32 m0, s{sM21}, {pos}' if j == 0 else f's_add_u32 m0, m0, s{sM21+1}'
            add(hdr + m, vDP + (j & 1), S_W2 if r < 11 or cfg.whit else S_WO, sT4, j == 3)
    return L

WPOS = [0, 1, 2, 3, 4, 5, 6, 7, 0, 1, 2, 3, 8, 9, 4]
p2w = [0]
def rdP2(dst, r):
    pos = WPOS[r] * 16384
    L = []
    if pos >> 16 != p2w[0]:
        L = [f'v_add_u32 v{vP2+c}, {hex((((pos >> 16) - p2w[0]) << 16) & 0xffffffff)}, v{vP2+c}' for c in range(4)]
        p2w[0] = pos >> 16
    return L + [f'ds_read_b64_tr_b16 {vr(dst + 4*c + 2*h, 2)}, v{vP2+c} offset:{(pos % 65536) + 2048*h}' for c in range(4) for h in range(2)]
def moves(rs):
    L = []
    for r in rs:
        L += rdP2(vWR + 16*r, r)
    return L

Atext = {}
def areg(r, j): return vAW + 8*r + 4*j if r < 6 else (vWR + 8*(r - 6) + 4*j)
def loadA(r):
    L = []
    def mk(t, key):
        Atext[key] = t
        def f():
            k.redo = True; k(t if cfg.asc == 1 else t.replace(' sc1', {0: '', 2: ' nt', 3: ' sc0'}[cfg.asc])); k.redo = False
            k.vm[-1]['key'] = key; k.vm[-1]['text'] = t
        f.regs = set(Ins(t).wr)
        return f
    for j in range(2):
        L.append(mk(f'buffer_load_dwordx4 {vr(areg(r, j), 4)}, v{vA+j}, {sr(S_WS,4)}, s{sU+r if not cfg.aoob else sU+10} offen sc1', (r, j)))
    if cfg.aoob != 3: L.append(mk(f'buffer_load_dword v{vCS+r}, v{vA+2}, {sr(S_WS,4)}, s{sU+r if not cfg.aoob else sU+10} offen sc1', (r, 2)))
    else: Atext[(r, 2)] = ''
    return L

def gelu(acc, out, T, C0, pk):
    L = []
    p = lambda r: vr(r, 2)
    if pk == 1: pk = 7
    if pk == 9: pk = 1
    if pk & 1:
        for i in range(0, 16, 2): L.append(f'v_pk_mul_f32 {p(T+i)}, {p(acc+i)}, {p(acc+i)}')
        for i in range(0, 16, 2): L.append(f'v_pk_fma_f32 {p(T+i)}, {p(T+i)}, {sr(sC1,2)}, {vr(C0,2)}')
        for i in range(0, 16, 2): L.append(f'v_pk_mul_f32 {p(T+i)}, {p(acc+i)}, {p(T+i)}')
    else:
        for i in range(16): L.append(f'v_mul_f32 v{T+i}, v{acc+i}, v{acc+i}')
        for i in range(16): L.append(f'v_fma_f32 v{T+i}, v{T+i}, s{sC1}, v{C0}')
        for i in range(16): L.append(f'v_mul_f32 v{T+i}, v{acc+i}, v{T+i}')
    for i in range(16): L.append(f'v_exp_f32 v{T+i}, v{T+i}')
    if pk & 2:
        for i in range(0, 16, 2): L.append(f'v_pk_add_f32 {p(T+i)}, {p(T+i)}, 1.0 op_sel_hi:[1,0]')
    else:
        for i in range(16): L.append(f'v_add_f32 v{T+i}, 1.0, v{T+i}')
    for i in range(16): L.append(f'v_rcp_f32 v{T+i}, v{T+i}')
    if pk & 4:
        for i in range(0, 16, 2): L.append(f'v_pk_mul_f32 {p(T+i)}, {p(acc+i)}, {p(T+i)}')
    else:
        for i in range(16): L.append(f'v_mul_f32 v{T+i}, v{acc+i}, v{T+i}')
    for i in range(0, 16, 2): L.append(f'v_cvt_pk_bf16_f32 v{out+i//2}, v{T+i}, v{T+i+1}')
    return L

def phi(acc, out, T, C0, pk):
    L = []
    p = lambda r: vr(r, 2)
    if pk:
        for i in range(0, 16, 2): L.append(f'v_pk_fma_f32 {p(T+i)}, {p(acc+i)}, {sr(sC1,2)}, {vr(C0,2)}')
    else:
        for i in range(16): L.append(f'v_fma_f32 v{T+i}, v{acc+i}, s{sC1}, v{C0}')
    for i in range(16): L.append(f'v_exp_f32_e64 v{T+i}, v{T+i} clamp')
    for i in range(16): L.append(f'v_max_f32 v{acc+i}, s{sEPS}, v{acc+i}')
    if pk:
        for i in range(0, 16, 2): L.append(f'v_pk_add_f32 {p(T+i)}, {p(T+i)}, {p(acc+i)}')
    else:
        for i in range(16): L.append(f'v_add_f32 v{T+i}, v{T+i}, v{acc+i}')
    for i in range(0, 16, 2): L.append(f'v_cvt_pk_bf16_f32 v{out+i//2}, v{T+i}, v{T+i+1}')
    return L

def st4(src, s_off, imm):
    return f'buffer_store_dwordx4 {vr(src,4)}, v{vL16}, {sr(S_WS,4)}, s{s_off} offen offset:{imm} sc1'

def strec(src, s_off, imm, T, vck=None):
    L = []
    addchain(L.append, T, range(src, src + 8))
    L.insert(1, st4(src, s_off, imm)); L.insert(3, st4(src + 4, s_off, imm + 1024))
    L.append(f'v_sub_u32 v{T}, s{sN}, v{T}')
    L.append(f'buffer_store_dword v{T}, v{vck or vL4}, {sr(S_WS,4)}, s{s_off} offen offset:{imm // 8} sc1')
    if cfg.nost: L = [x for x in L if not x.startswith('buffer')]
    if not cfg.ssc: L = [x.replace(' sc1', '') for x in L]
    return L

def get_epoch(reg):
    checked([DBTEXT(reg)], [reg], None, None)
    k(f'v_readfirstlane_b32 s{sN}, v{reg}\ns_cmp_eq_u32 s{sW}, 3\ns_cselect_b32 s{sN10}, 0, s{sN}\ns_lshl_b32 s{sN2}, s{sN}, 1')
def DBTEXT(reg): return f'buffer_load_dword v{reg}, off, {sr(S_DBG,4)}, 0 sc1'

def consts(typ, C0):
    if typ == 'A':
        c1, c0 = 1.4426950408889634, -1e-6*1.4426950408889634
    else:
        c1, c0 = -2.302208198*0.044715, -2.302208198
    k(f'''
    s_mov_b32 s{sC1}, {f32(c1)}
    s_mov_b32 s{sC1+1}, {f32(c1)}
    s_mov_b32 s{sEPS}, {f32(1e-6)}
    v_mov_b32 v{C0}, {f32(c0)}
    v_mov_b32 v{C0+1}, {f32(c0)}
    ''')

def unpack4(dst, src):
    return [f'v_and_b32 v{dst+3}, 0xffff0000, v{src+1}', f'v_lshlrev_b32 v{dst+2}, 16, v{src+1}',
            f'v_and_b32 v{dst+1}, 0xffff0000, v{src}', f'v_lshlrev_b32 v{dst}, 16, v{src}']

def phase2(g, vmA, nload, wnext):
    k.label(f'L_P2_{g}')
    k('s_nop 1')
    k.vm = merge_vm(k.vm, vmA); k.lg = []
    stamp('P2')
    ord_, lrd = (cfg.ord0, cfg.lrd0) if g == 0 else (cfg.ord1, cfg.lrd1)
    k(f's_setprio {cfg.pp0 if g == 0 else cfg.pp1}')
    BUF = [vWF + 16, vWF, vAW, vAW + 16, vAW + 32]
    def wreg(r): return vWR + 16*r if r < 5 else BUF[r % 5]
    FREE = {5: -1, 6: -1, 7: 1, 8: 3, 9: 5, 10: 5, 11: 6, 12: 7, 13: 8, 14: 9}
    zr = cfg.z0 if g == 0 or cfg.z1 < 0 else cfg.z1
    def more(r):
        nonlocal nload, wnext
        L = []
        while nload < 15:
            need = (nload - 6) // 2 if nload >= 6 else -1
            if need > r or nload > r + (cfg.aw2 if cfg.aw2 and r >= zr else cfg.awin) or (r >= 0 and len(L) >= 3*cfg.amax): break
            if nload >= 11 and r < ord_: break
            if nload >= 7 and r < lrd: break
            L += loadA(nload)
            nload += 1
        for i in range(cfg.dper):
            if wnext < 15:
                L += wpairs(wnext, wnext + 1)
                wnext += 1
        return L
    nrd = [5]
    def reads(r):
        L = []
        while nrd[0] < 15 and FREE[nrd[0]] <= r and (nrd[0] < 8 or r >= zr) and (not L or nrd[0] <= r + 3):
            L += rdP2(wreg(nrd[0]), nrd[0]); nrd[0] += 1
        return L
    def chk(r): return checked([Atext[(r, j)] for j in range(3)], [vCS + r] + list(range(areg(r, 0), areg(r, 0) + 8)), vE + 8, sN10 if r == 10 else sN, True)
    G2 = vE + 12
    BB = vE
    gadr = f'''s_lshl1_add_u32 s{sT0}, s{sSLAB}, {g}
    s_lshl_b32 s{sGO}, s{sT0}, 8
    s_add_u32 s{sGO}, s{sGO}, {WS_G}
    s_and_b32 s{sT1}, s{sW}, 1
    s_lshl_b32 s{sT2}, s{sT1}, 7
    v_and_b32 v3, 15, v{vLANE}
    v_lshlrev_b32 v4, 3, v3
    v_add_u32 v4, s{sT2}, v4
    v_xor_b32 v5, 0x80, v4'''.split('\n')
    gt = [f'buffer_load_dwordx2 {vr(G2+2*j,2)}, v{4+j}, {sr(S_WS,4)}, s{sGO} offen sc1' for j in range(2)]
    def redo(t):
        def f():
            k.redo = True; k(t); k.redo = False
        return f
    late = f'''s_lshl1_add_u32 s{sT0}, s{sT0}, s{sT1}
    s_lshl_b32 s{sT5}, s{sT0}, 14
    s_lshl_b32 s{sT0}, s{sCT}, 7
    s_add_u32 s{sT5}, s{sT5}, s{sT0}
    s_and_b32 s{sT0}, s{sW}, 2
    s_lshl_b32 s{sT0}, s{sT0}, 5
    s_add_u32 s{sT5}, s{sT5}, s{sT0}
    v_lshlrev_b32 v3, 10, v3
    v_and_b32 v6, 16, v{vLANE}
    v_lshl_add_u32 v3, v6, 1, v3
    v_lshrrev_b32 v6, 5, v{vLANE}
    v_lshl_add_u32 v3, v6, 4, v3
    s_xor_b32 s{sT1}, s{sWAVE}, 1
    s_xor_b32 s{sT2}, s{sWAVE}, 2
    s_xor_b32 s{sT3}, s{sWAVE}, 3
    s_mul_i32 s{sT0}, s{sWAVE}, 6144
    s_mul_i32 s{sT1}, s{sT1}, 6144
    s_mul_i32 s{sT2}, s{sT2}, 6144
    s_mul_i32 s{sT3}, s{sT3}, 6144
    v_add_u32 v10, {L_RED}, v{vL16}
    v_add_u32 v6, s{sT0}, v10
    v_add_u32 v7, s{sT1}, v10
    v_add_u32 v8, s{sT2}, v10
    v_add_u32 v9, s{sT3}, v10'''.split('\n')
    order = [(pi, e_) for pi in (1, 2, 3, 0) for e_ in range(2)]
    def scale(i):
        pi, e_ = order[i]
        return [f'v_mul_f32 v{vAC2+8*pi+4*e_+j}, v{G2 + 2*(pi & 1)}, v{vAC2+8*pi+4*e_+j}' for j in range(4)]
    for f in more(-1): emit(f)
    for f in chk(0): emit(f)
    for r in range(15):
        stamp(f'r{r}')
        F = (more(r - 1) if r > 0 else []) + reads(r - 1)
        if r == 0: F = unpack4(BB, vB2) + unpack4(BB + 4, vB2 + 2) + F
        if r == 3: F += gadr + [redo(t) for t in gt]
        if r == 4: F += late[:12]
        if r == 12: F += late[12:]
        if r == 9: F += checked(gt, [G2+1, G2+3], vE + 8, sN2, True)
        if r == 10: F = [f'v_sub_f32 v{G2}, 1.0, v{G2}', f'v_sub_f32 v{G2+2}, 1.0, v{G2+2}'] + F
        if r < 14:
            assert nload > r + 1
            F += chk(r + 1)
        M = []
        for pi, e_ in order:
            c = None
            if r == 0: c = vr(BB + 4*e_, 4) if pi == 0 else '0'
            M.append(mf(vAC2 + 8*pi + 4*e_, wreg(r) + 4*(2*(pi >> 1) + e_), areg(r, pi & 1), c))
        wait_regs([wreg(r) + i for i in range(16)])
        if cfg.m32p:
            M = [x for c in range(4) for x in (f'v_mfma_f32_32x32x16_bf16 {vr(vAC2+16*(1-(c>>1)),16)}, {vr(wreg(r)+4*c,4)}, {vr(areg(r, c&1),4)}, {vr(vAC2+16*(1-(c>>1)),16) if r or c & 1 else 0}', '')]
        j = 0
        for i, m in enumerate(M):
            if cfg.m32p and r in (10, 11):
                k(m)
                tgt = ((i + 1) * len(F) + 7) // 8
                while j < tgt: emit(F[j]); j += 1
                if r == 10 and i >= 6:
                    for t in scale(2*i-10) + scale(2*i-9): k(t)
                if r == 11 and i in (1, 3):
                    for t in scale((i-1)*3) + scale((i-1)*3+1): k(t)
                continue
            if r == 11 and i < 4:
                for t in scale(4 + i): k(t)
            k(m)
            if r == 10 and i >= 4:
                for t in scale(i - 4): k(t)
            tgt = ((i + 1) * len(F) + 7) // 8
            if r == 10: tgt = min(len(F), ((i + 1) * len(F) + 4) // 5) if i < 7 else len(F)
            if r == 11: tgt = 0 if i < 3 else ((i - 2) * len(F) + 4) // 5
            while j < tgt: emit(F[j]); j += 1
        if r == zr:
            assert wnext == 15 and nrd[0] == 8
            for q in range(24, 9, -1): wait_key(('W', q))
            k.wait_lg_all()
            k('s_barrier')
    stamp('mm')
    for pi in range(1, 4):
        for h in range(2):
            k(f'ds_write_b128 v{6+pi}, {vr(vAC2 + 8*pi + 4*h, 4)} offset:{(pi-1)*2048 + 1024*h}')
    k.wait_lg_all()
    k('s_barrier')
    stamp('red')
    R = vAW
    for p in range(3):
        for h in range(2):
            k(f'ds_read_b128 {vr(R + 8*p + 4*h, 4)}, v6 offset:{p*2048 + 1024*h}')
    for p in range(3):
        for i in range(0, 8, 2):
            k(f'v_pk_add_f32 {vr(vAC2+i,2)}, {vr(vAC2+i,2)}, {vr(R+8*p+i,2)}')
    for i in range(4): k(f'v_cvt_pk_bf16_f32 v{vE+i}, v{vAC2+2*i}, v{vAC2+2*i+1}')
    k(f'v_permlane16_swap_b32 v{vE}, v{vE+2}\nv_permlane16_swap_b32 v{vE+1}, v{vE+3}')
    k(f'buffer_store_dwordx4 {vr(vE,4)}, v3, {sr(S_OUT,4)}, s{sT5} offen')
    if g == 1: k('s_branch L_fin' if cfg.stamps else 's_endpgm')

if cfg.sp1: k(f's_setprio {cfg.sp1}')
k(f'''
v_lshrrev_b32 v{vE+2}, 1, v{vE}
v_xor_b32 v{vE+2}, v{vE+1}, v{vE+2}
v_lshlrev_b32 v{vE+2}, 4, v{vE+2}
s_lshl2_add_u32 s{sT1}, s{sRB}, s{sW}
s_lshl_b32 s{sT1}, s{sT1}, 15
v_lshl_add_u32 v{vDX}, v{vE}, 10, v{vE+2}
v_add_u32 v{vDX}, s{sT1}, v{vDX}
v_xor_b32 v{vDX+1}, 64, v{vDX}
v_add_u32 v{vDX+1}, 0x2000, v{vDX+1}
v_add_u32 v{vDX+2}, 0x4000, v{vDX}
v_add_u32 v{vDX+3}, 0x4000, v{vDX+1}
v_and_b32 v{vE+2}, 2, v{vE}
v_xor_b32 v{vE+2}, v{vE+1}, v{vE+2}
v_lshlrev_b32 v{vE+2}, 4, v{vE+2}
v_xor_b32 v{vE+3}, 64, v{vE+2}
s_lshl_b32 s{sT3}, s{sGRP}, 7
s_add_u32 s{sT4}, s{sT3}, 1024
s_mul_i32 s{sT3}, s{sT3}, 3
s_movk_i32 s{sT1}, 3072
s_movk_i32 s{sT5}, 0x400
s_cmp_eq_u32 s{sTYPE}, 1
s_cselect_b32 s{sT1}, 2752, s{sT1}
s_cselect_b32 s{sT3}, s{sT3}, s{sT4}
s_cselect_b32 s{sT4}, 0x80, s{sT5}
s_movk_i32 s{sT5}, 0xfc00
s_cselect_b32 s{sT5}, 0x100, s{sT5}
s_mov_b32 s{S_W+2}, 0x180000
s_cselect_b32 s{S_W+2}, {512*2752}, s{S_W+2}
s_cmp_eq_u32 s{sB7}, 1
s_cselect_b32 s{sT4}, {hex(OOB)}, s{sT4}
s_cselect_b32 s{sT5}, {hex(OOB)}, s{sT5}
s_cselect_b32 s{sT2}, 24, 0
s_lshl_b32 s{sT0}, s{sW}, 4
v_add_u32 v{vE+4}, s{sT0}, v{vE}
v_mul_lo_u32 v{vE+4}, v{vE+4}, s{sT1}
s_lshl_b32 s{sSTP}, s{sT1}, 6
s_lshl3_add_u32 s{sT0}, s{sT1}, s{sT3}
v_add3_u32 v{vDW}, v{vE+4}, v{vE+2}, s{sT3}
v_add3_u32 v{vDW+1}, v{vE+4}, v{vE+3}, s{sT0}
v_add_u32 v{vDW+2}, s{sT4}, v{vDW}
v_add_u32 v{vDW+3}, s{sT4}, v{vDW+1}
v_add_u32 v{vDW+4}, s{sT5}, v{vDW}
v_add_u32 v{vDW+5}, s{sT5}, v{vDW+1}
v_and_b32 v{vE+2}, 64, v{vE+2}
v_and_b32 v{vE+3}, 64, v{vE+3}
v_lshlrev_b32 v{vE+2}, s{sT2}, v{vE+2}
v_lshlrev_b32 v{vE+3}, s{sT2}, v{vE+3}
v_and_b32 v{vE+2}, 0x40000000, v{vE+2}
v_and_b32 v{vE+3}, 0x40000000, v{vE+3}
v_add_u32 v{vDW}, v{vE+2}, v{vDW}
v_add_u32 v{vDW+1}, v{vE+3}, v{vDW+1}
s_mov_b32 s{S_X+2}, 0x200000
s_mov_b32 s{S_X+3}, 0x20000
s_mov_b32 s{S_W+3}, 0x20000
''')
if cfg.stamps == 7: k.wait_lg_all()
stamp('ka')
for f in item(0): f()
stamp('i0')
if cfg.ka: k(KA2)
GF = vAC2
GA = vE + 8
e = side('L_nogf', f's_cmp_eq_u32 s{sB7}, 0')
srd_tail(S_GW, 1024)
k(f'v_and_b32 v{vE+2}, 48, v{vLANE}')
for s in range(8):
    k(f's_add_u32 s{sT0}, s{sROT}, {s}\ns_and_b32 s{sT0}, s{sT0}, 7\ns_lshl_b32 s{sT0}, s{sT0}, 7')
    for kk in range(2):
        k(f'buffer_load_dwordx4 {vr(GF + 8*s + 4*kk, 4)}, v{vE+2}, {sr(S_GW,4)}, s{sT0} offen offset:{64*kk}')
e()
if not cfg.so:
    for q in range(1, cfg.d0):
        for f in item(q): f()
common_setup(1)
xw_addr(f's{sW4K}', '0')
CI = vAW + 48
k(f'''
v_add_u32 v{vWA}, 0x18000, v{vWA}
v_xor_b32 v{vWA+1}, 32, v{vWA}
v_xor_b32 v{vWA+2}, 64, v{vWA}
v_xor_b32 v{vWA+3}, 0x60, v{vWA}
v_lshlrev_b32 v{vE+5}, 3, v{vE+3}
s_mul_i32 s{sT0}, s{sGRP}, 384
s_cmp_eq_u32 s{sTYPE}, 1
s_cselect_b32 s{sT0}, s{sT0}, {hex(OOB)}
v_add_u32 v{CI+3}, s{sT0}, v{vE+5}
''')
LB1 = [f'buffer_load_dwordx2 {vr(CI + 4*c, 2)}, v{CI+3}, {sr(S_B1,4)}, 0 offen offset:{256 + 32*c}' for c in range(4)]
if not cfg.lb:
    for t in LB1: k(t)
k(f'''
s_lshl2_add_u32 s{sT0}, s{sRB}, s{sW}
''')
ck_off(sCK, sT0)
k(f'''
s_mul_i32 s{sH}, s{sT0}, {RTS}
s_lshl_b32 s{sGO}, s{sT0}, 8
s_add_u32 s{sGO}, s{sGO}, {WS_G}
s_mul_i32 s{sT0}, s{sGRP}, {3*UNT}
s_add_u32 s{sT0}, s{sT0}, {2*UNT}
s_mul_i32 s{sT1}, s{sGRP}, {UNT}
s_add_u32 s{sT1}, s{sT1}, {22*UNT}
s_cmp_eq_u32 s{sTYPE}, 1
s_cselect_b32 s{sT0}, s{sT0}, s{sT1}
s_add_u32 s{sH}, s{sH}, s{sT0}
s_cmp_eq_u32 s{sB7}, 1
s_cselect_b32 s{sH}, {hex(OOB)}, s{sH}
s_cmp_eq_u32 s{sTYPE}, 1
s_cselect_b32 s{sEPS}, 0, {f32(1e-6)}
''')
def xreg(t, rt): return vWR + 8*t + 4*rt
def gate_mm(s):
    e = side(f'L_ng{s}', f's_cmp_eq_u32 s{sB7}, 0')
    if cfg.sq and s < 6 and cfg.xo == 2: k.waitcnt(lgkm=4 + 2*cfg.pad)
    elif cfg.sq and s < 7 and cfg.xo == 2: k.waitcnt(lgkm=4 + cfg.pad)
    else: k.wait_lg_all()
    for kk in range(2):
        for rt in range(2):
            k(mf(GA + 4*rt, GF + 8*s + 4*kk, xreg(2*s + kk, rt), '0' if s == 0 and kk == 0 else None))
    e()
STREAM = []
NW1 = 4 + cfg.q9 + cfg.q10 + cfg.q11
assert 4 + cfg.q9 + cfg.q10 >= 8 and cfg.q9 >= 1
for q in range(cfg.d0, 10 + NW1): STREAM += item(q)
done = [8*cfg.d0]
LIM = [40, 40, 48, 56, 64, 72, 80, 88, 96, 108, 120, 132]
def take(i):
    n = min(LIM[i], done[0] + (cfg.q0 if i < 7 else {7: cfg.q7, 8: cfg.q8, 9: 4*cfg.q9, 10: 4*cfg.q10, 11: 4*cfg.q11}[i])) - done[0]
    done[0] += n
    r = STREAM[:2*n]; del STREAM[:2*n]
    return r
win = 0
if cfg.aw1 >= 0:
    k.raw(f'    s_cmp_eq_u32 s{sTYPE}, 1\n    s_cbranch_scc1 L_aw1\n    s_waitcnt vmcnt({cfg.aw1})\nL_aw1:')
if cfg.so:
    for q in range(1, cfg.d0):
        for f in item(q): f()
if cfg.lb:
    for t in LB1: k(t)
    k(LB2)
SQ = [int(c_) for c_ in str(cfg.sq)] if cfg.sq else []
SPF = [f'    s_buffer_load_dwordx2 s[0:1], {sr(S_W2,4)}, s{sT3} offset:{128*i+60}' for i in range(11)]
SPF += [f'    s_buffer_load_dwordx2 s[0:1], {sr(S_WO,4)}, s{sT5} offset:{128*i+60}' for i in range(4)]
U3 = [f'    s_buffer_load_dwordx2 s[0:1], {sr(S_W,4)}, s{sT4} offset:60\n    s_add_u32 s{sT4}, s{sT4}, s{sH+2}' for i in range(8)]
if cfg.u3p: SPF = SPF[:cfg.u3p - 1] + U3 + SPF[cfg.u3p - 1:]
def spf(i):
    n = SQ[i] if i < len(SQ) else 0
    for t in SPF[:n]: k.raw(t)
    del SPF[:n]
if cfg.sq:
    k(f'''
    s_mul_i32 s{sT3}, s2, {43*128}
    s_mul_i32 s{sT5}, s{sW}, {11*128}
    s_min_u32 s{sT5}, s{sT5}, {32*128}
    s_add_u32 s{sT3}, s{sT3}, s{sT5}
    s_lshl2_add_u32 s{sT5}, s2, s{sW}
    s_lshl_b32 s{sT5}, s{sT5}, 9
    ''')
    if cfg.u3p: k(f'''
    s_lshr_b32 s{sH+2}, s{sSTP}, 6
    s_lshl2_add_u32 s{sT4}, s{sRB}, s{sW}
    s_lshl_b32 s{sT4}, s{sT4}, 3
    s_mul_i32 s{sT4}, s{sT4}, s{sH+2}
    s_lshl_b32 s{sH+3}, s{sGRP}, 7
    s_add_u32 s{sT4}, s{sT4}, s{sH+3}
    s_lshl1_add_u32 s{sH+3}, s{sH+3}, 0x100
    s_mul_i32 s{sH+3}, s{sH+3}, s{sTYPE}
    s_add_u32 s{sT4}, s{sT4}, s{sH+3}
    s_cmp_eq_u32 s{sB7}, 1
    s_cselect_b32 s{sT4}, 0, s{sT4}
    ''')
    k.wait_lg_all()
    spf(0)
stamp('i1')
if cfg.sp1 or cfg.sp2: k(f's_setprio {cfg.sp2}')
if cfg.stamps == 7:
    k.raw(f'    s_waitcnt vmcnt({len(k.vm)-1})'); stamp('f0'); k.raw(f'    s_waitcnt vmcnt({len(k.vm)-2})'); stamp('f1')
for s in range(8):
    k.wait_vm_tok(tokQ[s + (s == 7 and not cfg.l8)])
    if cfg.xo >= 2 and s > 0: k.waitcnt(lgkm=4 + 2*cfg.pad)
    else: k.wait_lg_all()
    k('s_barrier')
    stamp(f'B{s}')
    w = ((s % 5) * 32768) >> 16
    if w != win:
        k(f'v_add_u32 v{vXR}, {hex(((w - win) << 16) & 0xffffffff)}, v{vXR}\nv_add_u32 v{vXR+1}, {hex(((w - win) << 16) & 0xffffffff)}, v{vXR+1}')
        win = w
    if s == 3: k(DBTEXT(vE+7))
    F = take(s)
    if cfg.sql:
        for f in F[:2*cfg.sql]: f()
        F = F[2*cfg.sql:]
    spf(s + 1)
    R = [f'ds_read_b128 {vr(xreg(2*s+kk, rt), 4)}, v{vXR+kk} offset:{((s % 5) * 32768) % 65536 + 2048*rt}' for kk in range(2) for rt in range(2)]
    if cfg.nox: R = ['s_nop 0'] * 4
    if s == 2:
        for c in range(4): R += unpack4(CI + 4*c, CI + 4*c)
    if s == 3: R += [f'v_add_f32 v{CI+i}, s{sEPS}, v{CI+i}' for i in range(16)]
    if s == 7 and cfg.xo7:
        for r in R[:4]: k(r)
        F7 = F; F = []
    elif cfg.xo == 1:
        for r in R[:4]: k(r)
        weave(F, R[4:])
    elif cfg.xo == 2:
        weave(F, R[4:])
        for r in R[:4]: k(r)
        if s < 7:
            for i in range(cfg.pad):
                k.raw(f'    ds_read_u8 v{vE+6}, v{vLANE}'); k.lg.append({'id': -1, 'wr': {('v', vE+6)}})
    else:
        for f in F[:2]: f()
        weave(F[2:], R)
    if s >= 1: gate_mm(s - 1)
    if s == 6: get_epoch(vE+7)
gate_mm(7)
assert not cfg.sq or not SPF
e = side('L_nogate', f's_cmp_eq_u32 s{sB7}, 0')
k(f'''
v_cmp_gt_u32 vcc, 16, v{vLANE}
v_cndmask_b32 v{vE}, v{GA+4}, v{GA}, vcc
v_mul_f32 v{vE}, {f32(-1.4426950408889634)}, v{vE}
v_exp_f32 v{vE}, v{vE}
v_lshlrev_b32 v{vE+2}, 3, v{vLANE}
v_add_f32 v{vE}, 1.0, v{vE}
v_mov_b32 v{vE+1}, s{sN}
v_rcp_f32 v{vE}, v{vE}
s_mov_b32 exec_hi, 0
buffer_store_dwordx2 {vr(vE,2)}, v{vE+2}, {sr(S_WS,4)}, s{sGO} offen sc1
s_mov_b32 exec_hi, -1
''')
e()
POOL = [vWF + 4*i for i in range(8)] + [vE + 4*i for i in range(4)]
def wfrag(t, c): return POOL[(4*t + c) % 12]
def w2reads(t):
    return [f'ds_read_b64_tr_b16 {vr(wfrag(t, c) + 2*h, 2)}, v{vWA+c} offset:{4096*t + 512*h}' for c in range(4) for h in range(2)]
k.wait_lg_all()
if not cfg.l8:
    for r in w2reads(0) + w2reads(1): k(r)
assert done[0] >= 80
if cfg.xo7:
    for f in F7: f()
k(f'v_lshl_add_u32 v{vL4}, v{vLANE}, 2, s{sCK}')
if cfg.l8: k.wait_vm_tok(tokQ[8])
k('s_barrier')
stamp('B8')
if cfg.l8:
    for r in w2reads(0) + w2reads(1): k(r)
k(f's_setprio {cfg.prg1}')
MV = {0: (), 1: (0, 1), 2: (2, 3), 3: (4,)}
for t in range(16):
    if t in (4, 8, 12):
        k.wait_vm_tok(tokQ[{4: 11, 8: 13, 12: 14}[t]])
        if t > 4: wait_regs(range(vWR + 16*MV[t//4 - 1][0], vWR + 16*MV[t//4 - 1][-1] + 16))
        k('s_barrier')
        stamp(f'B{8 + t//4}')
    if t % 4 == 0:
        D = take(8 + t//4)
        nd = 2*((len(D) + 7) // 8)
        Mv = moves(MV[t//4])
        if cfg.nomv & 2: Mv = [x for x in Mv if not x.startswith('ds_')]
    R = w2reads(t + 2) if t + 2 < 16 else []
    X = D[nd*(t%4):nd*(t%4)+nd]
    nm = (len(Mv) + 2) // 3
    Y = Mv[nm*(t%4):nm*(t%4)+nm]
    Z = []
    for i in range(4): Z += R[2*i:2*i+1] + X[(i*len(X)+3)//4:((i+1)*len(X)+3)//4] + R[2*i+1:2*i+2] + Y[(i*len(Y)+3)//4:((i+1)*len(Y)+3)//4]
    R = Z
    wait_regs([wfrag(t, c) + i for c in range(4) for i in range(4)])
    M = [mf(vAC2 + ((c >> 1)*2 + rt)*8 + (c & 1)*4, wfrag(t, c), xreg(t, rt), vr(CI + 4*c, 4) if t == 0 else None) for c in range(4) for rt in range(2)]
    if cfg.m32: M = [f'v_mfma_f32_32x32x16_bf16 {vr(vAC2+16*(c&1),16)}, {vr(wfrag(t, c),4)}, {vr(xreg(t, c>>1),4)}, {vr(vAC2+16*(c&1),16) if t or c > 1 else 0}' for c in range(4)]
    j = 0
    for i, m in enumerate(M):
        k(m)
        tgt = ((i + 1) * len(R) + len(M) - 1) // len(M)
        while j < tgt: emit(R[j]); j += 1
assert not STREAM
k.wait_vm_tok(tokQ[17])
k.wait_lg_all()
k('s_barrier')
stamp('B12')
k(f's_setprio {cfg.pe1}')
k(f's_cmp_eq_u32 s{sTYPE}, 1\ns_cbranch_scc1 L_G1B')
snap1 = k.snapshot(); nst1 = nst[0]
C0_1 = 8
def early(n): return [f for r in range(n) for f in loadA(r)]
def wpairs(lo, hi):
    L = []
    for r in range(lo, hi):
        it = item(10 + r)
        for i in range(0, 8, 2): L.append(lambda a=it[i], b=it[i+1]: (a(), b()))
    return L
def fill(n, lo, hi): return early(n) + wpairs(lo, hi) if cfg.afirst else wpairs(lo, hi) + early(n)
W0 = NW1 + cfg.wa1
consts('A', C0_1)
GG = 4
gtexts = [f'buffer_load_dwordx2 {vr(GG+2*rt,2)}, v3, {sr(S_WS,4)}, s{sGO} offen offset:{128*rt} sc1' for rt in range(2)]
k(f'v_and_b32 v3, 15, v{vLANE}\nv_lshlrev_b32 v3, 3, v3')
for t in gtexts: k(t)
PQ = vAW + 32
assert cfg.e1a <= 4
V = stx('e1') + phi(vAC2, PQ, vE, C0_1, cfg.pk) + phi(vAC2 + 16, PQ + 8, vE, C0_1, cfg.pk) + stx('e2')
if cfg.e1la:
    for v in V: k(v)
    if cfg.e1la == 1:
        for f in early(cfg.e1a): f()
else: weave_int(V, fill(cfg.e1a, NW1, W0), cfg.gint1, cfg.f1)
k(f'''
v_lshlrev_b32 v10, 3, v{vLANE}
v_lshrrev_b32 v11, 4, v{vLANE}
v_lshlrev_b32 v11, 3, v11
''')
checked(gtexts, [GG+1, GG+3], vE, sN2)
k('s_barrier')
stamp('e3')
KV, ZZ = vE, vE + 8
for c in range(4):
    k(f'ds_read_b64 {vr(ZZ+2*c,2)}, v11 offset:{L_KV + 2048 + 32*c}')
    k(f'ds_read_b64 {vr(KV+2*c,2)}, v10 offset:{L_KV + 512*c}')
if cfg.e1la == 2:
    for f in early(cfg.e1a): f()
DEN = vWF
def idx(c, rt): return ((c >> 1)*2 + rt)*2 + (c & 1)
for c in range(4):
    for rt in range(2):
        i = idx(c, rt)
        k(f'v_mfma_f32_16x16x16_bf16 {vr(DEN+4*i,4)}, {vr(ZZ+2*c,2)}, {vr(PQ+2*i,2)}, 0')
for c in range(4):
    for rt in range(2):
        i = idx(c, rt)
        k(f'v_mfma_f32_16x16x16_bf16 {vr(vAC2+4*i,4)}, {vr(KV+2*c,2)}, {vr(PQ+2*i,2)}, 0')
for i in range(8): k(f'v_add_f32 v{DEN+4*i}, s{sEPS}, v{DEN+4*i}')
for i in range(8): k(f'v_rcp_f32 v{DEN+4*i}, v{DEN+4*i}')
for i in range(8): k(f'v_mul_f32 v{DEN+4*i}, v{DEN+4*i}, v{GG + 2*((i >> 1) & 1)}')
OO = PQ
stamp('e4')
for f in range(4):
    for i in (2*f, 2*f + 1):
        for h in range(2):
            k(f'v_pk_mul_f32 {vr(vAC2+4*i+2*h,2)}, {vr(vAC2+4*i+2*h,2)}, {vr(DEN+4*i,2)} op_sel_hi:[1,0]')
    for j in range(4): k(f'v_cvt_pk_bf16_f32 v{OO+4*f+j}, v{vAC2+8*f+2*j}, v{vAC2+8*f+2*j+1}')
    if f & 1:
        for t in strec(OO + 4*f - 4, sH, STP*(f >> 1), vE + 2*f): k(t)
for r in range(cfg.e1a, max(cfg.e1a, cfg.e1b)):
    for f in loadA(r): f()
k('s_branch L_P2_1')
vmA = [dict(x) for x in k.vm]
k.label('L_G1B')
k.restore(snap1); nst[0] = nst1
consts('B', C0_1)
V = stx('e1') + gelu(vAC2, vWF, vE, C0_1, cfg.pk) + stx('e2') + strec(vWF, sH, 0, vWF + 16) + stx('e3')
if cfg.e1l:
    for v in V: k(v)
    V = gelu(vAC2 + 16, vWF + 8, vE, C0_1, cfg.pk) + stx('e4')
    n0 = {1: 0, 2: len(V) // 2, 3: len(V) - 10}[cfg.e1l]
    for v in V[:n0]: k(v)
    weave(V[n0:], early(cfg.e1b))
    for v in strec(vWF + 8, sH, STP, vWF + 18): k(v)
else:
    V += gelu(vAC2 + 16, vWF + 8, vE, C0_1, cfg.pk) + stx('e4') + strec(vWF + 8, sH, STP, vWF + 18)
    weave_int(V, fill(cfg.e1b, NW1, W0), cfg.gint1, cfg.f1)
for r in range(cfg.e1b, max(cfg.e1a, cfg.e1b)):
    for f in loadA(r): f()
phase2(1, vmA, max(cfg.e1a, cfg.e1b), 15)

WT = [f'buffer_load_dword v10, v{vE+6}, {sr(S_W2,4)}, s{sT0} offen', f'buffer_load_dword v11, v{vE+7}, {sr(S_WO,4)}, s{sT2} offen']
def stouch(part=0):
    k(f'''
    s_mul_i32 s{sT0}, s2, {43*128}
    s_mul_i32 s{sT2}, s{sW}, {11*128}
    s_min_u32 s{sT2}, s{sT2}, {32*128}
    s_add_u32 s{sT0}, s{sT0}, s{sT2}
    s_lshl2_add_u32 s{sT2}, s2, s{sW}
    s_lshl_b32 s{sT2}, s{sT2}, 9
    s_mov_b32 s{S_W2+2}, {1376*1024}
    s_mov_b32 s{S_W2+3}, 0x20000
    s_mov_b32 s{S_WO+2}, {512*1024}
    s_mov_b32 s{S_WO+3}, 0x20000
    ''')
    if part < 2: k.wait_lg_all()
    op, dst, o = ('dword', 'vcc_lo', 0) if cfg.wts in (1, 3) else ('dwordx2', 'vcc', 60)
    L = [f'    s_buffer_load_{op} {dst}, {sr(S_W2,4)}, s{sT0} offset:{128*i+o}' for i in range(11 if cfg.wts != 3 else 1)]
    L += [f'    s_buffer_load_{op} {dst}, {sr(S_WO,4)}, s{sT2} offset:{128*i+o}' for i in range(4 if cfg.wts != 3 else 1)]
    if part == 1: L = L[:cfg.wn1]
    if part == 2: L = L[cfg.wn1:]
    for t in L: k.raw(t)
    k.smem_pending.add(('s', 'vcc'))
def wtouch():
    if cfg.wts == 5: stouch(2)
    elif cfg.wts and cfg.wsp == 1: stouch()
    if not cfg.wtouch: return
    if cfg.tx:
        G = f'''
        s_lshr_b32 s{sT3}, s2, 3
        s_and_b32 s{sT4}, s2, 3
        s_lshl2_add_u32 s{sT4}, s{sT3}, s{sT4}
        s_lshl1_add_u32 s{sT0}, s{sT4}, s{sW}
        s_sub_u32 s{sT0}, s{sT0}, 1
        s_mul_i32 s{sT0}, s{sT0}, {43*128}
        s_lshl_b32 s{sT2}, s{sT4}, 12
        s_sub_u32 s{sT4}, s{sW}, 1
        s_cmp_le_u32 s{sT4}, 1
        s_cselect_b32 s{sT0}, s{sT0}, {hex(OOB)}
        s_cmp_eq_u32 s{sW}, 2
        s_cselect_b32 s{sT2}, s{sT2}, {hex(OOB)}
        s_bitcmp1_b32 s2, 2
        s_cselect_b32 s{sT0}, {hex(OOB)}, s{sT0}
        s_cselect_b32 s{sT2}, {hex(OOB)}, s{sT2}
        s_movk_i32 s{sT5}, 31
        '''
    else:
        G = f'''
        s_lshr_b32 s{sT3}, s2, 3
        s_mul_i32 s{sT0}, s2, {43*128}
        s_lshl_b32 s{sT2}, s2, 11
        s_cmp_eq_u32 s{sW}, 1
        s_cselect_b32 s{sT0}, s{sT0}, {hex(OOB)}
        s_cmp_eq_u32 s{sW}, 2
        s_cselect_b32 s{sT2}, s{sT2}, {hex(OOB)}
        s_movk_i32 s{sT5}, 15
        '''
    k(G)
    if cfg.c3o: k(f's_mov_b32 s{sT0}, {hex(OOB)}\ns_mov_b32 s{sT2}, {hex(OOB)}')
    k(f's_movk_i32 s{sT1}, 7')
    if cfg.c3: k(f'''
        s_mul_i32 s{sT4}, s{sT3}, {43*1024}
        s_add_u32 s{sT4}, s{sT4}, 384
        s_cmp_eq_u32 s{sW}, 0
        s_cselect_b32 s{sT0}, s{sT4}, s{sT0}
        s_cselect_b32 s{sT1}, 10, s{sT1}
        s_lshl_b32 s{sT4}, s{sT3}, 14
        s_add_u32 s{sT4}, s{sT4}, 384
        s_cmp_eq_u32 s{sW}, 3
        s_cselect_b32 s{sT2}, s{sT4}, s{sT2}
        s_cselect_b32 s{sT1}, 10, s{sT1}
        s_cselect_b32 s{sT5}, 15, s{sT5}
        ''')
    k(f'''
    v_min_u32 v{vE+6}, 42, v{vLANE}
    v_and_b32 v{vE+7}, s{sT5}, v{vLANE}
    v_lshlrev_b32 v{vE+6}, s{sT1}, v{vE+6}
    v_lshlrev_b32 v{vE+7}, s{sT1}, v{vE+7}
    ''')
    if cfg.wtd < 0:
        for t in WT: k(t)
k.label('L_G0')
k.restore(snapE); nst[0] = nstE; tokQ.clear(); p2w[0] = 0
if cfg.ka: k(KA2)
k(f's_or_b32 s{sT5}, s2, s{sWAVE}')
e = side('L_noclr', f's_cmp_lg_u32 s{sT5}, 0')
k(f'''
s_mov_b32 s{sT0}, {WS_EP}
buffer_load_dword v{vE+8}, off, {sr(S_WS,4)}, s{sT0} sc1
s_waitcnt vmcnt(0)
v_add_u32 v{vE+8}, 2, v{vE+8}
v_or_b32 v{vE+8}, 1, v{vE+8}
s_mov_b64 exec, 1
buffer_store_dword v{vE+8}, off, {sr(S_DBG,4)}, 0 sc1
buffer_store_dword v{vE+8}, off, {sr(S_WS,4)}, s{sT0} sc1
s_mov_b64 exec, -1
''')
e()
if cfg.stamps == 7:
    k.wait_lg_all()
    for nm in ('ka', 'i0', 'i1', 'f0', 'f1'): stamp(nm)
if cfg.wts and cfg.wsp == 0 and cfg.wts != 5: stouch()
if not cfg.lb: common_setup(0)
vEP, C0_0 = 4, 6
k(f's_cmp_eq_u32 s{sTYPE}, 1\ns_cbranch_scc1 L_G0B')
snap0 = k.snapshot(); nst0 = nst[0]
CI0 = vWF

def TL():
    L = []
    T = sT1
    if cfg.tlm & 1: L += [f's_lshl_b32 s{T}, s{sSLAB}, 16', f'buffer_load_dword v{vE+8}, off, {sr(S_OUT,4)}, s{T}']
    if cfg.tlm & 2: L += [f's_lshl2_add_u32 s{T}, s{sRB}, s{sW}', f's_mul_i32 s{T}, s{T}, {RTS}', f's_add_u32 s{T}, s{T}, {21*4096+2048}', f'buffer_load_dword v{vE+9}, off, {sr(S_WS,4)}, s{T}',
                          f's_mov_b32 s{T}, {WS_EP+64}', f'buffer_load_dword v{vE+10}, off, {sr(S_WS,4)}, s{T}',
                          f's_lshr_b32 s{T}, s{sRB}, 1', f's_mul_i32 s{T}, s{T}, {RTS}', f's_add_u32 s{T}, s{T}, {WS_CB + 21*4096 + 256}', f'buffer_load_dword v{vE+13}, off, {sr(S_WS,4)}, s{T}']
    if cfg.tlm & 4: L += [f's_and_b32 s{T}, s{sW}, 1', f's_lshl1_add_u32 s{T}, s{sSLAB}, s{T}', f's_mul_i32 s{T}, s{T}, {RTS}', f's_add_u32 s{T}, s{T}, {21*4096+2048}', f'buffer_load_dword v{vE+11}, off, {sr(S_WS,4)}, s{T}',
                          f's_lshr_b32 s{T}, s{sSLAB}, 2', f's_mul_i32 s{T}, s{T}, {RTS}', f's_add_u32 s{T}, s{T}, {WS_CB + 21*4096 + 256}', f'buffer_load_dword v{vE+12}, off, {sr(S_WS,4)}, s{T}']
    return L
def pass1(typ):
    nfr = 10 if typ == 'A' else 8
    def fr(t, i): return vWR + 4*(nfr*(t & 1) + i)
    def reads(t):
        s, kk = t >> 1, t & 1
        off = ((s % 5) * 32768) % 65536
        X = lambda i, f: f'ds_read_b128 {vr(fr(t, f), 4)}, v{vXR+kk} offset:{off + 2048*i}'
        W = lambda a, u, f: [f'ds_read_b64_tr_b16 {vr(fr(t, f) + 2*h, 2)}, v{vWA+a} offset:{off + 16384 + 8192*u + 4096*kk + 512*h}' for h in range(2)]
        if typ == 'A':
            return W(0, 0, 8) + [X(0, 0)] + W(0, 1, 9) + [X(i, i) for i in range(1, 8)]
        return W(0, 0, 4) + [X(0, 0), X(1, 1)] + W(1, 0, 5) + [X(2, 2), X(3, 3)] + W(0, 1, 6) + W(1, 1, 7)
    def mms(t):
        if typ == 'A':
            return [(mf(vAW + 32*u + 4*i, fr(t, i), fr(t, 8+u), (vr(CI0, 4) if u == 0 else '0') if t == 0 else None), (i, 8+u)) for i in range(8) for u in range(2)]
        order = [(0,0),(0,1),(1,0),(1,1),(0,2),(0,3),(1,2),(1,3)] + [(w, i) for w in (2, 3) for i in range(4)]
        return [(mf(vAW + (((w >> 1)*4 + i + 6) % 8)*8 + (w & 1)*4, fr(t, 4+w), fr(t, i), vr(CI0 + 4*w, 4) if t == 0 else None), (i, 4+w)) for w, i in order]
    na = 1 if typ == 'A' else 2
    if cfg.lb and cfg.stamps == 7: k(LB2)
    if cfg.prio: k(f's_setprio {cfg.prio}')
    k('s_barrier')
    stamp('B0')
    for r in reads(0): k(r)
    win = 0
    for t in range(16):
        R = []
        if t % 2 == 1:
            s = (t + 1) // 2
            k('s_barrier')
            stamp(f'B{s}')
            w = ((s % 5) * 32768) >> 16
            if s < 8 and w != win:
                d = hex(((w - win) << 16) & 0xffffffff); win = w
                R += [f'v_add_u32 v{vWA+a}, {d}, v{vWA+a}' for a in range(na)] + [f'v_add_u32 v{vXR+a}, {d}, v{vXR+a}' for a in range(2)]
        if t + 1 < 16: R += reads(t + 1)
        if t == 8: R.append(DBTEXT(vEP))
        if cfg.lb and cfg.stamps != 7 and t == 4: R += LB2.split('\n')
        if t == cfg.tl: R += TL()
        if cfg.wtouch and t == cfg.wtd: R.append(WT[0])
        if cfg.wtouch and cfg.wtd >= 0 and t == cfg.wtd + cfg.wtd2: R.append(WT[1])
        M = mms(t)
        if cfg.nog0 & 1: R = [x for x in R if not x.startswith('ds_')]
        if cfg.nog0 & 2: M = [('s_nop 0', f) for m, f in M]
        j = 0
        for i, (m, fs) in enumerate(M):
            if i % 8 == 0:
                wait_regs([fr(t, f) + q for mm in M[i:i+8] for f in mm[1] for q in range(4)])
            k(m)
            tgt = min(len(R), ((i + 1) * len(R) + 11) // 12)
            while j < tgt: k(R[j]); j += 1
    if cfg.prio: k('s_setprio 0')

def pass2(V, nv, extra=[]):
    assert W0 + cfg.g4 <= 13 or cfg.g4 == 0
    V = list(V)
    if cfg.prio2: k(f's_setprio {cfg.prio2}')
    get_epoch(vEP)
    p2w[0] = 0
    for i in range(4):
        F = moves(MV[i])
        if cfg.nomv & 1: F = [x for x in F if not x.startswith('ds_')]
        if cfg.mvb == 1:
            for x in F: k(x)
            F = []
        if i == 3: F += [f for r in range(W0, W0 + cfg.g4) for f in item(10 + r)] + extra
        n = nv - len(F) // 2
        if cfg.nv0 and nv == cfg.nvb: n = cfg.nv0 if i == 0 else nv if i < 3 else 999
        if cfg.mvb == 2:
            weave(V[:n], []); weave([], F)
        else: weave(V[:n], F)
        V = V[n:]
        k.wait_lg_all()
        k('s_barrier')
        stamp(f'B{9+i}')
    k(f's_setprio {cfg.pe0}')
    return V

W1 = W0 + cfg.g4; W2 = min(15, W1 + cfg.we0)
if cfg.wts == 5: stouch(1)
if cfg.lb: common_setup(0)
if not cfg.kv2: k(f'''
s_lshl2_add_u32 s{sT0}, s{sGRP}, s{sW}
s_lshl4_add_u32 s{sT1}, s{sT0}, s{sRB}
s_lshl_b32 s{sH}, s{sT1}, 10
s_add_u32 s{sH}, s{sH}, {WS_KVP}
v_and_b32 v{vE+5}, 1, v{vLANE}
v_cmp_eq_u32 {sr(sH+1,2)}, 1, v{vE+5}
v_lshlrev_b32 v8, 3, v{vLANE}
s_lshl_b32 s{sT1}, s{sW}, 9
v_add_u32 v8, s{sT1}, v8
v_lshlrev_b32 v9, 2, v{vE+5}
v_lshl_add_u32 v9, v{vE+3}, 3, v9
s_lshl_b32 s{sT0}, s{sW}, 5
v_add_u32 v9, s{sT0}, v9
''')
SEL, SD = vWF + 16, vWF + 20
if cfg.kv2:
    k(f'''
    s_lshl2_add_u32 s{sT0}, s{sGRP}, s{sW}
    s_lshl4_add_u32 s{sT1}, s{sT0}, s{sRB}
    s_lshl_b32 s{sH}, s{sT1}, 9
    s_add_u32 s{sH}, s{sH}, {WS_KVP}
    s_lshl_b32 s{sH+1}, s{sT1}, 6
    s_add_u32 s{sH+1}, s{sH+1}, {WS_KVP + 0x40000}
    v_lshlrev_b32 v8, 3, v{vLANE}
    s_lshl_b32 s{sT1}, s{sW}, 9
    v_add_u32 v8, s{sT1}, v8
    s_lshl_b32 s{sT0}, s{sW}, 5
    v_lshl_add_u32 v9, v{vE+3}, 3, s{sT0}
    v_lshrrev_b32 v{vE+8}, 1, v{vE+3}
    v_lshl_add_u32 v{vE+8}, v{vE+8}, 4, v{vE+2}
    v_and_b32 v{vE+9}, 1, v{vE+3}
    v_lshl_add_u32 v{vE+8}, v{vE+8}, 1, v{vE+9}
    v_lshlrev_b32 v3, 3, v{vE+8}
    v_lshlrev_b32 v5, 4, v{vE+3}
    v_lshl_add_u32 v12, v{vE+2}, 6, v5
    v_lshl_add_u32 v5, v{vE+2}, 26, v5
    v_lshrrev_b32 v{vE+8}, 1, v{vE+2}
    v_lshlrev_b32 v{vE+9}, 2, v{vE+9}
    v_xor_b32 v{vE+8}, v{vE+8}, v{vE+9}
    v_and_b32 v{vE+9}, 1, v{vE+2}
    v_lshlrev_b32 v{vE+9}, 4, v{vE+9}
    v_mov_b32 v{vE+10}, 0x3f80
    v_lshlrev_b32 v{vE+10}, v{vE+9}, v{vE+10}
    ''')
    for r in range(4): k(f'v_cmp_eq_u32 vcc, {r}, v{vE+8}\nv_cndmask_b32 v{SEL+r}, 0, v{vE+10}, vcc')
xw_addr('0', f's{sT0}')
wtouch()
consts('A', C0_0)
for i in range(4): k(f'v_mov_b32 v{CI0+i}, s{sEPS}')
ONES = vWF + 4
for i in range(4): k(f'v_mov_b32 v{ONES+i}, 0x3f803f80')
pass1('A')
PK, VV = vAC2, vAC2 + 16
KVA, ZA = vWF + 8, vWF + 12
V = phi(vAW, PK, vE, C0_0, 0)
V += [f'v_cvt_pk_bf16_f32 v{VV+i}, v{vAW+32+2*i}, v{vAW+32+2*i+1}' for i in range(16)]
V += [mf(KVA, PK, VV, '0'), mf(ZA, PK, ONES, '0'), mf(KVA, PK+4, VV+4), mf(ZA, PK+4, ONES)]
V += phi(vAW + 16, PK + 8, vE, C0_0, 0)
V += [mf(KVA, PK+8, VV+8), mf(ZA, PK+8, ONES), mf(KVA, PK+12, VV+12), mf(ZA, PK+12, ONES)]
V += [f'v_cvt_pk_bf16_f32 v{vE+i}, v{KVA+2*i}, v{KVA+2*i+1}' for i in range(4)]
if not cfg.kv2:
    V += [f'v_cndmask_b32_e64 v{vE+2}, v{vE+2}, v{vE+3}, {sr(sH+1,2)}', f'v_mov_b32 v{vE+3}, s{sN}', st4(vE, sH, 0)]
    KB = vAC2
    kt = [f'buffer_load_dwordx4 {vr(KB+4*r,4)}, v{vL16}, {sr(S_WS,4)}, s{sH + r//4} offen offset:{1024*(r%4)} sc1' for r in range(16)]
    V += [f's_and_b32 s{sH}, s{sH}, 0xffffc000', f's_add_u32 s{sH+1}, s{sH}, 4096', f's_add_u32 s{sH+2}, s{sH}, 8192', f's_add_u32 s{sH+3}, s{sH}, 12288']
ROR = lambda op, r, n: f'{op}_dpp v{r}, v{r}, v{r} row_ror:{n} row_mask:0xf bank_mask:0xf'
if cfg.kv2:
    V += [f'v_add_u32 v{vE+4}, v{vE}, v{vE+1}', f'buffer_store_dwordx2 {vr(vE,2)}, v3, {sr(S_WS,4)}, s{sH} offen sc1']
    V += [ROR('v_add_u32', vE + 4, n) for n in (8, 4, 2, 1)]
    V += [f'v_add3_u32 v{vE+4}, v{vE+4}, v{vE+2}, v{vE+3}', f'v_sub_u32 v{vE+4}, s{sN}, v{vE+4}',
          f'buffer_store_dwordx3 {vr(vE+2,3)}, v5, {sr(S_WS,4)}, s{sH+1} offen sc1']
    KB = vAC2
    kt = [f'buffer_load_dwordx3 {vr(SD,3)}, v12, {sr(S_WS,4)}, s{sH+1} offen sc1']
    kt += [f'buffer_load_dwordx4 {vr(KB+4*r,4)}, v{vL16}, {sr(S_WS,4)}, s{sH + 2*(r//4)} offen offset:{1024*(r%4)} sc1' for r in range(8)]
    V += [f's_and_b32 s{sH}, s{sH}, 0xffffe000', f's_add_u32 s{sH+2}, s{sH}, 4096', f's_and_b32 s{sH+1}, s{sH+1}, 0xfffffc00', f's_lshl_b32 s{sH+3}, s{sN}, 6']
if cfg.kve: assert len(V) <= 3*cfg.nva - 40
V = pass2(V, cfg.nva, kt if cfg.kve else [])
for v in V: k(v)
if not cfg.kve:
    for t in kt: k(t)
stamp('e1')
for f in fill(cfg.e0a, W1, W2): f()
stamp('e2')
if not cfg.kv2:
    k(f's_lshl_b32 s{sT5}, s{sN}, 4\ns_mov_b32 s{sSEL0}, 0x00003f80\ns_mov_b32 s{sSEL1}, 0x3f800000')
    checked(kt, [KB + 4*r + 3 for r in range(16)], vE, sT5)
    stamp('e3')
    SUM = vE
    V = []
    for r in range(16):
        for j in range(3):
            for h in range(2):
                d = SUM + 6*(r & 1) + 2*j + h
                V.append(f'v_dot2_f32_bf16 v{d}, v{KB+4*r+j}, s{sSEL0+h}, {"0" if r < 2 else "v%d" % d}')
    for i in range(0, 6, 2): V.append(f'v_pk_add_f32 {vr(SUM+i,2)}, {vr(SUM+i,2)}, {vr(SUM+6+i,2)}')
    for i in range(3): V.append(f'v_cvt_pk_bf16_f32 v{vE+12+i}, v{SUM+2*i}, v{SUM+2*i+1}')
    weave(V, [f for r in range(cfg.e0a, max(cfg.e0a, cfg.e0b)) for f in loadA(r)])
    k(f'ds_write_b64 v8, {vr(vE+12,2)} offset:{L_KV}')
    k(f'ds_write_b32 v9, v{vE+14} offset:{L_KV + 2048}')
else:
    k.label('L_kvc')
    k('s_nop 1')
    Z, T, D = vE, vE + 4, vE + 8
    V = unpack4(Z, SD) + [f'v_add3_u32 v{T}, v{SD}, v{SD+1}, v{SD+2}']
    V += [ROR('v_add_f32', Z + i, n) for n in (8, 4, 2, 1) for i in range(4)]
    V += [f'v_cvt_pk_bf16_f32 v{Z+i}, v{Z+2*i}, v{Z+2*i+1}' for i in range(2)] + [f'ds_write_b64 v9, {vr(Z,2)} offset:{L_KV + 2048}']
    V += stx('e3')
    for r in range(8):
        V += [mf(D, SEL, KB + 4*r, '0' if r == 0 else None), f'v_add3_u32 v{T}, v{T}, v{KB+4*r}, v{KB+4*r+1}']
        V += [f'v_add3_u32 v{T+1}, v{T+1}, v{KB+4*r+2}, v{KB+4*r+3}' if r else f'v_add_u32 v{T+1}, v{KB+2}, v{KB+3}']
    for v in V: k(v)
    V = [f'v_add_u32 v{T}, v{T}, v{T+1}'] + [ROR('v_add_u32', T, n) for n in (8, 4, 2, 1)]
    V.insert(3, f'v_cvt_pk_bf16_f32 v{D}, v{D}, v{D+1}'); V.insert(5, f'v_cvt_pk_bf16_f32 v{D+1}, v{D+2}, v{D+3}')
    V += [f'v_mov_b32 v{T+1}, v{T}', f'ds_write_b64 v8, {vr(D,2)} offset:{L_KV}', f'v_permlane16_swap_b32 v{T}, v{T+1}', f'v_add_u32 v{T}, v{T}, v{T+1}',
          f'v_mov_b32 v{T+1}, v{T}', f'v_permlane32_swap_b32 v{T}, v{T+1}', f'v_add_u32 v{T}, v{T}, v{T+1}', f'v_cmp_ne_u32 vcc, s{sH+3}, v{T}']
    weave(V, [f for r in range(cfg.e0a, max(cfg.e0a, cfg.e0b)) for f in loadA(r)] if cfg.kv2 == 1 else [])
    if not cfg.nocheck: k('s_cbranch_vccnz L_kvs')
    k.label('L_kvd')
    s_ = Kern()
    s_.label('L_kvs')
    s_(f's_sub_u32 s{sSPIN}, s{sSPIN}, 1\ns_cbranch_scc1 L_kvg\ns_nop 7\ns_nop 3')
    for t in kt: s_(t)
    s_('s_waitcnt vmcnt(0) lgkmcnt(0)\ns_branch L_kvc')
    s_.label('L_kvg')
    s_(f's_mov_b32 s{sSPIN}, 0\ns_branch L_kvd')
    slow.append(s_.text())
k.wait_lg_all()
stamp('e4')
k('s_barrier')
if cfg.kv2 == 2:
    for r in range(cfg.e0a, max(cfg.e0a, cfg.e0b)):
        for f in loadA(r): f()
k('s_branch L_P2_0')
vmA = [dict(x) for x in k.vm]

k.label('L_G0B')
k.restore(snap0); nst[0] = nst0; tokQ.clear()
k(f'''
s_and_b32 s{sT2}, s{sW}, 1
s_lshl_b32 s{sT2}, s{sT2}, 6
s_mul_i32 s{sT0}, s{sGRP}, 384
s_add_u32 s{sT0}, s{sT0}, s{sT2}
v_lshrrev_b32 v{vE+5}, 4, v{vLANE}
v_lshlrev_b32 v{vE+5}, 3, v{vE+5}
''')
srd_tail(S_B1, 2752)
for w in range(4):
    k(f'buffer_load_dwordx2 {vr(CI0 + 4*w, 2)}, v{vE+5}, {sr(S_B1,4)}, s{sT0} offen offset:{128*(w >> 1) + 32*(w & 1)}')
if cfg.wts == 5: stouch(1)
if cfg.lb:
    common_setup(0)
    k(f's_and_b32 s{sT2}, s{sW}, 1\ns_lshl_b32 s{sT2}, s{sT2}, 6')
k(f'''
s_mul_i32 s{sT0}, s{sGRP}, {3*UNT}
s_and_b32 s{sT1}, s{sW}, 2
s_lshl2_add_u32 s{sT1}, s{sRB}, s{sT1}
''')
ck_off(sT3, sT1)
k(f'''
s_mul_i32 s{sT4}, s{sT2}, {1792//64}
s_sub_u32 s{sT3}, s{sT3}, s{sT4}
v_lshl_add_u32 v{vL4}, v{vLANE}, 2, s{sT3}
v_subrev_u32 v5, {RTS - 512}, v{vL4}
s_mul_i32 s{sT1}, s{sT1}, {RTS}
s_add_u32 s{sT1}, s{sT1}, s{sT0}
s_mul_i32 s{sT3}, s{sT2}, {STP//64}
s_add_u32 s{sH}, s{sT1}, s{sT3}
s_add_u32 s{sH+1}, s{sH}, {RTS}
s_add_u32 s{sH+2}, s{sH}, {UNT}
s_add_u32 s{sH+3}, s{sH+1}, {UNT}
s_cmp_eq_u32 s{sB7}, 1
s_cselect_b32 s{sH+2}, {hex(OOB)}, s{sH+2}
s_cselect_b32 s{sH+3}, {hex(OOB)}, s{sH+3}
''')
k(f's_and_b32 s{sT1}, s{sW}, 2\ns_lshl_b32 s{sT1}, s{sT1}, 12')
xw_addr(f's{sT1}', f's{sT2}')
k(f'v_xor_b32 v{vWA+1}, 32, v{vWA}')
wtouch()
consts('B', C0_0)
for w in range(4):
    for t in unpack4(CI0 + 4*w, CI0 + 4*w): k(t)
pass1('B')
def btile(i, pk):
    o = vAC2 + 8*i
    S = strec(o, sH + i, 0, vWF + 2*i, 5 if i & 1 else vL4)
    if cfg.pst >= 0: S = [f's_setprio {cfg.pst}'] + S + [f's_setprio {cfg.prio2}']
    return gelu(vAW + 16*((i + 3) % 4), o, vE, C0_0, pk) + S
ntile = min(4, -(-(4*cfg.nvb - 16) // 128)) if not cfg.nv0 else 4
V = []
for i in range(ntile): V += btile(i, cfg.gpk if i or cfg.gpk0 < 0 else cfg.gpk0)
if cfg.e0p:
    assert ntile == 4
    pos = len(V) - 8 - cfg.e0q
    E = early(cfg.e0p)
    step = max(1, cfg.e0q // len(E))
    for i, f in enumerate(E): V.insert(pos + i * (step + 1), f)
V = pass2(V, cfg.nvb)
if cfg.e0p:
    for v in V: emit(v)
    V = []
V = stx('e1') + V + stx('e2')
for i in range(ntile, 4): V += btile(i, cfg.pk) + stx(f'e{i+1}')
weave_int(V, fill(cfg.e0b, W1, W2)[3*cfg.e0p:], cfg.gint, cfg.f0)
for r in range(cfg.e0b, max(cfg.e0a, cfg.e0b)):
    for f in loadA(r): f()
phase2(0, vmA, max(cfg.e0a, cfg.e0b), W2)
k.label('L_fin')
k('s_nop 1')

if cfg.stamps:
    stamp('sto')
    k('s_waitcnt vmcnt(0)')
    stamp('end')
    k(f'''
    s_waitcnt lgkmcnt(0)
    s_cmp_lg_u32 s{sW}, 0
    s_cbranch_scc1 L_end
    ''')
    if cfg.probe >= 0:
        k(f's_cmp_lg_u32 s{sGI}, {cfg.pgrp}\ns_cbranch_scc1 L_end')
        if cfg.ptype >= 0:
            k(f's_cmp_lg_u32 s{sTYPE}, {cfg.ptype}\ns_cbranch_scc1 L_end')
        k(f'''
        s_sub_u32 s{sT0}, s{STREG[cfg.probe]}, s{STREG[0]}
        s_lshl_b32 s{sT0}, s{sT0}, 2
        s_add_u32 s{sT0}, s{sT0}, 5000
        L_probe:
        s_memrealtime s[72:73]
        s_waitcnt lgkmcnt(0)
        s_sub_u32 s{sT1}, s72, s{STREG[0]}
        s_cmp_lt_u32 s{sT1}, s{sT0}
        s_cbranch_scc1 L_probe
        s_branch L_end
        ''')
    k(f'''
    s_mov_b64 exec, 1
    s_lshl1_add_u32 s{sT0}, s2, s{sGI}
    s_mul_i32 s{sT0}, s{sT0}, {8*(nst[0]+1)}
    s_add_u32 s{sT0}, s{sT0}, {STAMP_OFF}
    ''')
    for s in range(nst[0]):
        k(f'v_mov_b32 v4, s{STREG[s]}\nv_mov_b32 v5, s{STREG[s]+1}\nbuffer_store_dwordx2 v[4:5], off, {sr(S_WS,4)}, s{sT0} offset:{8*s}\ns_nop 1')
    k(f'''
    s_sub_u32 s{sT1}, 0x4000, s{sSPIN}
    s_mul_i32 s{sT1}, s{sT1}, 100
    s_add_u32 s{sT1}, s{sT1}, s{STREG[0]}
    s_addc_u32 s{sT2}, s{STREG[0]+1}, 0
    v_mov_b32 v4, s{sT1}
    v_mov_b32 v5, s{sT2}
    buffer_store_dwordx2 v[4:5], off, {sr(S_WS,4)}, s{sT0} offset:{8*nst[0]}
    ''')
k.label('L_end')
k('s_endpgm')

hdr = open('gated_mix__linear_attn_block__dense_activation_gelu__prompt.s.ref').read().split('; @launch')[0]
text = hdr + f'''; @launch grid=(256,1,1) block=(512,1,1) lds={LDS_BYTES}
.amdgcn_target "amdgcn-amd-amdhsa--gfx950"
.text
.globl {KNAME}
.p2align 8
.type {KNAME},@function
{KNAME}:
{k.text()}
{"".join(slow)}
.section .rodata,"a"
.p2align 6
.amdhsa_kernel {KNAME}
  .amdhsa_next_free_vgpr 256
  .amdhsa_next_free_sgpr 102
  .amdhsa_accum_offset 256
  .amdhsa_group_segment_fixed_size 0
  .amdhsa_kernarg_size 96
  .amdhsa_user_sgpr_count 2
  .amdhsa_user_sgpr_kernarg_segment_ptr 1
  .amdhsa_system_sgpr_workgroup_id_x 1
.end_amdhsa_kernel
'''
open(sys.argv[1], 'w').write(text)
print('instructions', k.ninstr, 'nops', k.nnop, 'stamps', nst[0])
```

```python
import sys, struct
from kern import *

KNAME = 'gated_mix__linear_attn_block__dense_activation_gelu__prompt_kernel'
def f32(x): return '0x%08x' % struct.unpack('<I', struct.pack('<f', x))[0]

class Cfg:
    stamps = 0
    xg = 0
    wf = 0
    xf = 0
    pf = 0
    nb1 = 0
    kk = 0
    xb = 0
    xbm = 8
    cp = 0
    cpm = 7
    lf = 0
    ce = 0
    aw3 = 0
    a3r = 9
    a3g = 3
    df = 0
    dfb = 4
    dw = 1
    xs = 0
    xw0 = 6
    xw1 = 6
    xd = 0
    xp1 = 0
    xi1 = 4
    z2 = 9
    z21 = -1
    xm = 9
    xrd = 3
    t0 = 99
    t4 = 99
    t7 = 99
    t7a = 99
    t11 = 99
    t11a = 99
    th = 1
    zx = 0
    aw1st = 0
    tl = -1
    tlm = 7
    pad = 0
    q7 = 8
    q8 = 8
    xo7 = 0
    u3p = 0
    gpk = 0
    gpk0 = -1
    nv0 = 0
    pst = -1
    pmv = -1
    aw1 = -1
    l8 = 0
    clk = 0
    rot = 7
    wrot = 3
    wtouch = 1
    wtd = -1
    wtd2 = 0
    kv2 = 0
    aw2 = 0
    amax = 9
    z1 = -1
    sq = 0
    sql = 0
    c3o = 0
    e1l = 0
    e1la = 0
    e0p = 0
    e0q = 30
    nog0 = 0
    nox = 0
    sp2 = 0
    tx = 0
    c3 = 0
    gx = 0
    wn1 = 7
    lb = 1
    ka = 1
    sp1 = 0
    so = 1
    rmul = 1
    rx = 0
    wts = 0
    wsp = 1
    d0 = 2
    nvb = 95
    nva = 95
    gint = 12
    prio = 1
    probe = -1
    pgrp = 0
    ptype = -1
    nocheck = 0
    prio2 = 0
    pk = 1
    ord0 = 8
    ord1 = 6
    lrd0 = 3
    lrd1 = 1
    e0a = 4
    e0b = 4
    e1a = 4
    e1b = 4
    z0 = 4
    q0 = 10
    g4 = 2
    dper = 1
    gint1 = 8
    xo = 2
    q9 = 2
    q10 = 2
    q11 = 0
    wa1 = 0
    we0 = 0
    pe0 = 0
    pe1 = 2
    pp0 = 0
    pp1 = 0
    f0 = 0
    f1 = 0
    afirst = 1
    kve = 0
    slp = 0
    cm = 0
    nomv = 0
    nost = 0
    mvb = 0
    m32 = 0
    m32p = 0
    prg1 = 1
    whit = 0
    u3hit = 0
    aoob = 0
    mp = 0
    ssc = 1
    xr = 1
    asc = 1
    awin = 4
cfg = Cfg()
for a in sys.argv[2:]:
    k_, v_ = a.split('='); setattr(cfg, k_, int(v_))

STP, UNT = 2048, 4096
RTS = 30 * UNT
WS_CB = 64 * RTS
OOBU = 0x7f200000
WS_KVP = 0x880000
WS_G = WS_KVP + 512 * 1024
WS_EP = WS_G + 16384
WS_END = WS_EP + 128
STAMP_OFF = 0x8000000
WS_SIZE = 0x10000000
OOB = 0x7f000000
LDS_BYTES = 163840
L_KV = 2*16384 + 12288
L_RED = 5 * 16384

S_X, S_W, S_B1, S_GW, S_WS, S_DBG, S_W2, S_WO, S_OUT, S_B2 = 8, 12, 16, 20, 24, 28, 32, 36, 40, 44
sWAVE, sW, sRB, sGRP, sTYPE, sROT, sSTP, sW4K, sW2K, sSLAB, sCT, sB7, sSPIN, sN, sN2 = range(48, 63)
sEPS = 63
sC1 = 64
sT0, sT1, sT2, sT3, sT4, sT5 = range(66, 72)
sU = 72
sH = 87
sM21 = 91
sGO = 93
sCK = 88
sSEL0, sSEL1 = 64, 65
sN10 = 23
STREG = [94, 96, 98, 100, 4, 6, 44, 46]
sGI = 3

vLANE, vL16 = 1, 2
vDX, vDW = 3, 7
vDP = 13
vXR = 15
vWA = 17
vP2 = 21
vA = 25
vB2 = 28
vL4 = 12
vWR = 32
vAW = 112
vCS = 160
vAC2 = 176
vWF = 208
vE = 240
vDUM = 0

k = Kern()
slow = []
nst = [0]
SETS = {1: ['st', 'B0', 'B8', 'B12', 'P2', 'r2', 'r11', 'end'],
        2: ['st', 'B0', 'B1', 'B2', 'B3', 'B4', 'B5', 'B6'],
        3: ['st', 'B6', 'B7', 'B8', 'B9', 'B10', 'B11', 'B12'],
        4: ['st', 'P2', 'r0', 'r2', 'r4', 'r6', 'r8', 'r10'],
        5: ['st', 'r10', 'r11', 'r13', 'mm', 'red', 'sto', 'end'],
        6: ['st', 'B12', 'e1', 'e2', 'e3', 'e4', 'P2', 'r0'],
        7: ['st', 'ka', 'i0', 'i1', 'f0', 'f1', 'B0', 'B1'],
        8: ['st', 'P2', 'z1', 'r5', 'r7', 'r9', 'r11', 'end'],
        10: ['st', 'P2', 'p1', 'p2', 'p3', 'z1', 'p4', 'r4'],
        9: ['st', 'P2', 'x0', 'r1', 'z1', 'r3', 'r4', 'r6']}
def stx(name):
    if cfg.stamps and name in SETS[cfg.stamps]:
        return [f'{"s_memtime" if cfg.clk else "s_memrealtime"} {sr(STREG[SETS[cfg.stamps].index(name)], 2)}']
    return []
def stamp(name):
    if cfg.stamps and name in SETS[cfg.stamps]:
        k(f'{"s_memtime" if cfg.clk else "s_memrealtime"} {sr(STREG[SETS[cfg.stamps].index(name)], 2)}')
    nst[0] = 8

def side(label, cond):
    k(cond + f'\ns_cbranch_scc1 {label}')
    snap = k.snapshot(); k.track = False
    def end():
        k('s_nop 7')
        k.out.append(label + ':'); k.restore(snap); k.track = True
    return end

def mf(d, a, b, c=None):
    return f'v_mfma_f32_16x16x32_bf16 {vr(d,4)}, {vr(a,4)}, {vr(b,4)}, {vr(d,4) if c is None else c}'

def wait_regs(regs):
    regs = {('v', r) for r in regs}
    l = None
    for i, op in enumerate(k.lg):
        if op['wr'] & regs: l = len(k.lg) - 1 - i
    if l is not None:
        if k.smem_pending: l = 0
        k.waitcnt(lgkm=l)

def emit(x):
    return x() if callable(x) else k(x)
def weave(V, F):
    n = len(V); j = 0
    if n == 0:
        for f in F: emit(f)
        return
    for i, v in enumerate(V):
        tgt = ((i + 1) * len(F) + n - 1) // n
        while j < tgt: emit(F[j]); j += 1
        emit(v)
def weave_int(V, F, step, front=0):
    F = list(F)
    use = [set(Ins(v).rd) | set(Ins(v).wr) for v in V]
    last = -step
    while front and F and not any(getattr(F[0], 'regs', set()) & u for u in use):
        emit(F.pop(0)); front -= 1; last = 0
    for i, v in enumerate(V):
        if F and i - last >= step and not any(getattr(F[0], 'regs', set()) & u for u in use[i:]):
            emit(F.pop(0)); last = i
        emit(v)
    for f in F: emit(f)

def merge_vm(*paths):
    order, cnt, ent = [], {}, {}
    for vm in sorted(paths, key=lambda v: -sum(1 for o in v if o.get('key') or o['wr'])):
        ks = []
        for i, o in enumerate(vm):
            key = o.get('key') or (o['text'] if o['wr'] else None)
            if key is None: continue
            ks.append(key); ent[key] = o
            cnt[key] = min(cnt.get(key, 99), len(vm) - 1 - i)
        if not order: order = ks
        else: assert order[len(order) - len(ks):] == ks, (order, ks)
    out = []
    for key in reversed(order):
        assert cnt[key] >= len(out)
        while len(out) < cnt[key]: out.insert(0, {'id': -1, 'wr': set(), 'text': '', 'redo': False})
        out.insert(0, dict(ent[key]))
    return out
def wait_key(key):
    for i, o in enumerate(k.vm):
        if o.get('key') == key:
            k.waitcnt(vm=len(k.vm) - 1 - i); return

uid = [0]
def addchain(kk, t, r):
    r = list(r)
    if len(r) == 2:
        kk(f'v_add_u32 v{t}, v{r[0]}, v{r[1]}'); return
    if len(r) <= 9:
        parts = [r[:3] + r[6:], r[3:6]]
    else:
        h = (len(r) // 2) | 1
        parts = [r[:h], r[h:]]
    first = [True, True]
    tail = []
    while parts[0] or parts[1]:
        for c in range(2):
            q = parts[c]
            if not q: continue
            if first[c]:
                parts[c] = q[3:]; first[c] = False
                kk(f'v_add3_u32 v{t+c}, v{q[0]}, v{q[1]}, v{q[2]}')
            elif len(q) >= 2:
                parts[c] = q[2:]
                kk(f'v_add3_u32 v{t+c}, v{t+c}, v{q[0]}, v{q[1]}')
            else:
                parts[c] = []; tail.append(q[0])
    if len(tail) == 2:
        kk(f'v_add3_u32 v{t}, v{t}, v{tail[0]}, v{tail[1]}'); tail = []
    if tail: kk(f'v_add3_u32 v{t}, v{t}, v{t+1}, v{tail[0]}')
    else: kk(f'v_add_u32 v{t}, v{t}, v{t+1}')
def checked(texts, regs, T, expect, defer=False):
    uid[0] += 1; u = uid[0]
    def check(kk):
        if expect is None:
            kk(f'v_cmp_eq_u32 vcc, 0, v{regs[0]}')
            return
        addchain(kk, T, regs)
        kk(f'v_cmp_ne_u32 vcc, s{expect}, v{T}')
    if cfg.nocheck and expect is not None: return []
    def fin():
        k(f's_cbranch_vccnz L_slow{u}')
        k.label(f'L_back{u}')
        vm = [dict(x) for x in k.vm]
        while vm and not vm[0]['redo']: vm.pop(0)
        s = Kern()
        s.label(f'L_slow{u}')
        s(f's_sub_u32 s{sSPIN}, s{sSPIN}, 1\ns_cbranch_scc1 L_give{u}\ns_nop 7\ns_nop 3')
        if cfg.slp: s(f's_sleep {cfg.slp}')
        for t in texts: s(t)
        s('s_waitcnt vmcnt(0)')
        check(s)
        s(f's_cbranch_vccnz L_slow{u}')
        for op in vm:
            s(op['text'] if op['redo'] else f'buffer_load_dword v{vDUM}, off, {sr(S_DBG,4)}, 0 offset:4080')
            s.vm = []
        s(f's_branch L_back{u}')
        s.label(f'L_give{u}')
        s(f's_mov_b32 s{sSPIN}, 0\ns_waitcnt vmcnt(0)\ns_branch L_back{u}')
        slow.append(s.text())
    L = []
    check(L.append)
    L.append(fin)
    if defer: return L
    for x in L: emit(x)

def srd_tail(base, size):
    k(f's_mov_b32 s{base+2}, {size}\ns_mov_b32 s{base+3}, 0x20000')

MAP = f'''s_lshr_b32 s{sT2}, s2, 5
v_readfirstlane_b32 s{sWAVE}, v{vE}
s_and_b32 s{sT1}, s2, 1
s_lshl3_add_u32 s{sRB}, s{sT1}, s{sT2}
s_bfe_u32 s{sT1}, s2, 0x20003
s_lshl1_add_u32 s{sROT}, s{sT1}, s{sT2}
s_and_b32 s{sROT}, s{sROT}, {cfg.rot}
s_mul_i32 s{sROT}, s{sROT}, {cfg.rmul}
s_mul_i32 s{sT1}, s2, {cfg.rx}
s_add_u32 s{sROT}, s{sROT}, s{sT1}
s_and_b32 s{sROT}, s{sROT}, 7
s_and_b32 s{sT1}, s2, 6
s_xor_b32 s{sT1}, s{sT1}, {cfg.gx}
s_bfe_u32 s{sT2}, s2, 0x10004
s_add_u32 s{sGRP}, s{sT1}, s{sT2}
s_and_b32 s{sT1}, s2, 0x1e
s_cmp_eq_u32 s{sT1}, {0x1e ^ cfg.gx}
s_cselect_b32 s{sB7}, 1, 0''' if not cfg.mp else f'''s_lshr_b32 s{sT2}, s2, 7
v_readfirstlane_b32 s{sWAVE}, v{vE}
s_and_b32 s{sT1}, s2, 7
s_lshl1_add_u32 s{sRB}, s{sT1}, s{sT2}
s_bfe_u32 s{sGRP}, s2, 0x30004
s_lshl2_add_u32 s{sROT}, s{sT2}, s{sGRP}
s_mul_i32 s{sT1}, s{sT1}, {cfg.xr}
s_add_u32 s{sROT}, s{sROT}, s{sT1}
s_and_b32 s{sROT}, s{sROT}, {cfg.rot}
s_and_b32 s{sT1}, s2, 0x78
s_cmp_eq_u32 s{sT1}, 0x78
s_cselect_b32 s{sB7}, 1, 0'''
KA2 = f'''s_load_dwordx2 {sr(S_B1,2)}, s[0:1], 40
s_load_dwordx2 {sr(S_GW,2)}, s[0:1], 64
s_load_dwordx2 {sr(S_W2,2)}, s[0:1], 48
s_load_dwordx2 {sr(S_WO,2)}, s[0:1], 16
s_load_dwordx2 {sr(S_B2,2)}, s[0:1], 56
s_load_dwordx2 {sr(S_OUT,2)}, s[0:1], 72
'''
stamp('st')
k(f'''
s_cmp_ge_u32 s2, 256
s_cbranch_scc1 L_end
s_load_dwordx2 {sr(S_X,2)}, s[0:1], 0
s_bfe_u32 s{sTYPE}, s2, 0x10003
s_mul_i32 s{sT0}, s{sTYPE}, 24
s_add_u32 s{sT0}, s{sT0}, 8
s_load_dwordx2 {sr(S_W,2)}, s[0:1], s{sT0}
s_load_dwordx2 {sr(S_WS,2)}, s[0:1], 88
s_load_dwordx2 {sr(S_DBG,2)}, s[0:1], 80
{'' if cfg.ka else KA2}
v_lshrrev_b32 v{vE}, 6, v0
v_and_b32 v{vLANE}, 63, v0
{MAP}
s_and_b32 s{sW}, s{sWAVE}, 3
s_lshl_b32 s{sW4K}, s{sW}, 12
s_lshl_b32 s{sW2K}, s{sW}, 11
v_lshlrev_b32 v{vL16}, 4, v{vLANE}
v_lshrrev_b32 v{vE}, 3, v{vLANE}
v_and_b32 v{vE+1}, 7, v{vLANE}
s_mov_b32 s{S_WS+2}, {hex(WS_SIZE) if cfg.stamps else hex(WS_END)}
s_mov_b32 s{S_WS+3}, 0x20000
s_mov_b32 s{S_DBG+2}, 256
s_mov_b32 s{S_DBG+3}, 0x20000
s_cmp_lt_u32 s{sWAVE}, 4
s_cbranch_scc1 L_G0
''')
snapE = k.snapshot(); nstE = nst[0]

CMAP = f'''s_lshr_b32 s{sT1}, s2, 6
    s_lshl2_add_u32 s{sSLAB}, s{sT0}, s{sT1}
    s_bfe_u32 s{sCT}, s2, 0x30003
    s_add_u32 s{sT1}, s{sT1}, s{sCT}''' if not cfg.cm else f'''s_bfe_u32 s{sCT}, s2, 0x30004
    s_xor_b32 s{sT1}, s{sCT}, s{sTYPE}
    s_and_b32 s{sT1}, s{sT1}, 1
    s_lshr_b32 s{sT2}, s2, 7
    s_lshl1_add_u32 s{sT1}, s{sT2}, s{sT1}
    s_lshl2_add_u32 s{sSLAB}, s{sT0}, s{sT1}
    s_lshr_b32 s{sT1}, s{sCT}, 1
    s_lshl1_add_u32 s{sT1}, s{sT2}, s{sT1}
    {"s_add_u32 s%d, s%d, s%d" % (sT1, sT1, sTYPE) if cfg.cm == 2 else ""}'''
LB2 = f'''buffer_load_dwordx2 {vr(vB2+2,2)}, v{vB2}, {sr(S_B2,4)}, 0 offen offset:32
buffer_load_dwordx2 {vr(vB2,2)}, v{vB2}, {sr(S_B2,4)}, 0 offen'''
def common_setup(grp):
    srd_tail(S_B1, 2752); srd_tail(S_W2, 1376*1024); srd_tail(S_WO, 512*1024)
    srd_tail(S_B2, 1024); srd_tail(S_OUT, 2048*1024)
    k(f'''
    s_and_b32 s{sT0}, s2, 7
    {CMAP}
    s_and_b32 s{sT1}, s{sT1}, {cfg.wrot}
    s_lshr_b32 s{sT3}, s{sW}, 1
    s_lshl1_add_u32 s{sT1}, s{sT1}, s{sT3}
    s_lshl_b32 s{sU+11}, s{sT1}, 12
    s_cmp_eq_u32 s{sT1}, 7
    s_cselect_b32 s{sT1}, 0, s{sT1}
    s_mul_i32 s{sU}, s{sT1}, 12288
    v_and_b32 v{vE+2}, 6, v{vE}
    v_xor_b32 v{vE+2}, v{vE+2}, v{vE+1}
    v_lshlrev_b32 v{vE+2}, 4, v{vE+2}
    v_lshl_add_u32 v{vDP}, v{vE}, 10, v{vE+2}
    s_lshl_b32 s{sT0}, s{sCT}, 7
    s_and_b32 s{sT2}, s{sW}, 1
    s_lshl_b32 s{sT2}, s{sT2}, 15
    s_add_u32 s{sT2}, s{sT2}, s{sT0}
    v_add_u32 v{vDP}, s{sT2}, v{vDP}
    v_add_u32 v{vDP+1}, 0x2000, v{vDP}
    v_and_b32 v{vE+2}, 15, v{vLANE}
    v_lshrrev_b32 v{vE+3}, 4, v{vLANE}
    v_lshlrev_b32 v{vE+5}, 3, v{vE+3}
    s_and_b32 s{sT2}, s{sW}, 2
    s_lshl_b32 s{sT2}, s{sT2}, 5
    s_add_u32 s{sT0}, s{sT0}, s{sT2}
    v_add_u32 v{vB2}, s{sT0}, v{vE+5}
    {'' if cfg.lb else LB2}
    v_bfe_u32 v{vE+4}, v{vLANE}, 1, 1
    v_and_b32 v{vE+5}, 3, v{vE}
    v_lshl_add_u32 v{vE+4}, v{vE+5}, 1, v{vE+4}
    v_lshlrev_b32 v{vE+4}, 4, v{vE+4}
    v_and_b32 v{vE+5}, 1, v{vLANE}
    v_lshl_add_u32 v{vE+4}, v{vE+5}, 3, v{vE+4}
    v_lshrrev_b32 v{vE+5}, 2, v{vLANE}
    v_lshl_add_u32 v{vE+5}, v{vE+5}, 7, v{vE+4}
    v_add_u32 v{vE+5}, s{sW4K}, v{vE+5}
    v_xor_b32 v{vP2}, s{sT2}, v{vE+5}
    v_xor_b32 v{vP2+1}, 32, v{vP2}
    v_xor_b32 v{vP2+2}, 64, v{vP2}
    v_xor_b32 v{vP2+3}, 0x60, v{vP2}
    s_lshl1_add_u32 s{sT4}, s{sSLAB}, {grp}
    s_mul_i32 s{sT0}, s{sT4}, {RTS}
    s_and_b32 s{sT1}, s{sW}, 1
    s_lshl_b32 s{sT2}, s{sT1}, 11
    s_add_u32 s{sT0}, s{sT0}, s{sT2}
    s_lshl_b32 s{sT2}, s{sT1}, 10
    v_xor_b32 v{vA}, s{sT2}, v{vL16}
    v_xor_b32 v{vA+1}, 0x400, v{vA}
    v_add_u32 v{vA}, s{sT0}, v{vA}
    v_add_u32 v{vA+1}, s{sT0}, v{vA+1}
    s_lshr_b32 s{sT0}, s{sT4}, 3
    s_mul_i32 s{sT0}, s{sT0}, {RTS}
    s_and_b32 s{sT4}, s{sT4}, 7
    s_lshl1_add_u32 s{sT4}, s{sT4}, s{sT1}
    s_lshl_b32 s{sT4}, s{sT4}, 8
    s_add_u32 s{sT0}, s{sT0}, s{sT4}
    s_add_u32 s{sT0}, s{sT0}, {WS_CB}
    v_lshl_add_u32 v{vA+2}, v{vLANE}, 2, s{sT0}
    s_mov_b32 s{sSPIN}, 0x4000
    s_cmp_lt_u32 s{sW}, 3
    s_cselect_b32 s{sM21}, s{sW4K}, 15360
    s_cselect_b32 s{sM21+1}, 1024, 0
    s_mov_b32 s{sGI}, {grp}
    ''')
    for i in range(1, 11):
        k(f's_add_u32 s{sU+i}, s{sU+i-1}, 24576\ns_sub_u32 s{sT0}, s{sU+i}, {7*12288}\ns_cselect_b32 s{sU+i}, s{sU+i}, s{sT0}')
    for i in range(12, 15):
        k(f's_add_u32 s{sU+i}, s{sU+i-1}, 8192\ns_and_b32 s{sU+i}, s{sU+i}, 0x7fff')
    k(f's_lshl_b32 s{sT3}, s{sT3}, 12\ns_add_u32 s{sU+3}, s{sU+3}, s{sT3}')
    for i in range(4, 11): k(f's_add_u32 s{sU+i}, s{sU+i}, {4096 if i < 7 else 8192}')
    for i in range(11, 15): k(f's_add_u32 s{sU+i}, s{sU+i}, {22*4096}')
    k(f's_cmp_ge_u32 s{sW}, 2\ns_cselect_b32 s{sU+10}, {21*4096}, s{sU+10}')
    k(f's_cmp_eq_u32 s{sW}, 3\ns_cselect_b32 s{sU+10}, {hex(OOBU)}, s{sU+10}')

def ck_off(dst, rt):
    k(f'''
    s_lshr_b32 s{sT4}, s{rt}, 3
    s_sub_u32 s{sT4}, s{rt}, s{sT4}
    s_mul_i32 s{sT4}, s{sT4}, {RTS}
    s_and_b32 s{dst}, s{rt}, 7
    s_lshl_b32 s{dst}, s{dst}, 9
    s_add_u32 s{dst}, s{dst}, {WS_CB}
    s_sub_u32 s{dst}, s{dst}, s{sT4}
    ''')

def xw_addr(rowbase_s, tile_s):
    k(f'''
    v_lshrrev_b32 v{vE+5}, 1, v{vE+2}
    v_xor_b32 v{vE+5}, v{vE+5}, v{vE+3}
    v_lshlrev_b32 v{vE+5}, 4, v{vE+5}
    v_lshl_add_u32 v{vE+5}, v{vE+2}, 7, v{vE+5}
    v_add_u32 v{vXR}, {rowbase_s}, v{vE+5}
    v_xor_b32 v{vXR+1}, 64, v{vXR}
    v_bfe_u32 v{vE+5}, v{vLANE}, 2, 2
    v_lshl_add_u32 v{vE+5}, v{vE+3}, 3, v{vE+5}
    v_lshl_add_u32 v{vE+5}, v{vE+5}, 7, v{vE+4}
    v_xor_b32 v{vWA}, {tile_s}, v{vE+5}
    ''')

tokQ = {}
def item(q):
    L = []
    def add(pre, vo, srd_, so, last=False):
        def f():
            fl = cfg.wf if srd_ == S_W else cfg.xf if srd_ == S_X else cfg.pf
            fl = (' sc0' if fl & 4 else '') + (' nt' if fl & 1 else '') + (' sc1' if fl & 2 else '')
            t = k(f'buffer_load_dwordx4 v{vo}, {sr(srd_,4)}, s{so} offen{fl} lds')
            if last: tokQ[q] = t; k.vm[-1]['key'] = ('W', q)
        pl = pre.split('\n')
        L.append(lambda: k('\n'.join(pl[-1:] + pl[:-1])))
        L.append(f)
    if q < 8:
        base = (q % 5) * 32768
        hdr = f's_add_u32 s{sT0}, s{sROT}, {q}\ns_and_b32 s{sT0}, s{sT0}, 7\ns_lshl_b32 s{sT1}, s{sT0}, 7\ns_mul_i32 s{sT2}, s{sT0}, s{sSTP}\n'
        for i in range(4):
            add((hdr if i == 0 else '') + f's_add_u32 m0, s{sW4K}, {base + 1024*i}', vDX + i, S_X, sT1)
            u, j = i // 2, i % 2
            add(f's_add_u32 m0, s{sW2K}, {base + 16384 + 8192*u + 1024*j}', vDW + 2*u + j, S_W, sT2, i == 3)
    elif q < 10:
        for b in range(4):
            s = 4*(q - 8) + b
            hdr = f's_add_u32 s{sT0}, s{sROT}, {s}\ns_and_b32 s{sT0}, s{sT0}, 7\ns_mul_i32 s{sT2}, s{sT0}, s{sSTP}\n'
            for j in range(2):
                add((hdr if j == 0 else '') + f's_add_u32 m0, s{sW2K}, {98304 + 8192*s + 1024*j}', vDW + (0 if cfg.u3hit else 4) + j, S_W, sT2, b == 3 and j == 1)
    else:
        r = q - 10
        pos = WPOS[r] * 16384
        for j in range(4):
            hdr = {0: f's_lshl4_add_u32 s{sT4}, s{sU + r}, {0 if r < 11 else hex((-22*65536) & 0xffffffff)}\n' if not cfg.whit else f's_mov_b32 s{sT4}, {0 if cfg.whit == 1 else hex(OOB)}\n', 2: f's_add_u32 s{sT4}, s{sT4}, 0x4000\n'}.get(j, '')
            m = f's_add_u32 m0, s{sW4K}, {pos + 1024*j}'
            if r == 10: m = f's_add_u32 m0, s{sM21}, {pos}' if j == 0 else f's_add_u32 m0, m0, s{sM21+1}'
            add(hdr + m, vDP + (j & 1), S_W2 if r < 11 or cfg.whit else S_WO, sT4, j == 3)
    return L

WPOS = [0, 1, 2, 3, 4, 5, 6, 7, 0, 1, 2, 3, 8, 9, 4]
p2w = [0]
def rdP2(dst, r):
    pos = WPOS[r] * 16384
    L = []
    if pos >> 16 != p2w[0]:
        L = [f'v_add_u32 v{vP2+c}, {hex((((pos >> 16) - p2w[0]) << 16) & 0xffffffff)}, v{vP2+c}' for c in range(4)]
        p2w[0] = pos >> 16
    return L + [f'ds_read_b64_tr_b16 {vr(dst + 4*c + 2*h, 2)}, v{vP2+c} offset:{(pos % 65536) + 2048*h}' for c in range(4) for h in range(2)]
def moves(rs):
    L = []
    for r in rs:
        L += rdP2(vWR + 16*r, r)
    return L

Atext = {}
curg = [1]
def jobs(g):
    n = cfg.xs
    J = []
    if g == 0:
        for r in range(n): J += [('X', r), ('R', r)]
    return J + [('R', r) for r in range(n, 15)]
JD = 2*cfg.xs - 1 + cfg.xd
def plan(g):
    J = jobs(g); pos = {j: i for i, j in enumerate(J)}
    pool = [(-1, vAW + 8*i) for i in range(6)] + [(JD if g == 0 else -1, vWF + 8*i) for i in range(4)]
    for r in (3, 4): pool += [(pos.get(('R', r), -1), vWR + 16*r + 8*h) for h in range(2)]
    A = []
    for i in range(len(J)):
        b = min(range(len(pool)), key=lambda q: pool[q][0])
        A.append(pool.pop(b)); pool.append((i, A[-1][1]))
    return J, pos, A
def areg(r, j):
    if cfg.xs: return plan(curg[0])[2][r][1] + 4*j
    return vAW + 8*r + 4*j if r < 6 else (vWR + 8*(r - 6) + 4*j)
def loadA(r):
    L = []
    def mk(t, key):
        Atext[key] = t
        def f():
            k.redo = True; k(t if cfg.asc == 1 else t.replace(' sc1', {0: '', 2: ' nt', 3: ' sc0'}[cfg.asc])); k.redo = False
            k.vm[-1]['key'] = key; k.vm[-1]['text'] = t
        f.regs = set(Ins(t).wr)
        return f
    if cfg.xs:
        kind, q = jobs(curg[0])[r]
        for j in range(2):
            L.append(mk(f'buffer_load_dwordx4 {vr(areg(r, j), 4)}, v{(vA if kind == "R" else vXR)+j}, {sr(S_WS,4)}, s{sU+q} offen sc1', (r, j)))
        L.append(mk(f'buffer_load_dword v{vCS+r%16}, v{vA+2}, {sr(S_WS,4)}, s{sU+q} offen{"" if kind == "R" else " offset:512"} sc1', (r, 2)))
        return L
    for j in range(2):
        L.append(mk(f'buffer_load_dwordx4 {vr(areg(r, j), 4)}, v{vA+j}, {sr(S_WS,4)}, s{sU+r if not cfg.aoob else sU+10} offen sc1', (r, j)))
    if cfg.aoob != 3: L.append(mk(f'buffer_load_dword v{vCS+r}, v{vA+2}, {sr(S_WS,4)}, s{sU+r if not cfg.aoob else sU+10} offen sc1', (r, 2)))
    else: Atext[(r, 2)] = ''
    return L

def gelu(acc, out, T, C0, pk):
    L = []
    p = lambda r: vr(r, 2)
    if pk == 1: pk = 7
    if pk == 9: pk = 1
    if pk & 1:
        for i in range(0, 16, 2): L.append(f'v_pk_mul_f32 {p(T+i)}, {p(acc+i)}, {p(acc+i)}')
        for i in range(0, 16, 2): L.append(f'v_pk_fma_f32 {p(T+i)}, {p(T+i)}, {sr(sC1,2)}, {vr(C0,2)}')
        for i in range(0, 16, 2): L.append(f'v_pk_mul_f32 {p(T+i)}, {p(acc+i)}, {p(T+i)}')
    else:
        for i in range(16): L.append(f'v_mul_f32 v{T+i}, v{acc+i}, v{acc+i}')
        for i in range(16): L.append(f'v_fma_f32 v{T+i}, v{T+i}, s{sC1}, v{C0}')
        for i in range(16): L.append(f'v_mul_f32 v{T+i}, v{acc+i}, v{T+i}')
    for i in range(16): L.append(f'v_exp_f32 v{T+i}, v{T+i}')
    if pk & 2:
        for i in range(0, 16, 2): L.append(f'v_pk_add_f32 {p(T+i)}, {p(T+i)}, 1.0 op_sel_hi:[1,0]')
    else:
        for i in range(16): L.append(f'v_add_f32 v{T+i}, 1.0, v{T+i}')
    for i in range(16): L.append(f'v_rcp_f32 v{T+i}, v{T+i}')
    if pk & 4:
        for i in range(0, 16, 2): L.append(f'v_pk_mul_f32 {p(T+i)}, {p(acc+i)}, {p(T+i)}')
    else:
        for i in range(16): L.append(f'v_mul_f32 v{T+i}, v{acc+i}, v{T+i}')
    for i in range(0, 16, 2): L.append(f'v_cvt_pk_bf16_f32 v{out+i//2}, v{T+i}, v{T+i+1}')
    return L

def phi(acc, out, T, C0, pk):
    L = []
    p = lambda r: vr(r, 2)
    if pk:
        for i in range(0, 16, 2): L.append(f'v_pk_fma_f32 {p(T+i)}, {p(acc+i)}, {sr(sC1,2)}, {vr(C0,2)}')
    else:
        for i in range(16): L.append(f'v_fma_f32 v{T+i}, v{acc+i}, s{sC1}, v{C0}')
    for i in range(16): L.append(f'v_exp_f32_e64 v{T+i}, v{T+i} clamp')
    for i in range(16): L.append(f'v_max_f32 v{acc+i}, s{sEPS}, v{acc+i}')
    if pk:
        for i in range(0, 16, 2): L.append(f'v_pk_add_f32 {p(T+i)}, {p(T+i)}, {p(acc+i)}')
    else:
        for i in range(16): L.append(f'v_add_f32 v{T+i}, v{T+i}, v{acc+i}')
    for i in range(0, 16, 2): L.append(f'v_cvt_pk_bf16_f32 v{out+i//2}, v{T+i}, v{T+i+1}')
    return L

def st4(src, s_off, imm):
    return f'buffer_store_dwordx4 {vr(src,4)}, v{vL16}, {sr(S_WS,4)}, s{s_off} offen offset:{imm} sc1'

def strec(src, s_off, imm, T, vck=None):
    L = []
    addchain(L.append, T, range(src, src + 8))
    L.insert(1, st4(src, s_off, imm)); L.insert(3, st4(src + 4, s_off, imm + 1024))
    L.append(f'v_sub_u32 v{T}, s{sN}, v{T}')
    L.append(f'buffer_store_dword v{T}, v{vck or vL4}, {sr(S_WS,4)}, s{s_off} offen offset:{imm // 8} sc1')
    if cfg.nost: L = [x for x in L if not x.startswith('buffer')]
    if not cfg.ssc: L = [x.replace(' sc1', '') for x in L]
    return L

def get_epoch(reg):
    checked([DBTEXT(reg)], [reg], None, None)
    k(f'v_readfirstlane_b32 s{sN}, v{reg}\ns_cmp_eq_u32 s{sW}, 3\ns_cselect_b32 s{sN10}, 0, s{sN}\ns_lshl_b32 s{sN2}, s{sN}, 1')
def DBTEXT(reg): return f'buffer_load_dword v{reg}, off, {sr(S_DBG,4)}, 0 sc1'

def consts(typ, C0):
    if typ == 'A':
        c1, c0 = 1.4426950408889634, -1e-6*1.4426950408889634
    else:
        c1, c0 = -2.302208198*0.044715, -2.302208198
    k(f'''
    s_mov_b32 s{sC1}, {f32(c1)}
    s_mov_b32 s{sC1+1}, {f32(c1)}
    s_mov_b32 s{sEPS}, {f32(1e-6)}
    v_mov_b32 v{C0}, {f32(c0)}
    v_mov_b32 v{C0+1}, {f32(c0)}
    ''')

def unpack4(dst, src):
    return [f'v_and_b32 v{dst+3}, 0xffff0000, v{src+1}', f'v_lshlrev_b32 v{dst+2}, 16, v{src+1}',
            f'v_and_b32 v{dst+1}, 0xffff0000, v{src}', f'v_lshlrev_b32 v{dst}, 16, v{src}']

def phase2x(g, vmA, nload):
    k.label(f'L_P2_{g}')
    k('s_nop 1')
    k.vm = merge_vm(k.vm, vmA); k.lg = []
    stamp('P2')
    n = cfg.xs
    J, pos, A = plan(g)
    NJ = len(J)
    P = lambda r: pos.get(('R', r), -1)
    ord_, lrd, win = (cfg.ord0, cfg.lrd0, cfg.xw0) if g == 0 else (cfg.ord1, cfg.lrd1, cfg.xw1)
    k(f's_setprio {cfg.pp0 if g == 0 else cfg.pp1}')
    def wreg(r): return vWR + 16*r if r < 5 else vWR + 16*((r - 5) % 3)
    def wfree(r): return P(r - 5) if r < 8 else P(r - 3)
    z1 = JD if g == 0 else -1
    z2 = P(cfg.z2 if g == 0 or cfg.z21 < 0 else cfg.z21)
    assert P(7) <= z2 <= P(11)
    def more(i, lim=99):
        nonlocal nload
        L = []
        while nload < min(NJ, lim):
            q = J[nload][1]
            if A[nload][0] > i or nload > i + win or (i >= 0 and len(L) >= 3*cfg.xm): break
            if q >= 11 and i < P(ord_): break
            if q >= 7 and i < P(lrd): break
            L += loadA(nload)
            nload += 1
        return L
    nrd = [5]
    def reads(i, top=15):
        L = []
        while nrd[0] < top and wfree(nrd[0]) <= i and (nrd[0] < 8 or i >= z1) and (nrd[0] < 13 or i >= z2) and P(nrd[0]) <= i + 1 + cfg.xrd:
            L += rdP2(wreg(nrd[0]), nrd[0]); nrd[0] += 1
        return L
    def chk(i): return checked([Atext[(i, j)] for j in range(3)], [vCS + i % 16] + list(range(areg(i, 0), areg(i, 0) + 8)), vE + 8, sN10 if J[i][1] == 10 else sN, True)
    G2 = vE + 12
    BB = vE
    gadr = f'''s_lshl1_add_u32 s{sT0}, s{sSLAB}, {g}
    s_lshl_b32 s{sGO}, s{sT0}, 8
    s_add_u32 s{sGO}, s{sGO}, {WS_G}
    s_and_b32 s{sT1}, s{sW}, 1
    s_lshl_b32 s{sT2}, s{sT1}, 7
    v_and_b32 v3, 15, v{vLANE}
    v_lshlrev_b32 v4, 3, v3
    v_add_u32 v4, s{sT2}, v4
    v_xor_b32 v5, 0x80, v4'''.split('\n')
    gt = [f'buffer_load_dwordx2 {vr(G2+2*j,2)}, v{4+j}, {sr(S_WS,4)}, s{sGO} offen sc1' for j in range(2)]
    def redo(t):
        def f():
            k.redo = True; k(t); k.redo = False
        return f
    late = f'''s_lshl1_add_u32 s{sT0}, s{sT0}, s{sT1}
    s_lshl_b32 s{sT5}, s{sT0}, 14
    s_lshl_b32 s{sT0}, s{sCT}, 7
    s_add_u32 s{sT5}, s{sT5}, s{sT0}
    s_and_b32 s{sT0}, s{sW}, 2
    s_lshl_b32 s{sT0}, s{sT0}, 5
    s_add_u32 s{sT5}, s{sT5}, s{sT0}
    v_lshlrev_b32 v3, 10, v3
    v_and_b32 v6, 16, v{vLANE}
    v_lshl_add_u32 v3, v6, 1, v3
    v_lshrrev_b32 v6, 5, v{vLANE}
    v_lshl_add_u32 v3, v6, 4, v3
    s_xor_b32 s{sT1}, s{sWAVE}, 1
    s_xor_b32 s{sT2}, s{sWAVE}, 2
    s_xor_b32 s{sT3}, s{sWAVE}, 3
    s_mul_i32 s{sT0}, s{sWAVE}, 6144
    s_mul_i32 s{sT1}, s{sT1}, 6144
    s_mul_i32 s{sT2}, s{sT2}, 6144
    s_mul_i32 s{sT3}, s{sT3}, 6144
    v_add_u32 v10, {L_RED}, v{vL16}
    v_add_u32 v6, s{sT0}, v10
    v_add_u32 v7, s{sT1}, v10
    v_add_u32 v8, s{sT2}, v10
    v_add_u32 v9, s{sT3}, v10'''.split('\n')
    order = [(pi, e_) for pi in (1, 2, 3, 0) for e_ in range(2)]
    def scale(i):
        pi, e_ = order[i]
        return [f'v_mul_f32 v{vAC2+8*pi+4*e_+j}, v{G2 + 2*(pi & 1)}, v{vAC2+8*pi+4*e_+j}' for j in range(4)]
    vY = vWA
    xadr = [f'v_add_u32 v{vY}, s{sW4K}, v{vL16}', f'v_add_u32 v{vY+1}, {WPOS[13]*16384}, v{vY}', f'v_add_u32 v{vY}, {WPOS[14]*16384}, v{vY}']
    PRE = xadr + gadr + [redo(t) for t in gt] + late
    if g == 0:
        for f in more(-1) + stx('p1') + unpack4(BB, vB2) + unpack4(BB + 4, vB2 + 2) + PRE + stx('p2'): emit(f)
    else:
        if cfg.xg: PRE, POST = xadr, PRE[3:]
        else: POST = []
        for f in more(-1, cfg.xp1) + stx('p1') + PRE + stx('p2') + reads(-1, 8): emit(f)
        for q in range(22, 9, -1): wait_key(('W', q))
        stamp('p3')
        k('s_barrier')
        stamp('z1')
        for i, (pi, e_) in enumerate(order):
            k(f'ds_read_b128 {vr(vAC2 + 8*pi + 4*e_, 4)}, v{vY + (i >> 2)} offset:{1024*(i & 3)}')
        for f in more(-1, cfg.xi1): emit(f)
        k.wait_lg_all()
        for f in wpairs(13, 15) + more(-1) + POST: emit(f)
        stamp('p4')
    for f in chk(0): emit(f)
    for i, (kind, r) in enumerate(J):
        if kind == 'R': stamp(f'r{r}')
        else: stamp(f'x{r}')
        F = (more(i - 1) if i > 0 else []) + reads(i - 1)
        if kind == 'R' and r == 9: F += checked(gt, [G2+1, G2+3], vE + 8, sN2, True)
        if kind == 'R' and r == 10: F = [f'v_sub_f32 v{G2}, 1.0, v{G2}', f'v_sub_f32 v{G2+2}, 1.0, v{G2+2}'] + F
        D = []
        if g == 0 and i == JD:
            D = [f'ds_write_b128 v{vY + (q >> 2)}, {vr(vWF + 8*pi + 4*e_, 4)} offset:{1024*(q & 3)}' for q, (pi, e_) in enumerate(order)]
        if i < NJ - 1:
            assert nload > i + 1, (g, i, nload)
            if not D: F += chk(i + 1)
        acc = vAC2 if kind == 'R' else vWF
        M = []
        for pi, e_ in order:
            c = None
            if r == 0: c = vr(BB + 4*e_, 4) if pi == 0 else '0'
            M.append(mf(acc + 8*pi + 4*e_, wreg(r) + 4*(2*(pi >> 1) + e_), areg(i, pi & 1), c))
        assert r < nrd[0], (g, i, r, nrd)
        wait_regs([wreg(r) + q for q in range(16)])
        sc = kind == 'R' and r
        j = 0
        for q, m in enumerate(M):
            if sc == 11 and q < 4:
                for t in scale(4 + q): k(t)
            k(m)
            if D: k(D[q])
            if sc == 10 and q >= 4:
                for t in scale(q - 4): k(t)
            tgt = ((q + 1) * len(F) + 7) // 8
            if sc == 10: tgt = min(len(F), ((q + 1) * len(F) + 4) // 5) if q < 7 else len(F)
            if sc == 11: tgt = 0 if q < 3 else ((q - 2) * len(F) + 4) // 5
            while j < tgt: emit(F[j]); j += 1
        if D:
            k.wait_lg_all()
            stamp('p3')
            k('s_barrier')
            stamp('z1')
            for f in chk(i + 1): emit(f)
        if i == z2:
            assert nrd[0] >= 8
            wait_key(('W', 24))
            k('s_barrier')
            stamp('z2')
    stamp('mm')
    for pi in range(1, 4):
        for h in range(2):
            k(f'ds_write_b128 v{6+pi}, {vr(vAC2 + 8*pi + 4*h, 4)} offset:{(pi-1)*2048 + 1024*h}')
    k.wait_lg_all()
    k('s_barrier')
    stamp('red')
    R = vAW
    for p in range(3):
        for h in range(2):
            k(f'ds_read_b128 {vr(R + 8*p + 4*h, 4)}, v6 offset:{p*2048 + 1024*h}')
    for p in range(3):
        for i in range(0, 8, 2):
            k(f'v_pk_add_f32 {vr(vAC2+i,2)}, {vr(vAC2+i,2)}, {vr(R+8*p+i,2)}')
    for i in range(4): k(f'v_cvt_pk_bf16_f32 v{vE+i}, v{vAC2+2*i}, v{vAC2+2*i+1}')
    k(f'v_permlane16_swap_b32 v{vE}, v{vE+2}\nv_permlane16_swap_b32 v{vE+1}, v{vE+3}')
    k(f'buffer_store_dwordx4 {vr(vE,4)}, v3, {sr(S_OUT,4)}, s{sT5} offen')
    if g == 1: k('s_branch L_fin' if cfg.stamps else 's_endpgm')

def phase2(g, vmA, nload, wnext):
    if cfg.xs:
        assert NW1 == 13 and (g == 1 or wnext == 13)
        return phase2x(g, vmA, nload)
    k.label(f'L_P2_{g}')
    k('s_nop 1')
    k.vm = merge_vm(k.vm, vmA); k.lg = []
    stamp('P2')
    ord_, lrd = (cfg.ord0, cfg.lrd0) if g == 0 else (cfg.ord1, cfg.lrd1)
    k(f's_setprio {cfg.pp0 if g == 0 else cfg.pp1}')
    BUF = [vWF + 16, vWF, vAW, vAW + 16, vAW + 32]
    def wreg(r): return vWR + 16*r if r < 5 else BUF[r % 5]
    FREE = {5: -1, 6: -1, 7: 1, 8: 3, 9: 5, 10: 5, 11: 6, 12: 7, 13: 8, 14: 9}
    zr = cfg.z0 if g == 0 or cfg.z1 < 0 else cfg.z1
    def more(r):
        nonlocal nload, wnext
        L = []
        while nload < 15:
            need = (nload - 6) // 2 if nload >= 6 else -1
            if need > r or nload > r + (cfg.aw3 if cfg.aw3 and r >= cfg.a3r and cfg.a3g >> g & 1 else cfg.aw2 if cfg.aw2 and r >= zr else cfg.aw1st if g == 1 and cfg.aw1st and r < zr else cfg.awin) or (r >= 0 and len(L) >= 3*cfg.amax): break
            if nload >= 11 and r < ord_: break
            if nload >= 7 and r < lrd: break
            L += loadA(nload)
            nload += 1
        for i in range(cfg.dper):
            if wnext < 15:
                L += wpairs(wnext, wnext + 1)
                wnext += 1
        return L
    vT = vXR
    TD = [vWA, vWA + 1, vWA + 2, vWA + 3, 11, 10]
    TCH = [(cfg.t0, 1, 0), (cfg.t4, 1, 4), (cfg.t7a, 0, 7), (cfg.t7, 1, 7), (cfg.t11a, 0, 11), (cfg.t11, 1, 11)] if g == 0 else []
    def touch(r):
        return [f'buffer_load_dword v{TD[i]}, v{vT+o}, {sr(S_WS,4)}, s{sU+q} offen sc1' for i, (t, o, q) in enumerate(TCH) if t == r]
    if any(t != 99 for t, o, q in TCH):
        sh, nd = (6, 32) if cfg.th else (7, 16)
        k(f'''
        v_and_b32 v{vWA}, 0xfffff800, v{vA}
        v_and_b32 v{vWA+1}, 0xffffff00, v{vA+2}
        v_and_b32 v{vWA+2}, {nd//8 - 1}, v{vLANE}
        v_lshl_add_u32 v{vWA}, v{vLANE}, {sh}, v{vWA}
        v_lshl_add_u32 v{vWA+1}, v{vWA+2}, {sh}, v{vWA+1}
        v_cmp_gt_u32 vcc, {nd}, v{vLANE}
        v_add_u32 v{vWA+2}, {RTS}, v{vWA}
        v_add_u32 v{vWA+3}, 512, v{vWA+1}
        v_cndmask_b32 v{vT}, v{vWA+1}, v{vWA}, vcc
        v_cndmask_b32 v{vT+1}, v{vWA+3}, v{vWA+2}, vcc
        ''')
    nrd = [5]
    def reads(r):
        L = []
        while nrd[0] < 15 and FREE[nrd[0]] <= r and (nrd[0] < 8 or r >= zr) and (not L or nrd[0] <= r + 3):
            L += rdP2(wreg(nrd[0]), nrd[0]); nrd[0] += 1
        return L
    def chk(r): return checked([Atext[(r, j)] for j in range(3)], [vCS + r] + list(range(areg(r, 0), areg(r, 0) + 8)), vE + 8, sN10 if r == 10 else sN, True)
    G2 = vE + 12
    BB = vE
    gadr = f'''s_lshl1_add_u32 s{sT0}, s{sSLAB}, {g}
    s_lshl_b32 s{sGO}, s{sT0}, 8
    s_add_u32 s{sGO}, s{sGO}, {WS_G}
    s_and_b32 s{sT1}, s{sW}, 1
    s_lshl_b32 s{sT2}, s{sT1}, 7
    v_and_b32 v3, 15, v{vLANE}
    v_lshlrev_b32 v4, 3, v3
    v_add_u32 v4, s{sT2}, v4
    v_xor_b32 v5, 0x80, v4'''.split('\n')
    gt = [f'buffer_load_dwordx2 {vr(G2+2*j,2)}, v{4+j}, {sr(S_WS,4)}, s{sGO} offen sc1' for j in range(2)]
    def redo(t):
        def f():
            k.redo = True; k(t); k.redo = False
        return f
    late = f'''s_lshl1_add_u32 s{sT0}, s{sT0}, s{sT1}
    s_lshl_b32 s{sT5}, s{sT0}, 14
    s_lshl_b32 s{sT0}, s{sCT}, 7
    s_add_u32 s{sT5}, s{sT5}, s{sT0}
    s_and_b32 s{sT0}, s{sW}, 2
    s_lshl_b32 s{sT0}, s{sT0}, 5
    s_add_u32 s{sT5}, s{sT5}, s{sT0}
    v_lshlrev_b32 v3, 10, v3
    v_and_b32 v6, 16, v{vLANE}
    v_lshl_add_u32 v3, v6, 1, v3
    v_lshrrev_b32 v6, 5, v{vLANE}
    v_lshl_add_u32 v3, v6, 4, v3
    s_xor_b32 s{sT1}, s{sWAVE}, 1
    s_xor_b32 s{sT2}, s{sWAVE}, 2
    s_xor_b32 s{sT3}, s{sWAVE}, 3
    s_mul_i32 s{sT0}, s{sWAVE}, 6144
    s_mul_i32 s{sT1}, s{sT1}, 6144
    s_mul_i32 s{sT2}, s{sT2}, 6144
    s_mul_i32 s{sT3}, s{sT3}, 6144
    v_add_u32 v10, {L_RED}, v{vL16}
    v_add_u32 v6, s{sT0}, v10
    v_add_u32 v7, s{sT1}, v10
    v_add_u32 v8, s{sT2}, v10
    v_add_u32 v9, s{sT3}, v10'''.split('\n')
    order = [(pi, e_) for pi in (1, 2, 3, 0) for e_ in range(2)]
    def scale(i):
        pi, e_ = order[i]
        return [f'v_mul_f32 v{vAC2+8*pi+4*e_+j}, v{G2 + 2*(pi & 1)}, v{vAC2+8*pi+4*e_+j}' for j in range(4)]
    for f in more(-1) + touch(-1): emit(f)
    for f in chk(0): emit(f)
    DEF = []
    for r in range(15):
        stamp(f'r{r}')
        F = (more(r - 1) if r > 0 else []) + touch(r) + reads(r - 1)
        if r == 0: F = unpack4(BB, vB2) + unpack4(BB + 4, vB2 + 2) + F
        if r == 3: F += gadr + [redo(t) for t in gt]
        if r == 4: F += late[:12]
        if r == 12: F += late[12:]
        if r == 9: F += checked(gt, [G2+1, G2+3], vE + 8, sN2, True)
        if r == 10: F = [f'v_sub_f32 v{G2}, 1.0, v{G2}', f'v_sub_f32 v{G2+2}, 1.0, v{G2+2}'] + F
        if r < 14:
            assert nload > r + 1
            C = chk(r + 1)
            if cfg.lf >> g & 1 and r != zr:
                Lm = more(r)
                C = [lambda q=r+1, Lm=Lm: (wait_key((q, 2)), [emit(f) for f in Lm])] + C
            F += [''] * max(0, cfg.ce - len(F)) + C
        M = []
        for pi, e_ in order:
            c = None
            if r == 0: c = vr(BB + 4*e_, 4) if pi == 0 else '0'
            M.append(mf(vAC2 + 8*pi + 4*e_, wreg(r) + 4*(2*(pi >> 1) + e_), areg(r, pi & 1), c))
        wait_regs([wreg(r) + i for i in range(16)])
        if cfg.m32p:
            M = [x for c in range(4) for x in (f'v_mfma_f32_32x32x16_bf16 {vr(vAC2+16*(1-(c>>1)),16)}, {vr(wreg(r)+4*c,4)}, {vr(areg(r, c&1),4)}, {vr(vAC2+16*(1-(c>>1)),16) if r or c & 1 else 0}', '')]
        if r >= 15 - cfg.df:
            DEF += M[6:]; M = M[:6] + ['', '']
        j = 0
        for i, m in enumerate(M):
            if cfg.m32p and r in (10, 11):
                k(m)
                tgt = ((i + 1) * len(F) + 7) // 8
                while j < tgt: emit(F[j]); j += 1
                if r == 10 and i >= 6:
                    for t in scale(2*i-10) + scale(2*i-9): k(t)
                if r == 11 and i in (1, 3):
                    for t in scale((i-1)*3) + scale((i-1)*3+1): k(t)
                continue
            if r == 11 and i < 4:
                for t in scale(4 + i): k(t)
            k(m)
            if r == 10 and i >= 4:
                for t in scale(i - 4): k(t)
            tgt = ((i + 1) * len(F) + 7) // 8
            if r == 10: tgt = min(len(F), ((i + 1) * len(F) + 4) // 5) if i < 7 else len(F)
            if r == 11: tgt = 0 if i < 3 else ((i - 2) * len(F) + 4) // 5
            if g == 1 and cfg.xb and r == cfg.xb and i == cfg.xbm - 1: k('s_barrier')
            while j < tgt: emit(F[j]); j += 1
        if r == zr:
            assert wnext == 15 and nrd[0] == 8
            for q in range(24, 9, -1): wait_key(('W', q))
            k.wait_lg_all()
            for i in range(cfg.zx if g == 0 else 0):
                for f in loadA(nload): emit(f)
                nload += 1
            for f in touch(50): emit(f)
            k('s_barrier')
    stamp('mm')
    WR = [f'ds_write_b128 v{6+pi}, {vr(vAC2 + 8*pi + 4*h, 4)} offset:{(pi-1)*2048 + 1024*h}' for pi in range(1, 4) for h in range(2)]
    nb = min(cfg.dfb, len(DEF))
    if cfg.dw and nb >= 2:
        for t in WR[:2] + DEF[:1] + WR[2:4] + DEF[1:2] + WR[4:] + DEF[2:nb]: k(t)
    else:
        for t in WR + DEF[:nb]: k(t)
    k.wait_lg_all()
    k('s_barrier')
    stamp('red')
    R = vAW if not cfg.df else vWR
    for p in range(3):
        for h in range(2):
            k(f'ds_read_b128 {vr(R + 8*p + 4*h, 4)}, v6 offset:{p*2048 + 1024*h}')
    for t in DEF[nb:]: k(t)
    if cfg.df:
        for p in (1, 2):
            for i in range(0, 8, 2):
                k(f'v_pk_add_f32 {vr(R+i,2)}, {vr(R+i,2)}, {vr(R+8*p+i,2)}')
    for p in range(3 if not cfg.df else 1):
        for i in range(0, 8, 2):
            k(f'v_pk_add_f32 {vr(vAC2+i,2)}, {vr(vAC2+i,2)}, {vr(R+8*p+i,2)}')
    for i in range(4): k(f'v_cvt_pk_bf16_f32 v{vE+i}, v{vAC2+2*i}, v{vAC2+2*i+1}')
    k(f'v_permlane16_swap_b32 v{vE}, v{vE+2}\nv_permlane16_swap_b32 v{vE+1}, v{vE+3}')
    k(f'buffer_store_dwordx4 {vr(vE,4)}, v3, {sr(S_OUT,4)}, s{sT5} offen')
    if g == 0 and cfg.xb: k('s_barrier')
    if g == 1: k('s_branch L_fin' if cfg.stamps else 's_endpgm')

if cfg.sp1: k(f's_setprio {cfg.sp1}')
k(f'''
v_lshrrev_b32 v{vE+2}, 1, v{vE}
v_xor_b32 v{vE+2}, v{vE+1}, v{vE+2}
v_lshlrev_b32 v{vE+2}, 4, v{vE+2}
s_lshl2_add_u32 s{sT1}, s{sRB}, s{sW}
s_lshl_b32 s{sT1}, s{sT1}, 15
v_lshl_add_u32 v{vDX}, v{vE}, 10, v{vE+2}
v_add_u32 v{vDX}, s{sT1}, v{vDX}
v_xor_b32 v{vDX+1}, 64, v{vDX}
v_add_u32 v{vDX+1}, 0x2000, v{vDX+1}
v_add_u32 v{vDX+2}, 0x4000, v{vDX}
v_add_u32 v{vDX+3}, 0x4000, v{vDX+1}
v_and_b32 v{vE+2}, 2, v{vE}
v_xor_b32 v{vE+2}, v{vE+1}, v{vE+2}
v_lshlrev_b32 v{vE+2}, 4, v{vE+2}
v_xor_b32 v{vE+3}, 64, v{vE+2}
s_lshl_b32 s{sT3}, s{sGRP}, 7
s_add_u32 s{sT4}, s{sT3}, 1024
s_mul_i32 s{sT3}, s{sT3}, 3
s_movk_i32 s{sT1}, 3072
s_movk_i32 s{sT5}, 0x400
s_cmp_eq_u32 s{sTYPE}, 1
s_cselect_b32 s{sT1}, 2752, s{sT1}
s_cselect_b32 s{sT3}, s{sT3}, s{sT4}
s_cselect_b32 s{sT4}, 0x80, s{sT5}
s_movk_i32 s{sT5}, 0xfc00
s_cselect_b32 s{sT5}, 0x100, s{sT5}
s_mov_b32 s{S_W+2}, 0x180000
s_cselect_b32 s{S_W+2}, {512*2752}, s{S_W+2}
s_cmp_eq_u32 s{sB7}, 1
s_cselect_b32 s{sT4}, {hex(OOB)}, s{sT4}
s_cselect_b32 s{sT5}, {hex(OOB)}, s{sT5}
s_cselect_b32 s{sT2}, 24, 0
s_lshl_b32 s{sT0}, s{sW}, 4
v_add_u32 v{vE+4}, s{sT0}, v{vE}
v_mul_lo_u32 v{vE+4}, v{vE+4}, s{sT1}
s_lshl_b32 s{sSTP}, s{sT1}, 6
s_lshl3_add_u32 s{sT0}, s{sT1}, s{sT3}
v_add3_u32 v{vDW}, v{vE+4}, v{vE+2}, s{sT3}
v_add3_u32 v{vDW+1}, v{vE+4}, v{vE+3}, s{sT0}
v_add_u32 v{vDW+2}, s{sT4}, v{vDW}
v_add_u32 v{vDW+3}, s{sT4}, v{vDW+1}
v_add_u32 v{vDW+4}, s{sT5}, v{vDW}
v_add_u32 v{vDW+5}, s{sT5}, v{vDW+1}
v_and_b32 v{vE+2}, 64, v{vE+2}
v_and_b32 v{vE+3}, 64, v{vE+3}
v_lshlrev_b32 v{vE+2}, s{sT2}, v{vE+2}
v_lshlrev_b32 v{vE+3}, s{sT2}, v{vE+3}
v_and_b32 v{vE+2}, 0x40000000, v{vE+2}
v_and_b32 v{vE+3}, 0x40000000, v{vE+3}
v_add_u32 v{vDW}, v{vE+2}, v{vDW}
v_add_u32 v{vDW+1}, v{vE+3}, v{vDW+1}
s_mov_b32 s{S_X+2}, 0x200000
s_mov_b32 s{S_X+3}, 0x20000
s_mov_b32 s{S_W+3}, 0x20000
''')
if cfg.stamps == 7: k.wait_lg_all()
stamp('ka')
for f in item(0): f()
stamp('i0')
if cfg.ka: k(KA2)
GF = vAC2
GA = vE + 8
e = side('L_nogf', f's_cmp_eq_u32 s{sB7}, 0')
srd_tail(S_GW, 1024)
k(f'v_and_b32 v{vE+2}, 48, v{vLANE}')
for s in range(8):
    k(f's_add_u32 s{sT0}, s{sROT}, {s}\ns_and_b32 s{sT0}, s{sT0}, 7\ns_lshl_b32 s{sT0}, s{sT0}, 7')
    for kk in range(2):
        k(f'buffer_load_dwordx4 {vr(GF + 8*s + 4*kk, 4)}, v{vE+2}, {sr(S_GW,4)}, s{sT0} offen offset:{64*kk}')
e()
if not cfg.so:
    for q in range(1, cfg.d0):
        for f in item(q): f()
common_setup(1)
xw_addr(f's{sW4K}', '0')
CI = vAW + 48
k(f'''
v_add_u32 v{vWA}, 0x18000, v{vWA}
v_xor_b32 v{vWA+1}, 32, v{vWA}
v_xor_b32 v{vWA+2}, 64, v{vWA}
v_xor_b32 v{vWA+3}, 0x60, v{vWA}
v_lshlrev_b32 v{vE+5}, 3, v{vE+3}
s_mul_i32 s{sT0}, s{sGRP}, 384
s_cmp_eq_u32 s{sTYPE}, 1
s_cselect_b32 s{sT0}, s{sT0}, {hex(OOB)}
v_add_u32 v{CI+3}, s{sT0}, v{vE+5}
''')
if cfg.nb1 & 2: k(f'v_mov_b32 v{CI+3}, {hex(OOB)}')
if cfg.nb1 & 4: k(f'v_mov_b32 v{vB2}, {hex(OOB)}')
LB1 = [f'buffer_load_dwordx2 {vr(CI + 4*c, 2)}, v{CI+3}, {sr(S_B1,4)}, 0 offen offset:{256 + 32*c}' for c in range(4)]
if not cfg.lb:
    for t in LB1: k(t)
k(f'''
s_lshl2_add_u32 s{sT0}, s{sRB}, s{sW}
''')
ck_off(sCK, sT0)
k(f'''
s_mul_i32 s{sH}, s{sT0}, {RTS}
s_lshl_b32 s{sGO}, s{sT0}, 8
s_add_u32 s{sGO}, s{sGO}, {WS_G}
s_mul_i32 s{sT0}, s{sGRP}, {3*UNT}
s_add_u32 s{sT0}, s{sT0}, {2*UNT}
s_mul_i32 s{sT1}, s{sGRP}, {UNT}
s_add_u32 s{sT1}, s{sT1}, {22*UNT}
s_cmp_eq_u32 s{sTYPE}, 1
s_cselect_b32 s{sT0}, s{sT0}, s{sT1}
s_add_u32 s{sH}, s{sH}, s{sT0}
s_cmp_eq_u32 s{sB7}, 1
s_cselect_b32 s{sH}, {hex(OOB)}, s{sH}
s_cmp_eq_u32 s{sTYPE}, 1
s_cselect_b32 s{sEPS}, 0, {f32(1e-6)}
''')
def xreg(t, rt): return vWR + 8*t + 4*rt
def gate_mm(s):
    e = side(f'L_ng{s}', f's_cmp_eq_u32 s{sB7}, 0')
    if cfg.sq and s < 6 and cfg.xo == 2: k.waitcnt(lgkm=4 + 2*cfg.pad)
    elif cfg.sq and s < 7 and cfg.xo == 2: k.waitcnt(lgkm=4 + cfg.pad)
    else: k.wait_lg_all()
    for kk in range(2):
        for rt in range(2):
            k(mf(GA + 4*rt, GF + 8*s + 4*kk, xreg(2*s + kk, rt), '0' if s == 0 and kk == 0 else None))
    e()
STREAM = []
NW1 = 4 + cfg.q9 + cfg.q10 + cfg.q11
assert 4 + cfg.q9 + cfg.q10 >= 8 and cfg.q9 >= 1
for q in range(cfg.d0, 10 + NW1): STREAM += item(q)
done = [8*cfg.d0]
LIM = [40, 40, 48, 56, 64, 72, 80, 88, 96, 108, 120, 132]
def take(i):
    n = min(LIM[i], done[0] + (cfg.q0 if i < 7 else {7: cfg.q7, 8: cfg.q8, 9: 4*cfg.q9, 10: 4*cfg.q10, 11: 4*cfg.q11}[i])) - done[0]
    done[0] += n
    r = STREAM[:2*n]; del STREAM[:2*n]
    return r
win = 0
if cfg.aw1 >= 0:
    k.raw(f'    s_cmp_eq_u32 s{sTYPE}, 1\n    s_cbranch_scc1 L_aw1\n    s_waitcnt vmcnt({cfg.aw1})\nL_aw1:')
if cfg.so:
    for q in range(1, cfg.d0):
        for f in item(q): f()
if cfg.lb:
    for t in LB1: k(t)
    k(LB2)
SQ = [int(c_) for c_ in str(cfg.sq)] if cfg.sq else []
SPF = [f'    s_buffer_load_dwordx2 s[0:1], {sr(S_W2,4)}, s{sT3} offset:{128*i+60}' for i in range(11)]
SPF += [f'    s_buffer_load_dwordx2 s[0:1], {sr(S_WO,4)}, s{sT5} offset:{128*i+60}' for i in range(4)]
U3 = [f'    s_buffer_load_dwordx2 s[0:1], {sr(S_W,4)}, s{sT4} offset:60\n    s_add_u32 s{sT4}, s{sT4}, s{sH+2}' for i in range(8)]
if cfg.u3p: SPF = SPF[:cfg.u3p - 1] + U3 + SPF[cfg.u3p - 1:]
def spf(i):
    n = SQ[i] if i < len(SQ) else 0
    for t in SPF[:n]: k.raw(t)
    del SPF[:n]
if cfg.sq:
    k(f'''
    s_mul_i32 s{sT3}, s2, {43*128}
    s_mul_i32 s{sT5}, s{sW}, {11*128}
    s_min_u32 s{sT5}, s{sT5}, {32*128}
    s_add_u32 s{sT3}, s{sT3}, s{sT5}
    s_lshl2_add_u32 s{sT5}, s2, s{sW}
    s_lshl_b32 s{sT5}, s{sT5}, 9
    ''')
    if cfg.u3p: k(f'''
    s_lshr_b32 s{sH+2}, s{sSTP}, 6
    s_lshl2_add_u32 s{sT4}, s{sRB}, s{sW}
    s_lshl_b32 s{sT4}, s{sT4}, 3
    s_mul_i32 s{sT4}, s{sT4}, s{sH+2}
    s_lshl_b32 s{sH+3}, s{sGRP}, 7
    s_add_u32 s{sT4}, s{sT4}, s{sH+3}
    s_lshl1_add_u32 s{sH+3}, s{sH+3}, 0x100
    s_mul_i32 s{sH+3}, s{sH+3}, s{sTYPE}
    s_add_u32 s{sT4}, s{sT4}, s{sH+3}
    s_cmp_eq_u32 s{sB7}, 1
    s_cselect_b32 s{sT4}, 0, s{sT4}
    ''')
    k.wait_lg_all()
    spf(0)
stamp('i1')
if cfg.sp1 or cfg.sp2: k(f's_setprio {cfg.sp2}')
if cfg.stamps == 7:
    k.raw(f'    s_waitcnt vmcnt({len(k.vm)-1})'); stamp('f0'); k.raw(f'    s_waitcnt vmcnt({len(k.vm)-2})'); stamp('f1')
for s in range(8):
    k.wait_vm_tok(tokQ[s + (s == 7 and not cfg.l8)])
    if cfg.xo >= 2 and s > 0: k.waitcnt(lgkm=4 + 2*cfg.pad)
    else: k.wait_lg_all()
    k('s_barrier')
    stamp(f'B{s}')
    w = ((s % 5) * 32768) >> 16
    if w != win:
        k(f'v_add_u32 v{vXR}, {hex(((w - win) << 16) & 0xffffffff)}, v{vXR}\nv_add_u32 v{vXR+1}, {hex(((w - win) << 16) & 0xffffffff)}, v{vXR+1}')
        win = w
    if s == 3: k(DBTEXT(vE+7))
    F = take(s)
    if cfg.sql:
        for f in F[:2*cfg.sql]: f()
        F = F[2*cfg.sql:]
    spf(s + 1)
    R = [f'ds_read_b128 {vr(xreg(2*s+kk, rt), 4)}, v{vXR+kk} offset:{((s % 5) * 32768) % 65536 + 2048*rt}' for kk in range(2) for rt in range(2)]
    if cfg.nox: R = ['s_nop 0'] * 4
    if s == 2:
        for c in range(4): R += unpack4(CI + 4*c, CI + 4*c)
    if s == 3: R += [f'v_add_f32 v{CI+i}, s{sEPS}, v{CI+i}' for i in range(16)]
    if s == 7 and cfg.xo7:
        for r in R[:4]: k(r)
        F7 = F; F = []
    elif cfg.xo == 1:
        for r in R[:4]: k(r)
        weave(F, R[4:])
    elif cfg.xo == 2:
        weave(F, R[4:])
        for r in R[:4]: k(r)
        if s < 7:
            for i in range(cfg.pad):
                k.raw(f'    ds_read_u8 v{vE+6}, v{vLANE}'); k.lg.append({'id': -1, 'wr': {('v', vE+6)}})
    else:
        for f in F[:2]: f()
        weave(F[2:], R)
    if s >= 1: gate_mm(s - 1)
    if s == 6: get_epoch(vE+7)
gate_mm(7)
assert not cfg.sq or not SPF
e = side('L_nogate', f's_cmp_eq_u32 s{sB7}, 0')
k(f'''
v_cmp_gt_u32 vcc, 16, v{vLANE}
v_cndmask_b32 v{vE}, v{GA+4}, v{GA}, vcc
v_mul_f32 v{vE}, {f32(-1.4426950408889634)}, v{vE}
v_exp_f32 v{vE}, v{vE}
v_lshlrev_b32 v{vE+2}, 3, v{vLANE}
v_add_f32 v{vE}, 1.0, v{vE}
v_mov_b32 v{vE+1}, s{sN}
v_rcp_f32 v{vE}, v{vE}
s_mov_b32 exec_hi, 0
buffer_store_dwordx2 {vr(vE,2)}, v{vE+2}, {sr(S_WS,4)}, s{sGO} offen sc1
s_mov_b32 exec_hi, -1
''')
e()
POOL = [vWF + 4*i for i in range(8)] + [vE + 4*i for i in range(4)]
def wfrag(t, c): return POOL[(4*t + c) % 12]
def w2reads(t):
    return [f'ds_read_b64_tr_b16 {vr(wfrag(t, c) + 2*h, 2)}, v{vWA+c} offset:{4096*t + 512*h}' for c in range(4) for h in range(2)]
k.wait_lg_all()
if not cfg.l8:
    for r in w2reads(0) + w2reads(1): k(r)
assert done[0] >= 80
if cfg.xo7:
    for f in F7: f()
k(f'v_lshl_add_u32 v{vL4}, v{vLANE}, 2, s{sCK}')
if cfg.l8: k.wait_vm_tok(tokQ[8])
k('s_barrier')
stamp('B8')
if cfg.l8:
    for r in w2reads(0) + w2reads(1): k(r)
k(f's_setprio {cfg.prg1}')
MV = {0: (), 1: (0, 1), 2: (2, 3), 3: (4,)}
for t in range(16):
    if t in (4, 8, 12):
        k.wait_vm_tok(tokQ[{4: 11, 8: 13, 12: 14}[t]])
        if t > 4: wait_regs(range(vWR + 16*MV[t//4 - 1][0], vWR + 16*MV[t//4 - 1][-1] + 16))
        k('s_barrier')
        stamp(f'B{8 + t//4}')
    if t % 4 == 0:
        D = take(8 + t//4)
        nd = 2*((len(D) + 7) // 8)
        Mv = moves([r_ for r_ in MV[t//4] if r_ >= cfg.xs])
        if cfg.nomv & 2: Mv = [x for x in Mv if not x.startswith('ds_')]
    R = w2reads(t + 2) if t + 2 < 16 else []
    X = D[nd*(t%4):nd*(t%4)+nd]
    nm = (len(Mv) + 2) // 3
    Y = Mv[nm*(t%4):nm*(t%4)+nm]
    Z = []
    for i in range(4): Z += R[2*i:2*i+1] + X[(i*len(X)+3)//4:((i+1)*len(X)+3)//4] + R[2*i+1:2*i+2] + Y[(i*len(Y)+3)//4:((i+1)*len(Y)+3)//4]
    R = Z
    wait_regs([wfrag(t, c) + i for c in range(4) for i in range(4)])
    M = [mf(vAC2 + ((c >> 1)*2 + rt)*8 + (c & 1)*4, wfrag(t, c), xreg(t, rt), vr(CI + 4*c, 4) if t == 0 else None) for c in range(4) for rt in range(2)]
    if cfg.m32: M = [f'v_mfma_f32_32x32x16_bf16 {vr(vAC2+16*(c&1),16)}, {vr(wfrag(t, c),4)}, {vr(xreg(t, c>>1),4)}, {vr(vAC2+16*(c&1),16) if t or c > 1 else 0}' for c in range(4)]
    j = 0
    for i, m in enumerate(M):
        k(m)
        tgt = ((i + 1) * len(R) + len(M) - 1) // len(M)
        while j < tgt: emit(R[j]); j += 1
assert not STREAM
k.wait_vm_tok(tokQ[17])
k.wait_lg_all()
k('s_barrier')
stamp('B12')
k(f's_setprio {cfg.pe1}')
k(f's_cmp_eq_u32 s{sTYPE}, 1\ns_cbranch_scc1 L_G1B')
snap1 = k.snapshot(); nst1 = nst[0]
C0_1 = 8
def early(n): return [f for r in range(n) for f in loadA(r)]
def wpairs(lo, hi):
    L = []
    for r in range(lo, hi):
        it = item(10 + r)
        for i in range(0, 8, 2): L.append(lambda a=it[i], b=it[i+1]: (a(), b()))
    return L
def fill(n, lo, hi): return early(n) + wpairs(lo, hi) if cfg.afirst else wpairs(lo, hi) + early(n)
W0 = NW1 + cfg.wa1
consts('A', C0_1)
GG = 4
gtexts = [f'buffer_load_dwordx2 {vr(GG+2*rt,2)}, v3, {sr(S_WS,4)}, s{sGO} offen offset:{128*rt} sc1' for rt in range(2)]
k(f'v_and_b32 v3, 15, v{vLANE}\nv_lshlrev_b32 v3, 3, v3')
for t in gtexts: k(t)
PQ = vAW + 32
assert cfg.e1a <= 4
V = stx('e1') + phi(vAC2, PQ, vE, C0_1, cfg.pk) + phi(vAC2 + 16, PQ + 8, vE, C0_1, cfg.pk) + stx('e2')
if cfg.e1la:
    for v in V: k(v)
    if cfg.e1la == 1:
        for f in early(cfg.e1a): f()
else: weave_int(V, fill(cfg.e1a, NW1, W0), cfg.gint1, cfg.f1)
k(f'''
v_lshlrev_b32 v10, 3, v{vLANE}
v_lshrrev_b32 v11, 4, v{vLANE}
v_lshlrev_b32 v11, 3, v11
''')
checked(gtexts, [GG+1, GG+3], vE, sN2)
k('s_barrier')
stamp('e3')
KV, ZZ = vE, vE + 8
for c in range(4):
    k(f'ds_read_b64 {vr(ZZ+2*c,2)}, v11 offset:{L_KV + 2048 + 32*c}')
    k(f'ds_read_b64 {vr(KV+2*c,2)}, v10 offset:{L_KV + 512*c}')
if cfg.e1la == 2:
    for f in early(cfg.e1a): f()
DEN = vWF
def idx(c, rt): return ((c >> 1)*2 + rt)*2 + (c & 1)
for c in range(4):
    for rt in range(2):
        i = idx(c, rt)
        k(f'v_mfma_f32_16x16x16_bf16 {vr(DEN+4*i,4)}, {vr(ZZ+2*c,2)}, {vr(PQ+2*i,2)}, 0')
for c in range(4):
    for rt in range(2):
        i = idx(c, rt)
        k(f'v_mfma_f32_16x16x16_bf16 {vr(vAC2+4*i,4)}, {vr(KV+2*c,2)}, {vr(PQ+2*i,2)}, 0')
for i in range(8): k(f'v_add_f32 v{DEN+4*i}, s{sEPS}, v{DEN+4*i}')
for i in range(8): k(f'v_rcp_f32 v{DEN+4*i}, v{DEN+4*i}')
for i in range(8): k(f'v_mul_f32 v{DEN+4*i}, v{DEN+4*i}, v{GG + 2*((i >> 1) & 1)}')
OO = PQ
stamp('e4')
for f in range(4):
    for i in (2*f, 2*f + 1):
        for h in range(2):
            k(f'v_pk_mul_f32 {vr(vAC2+4*i+2*h,2)}, {vr(vAC2+4*i+2*h,2)}, {vr(DEN+4*i,2)} op_sel_hi:[1,0]')
    for j in range(4): k(f'v_cvt_pk_bf16_f32 v{OO+4*f+j}, v{vAC2+8*f+2*j}, v{vAC2+8*f+2*j+1}')
    if f & 1:
        for t in strec(OO + 4*f - 4, sH, STP*(f >> 1), vE + 2*f): k(t)
for r in range(cfg.e1a, max(cfg.e1a, cfg.e1b)):
    for f in loadA(r): f()
k('s_branch L_P2_1')
vmA = [dict(x) for x in k.vm]
k.label('L_G1B')
k.restore(snap1); nst[0] = nst1
consts('B', C0_1)
V = stx('e1') + gelu(vAC2, vWF, vE, C0_1, cfg.pk) + stx('e2') + strec(vWF, sH, 0, vWF + 16) + stx('e3')
if cfg.e1l:
    for v in V: k(v)
    V = gelu(vAC2 + 16, vWF + 8, vE, C0_1, cfg.pk) + stx('e4')
    n0 = {1: 0, 2: len(V) // 2, 3: len(V) - 10}[cfg.e1l]
    for v in V[:n0]: k(v)
    weave(V[n0:], early(cfg.e1b))
    for v in strec(vWF + 8, sH, STP, vWF + 18): k(v)
else:
    V += gelu(vAC2 + 16, vWF + 8, vE, C0_1, cfg.pk) + stx('e4') + strec(vWF + 8, sH, STP, vWF + 18)
    weave_int(V, fill(cfg.e1b, NW1, W0), cfg.gint1, cfg.f1)
for r in range(cfg.e1b, max(cfg.e1a, cfg.e1b)):
    for f in loadA(r): f()
phase2(1, vmA, max(cfg.e1a, cfg.e1b), 15)

WT = [f'buffer_load_dword v10, v{vE+6}, {sr(S_W2,4)}, s{sT0} offen', f'buffer_load_dword v11, v{vE+7}, {sr(S_WO,4)}, s{sT2} offen']
def stouch(part=0):
    k(f'''
    s_mul_i32 s{sT0}, s2, {43*128}
    s_mul_i32 s{sT2}, s{sW}, {11*128}
    s_min_u32 s{sT2}, s{sT2}, {32*128}
    s_add_u32 s{sT0}, s{sT0}, s{sT2}
    s_lshl2_add_u32 s{sT2}, s2, s{sW}
    s_lshl_b32 s{sT2}, s{sT2}, 9
    s_mov_b32 s{S_W2+2}, {1376*1024}
    s_mov_b32 s{S_W2+3}, 0x20000
    s_mov_b32 s{S_WO+2}, {512*1024}
    s_mov_b32 s{S_WO+3}, 0x20000
    ''')
    if part < 2: k.wait_lg_all()
    op, dst, o = ('dword', 'vcc_lo', 0) if cfg.wts in (1, 3) else ('dwordx2', 'vcc', 60)
    L = [f'    s_buffer_load_{op} {dst}, {sr(S_W2,4)}, s{sT0} offset:{128*i+o}' for i in range(11 if cfg.wts != 3 else 1)]
    L += [f'    s_buffer_load_{op} {dst}, {sr(S_WO,4)}, s{sT2} offset:{128*i+o}' for i in range(4 if cfg.wts != 3 else 1)]
    if part == 1: L = L[:cfg.wn1]
    if part == 2: L = L[cfg.wn1:]
    for t in L: k.raw(t)
    k.smem_pending.add(('s', 'vcc'))
def wtouch():
    if cfg.wts == 5: stouch(2)
    elif cfg.wts and cfg.wsp == 1: stouch()
    if not cfg.wtouch: return
    if cfg.tx:
        G = f'''
        s_lshr_b32 s{sT3}, s2, 3
        s_and_b32 s{sT4}, s2, 3
        s_lshl2_add_u32 s{sT4}, s{sT3}, s{sT4}
        s_lshl1_add_u32 s{sT0}, s{sT4}, s{sW}
        s_sub_u32 s{sT0}, s{sT0}, 1
        s_mul_i32 s{sT0}, s{sT0}, {43*128}
        s_lshl_b32 s{sT2}, s{sT4}, 12
        s_sub_u32 s{sT4}, s{sW}, 1
        s_cmp_le_u32 s{sT4}, 1
        s_cselect_b32 s{sT0}, s{sT0}, {hex(OOB)}
        s_cmp_eq_u32 s{sW}, 2
        s_cselect_b32 s{sT2}, s{sT2}, {hex(OOB)}
        s_bitcmp1_b32 s2, 2
        s_cselect_b32 s{sT0}, {hex(OOB)}, s{sT0}
        s_cselect_b32 s{sT2}, {hex(OOB)}, s{sT2}
        s_movk_i32 s{sT5}, 31
        '''
    else:
        G = f'''
        s_lshr_b32 s{sT3}, s2, 3
        s_mul_i32 s{sT0}, s2, {43*128}
        s_lshl_b32 s{sT2}, s2, 11
        s_cmp_eq_u32 s{sW}, 1
        s_cselect_b32 s{sT0}, s{sT0}, {hex(OOB)}
        s_cmp_eq_u32 s{sW}, 2
        s_cselect_b32 s{sT2}, s{sT2}, {hex(OOB)}
        s_movk_i32 s{sT5}, 15
        '''
    k(G)
    if cfg.c3o: k(f's_mov_b32 s{sT0}, {hex(OOB)}\ns_mov_b32 s{sT2}, {hex(OOB)}')
    k(f's_movk_i32 s{sT1}, 7')
    if cfg.c3: k(f'''
        s_mul_i32 s{sT4}, s{sT3}, {43*1024}
        s_add_u32 s{sT4}, s{sT4}, 384
        s_cmp_eq_u32 s{sW}, 0
        s_cselect_b32 s{sT0}, s{sT4}, s{sT0}
        s_cselect_b32 s{sT1}, 10, s{sT1}
        s_lshl_b32 s{sT4}, s{sT3}, 14
        s_add_u32 s{sT4}, s{sT4}, 384
        s_cmp_eq_u32 s{sW}, 3
        s_cselect_b32 s{sT2}, s{sT4}, s{sT2}
        s_cselect_b32 s{sT1}, 10, s{sT1}
        s_cselect_b32 s{sT5}, 15, s{sT5}
        ''')
    k(f'''
    v_min_u32 v{vE+6}, 42, v{vLANE}
    v_and_b32 v{vE+7}, s{sT5}, v{vLANE}
    v_lshlrev_b32 v{vE+6}, s{sT1}, v{vE+6}
    v_lshlrev_b32 v{vE+7}, s{sT1}, v{vE+7}
    ''')
    if cfg.wtd < 0:
        for t in WT: k(t)
k.label('L_G0')
k.restore(snapE); nst[0] = nstE; tokQ.clear(); p2w[0] = 0; curg[0] = 0
if cfg.kk:
    k.raw(f'''    s_cmp_lg_u32 s{sWAVE}, 3
    s_cbranch_scc1 L_nokk
    s_mov_b32 s{S_X+2}, 0x200000
    s_mov_b32 s{S_X+3}, 0x20000
    s_mov_b32 s{S_W+2}, {512*2752}
    s_mov_b32 s{S_W+3}, 0x20000
    s_lshl_b32 s{sT0}, s{sRB}, 17
    s_mul_i32 s{sT1}, s{sROT}, {64*2752 if cfg.kk == 1 else 0}
    v_and_b32 v10, {0 if cfg.kk == 1 else 3}, v{vLANE}
    v_lshlrev_b32 v10, 15, v10
    v_mul_u32_u24 v11, {0 if cfg.kk == 1 else 22016 if cfg.kk == 2 else 88064}, v{vLANE}
    s_waitcnt lgkmcnt(0)
    buffer_load_dword v10, v10, {sr(S_X,4)}, s{sT0} offen
    buffer_load_dword v11, v11, {sr(S_W,4)}, s{sT1} offen
L_nokk:''')
if cfg.cp:
    k.raw(f'''    s_cmp_lg_u32 s{sWAVE}, {cfg.cp - 1}
    s_cbranch_scc1 L_nocp
    s_getpc_b64 {sr(sT0,2)}
L_pc:
    s_sub_u32 s{sT0}, s{sT0}, L_pc-{KNAME}
    s_subb_u32 s{sT0+1}, s{sT0+1}, 0
    s_lshr_b32 s{sT2}, s2, 3
    s_and_b32 s{sT2}, s{sT2}, {cfg.cpm}
    s_lshl_b32 s{sT2}, s{sT2}, 13
    v_lshl_add_u32 v10, v{vLANE}, 7, s{sT2}
    v_min_u32 v10, L_end-{KNAME}, v10
    global_load_dword v10, v10, {sr(sT0,2)}
L_nocp:''')
if cfg.ka: k(KA2)
k(f's_or_b32 s{sT5}, s2, s{sWAVE}')
e = side('L_noclr', f's_cmp_lg_u32 s{sT5}, 0')
k(f'''
s_mov_b32 s{sT0}, {WS_EP}
buffer_load_dword v{vE+8}, off, {sr(S_WS,4)}, s{sT0} sc1
s_waitcnt vmcnt(0)
v_add_u32 v{vE+8}, 2, v{vE+8}
v_or_b32 v{vE+8}, 1, v{vE+8}
s_mov_b64 exec, 1
buffer_store_dword v{vE+8}, off, {sr(S_DBG,4)}, 0 sc1
buffer_store_dword v{vE+8}, off, {sr(S_WS,4)}, s{sT0} sc1
s_mov_b64 exec, -1
''')
e()
if cfg.stamps == 7:
    k.wait_lg_all()
    for nm in ('ka', 'i0', 'i1', 'f0', 'f1'): stamp(nm)
if cfg.wts and cfg.wsp == 0 and cfg.wts != 5: stouch()
if not cfg.lb: common_setup(0)
vEP, C0_0 = 4, 6
k(f's_cmp_eq_u32 s{sTYPE}, 1\ns_cbranch_scc1 L_G0B')
snap0 = k.snapshot(); nst0 = nst[0]
CI0 = vWF

def TL():
    L = []
    T = sT1
    if cfg.tlm & 1: L += [f's_lshl_b32 s{T}, s{sSLAB}, 16', f'buffer_load_dword v{vE+8}, off, {sr(S_OUT,4)}, s{T}']
    if cfg.tlm & 2: L += [f's_lshl2_add_u32 s{T}, s{sRB}, s{sW}', f's_mul_i32 s{T}, s{T}, {RTS}', f's_add_u32 s{T}, s{T}, {21*4096+2048}', f'buffer_load_dword v{vE+9}, off, {sr(S_WS,4)}, s{T}',
                          f's_mov_b32 s{T}, {WS_EP+64}', f'buffer_load_dword v{vE+10}, off, {sr(S_WS,4)}, s{T}',
                          f's_lshr_b32 s{T}, s{sRB}, 1', f's_mul_i32 s{T}, s{T}, {RTS}', f's_add_u32 s{T}, s{T}, {WS_CB + 21*4096 + 256}', f'buffer_load_dword v{vE+13}, off, {sr(S_WS,4)}, s{T}']
    if cfg.tlm & 4: L += [f's_and_b32 s{T}, s{sW}, 1', f's_lshl1_add_u32 s{T}, s{sSLAB}, s{T}', f's_mul_i32 s{T}, s{T}, {RTS}', f's_add_u32 s{T}, s{T}, {21*4096+2048}', f'buffer_load_dword v{vE+11}, off, {sr(S_WS,4)}, s{T}',
                          f's_lshr_b32 s{T}, s{sSLAB}, 2', f's_mul_i32 s{T}, s{T}, {RTS}', f's_add_u32 s{T}, s{T}, {WS_CB + 21*4096 + 256}', f'buffer_load_dword v{vE+12}, off, {sr(S_WS,4)}, s{T}']
    return L
def pass1(typ):
    nfr = 10 if typ == 'A' else 8
    def fr(t, i): return vWR + 4*(nfr*(t & 1) + i)
    def reads(t):
        s, kk = t >> 1, t & 1
        off = ((s % 5) * 32768) % 65536
        X = lambda i, f: f'ds_read_b128 {vr(fr(t, f), 4)}, v{vXR+kk} offset:{off + 2048*i}'
        W = lambda a, u, f: [f'ds_read_b64_tr_b16 {vr(fr(t, f) + 2*h, 2)}, v{vWA+a} offset:{off + 16384 + 8192*u + 4096*kk + 512*h}' for h in range(2)]
        if typ == 'A':
            return W(0, 0, 8) + [X(0, 0)] + W(0, 1, 9) + [X(i, i) for i in range(1, 8)]
        return W(0, 0, 4) + [X(0, 0), X(1, 1)] + W(1, 0, 5) + [X(2, 2), X(3, 3)] + W(0, 1, 6) + W(1, 1, 7)
    def mms(t):
        if typ == 'A':
            return [(mf(vAW + 32*u + 4*i, fr(t, i), fr(t, 8+u), (vr(CI0, 4) if u == 0 else '0') if t == 0 else None), (i, 8+u)) for i in range(8) for u in range(2)]
        order = [(0,0),(0,1),(1,0),(1,1),(0,2),(0,3),(1,2),(1,3)] + [(w, i) for w in (2, 3) for i in range(4)]
        return [(mf(vAW + (((w >> 1)*4 + i + 6) % 8)*8 + (w & 1)*4, fr(t, 4+w), fr(t, i), vr(CI0 + 4*w, 4) if t == 0 else None), (i, 4+w)) for w, i in order]
    na = 1 if typ == 'A' else 2
    if cfg.lb and cfg.stamps == 7: k(LB2)
    if cfg.prio: k(f's_setprio {cfg.prio}')
    k('s_barrier')
    stamp('B0')
    for r in reads(0): k(r)
    win = 0
    for t in range(16):
        R = []
        if t % 2 == 1:
            s = (t + 1) // 2
            k('s_barrier')
            stamp(f'B{s}')
            w = ((s % 5) * 32768) >> 16
            if s < 8 and w != win:
                d = hex(((w - win) << 16) & 0xffffffff); win = w
                R += [f'v_add_u32 v{vWA+a}, {d}, v{vWA+a}' for a in range(na)] + [f'v_add_u32 v{vXR+a}, {d}, v{vXR+a}' for a in range(2)]
        if t + 1 < 16: R += reads(t + 1)
        if t == 8: R.append(DBTEXT(vEP))
        if cfg.lb and cfg.stamps != 7 and t == 4: R += LB2.split('\n')
        if t == cfg.tl: R += TL()
        if cfg.wtouch and t == cfg.wtd: R.append(WT[0])
        if cfg.wtouch and cfg.wtd >= 0 and t == cfg.wtd + cfg.wtd2: R.append(WT[1])
        M = mms(t)
        if cfg.nog0 & 1: R = [x for x in R if not x.startswith('ds_')]
        if cfg.nog0 & 2: M = [('s_nop 0', f) for m, f in M]
        j = 0
        for i, (m, fs) in enumerate(M):
            if i % 8 == 0:
                wait_regs([fr(t, f) + q for mm in M[i:i+8] for f in mm[1] for q in range(4)])
            k(m)
            tgt = min(len(R), ((i + 1) * len(R) + 11) // 12)
            while j < tgt: k(R[j]); j += 1
    if cfg.prio: k('s_setprio 0')

def pass2(V, nv, extra=[]):
    assert W0 + cfg.g4 <= 13 or cfg.g4 == 0
    V = list(V)
    if cfg.prio2: k(f's_setprio {cfg.prio2}')
    get_epoch(vEP)
    if cfg.xs: k(f'v_add_u32 v{vXR}, {RTS}, v{vA}\nv_add_u32 v{vXR+1}, {RTS}, v{vA+1}')
    p2w[0] = 0
    for i in range(4):
        F = moves(MV[i])
        if cfg.nomv & 1: F = [x for x in F if not x.startswith('ds_')]
        if cfg.mvb == 1:
            for x in F: k(x)
            F = []
        if i == 3: F += [f for r in range(W0, W0 + cfg.g4) for f in item(10 + r)] + extra
        n = nv - len(F) // 2
        if cfg.nv0 and nv == cfg.nvb: n = cfg.nv0 if i == 0 else nv if i < 3 else 999
        if cfg.mvb == 2:
            weave(V[:n], []); weave([], F)
        else: weave(V[:n], F)
        V = V[n:]
        k.wait_lg_all()
        k('s_barrier')
        stamp(f'B{9+i}')
    k(f's_setprio {cfg.pe0}')
    return V

W1 = W0 + cfg.g4; W2 = min(15, W1 + cfg.we0)
if cfg.wts == 5: stouch(1)
if cfg.lb: common_setup(0)
if not cfg.kv2: k(f'''
s_lshl2_add_u32 s{sT0}, s{sGRP}, s{sW}
s_lshl4_add_u32 s{sT1}, s{sT0}, s{sRB}
s_lshl_b32 s{sH}, s{sT1}, 10
s_add_u32 s{sH}, s{sH}, {WS_KVP}
v_and_b32 v{vE+5}, 1, v{vLANE}
v_cmp_eq_u32 {sr(sH+1,2)}, 1, v{vE+5}
v_lshlrev_b32 v8, 3, v{vLANE}
s_lshl_b32 s{sT1}, s{sW}, 9
v_add_u32 v8, s{sT1}, v8
v_lshlrev_b32 v9, 2, v{vE+5}
v_lshl_add_u32 v9, v{vE+3}, 3, v9
s_lshl_b32 s{sT0}, s{sW}, 5
v_add_u32 v9, s{sT0}, v9
''')
SEL, SD = vWF + 16, vWF + 20
if cfg.kv2:
    k(f'''
    s_lshl2_add_u32 s{sT0}, s{sGRP}, s{sW}
    s_lshl4_add_u32 s{sT1}, s{sT0}, s{sRB}
    s_lshl_b32 s{sH}, s{sT1}, 9
    s_add_u32 s{sH}, s{sH}, {WS_KVP}
    s_lshl_b32 s{sH+1}, s{sT1}, 6
    s_add_u32 s{sH+1}, s{sH+1}, {WS_KVP + 0x40000}
    v_lshlrev_b32 v8, 3, v{vLANE}
    s_lshl_b32 s{sT1}, s{sW}, 9
    v_add_u32 v8, s{sT1}, v8
    s_lshl_b32 s{sT0}, s{sW}, 5
    v_lshl_add_u32 v9, v{vE+3}, 3, s{sT0}
    v_lshrrev_b32 v{vE+8}, 1, v{vE+3}
    v_lshl_add_u32 v{vE+8}, v{vE+8}, 4, v{vE+2}
    v_and_b32 v{vE+9}, 1, v{vE+3}
    v_lshl_add_u32 v{vE+8}, v{vE+8}, 1, v{vE+9}
    v_lshlrev_b32 v3, 3, v{vE+8}
    v_lshlrev_b32 v5, 4, v{vE+3}
    v_lshl_add_u32 v12, v{vE+2}, 6, v5
    v_lshl_add_u32 v5, v{vE+2}, 26, v5
    v_lshrrev_b32 v{vE+8}, 1, v{vE+2}
    v_lshlrev_b32 v{vE+9}, 2, v{vE+9}
    v_xor_b32 v{vE+8}, v{vE+8}, v{vE+9}
    v_and_b32 v{vE+9}, 1, v{vE+2}
    v_lshlrev_b32 v{vE+9}, 4, v{vE+9}
    v_mov_b32 v{vE+10}, 0x3f80
    v_lshlrev_b32 v{vE+10}, v{vE+9}, v{vE+10}
    ''')
    for r in range(4): k(f'v_cmp_eq_u32 vcc, {r}, v{vE+8}\nv_cndmask_b32 v{SEL+r}, 0, v{vE+10}, vcc')
xw_addr('0', f's{sT0}')
wtouch()
consts('A', C0_0)
for i in range(4): k(f'v_mov_b32 v{CI0+i}, s{sEPS}')
ONES = vWF + 4
for i in range(4): k(f'v_mov_b32 v{ONES+i}, 0x3f803f80')
pass1('A')
PK, VV = vAC2, vAC2 + 16
KVA, ZA = vWF + 8, vWF + 12
V = phi(vAW, PK, vE, C0_0, 0)
V += [f'v_cvt_pk_bf16_f32 v{VV+i}, v{vAW+32+2*i}, v{vAW+32+2*i+1}' for i in range(16)]
V += [mf(KVA, PK, VV, '0'), mf(ZA, PK, ONES, '0'), mf(KVA, PK+4, VV+4), mf(ZA, PK+4, ONES)]
V += phi(vAW + 16, PK + 8, vE, C0_0, 0)
V += [mf(KVA, PK+8, VV+8), mf(ZA, PK+8, ONES), mf(KVA, PK+12, VV+12), mf(ZA, PK+12, ONES)]
V += [f'v_cvt_pk_bf16_f32 v{vE+i}, v{KVA+2*i}, v{KVA+2*i+1}' for i in range(4)]
if not cfg.kv2:
    V += [f'v_cndmask_b32_e64 v{vE+2}, v{vE+2}, v{vE+3}, {sr(sH+1,2)}', f'v_mov_b32 v{vE+3}, s{sN}', st4(vE, sH, 0)]
    KB = vAC2
    kt = [f'buffer_load_dwordx4 {vr(KB+4*r,4)}, v{vL16}, {sr(S_WS,4)}, s{sH + r//4} offen offset:{1024*(r%4)} sc1' for r in range(16)]
    V += [f's_and_b32 s{sH}, s{sH}, 0xffffc000', f's_add_u32 s{sH+1}, s{sH}, 4096', f's_add_u32 s{sH+2}, s{sH}, 8192', f's_add_u32 s{sH+3}, s{sH}, 12288']
ROR = lambda op, r, n: f'{op}_dpp v{r}, v{r}, v{r} row_ror:{n} row_mask:0xf bank_mask:0xf'
if cfg.kv2:
    V += [f'v_add_u32 v{vE+4}, v{vE}, v{vE+1}', f'buffer_store_dwordx2 {vr(vE,2)}, v3, {sr(S_WS,4)}, s{sH} offen sc1']
    V += [ROR('v_add_u32', vE + 4, n) for n in (8, 4, 2, 1)]
    V += [f'v_add3_u32 v{vE+4}, v{vE+4}, v{vE+2}, v{vE+3}', f'v_sub_u32 v{vE+4}, s{sN}, v{vE+4}',
          f'buffer_store_dwordx3 {vr(vE+2,3)}, v5, {sr(S_WS,4)}, s{sH+1} offen sc1']
    KB = vAC2
    kt = [f'buffer_load_dwordx3 {vr(SD,3)}, v12, {sr(S_WS,4)}, s{sH+1} offen sc1']
    kt += [f'buffer_load_dwordx4 {vr(KB+4*r,4)}, v{vL16}, {sr(S_WS,4)}, s{sH + 2*(r//4)} offen offset:{1024*(r%4)} sc1' for r in range(8)]
    V += [f's_and_b32 s{sH}, s{sH}, 0xffffe000', f's_add_u32 s{sH+2}, s{sH}, 4096', f's_and_b32 s{sH+1}, s{sH+1}, 0xfffffc00', f's_lshl_b32 s{sH+3}, s{sN}, 6']
if cfg.kve: assert len(V) <= 3*cfg.nva - 40
V = pass2(V, cfg.nva, kt if cfg.kve else [])
for v in V: k(v)
if not cfg.kve:
    for t in kt: k(t)
stamp('e1')
for f in fill(cfg.e0a, W1, W2): f()
stamp('e2')
if not cfg.kv2:
    k(f's_lshl_b32 s{sT5}, s{sN}, 4\ns_mov_b32 s{sSEL0}, 0x00003f80\ns_mov_b32 s{sSEL1}, 0x3f800000')
    checked(kt, [KB + 4*r + 3 for r in range(16)], vE, sT5)
    stamp('e3')
    SUM = vE
    V = []
    for r in range(16):
        for j in range(3):
            for h in range(2):
                d = SUM + 6*(r & 1) + 2*j + h
                V.append(f'v_dot2_f32_bf16 v{d}, v{KB+4*r+j}, s{sSEL0+h}, {"0" if r < 2 else "v%d" % d}')
    for i in range(0, 6, 2): V.append(f'v_pk_add_f32 {vr(SUM+i,2)}, {vr(SUM+i,2)}, {vr(SUM+6+i,2)}')
    for i in range(3): V.append(f'v_cvt_pk_bf16_f32 v{vE+12+i}, v{SUM+2*i}, v{SUM+2*i+1}')
    weave(V, [f for r in range(cfg.e0a, max(cfg.e0a, cfg.e0b)) for f in loadA(r)])
    k(f'ds_write_b64 v8, {vr(vE+12,2)} offset:{L_KV}')
    k(f'ds_write_b32 v9, v{vE+14} offset:{L_KV + 2048}')
else:
    k.label('L_kvc')
    k('s_nop 1')
    Z, T, D = vE, vE + 4, vE + 8
    V = unpack4(Z, SD) + [f'v_add3_u32 v{T}, v{SD}, v{SD+1}, v{SD+2}']
    V += [ROR('v_add_f32', Z + i, n) for n in (8, 4, 2, 1) for i in range(4)]
    V += [f'v_cvt_pk_bf16_f32 v{Z+i}, v{Z+2*i}, v{Z+2*i+1}' for i in range(2)] + [f'ds_write_b64 v9, {vr(Z,2)} offset:{L_KV + 2048}']
    V += stx('e3')
    for r in range(8):
        V += [mf(D, SEL, KB + 4*r, '0' if r == 0 else None), f'v_add3_u32 v{T}, v{T}, v{KB+4*r}, v{KB+4*r+1}']
        V += [f'v_add3_u32 v{T+1}, v{T+1}, v{KB+4*r+2}, v{KB+4*r+3}' if r else f'v_add_u32 v{T+1}, v{KB+2}, v{KB+3}']
    for v in V: k(v)
    V = [f'v_add_u32 v{T}, v{T}, v{T+1}'] + [ROR('v_add_u32', T, n) for n in (8, 4, 2, 1)]
    V.insert(3, f'v_cvt_pk_bf16_f32 v{D}, v{D}, v{D+1}'); V.insert(5, f'v_cvt_pk_bf16_f32 v{D+1}, v{D+2}, v{D+3}')
    V += [f'v_mov_b32 v{T+1}, v{T}', f'ds_write_b64 v8, {vr(D,2)} offset:{L_KV}', f'v_permlane16_swap_b32 v{T}, v{T+1}', f'v_add_u32 v{T}, v{T}, v{T+1}',
          f'v_mov_b32 v{T+1}, v{T}', f'v_permlane32_swap_b32 v{T}, v{T+1}', f'v_add_u32 v{T}, v{T}, v{T+1}', f'v_cmp_ne_u32 vcc, s{sH+3}, v{T}']
    weave(V, [f for r in range(cfg.e0a, max(cfg.e0a, cfg.e0b)) for f in loadA(r)] if cfg.kv2 == 1 else [])
    if not cfg.nocheck: k('s_cbranch_vccnz L_kvs')
    k.label('L_kvd')
    s_ = Kern()
    s_.label('L_kvs')
    s_(f's_sub_u32 s{sSPIN}, s{sSPIN}, 1\ns_cbranch_scc1 L_kvg\ns_nop 7\ns_nop 3')
    for t in kt: s_(t)
    s_('s_waitcnt vmcnt(0) lgkmcnt(0)\ns_branch L_kvc')
    s_.label('L_kvg')
    s_(f's_mov_b32 s{sSPIN}, 0\ns_branch L_kvd')
    slow.append(s_.text())
k.wait_lg_all()
stamp('e4')
k('s_barrier')
if cfg.kv2 == 2:
    for r in range(cfg.e0a, max(cfg.e0a, cfg.e0b)):
        for f in loadA(r): f()
k('s_branch L_P2_0')
vmA = [dict(x) for x in k.vm]

k.label('L_G0B')
k.restore(snap0); nst[0] = nst0; tokQ.clear()
k(f'''
s_and_b32 s{sT2}, s{sW}, 1
s_lshl_b32 s{sT2}, s{sT2}, 6
s_mul_i32 s{sT0}, s{sGRP}, 384
s_add_u32 s{sT0}, s{sT0}, s{sT2}
v_lshrrev_b32 v{vE+5}, 4, v{vLANE}
v_lshlrev_b32 v{vE+5}, 3, v{vE+5}
''')
srd_tail(S_B1, 2752)
if cfg.nb1 & 1: k(f's_mov_b32 s{sT0}, {hex(OOB)}')
for w in range(4):
    k(f'buffer_load_dwordx2 {vr(CI0 + 4*w, 2)}, v{vE+5}, {sr(S_B1,4)}, s{sT0} offen offset:{128*(w >> 1) + 32*(w & 1)}')
if cfg.wts == 5: stouch(1)
if cfg.lb:
    common_setup(0)
    k(f's_and_b32 s{sT2}, s{sW}, 1\ns_lshl_b32 s{sT2}, s{sT2}, 6')
k(f'''
s_mul_i32 s{sT0}, s{sGRP}, {3*UNT}
s_and_b32 s{sT1}, s{sW}, 2
s_lshl2_add_u32 s{sT1}, s{sRB}, s{sT1}
''')
ck_off(sT3, sT1)
k(f'''
s_mul_i32 s{sT4}, s{sT2}, {1792//64}
s_sub_u32 s{sT3}, s{sT3}, s{sT4}
v_lshl_add_u32 v{vL4}, v{vLANE}, 2, s{sT3}
v_subrev_u32 v5, {RTS - 512}, v{vL4}
s_mul_i32 s{sT1}, s{sT1}, {RTS}
s_add_u32 s{sT1}, s{sT1}, s{sT0}
s_mul_i32 s{sT3}, s{sT2}, {STP//64}
s_add_u32 s{sH}, s{sT1}, s{sT3}
s_add_u32 s{sH+1}, s{sH}, {RTS}
s_add_u32 s{sH+2}, s{sH}, {UNT}
s_add_u32 s{sH+3}, s{sH+1}, {UNT}
s_cmp_eq_u32 s{sB7}, 1
s_cselect_b32 s{sH+2}, {hex(OOB)}, s{sH+2}
s_cselect_b32 s{sH+3}, {hex(OOB)}, s{sH+3}
''')
k(f's_and_b32 s{sT1}, s{sW}, 2\ns_lshl_b32 s{sT1}, s{sT1}, 12')
xw_addr(f's{sT1}', f's{sT2}')
k(f'v_xor_b32 v{vWA+1}, 32, v{vWA}')
wtouch()
consts('B', C0_0)
for w in range(4):
    for t in unpack4(CI0 + 4*w, CI0 + 4*w): k(t)
pass1('B')
def btile(i, pk):
    o = vAC2 + 8*i
    S = strec(o, sH + i, 0, vWF + 2*i, 5 if i & 1 else vL4)
    if cfg.pst >= 0: S = [f's_setprio {cfg.pst}'] + S + [f's_setprio {cfg.prio2}']
    return gelu(vAW + 16*((i + 3) % 4), o, vE, C0_0, pk) + S
ntile = min(4, -(-(4*cfg.nvb - 16) // 128)) if not cfg.nv0 else 4
V = []
for i in range(ntile): V += btile(i, cfg.gpk if i or cfg.gpk0 < 0 else cfg.gpk0)
if cfg.e0p:
    assert ntile == 4
    pos = len(V) - 8 - cfg.e0q
    E = early(cfg.e0p)
    step = max(1, cfg.e0q // len(E))
    for i, f in enumerate(E): V.insert(pos + i * (step + 1), f)
V = pass2(V, cfg.nvb)
if cfg.e0p:
    for v in V: emit(v)
    V = []
V = stx('e1') + V + stx('e2')
for i in range(ntile, 4): V += btile(i, cfg.pk) + stx(f'e{i+1}')
weave_int(V, fill(cfg.e0b, W1, W2)[3*cfg.e0p:], cfg.gint, cfg.f0)
for r in range(cfg.e0b, max(cfg.e0a, cfg.e0b)):
    for f in loadA(r): f()
phase2(0, vmA, max(cfg.e0a, cfg.e0b), W2)
k.label('L_fin')
k('s_nop 1')

if cfg.stamps:
    stamp('sto')
    k('s_waitcnt vmcnt(0)')
    stamp('end')
    k(f'''
    s_waitcnt lgkmcnt(0)
    s_cmp_lg_u32 s{sW}, 0
    s_cbranch_scc1 L_end
    ''')
    if cfg.probe >= 0:
        k(f's_cmp_lg_u32 s{sGI}, {cfg.pgrp}\ns_cbranch_scc1 L_end')
        if cfg.ptype >= 0:
            k(f's_cmp_lg_u32 s{sTYPE}, {cfg.ptype}\ns_cbranch_scc1 L_end')
        k(f'''
        s_sub_u32 s{sT0}, s{STREG[cfg.probe]}, s{STREG[0]}
        s_lshl_b32 s{sT0}, s{sT0}, 2
        s_add_u32 s{sT0}, s{sT0}, 5000
        L_probe:
        s_memrealtime s[72:73]
        s_waitcnt lgkmcnt(0)
        s_sub_u32 s{sT1}, s72, s{STREG[0]}
        s_cmp_lt_u32 s{sT1}, s{sT0}
        s_cbranch_scc1 L_probe
        s_branch L_end
        ''')
    k(f'''
    s_mov_b64 exec, 1
    s_lshl1_add_u32 s{sT0}, s2, s{sGI}
    s_mul_i32 s{sT0}, s{sT0}, {8*(nst[0]+1)}
    s_add_u32 s{sT0}, s{sT0}, {STAMP_OFF}
    ''')
    for s in range(nst[0]):
        k(f'v_mov_b32 v4, s{STREG[s]}\nv_mov_b32 v5, s{STREG[s]+1}\nbuffer_store_dwordx2 v[4:5], off, {sr(S_WS,4)}, s{sT0} offset:{8*s}\ns_nop 1')
    k(f'''
    s_sub_u32 s{sT1}, 0x4000, s{sSPIN}
    s_mul_i32 s{sT1}, s{sT1}, 100
    s_add_u32 s{sT1}, s{sT1}, s{STREG[0]}
    s_addc_u32 s{sT2}, s{STREG[0]+1}, 0
    v_mov_b32 v4, s{sT1}
    v_mov_b32 v5, s{sT2}
    buffer_store_dwordx2 v[4:5], off, {sr(S_WS,4)}, s{sT0} offset:{8*nst[0]}
    ''')
k.label('L_end')
k('s_endpgm')

hdr = open('gated_mix__linear_attn_block__dense_activation_gelu__prompt.s.ref').read().split('; @launch')[0]
text = hdr + f'''; @launch grid=(256,1,1) block=(512,1,1) lds={LDS_BYTES}
.amdgcn_target "amdgcn-amd-amdhsa--gfx950"
.text
.globl {KNAME}
.p2align 8
.type {KNAME},@function
{KNAME}:
{k.text()}
{"".join(slow)}
.section .rodata,"a"
.p2align 6
.amdhsa_kernel {KNAME}
  .amdhsa_next_free_vgpr 256
  .amdhsa_next_free_sgpr 102
  .amdhsa_accum_offset 256
  .amdhsa_group_segment_fixed_size 0
  .amdhsa_kernarg_size 96
  .amdhsa_user_sgpr_count 2
  .amdhsa_user_sgpr_kernarg_segment_ptr 1
  .amdhsa_system_sgpr_workgroup_id_x 1
.end_amdhsa_kernel
'''
open(sys.argv[1], 'w').write(text)
print('instructions', k.ninstr, 'nops', k.nnop, 'stamps', nst[0])
```

```python
import sys, struct
from kern import *

KNAME = 'gated_mix__linear_attn_block__dense_activation_gelu__prompt_kernel'
def f32(x): return '0x%08x' % struct.unpack('<I', struct.pack('<f', x))[0]

class Cfg:
    stamps = 0
    xg = 0
    cpe = 0
    fr = 0
    dfb0 = -1
    yb = 0
    al = 0
    alt = 4
    alw = 0
    c4 = 0
    xv = 0
    z1r = 4
    z0x = 0
    ra = 7
    bxp = 30
    xw2 = 0
    es = 0
    wf = 0
    xf = 0
    pf = 0
    nb1 = 0
    kk = 0
    xb = 0
    xbm = 8
    cp = 0
    cpm = 7
    lf = 0
    ce = 0
    aw3 = 0
    a3r = 9
    a3g = 3
    df = 0
    dfb = 4
    dw = 1
    xs = 0
    xw0 = 6
    xw1 = 6
    xd = 0
    xp1 = 0
    xi1 = 4
    z2 = 9
    z21 = -1
    xm = 9
    xrd = 3
    t0 = 99
    t4 = 99
    t7 = 99
    t7a = 99
    t11 = 99
    t11a = 99
    th = 1
    zx = 0
    aw1st = 0
    tl = -1
    tlm = 7
    pad = 0
    q7 = 8
    q8 = 8
    xo7 = 0
    u3p = 0
    gpk = 0
    gpk0 = -1
    nv0 = 0
    pst = -1
    pmv = -1
    aw1 = -1
    l8 = 0
    clk = 0
    rot = 7
    wrot = 3
    wtouch = 1
    wtd = -1
    wtd2 = 0
    kv2 = 0
    aw2 = 0
    amax = 9
    z1 = -1
    sq = 0
    sql = 0
    c3o = 0
    e1l = 0
    e1la = 0
    e0p = 0
    e0q = 30
    nog0 = 0
    nox = 0
    sp2 = 0
    tx = 0
    c3 = 0
    gx = 0
    wn1 = 7
    lb = 1
    ka = 1
    sp1 = 0
    so = 1
    rmul = 1
    rx = 0
    wts = 0
    wsp = 1
    d0 = 2
    nvb = 95
    nva = 95
    gint = 12
    prio = 1
    probe = -1
    pgrp = 0
    ptype = -1
    nocheck = 0
    prio2 = 0
    pk = 1
    ord0 = 8
    ord1 = 6
    lrd0 = 3
    lrd1 = 1
    e0a = 4
    e0b = 4
    e1a = 4
    e1b = 4
    z0 = 4
    q0 = 10
    g4 = 2
    dper = 1
    gint1 = 8
    xo = 2
    q9 = 2
    q10 = 2
    q11 = 0
    wa1 = 0
    we0 = 0
    pe0 = 0
    pe1 = 2
    pp0 = 0
    pp1 = 0
    f0 = 0
    f1 = 0
    afirst = 1
    kve = 0
    slp = 0
    cm = 0
    nomv = 0
    nost = 0
    mvb = 0
    m32 = 0
    m32p = 0
    prg1 = 1
    whit = 0
    u3hit = 0
    aoob = 0
    mp = 0
    ssc = 1
    xr = 1
    asc = 1
    awin = 4
cfg = Cfg()
for a in sys.argv[2:]:
    k_, v_ = a.split('='); setattr(cfg, k_, int(v_))

STP, UNT = 2048, 4096
RTS = 30 * UNT
WS_CB = 64 * RTS
OOBU = 0x7f200000
WS_KVP = 0x880000
WS_G = WS_KVP + 512 * 1024
WS_EP = WS_G + 16384
WS_END = WS_EP + 128
STAMP_OFF = 0x8000000
WS_SIZE = 0x10000000
OOB = 0x7f000000
LDS_BYTES = 163840
L_KV = 2*16384 + 12288
L_RED = 5 * 16384

S_X, S_W, S_B1, S_GW, S_WS, S_DBG, S_W2, S_WO, S_OUT, S_B2 = 8, 12, 16, 20, 24, 28, 32, 36, 40, 44
sWAVE, sW, sRB, sGRP, sTYPE, sROT, sSTP, sW4K, sW2K, sSLAB, sCT, sB7, sSPIN, sN, sN2 = range(48, 63)
sEPS = 63
sC1 = 64
sT0, sT1, sT2, sT3, sT4, sT5 = range(66, 72)
sU = 72
sH = 87
sM21 = 91
sGO = 93
sCK = 88
sSEL0, sSEL1 = 64, 65
sN10 = 23
STREG = [94, 96, 98, 100, 4, 6, 44, 46]
sGI = 3

vLANE, vL16 = 1, 2
vDX, vDW = 3, 7
vDP = 13
vXR = 15
vWA = 17
vP2 = 21
vA = 25
vB2 = 28
vL4 = 12
vWR = 32
vAW = 112
vCS = 160
vAC2 = 176
vWF = 208
vE = 240
vDUM = 0

k = Kern()
slow = []
nst = [0]
SETS = {1: ['st', 'B0', 'B8', 'B12', 'P2', 'r2', 'r11', 'end'],
        2: ['st', 'B0', 'B1', 'B2', 'B3', 'B4', 'B5', 'B6'],
        3: ['st', 'B6', 'B7', 'B8', 'B9', 'B10', 'B11', 'B12'],
        4: ['st', 'P2', 'r0', 'r2', 'r4', 'r6', 'r8', 'r10'],
        5: ['st', 'r10', 'r11', 'r13', 'mm', 'red', 'sto', 'end'],
        6: ['st', 'B12', 'e1', 'e2', 'e3', 'e4', 'P2', 'r0'],
        7: ['st', 'ka', 'i0', 'i1', 'f0', 'f1', 'B0', 'B1'],
        8: ['st', 'P2', 'z1', 'r5', 'r7', 'r9', 'r11', 'end'],
        10: ['st', 'P2', 'p1', 'p2', 'p3', 'z1', 'p4', 'r4'],
        9: ['st', 'P2', 'x0', 'r1', 'z1', 'r3', 'r4', 'r6']}
def stx(name):
    if cfg.stamps and name in SETS[cfg.stamps]:
        return [f'{"s_memtime" if cfg.clk else "s_memrealtime"} {sr(STREG[SETS[cfg.stamps].index(name)], 2)}']
    return []
def stamp(name):
    if cfg.stamps and name in SETS[cfg.stamps]:
        k(f'{"s_memtime" if cfg.clk else "s_memrealtime"} {sr(STREG[SETS[cfg.stamps].index(name)], 2)}')
    nst[0] = 8

def side(label, cond):
    k(cond + f'\ns_cbranch_scc1 {label}')
    snap = k.snapshot(); k.track = False
    def end():
        k('s_nop 7')
        k.out.append(label + ':'); k.restore(snap); k.track = True
    return end

def mf(d, a, b, c=None):
    return f'v_mfma_f32_16x16x32_bf16 {vr(d,4)}, {vr(a,4)}, {vr(b,4)}, {vr(d,4) if c is None else c}'

def wait_regs(regs):
    regs = {('v', r) for r in regs}
    l = None
    for i, op in enumerate(k.lg):
        if op['wr'] & regs: l = len(k.lg) - 1 - i
    if l is not None:
        if k.smem_pending: l = 0
        k.waitcnt(lgkm=l)

def emit(x):
    return x() if callable(x) else k(x)
def weave(V, F):
    n = len(V); j = 0
    if n == 0:
        for f in F: emit(f)
        return
    for i, v in enumerate(V):
        tgt = ((i + 1) * len(F) + n - 1) // n
        while j < tgt: emit(F[j]); j += 1
        emit(v)
def weave_int(V, F, step, front=0):
    F = list(F)
    use = [set(Ins(v).rd) | set(Ins(v).wr) for v in V]
    last = -step
    while front and F and not any(getattr(F[0], 'regs', set()) & u for u in use):
        emit(F.pop(0)); front -= 1; last = 0
    for i, v in enumerate(V):
        if F and i - last >= step and not any(getattr(F[0], 'regs', set()) & u for u in use[i:]):
            emit(F.pop(0)); last = i
        emit(v)
    for f in F: emit(f)

def merge_vm(*paths):
    order, cnt, ent = [], {}, {}
    for vm in sorted(paths, key=lambda v: -sum(1 for o in v if o.get('key') or o['wr'])):
        ks = []
        for i, o in enumerate(vm):
            key = o.get('key') or (o['text'] if o['wr'] else None)
            if key is None: continue
            ks.append(key); ent[key] = o
            cnt[key] = min(cnt.get(key, 99), len(vm) - 1 - i)
        if not order: order = ks
        else: assert order[len(order) - len(ks):] == ks, (order, ks)
    out = []
    for key in reversed(order):
        assert cnt[key] >= len(out)
        while len(out) < cnt[key]: out.insert(0, {'id': -1, 'wr': set(), 'text': '', 'redo': False})
        out.insert(0, dict(ent[key]))
    return out
def wait_key(key):
    for i, o in enumerate(k.vm):
        if o.get('key') == key:
            k.waitcnt(vm=len(k.vm) - 1 - i); return

uid = [0]
def addchain(kk, t, r):
    r = list(r)
    if len(r) == 2:
        kk(f'v_add_u32 v{t}, v{r[0]}, v{r[1]}'); return
    if len(r) <= 9:
        parts = [r[:3] + r[6:], r[3:6]]
    else:
        h = (len(r) // 2) | 1
        parts = [r[:h], r[h:]]
    first = [True, True]
    tail = []
    while parts[0] or parts[1]:
        for c in range(2):
            q = parts[c]
            if not q: continue
            if first[c]:
                parts[c] = q[3:]; first[c] = False
                kk(f'v_add3_u32 v{t+c}, v{q[0]}, v{q[1]}, v{q[2]}')
            elif len(q) >= 2:
                parts[c] = q[2:]
                kk(f'v_add3_u32 v{t+c}, v{t+c}, v{q[0]}, v{q[1]}')
            else:
                parts[c] = []; tail.append(q[0])
    if len(tail) == 2:
        kk(f'v_add3_u32 v{t}, v{t}, v{tail[0]}, v{tail[1]}'); tail = []
    if tail: kk(f'v_add3_u32 v{t}, v{t}, v{t+1}, v{tail[0]}')
    else: kk(f'v_add_u32 v{t}, v{t}, v{t+1}')
def checked(texts, regs, T, expect, defer=False):
    uid[0] += 1; u = uid[0]
    def check(kk):
        if expect is None:
            kk(f'v_cmp_eq_u32 vcc, 0, v{regs[0]}')
            return
        addchain(kk, T, regs)
        kk(f'v_cmp_ne_u32 vcc, s{expect}, v{T}')
    if cfg.nocheck and expect is not None: return []
    def fin():
        vm = [dict(x) for x in k.vm]
        while vm and not vm[0]['redo']: vm.pop(0)
        if cfg.fr == 2: vm = []
        first = cfg.fr == 1 and vm
        k(f's_cbranch_vccnz L_{"first" if first else "slow"}{u}')
        k.label(f'L_back{u}')
        s = Kern()
        if first:
            s.label(f'L_first{u}')
            s(f's_sub_u32 s{sSPIN}, s{sSPIN}, 1\ns_cbranch_scc1 L_give{u}\ns_nop 7\ns_nop 3')
            for t in texts + [op['text'] for op in vm if op['redo']]:
                s(t); s.vm = []
            s('s_waitcnt vmcnt(0)')
            check(s)
            s(f's_cbranch_vccz L_back{u}')
        s.label(f'L_slow{u}')
        s(f's_sub_u32 s{sSPIN}, s{sSPIN}, 1\ns_cbranch_scc1 L_give{u}\ns_nop 7\ns_nop 3')
        if cfg.slp: s(f's_sleep {cfg.slp}')
        for t in texts: s(t)
        s('s_waitcnt vmcnt(0)')
        check(s)
        s(f's_cbranch_vccnz L_slow{u}')
        for op in vm:
            s(op['text'] if op['redo'] else f'buffer_load_dword v{vDUM}, off, {sr(S_DBG,4)}, 0 offset:4080')
            s.vm = []
        s(f's_branch L_back{u}')
        s.label(f'L_give{u}')
        s(f's_mov_b32 s{sSPIN}, 0\ns_waitcnt vmcnt(0)\ns_branch L_back{u}')
        slow.append(s.text())
    L = []
    check(L.append)
    L.append(fin)
    if defer: return L
    for x in L: emit(x)

def srd_tail(base, size):
    k(f's_mov_b32 s{base+2}, {size}\ns_mov_b32 s{base+3}, 0x20000')

MAP = f'''s_lshr_b32 s{sT2}, s2, 5
v_readfirstlane_b32 s{sWAVE}, v{vE}
s_and_b32 s{sT1}, s2, 1
s_lshl3_add_u32 s{sRB}, s{sT1}, s{sT2}
s_bfe_u32 s{sT1}, s2, 0x20003
s_lshl1_add_u32 s{sROT}, s{sT1}, s{sT2}
s_and_b32 s{sROT}, s{sROT}, {cfg.rot}
s_mul_i32 s{sROT}, s{sROT}, {cfg.rmul}
s_mul_i32 s{sT1}, s2, {cfg.rx}
s_add_u32 s{sROT}, s{sROT}, s{sT1}
s_and_b32 s{sROT}, s{sROT}, 7
s_and_b32 s{sT1}, s2, 6
s_xor_b32 s{sT1}, s{sT1}, {cfg.gx}
s_bfe_u32 s{sT2}, s2, 0x10004
s_add_u32 s{sGRP}, s{sT1}, s{sT2}
s_and_b32 s{sT1}, s2, 0x1e
s_cmp_eq_u32 s{sT1}, {0x1e ^ cfg.gx}
s_cselect_b32 s{sB7}, 1, 0''' if not cfg.mp else f'''s_lshr_b32 s{sT2}, s2, 7
v_readfirstlane_b32 s{sWAVE}, v{vE}
s_and_b32 s{sT1}, s2, 7
s_lshl1_add_u32 s{sRB}, s{sT1}, s{sT2}
s_bfe_u32 s{sGRP}, s2, 0x30004
s_lshl2_add_u32 s{sROT}, s{sT2}, s{sGRP}
s_mul_i32 s{sT1}, s{sT1}, {cfg.xr}
s_add_u32 s{sROT}, s{sROT}, s{sT1}
s_and_b32 s{sROT}, s{sROT}, {cfg.rot}
s_and_b32 s{sT1}, s2, 0x78
s_cmp_eq_u32 s{sT1}, 0x78
s_cselect_b32 s{sB7}, 1, 0'''
KA2 = f'''s_load_dwordx2 {sr(S_B1,2)}, s[0:1], 40
s_load_dwordx2 {sr(S_GW,2)}, s[0:1], 64
s_load_dwordx2 {sr(S_W2,2)}, s[0:1], 48
s_load_dwordx2 {sr(S_WO,2)}, s[0:1], 16
s_load_dwordx2 {sr(S_B2,2)}, s[0:1], 56
s_load_dwordx2 {sr(S_OUT,2)}, s[0:1], 72
'''
stamp('st')
k(f'''
s_cmp_ge_u32 s2, 256
s_cbranch_scc1 L_end
s_load_dwordx2 {sr(S_X,2)}, s[0:1], 0
s_bfe_u32 s{sTYPE}, s2, 0x10003
s_mul_i32 s{sT0}, s{sTYPE}, 24
s_add_u32 s{sT0}, s{sT0}, 8
s_load_dwordx2 {sr(S_W,2)}, s[0:1], s{sT0}
s_load_dwordx2 {sr(S_WS,2)}, s[0:1], 88
s_load_dwordx2 {sr(S_DBG,2)}, s[0:1], 80
{'' if cfg.ka else KA2}
v_lshrrev_b32 v{vE}, 6, v0
v_and_b32 v{vLANE}, 63, v0
{MAP}
s_and_b32 s{sW}, s{sWAVE}, 3
s_lshl_b32 s{sW4K}, s{sW}, 12
s_lshl_b32 s{sW2K}, s{sW}, 11
v_lshlrev_b32 v{vL16}, 4, v{vLANE}
v_lshrrev_b32 v{vE}, 3, v{vLANE}
v_and_b32 v{vE+1}, 7, v{vLANE}
s_mov_b32 s{S_WS+2}, {hex(WS_SIZE) if cfg.stamps else hex(WS_END)}
s_mov_b32 s{S_WS+3}, 0x20000
s_mov_b32 s{S_DBG+2}, 256
s_mov_b32 s{S_DBG+3}, 0x20000
s_cmp_lt_u32 s{sWAVE}, 4
s_cbranch_scc1 L_G0
''')
snapE = k.snapshot(); nstE = nst[0]

CMAP = f'''s_lshr_b32 s{sT1}, s2, 6
    s_lshl2_add_u32 s{sSLAB}, s{sT0}, s{sT1}
    s_bfe_u32 s{sCT}, s2, 0x30003
    s_add_u32 s{sT1}, s{sT1}, s{sCT}''' if not cfg.cm else f'''s_bfe_u32 s{sCT}, s2, 0x30004
    s_xor_b32 s{sT1}, s{sCT}, s{sTYPE}
    s_and_b32 s{sT1}, s{sT1}, 1
    s_lshr_b32 s{sT2}, s2, 7
    s_lshl1_add_u32 s{sT1}, s{sT2}, s{sT1}
    s_lshl2_add_u32 s{sSLAB}, s{sT0}, s{sT1}
    s_lshr_b32 s{sT1}, s{sCT}, 1
    s_lshl1_add_u32 s{sT1}, s{sT2}, s{sT1}
    {"s_add_u32 s%d, s%d, s%d" % (sT1, sT1, sTYPE) if cfg.cm == 2 else ""}'''
LB2 = f'''buffer_load_dwordx2 {vr(vB2+2,2)}, v{vB2}, {sr(S_B2,4)}, 0 offen offset:32
buffer_load_dwordx2 {vr(vB2,2)}, v{vB2}, {sr(S_B2,4)}, 0 offen'''
def common_setup(grp):
    srd_tail(S_B1, 2752); srd_tail(S_W2, 1376*1024); srd_tail(S_WO, 512*1024)
    srd_tail(S_B2, 1024); srd_tail(S_OUT, 2048*1024)
    k(f'''
    s_and_b32 s{sT0}, s2, 7
    {CMAP}
    s_and_b32 s{sT1}, s{sT1}, {cfg.wrot}
    s_lshr_b32 s{sT3}, s{sW}, 1
    s_lshl1_add_u32 s{sT1}, s{sT1}, s{sT3}
    s_lshl_b32 s{sU+11}, s{sT1}, 12
    s_cmp_eq_u32 s{sT1}, 7
    s_cselect_b32 s{sT1}, 0, s{sT1}
    s_mul_i32 s{sU}, s{sT1}, 12288
    v_and_b32 v{vE+2}, 6, v{vE}
    v_xor_b32 v{vE+2}, v{vE+2}, v{vE+1}
    v_lshlrev_b32 v{vE+2}, 4, v{vE+2}
    v_lshl_add_u32 v{vDP}, v{vE}, 10, v{vE+2}
    s_lshl_b32 s{sT0}, s{sCT}, 7
    s_and_b32 s{sT2}, s{sW}, 1
    s_lshl_b32 s{sT2}, s{sT2}, 15
    s_add_u32 s{sT2}, s{sT2}, s{sT0}
    v_add_u32 v{vDP}, s{sT2}, v{vDP}
    v_add_u32 v{vDP+1}, 0x2000, v{vDP}
    v_and_b32 v{vE+2}, 15, v{vLANE}
    v_lshrrev_b32 v{vE+3}, 4, v{vLANE}
    v_lshlrev_b32 v{vE+5}, 3, v{vE+3}
    s_and_b32 s{sT2}, s{sW}, 2
    s_lshl_b32 s{sT2}, s{sT2}, 5
    s_add_u32 s{sT0}, s{sT0}, s{sT2}
    v_add_u32 v{vB2}, s{sT0}, v{vE+5}
    {'' if cfg.lb else LB2}
    v_bfe_u32 v{vE+4}, v{vLANE}, 1, 1
    v_and_b32 v{vE+5}, 3, v{vE}
    v_lshl_add_u32 v{vE+4}, v{vE+5}, 1, v{vE+4}
    v_lshlrev_b32 v{vE+4}, 4, v{vE+4}
    v_and_b32 v{vE+5}, 1, v{vLANE}
    v_lshl_add_u32 v{vE+4}, v{vE+5}, 3, v{vE+4}
    v_lshrrev_b32 v{vE+5}, 2, v{vLANE}
    v_lshl_add_u32 v{vE+5}, v{vE+5}, 7, v{vE+4}
    v_add_u32 v{vE+5}, s{sW4K}, v{vE+5}
    v_xor_b32 v{vP2}, s{sT2}, v{vE+5}
    v_xor_b32 v{vP2+1}, 32, v{vP2}
    v_xor_b32 v{vP2+2}, 64, v{vP2}
    v_xor_b32 v{vP2+3}, 0x60, v{vP2}
    s_lshl1_add_u32 s{sT4}, s{sSLAB}, {grp}
    s_mul_i32 s{sT0}, s{sT4}, {RTS}
    s_and_b32 s{sT1}, s{sW}, 1
    s_lshl_b32 s{sT2}, s{sT1}, 11
    s_add_u32 s{sT0}, s{sT0}, s{sT2}
    s_lshl_b32 s{sT2}, s{sT1}, 10
    v_xor_b32 v{vA}, s{sT2}, v{vL16}
    v_xor_b32 v{vA+1}, 0x400, v{vA}
    v_add_u32 v{vA}, s{sT0}, v{vA}
    v_add_u32 v{vA+1}, s{sT0}, v{vA+1}
    s_lshr_b32 s{sT0}, s{sT4}, 3
    s_mul_i32 s{sT0}, s{sT0}, {RTS}
    s_and_b32 s{sT4}, s{sT4}, 7
    s_lshl1_add_u32 s{sT4}, s{sT4}, s{sT1}
    s_lshl_b32 s{sT4}, s{sT4}, 8
    s_add_u32 s{sT0}, s{sT0}, s{sT4}
    s_add_u32 s{sT0}, s{sT0}, {WS_CB}
    v_lshl_add_u32 v{vA+2}, v{vLANE}, 2, s{sT0}
    s_mov_b32 s{sSPIN}, 0x4000
    s_cmp_lt_u32 s{sW}, 3
    s_cselect_b32 s{sM21}, s{sW4K}, 15360
    s_cselect_b32 s{sM21+1}, 1024, 0
    s_mov_b32 s{sGI}, {grp}
    ''')
    for i in range(1, 11):
        k(f's_add_u32 s{sU+i}, s{sU+i-1}, 24576\ns_sub_u32 s{sT0}, s{sU+i}, {7*12288}\ns_cselect_b32 s{sU+i}, s{sU+i}, s{sT0}')
    for i in range(12, 15):
        k(f's_add_u32 s{sU+i}, s{sU+i-1}, 8192\ns_and_b32 s{sU+i}, s{sU+i}, 0x7fff')
    k(f's_lshl_b32 s{sT3}, s{sT3}, 12\ns_add_u32 s{sU+3}, s{sU+3}, s{sT3}')
    for i in range(4, 11): k(f's_add_u32 s{sU+i}, s{sU+i}, {4096 if i < 7 else 8192}')
    for i in range(11, 15): k(f's_add_u32 s{sU+i}, s{sU+i}, {22*4096}')
    k(f's_cmp_ge_u32 s{sW}, 2\ns_cselect_b32 s{sU+10}, {21*4096}, s{sU+10}')
    k(f's_cmp_eq_u32 s{sW}, 3\ns_cselect_b32 s{sU+10}, {hex(OOBU)}, s{sU+10}')

def ck_off(dst, rt):
    k(f'''
    s_lshr_b32 s{sT4}, s{rt}, 3
    s_sub_u32 s{sT4}, s{rt}, s{sT4}
    s_mul_i32 s{sT4}, s{sT4}, {RTS}
    s_and_b32 s{dst}, s{rt}, 7
    s_lshl_b32 s{dst}, s{dst}, 9
    s_add_u32 s{dst}, s{dst}, {WS_CB}
    s_sub_u32 s{dst}, s{dst}, s{sT4}
    ''')

def xw_addr(rowbase_s, tile_s):
    k(f'''
    v_lshrrev_b32 v{vE+5}, 1, v{vE+2}
    v_xor_b32 v{vE+5}, v{vE+5}, v{vE+3}
    v_lshlrev_b32 v{vE+5}, 4, v{vE+5}
    v_lshl_add_u32 v{vE+5}, v{vE+2}, 7, v{vE+5}
    v_add_u32 v{vXR}, {rowbase_s}, v{vE+5}
    v_xor_b32 v{vXR+1}, 64, v{vXR}
    v_bfe_u32 v{vE+5}, v{vLANE}, 2, 2
    v_lshl_add_u32 v{vE+5}, v{vE+3}, 3, v{vE+5}
    v_lshl_add_u32 v{vE+5}, v{vE+5}, 7, v{vE+4}
    v_xor_b32 v{vWA}, {tile_s}, v{vE+5}
    ''')

tokQ = {}
def item(q):
    L = []
    def add(pre, vo, srd_, so, last=False):
        def f():
            fl = cfg.wf if srd_ == S_W else cfg.xf if srd_ == S_X else cfg.pf
            fl = (' sc0' if fl & 4 else '') + (' nt' if fl & 1 else '') + (' sc1' if fl & 2 else '')
            t = k(f'buffer_load_dwordx4 v{vo}, {sr(srd_,4)}, s{so} offen{fl} lds')
            if last: tokQ[q] = t; k.vm[-1]['key'] = ('W', q)
        pl = pre.split('\n')
        L.append(lambda: k('\n'.join(pl[-1:] + pl[:-1])))
        L.append(f)
    if q < 8:
        base = (q % 5) * 32768
        hdr = f's_add_u32 s{sT0}, s{sROT}, {q}\ns_and_b32 s{sT0}, s{sT0}, 7\ns_lshl_b32 s{sT1}, s{sT0}, 7\ns_mul_i32 s{sT2}, s{sT0}, s{sSTP}\n'
        for i in range(4):
            add((hdr if i == 0 else '') + f's_add_u32 m0, s{sW4K}, {base + 1024*i}', vDX + i, S_X, sT1)
            u, j = i // 2, i % 2
            add(f's_add_u32 m0, s{sW2K}, {base + 16384 + 8192*u + 1024*j}', vDW + 2*u + j, S_W, sT2, i == 3)
    elif q < 10:
        for b in range(4):
            s = 4*(q - 8) + b
            hdr = f's_add_u32 s{sT0}, s{sROT}, {s}\ns_and_b32 s{sT0}, s{sT0}, 7\ns_mul_i32 s{sT2}, s{sT0}, s{sSTP}\n'
            for j in range(2):
                add((hdr if j == 0 else '') + f's_add_u32 m0, s{sW2K}, {98304 + 8192*s + 1024*j}', vDW + (0 if cfg.u3hit else 4) + j, S_W, sT2, b == 3 and j == 1)
    else:
        r = q - 10
        pos = WPOS[r] * 16384
        for j in range(4):
            hdr = {0: f's_lshl4_add_u32 s{sT4}, s{sU + r}, {0 if r < 11 else hex((-22*65536) & 0xffffffff)}\n' if not cfg.whit else f's_mov_b32 s{sT4}, {0 if cfg.whit == 1 else hex(OOB)}\n', 2: f's_add_u32 s{sT4}, s{sT4}, 0x4000\n'}.get(j, '')
            m = f's_add_u32 m0, s{sW4K}, {pos + 1024*j}'
            if r == 10: m = f's_add_u32 m0, s{sM21}, {pos}' if j == 0 else f's_add_u32 m0, m0, s{sM21+1}'
            add(hdr + m, vDP + (j & 1), S_W2 if r < 11 or cfg.whit else S_WO, sT4, j == 3)
    return L

WPOS = [0, 1, 2, 3, 4, 5, 6, 7, 0, 1, 2, 3, 8, 9, 4]
p2w = [0]
def rdP2(dst, r):
    pos = WPOS[r] * 16384
    L = []
    if pos >> 16 != p2w[0]:
        L = [f'v_add_u32 v{vP2+c}, {hex((((pos >> 16) - p2w[0]) << 16) & 0xffffffff)}, v{vP2+c}' for c in range(4)]
        p2w[0] = pos >> 16
    return L + [f'ds_read_b64_tr_b16 {vr(dst + 4*c + 2*h, 2)}, v{vP2+c} offset:{(pos % 65536) + 2048*h}' for c in range(4) for h in range(2)]
def moves(rs):
    L = []
    for r in rs:
        L += rdP2(vWR + 16*r, r)
    return L

Atext = {}
curg = [1]
def jobs(g):
    n = cfg.xs
    J = []
    if g == 0:
        for r in range(n): J += [('X', r), ('R', r)]
    return J + [('R', r) for r in range(n, 15)]
JD = (max(5, 2*cfg.xs - 1) if cfg.xv else 2*cfg.xs - 1) + cfg.xd
def plan(g):
    J = jobs(g); pos = {j: i for i, j in enumerate(J)}
    pool = [(-1, vAW + 8*i) for i in range(6)] + [(JD if g == 0 else -1, vWF + 8*i) for i in range(4)]
    for r in (3, 4): pool += [(pos.get(('R', r), -1), vWR + 16*r + 8*h) for h in range(2)]
    if cfg.xv: pool = pool[:6]
    A = []
    for i in range(len(J)):
        b = min(range(len(pool)), key=lambda q: pool[q][0])
        A.append(pool.pop(b)); pool.append((i, A[-1][1]))
    return J, pos, A
def areg(r, j):
    if cfg.xs: return plan(curg[0])[2][r][1] + 4*j
    return vAW + 8*r + 4*j if r < 6 else (vWR + 8*(r - 6) + 4*j)
def loadA(r):
    L = []
    def mk(t, key):
        Atext[key] = t
        def f():
            k.redo = True; k(t if cfg.asc == 1 else t.replace(' sc1', {0: '', 2: ' nt', 3: ' sc0'}[cfg.asc])); k.redo = False
            k.vm[-1]['key'] = key; k.vm[-1]['text'] = t
        f.regs = set(Ins(t).wr)
        return f
    if cfg.xs:
        kind, q = jobs(curg[0])[r]
        for j in range(2):
            L.append(mk(f'buffer_load_dwordx4 {vr(areg(r, j), 4)}, v{(vA if kind == "R" else vXR)+j}, {sr(S_WS,4)}, s{sU+q} offen sc1', (r, j)))
        L.append(mk(f'buffer_load_dword v{vCS+r%16}, v{vA+2}, {sr(S_WS,4)}, s{sU+q} offen{"" if kind == "R" else " offset:512"} sc1', (r, 2)))
        return L
    for j in range(2):
        L.append(mk(f'buffer_load_dwordx4 {vr(areg(r, j), 4)}, v{vA+j}, {sr(S_WS,4)}, s{sU+r if not cfg.aoob else sU+10} offen sc1', (r, j)))
    if cfg.aoob != 3: L.append(mk(f'buffer_load_dword v{vCS+r}, v{vA+2}, {sr(S_WS,4)}, s{sU+r if not cfg.aoob else sU+10} offen sc1', (r, 2)))
    else: Atext[(r, 2)] = ''
    return L

def gelu(acc, out, T, C0, pk):
    L = []
    p = lambda r: vr(r, 2)
    if pk == 1: pk = 7
    if pk == 9: pk = 1
    if pk & 1:
        for i in range(0, 16, 2): L.append(f'v_pk_mul_f32 {p(T+i)}, {p(acc+i)}, {p(acc+i)}')
        for i in range(0, 16, 2): L.append(f'v_pk_fma_f32 {p(T+i)}, {p(T+i)}, {sr(sC1,2)}, {vr(C0,2)}')
        for i in range(0, 16, 2): L.append(f'v_pk_mul_f32 {p(T+i)}, {p(acc+i)}, {p(T+i)}')
    else:
        for i in range(16): L.append(f'v_mul_f32 v{T+i}, v{acc+i}, v{acc+i}')
        for i in range(16): L.append(f'v_fma_f32 v{T+i}, v{T+i}, s{sC1}, v{C0}')
        for i in range(16): L.append(f'v_mul_f32 v{T+i}, v{acc+i}, v{T+i}')
    for i in range(16): L.append(f'v_exp_f32 v{T+i}, v{T+i}')
    if pk & 2:
        for i in range(0, 16, 2): L.append(f'v_pk_add_f32 {p(T+i)}, {p(T+i)}, 1.0 op_sel_hi:[1,0]')
    else:
        for i in range(16): L.append(f'v_add_f32 v{T+i}, 1.0, v{T+i}')
    for i in range(16): L.append(f'v_rcp_f32 v{T+i}, v{T+i}')
    if pk & 4:
        for i in range(0, 16, 2): L.append(f'v_pk_mul_f32 {p(T+i)}, {p(acc+i)}, {p(T+i)}')
    else:
        for i in range(16): L.append(f'v_mul_f32 v{T+i}, v{acc+i}, v{T+i}')
    for i in range(0, 16, 2): L.append(f'v_cvt_pk_bf16_f32 v{out+i//2}, v{T+i}, v{T+i+1}')
    return L

def phi(acc, out, T, C0, pk):
    L = []
    p = lambda r: vr(r, 2)
    if pk:
        for i in range(0, 16, 2): L.append(f'v_pk_fma_f32 {p(T+i)}, {p(acc+i)}, {sr(sC1,2)}, {vr(C0,2)}')
    else:
        for i in range(16): L.append(f'v_fma_f32 v{T+i}, v{acc+i}, s{sC1}, v{C0}')
    for i in range(16): L.append(f'v_exp_f32_e64 v{T+i}, v{T+i} clamp')
    for i in range(16): L.append(f'v_max_f32 v{acc+i}, s{sEPS}, v{acc+i}')
    if pk:
        for i in range(0, 16, 2): L.append(f'v_pk_add_f32 {p(T+i)}, {p(T+i)}, {p(acc+i)}')
    else:
        for i in range(16): L.append(f'v_add_f32 v{T+i}, v{T+i}, v{acc+i}')
    for i in range(0, 16, 2): L.append(f'v_cvt_pk_bf16_f32 v{out+i//2}, v{T+i}, v{T+i+1}')
    return L

def st4(src, s_off, imm):
    return f'buffer_store_dwordx4 {vr(src,4)}, v{vL16}, {sr(S_WS,4)}, s{s_off} offen offset:{imm} sc1'

def strec(src, s_off, imm, T, vck=None, Q=None, vN=None):
    L = []
    addchain(L.append, T, range(src, src + 8))
    if cfg.c4 >> curg[0] & 1:
        L += [f'v_sub_u32 v{Q}, s{sN}, v{T}', st4(src, s_off, imm), st4(src + 4, s_off, imm + 1024)]
        L += [f'v_mov_b32_dpp v{Q+j}, v{Q} quad_perm:[{j},{j},{j},{j}] row_mask:0xf bank_mask:0xf' for j in range(1, 4)]
        L.append(f'buffer_store_dwordx4 {vr(Q,4)}, v{vck or vL4}, {sr(S_WS,4)}, s{s_off} offen offset:{imm // 8} sc1')
    else:
        L.insert(1, st4(src, s_off, imm)); L.insert(3, st4(src + 4, s_off, imm + 1024))
        L.append(f'v_sub_u32 v{T}, s{sN}, v{T}')
        L.append(f'buffer_store_dword v{T}, v{vck or vL4}, {sr(S_WS,4)}, s{s_off} offen offset:{imm // 8} sc1')
    if cfg.nost: L = [x for x in L if not x.startswith('buffer')]
    if not cfg.ssc: L = [x.replace(' sc1', '') for x in L]
    return L

def get_epoch(reg):
    checked([DBTEXT(reg)], [reg], None, None)
    k(f'v_readfirstlane_b32 s{sN}, v{reg}\ns_cmp_eq_u32 s{sW}, 3\ns_cselect_b32 s{sN10}, 0, s{sN}\ns_lshl_b32 s{sN2}, s{sN}, 1')
def DBTEXT(reg): return f'buffer_load_dword v{reg}, off, {sr(S_DBG,4)}, 0 sc1'

def consts(typ, C0):
    if typ == 'A':
        c1, c0 = 1.4426950408889634, -1e-6*1.4426950408889634
    else:
        c1, c0 = -2.302208198*0.044715, -2.302208198
    k(f'''
    s_mov_b32 s{sC1}, {f32(c1)}
    s_mov_b32 s{sC1+1}, {f32(c1)}
    s_mov_b32 s{sEPS}, {f32(1e-6)}
    v_mov_b32 v{C0}, {f32(c0)}
    v_mov_b32 v{C0+1}, {f32(c0)}
    ''')

def unpack4(dst, src):
    return [f'v_and_b32 v{dst+3}, 0xffff0000, v{src+1}', f'v_lshlrev_b32 v{dst+2}, 16, v{src+1}',
            f'v_and_b32 v{dst+1}, 0xffff0000, v{src}', f'v_lshlrev_b32 v{dst}, 16, v{src}']

def phase2x(g, vmA, nload):
    k.label(f'L_P2_{g}')
    k('s_nop 1')
    k.vm = merge_vm(k.vm, vmA); k.lg = []
    stamp('P2')
    n = cfg.xs
    J, pos, A = plan(g)
    NJ = len(J)
    P = lambda r: pos.get(('R', r), -1)
    ord_, lrd, win = (cfg.ord0, cfg.lrd0, cfg.xw0) if g == 0 else (cfg.ord1, cfg.lrd1, cfg.xw1)
    k(f's_setprio {cfg.pp0 if g == 0 else cfg.pp1}')
    def wreg(r): return vWR + 16*r if r < 5 else vWR + 16*((r - 5) % 3)
    def wfree(r): return P(r - 5) if r < 8 else P(r - 3)
    z1 = JD if g == 0 else -1
    z2 = P(cfg.z2 if g == 0 or cfg.z21 < 0 else cfg.z21)
    assert P(7) <= z2 <= P(11)
    def more(i, lim=99):
        nonlocal nload
        L = []
        while nload < min(NJ, lim):
            q = J[nload][1]
            if A[nload][0] > i or nload > i + win or (i >= 0 and len(L) >= 3*cfg.xm): break
            if q >= 11 and i < P(ord_): break
            if q >= 7 and i < P(lrd): break
            L += loadA(nload)
            nload += 1
        return L
    nrd = [5]
    def reads(i, top=15):
        L = []
        while nrd[0] < top and wfree(nrd[0]) <= i and (nrd[0] < 8 or i >= z1) and (nrd[0] < 13 or i >= z2) and P(nrd[0]) <= i + 1 + cfg.xrd:
            L += rdP2(wreg(nrd[0]), nrd[0]); nrd[0] += 1
        return L
    def chk(i): return checked([Atext[(i, j)] for j in range(3)], [vCS + i % 16] + list(range(areg(i, 0), areg(i, 0) + 8)), vE + 8, sN10 if J[i][1] == 10 else sN, True)
    G2 = vE + 12
    BB = vE
    gadr = f'''s_lshl1_add_u32 s{sT0}, s{sSLAB}, {g}
    s_lshl_b32 s{sGO}, s{sT0}, 8
    s_add_u32 s{sGO}, s{sGO}, {WS_G}
    s_and_b32 s{sT1}, s{sW}, 1
    s_lshl_b32 s{sT2}, s{sT1}, 7
    v_and_b32 v3, 15, v{vLANE}
    v_lshlrev_b32 v4, 3, v3
    v_add_u32 v4, s{sT2}, v4
    v_xor_b32 v5, 0x80, v4'''.split('\n')
    gt = [f'buffer_load_dwordx2 {vr(G2+2*j,2)}, v{4+j}, {sr(S_WS,4)}, s{sGO} offen sc1' for j in range(2)]
    def redo(t):
        def f():
            k.redo = True; k(t); k.redo = False
        return f
    late = f'''s_lshl1_add_u32 s{sT0}, s{sT0}, s{sT1}
    s_lshl_b32 s{sT5}, s{sT0}, 14
    s_lshl_b32 s{sT0}, s{sCT}, 7
    s_add_u32 s{sT5}, s{sT5}, s{sT0}
    s_and_b32 s{sT0}, s{sW}, 2
    s_lshl_b32 s{sT0}, s{sT0}, 5
    s_add_u32 s{sT5}, s{sT5}, s{sT0}
    v_lshlrev_b32 v3, 10, v3
    v_and_b32 v6, 16, v{vLANE}
    v_lshl_add_u32 v3, v6, 1, v3
    v_lshrrev_b32 v6, 5, v{vLANE}
    v_lshl_add_u32 v3, v6, 4, v3
    s_xor_b32 s{sT1}, s{sWAVE}, 1
    s_xor_b32 s{sT2}, s{sWAVE}, 2
    s_xor_b32 s{sT3}, s{sWAVE}, 3
    s_mul_i32 s{sT0}, s{sWAVE}, 6144
    s_mul_i32 s{sT1}, s{sT1}, 6144
    s_mul_i32 s{sT2}, s{sT2}, 6144
    s_mul_i32 s{sT3}, s{sT3}, 6144
    v_add_u32 v10, {L_RED}, v{vL16}
    v_add_u32 v6, s{sT0}, v10
    v_add_u32 v7, s{sT1}, v10
    v_add_u32 v8, s{sT2}, v10
    v_add_u32 v9, s{sT3}, v10'''.split('\n')
    order = [(pi, e_) for pi in (1, 2, 3, 0) for e_ in range(2)]
    def scale(i):
        pi, e_ = order[i]
        return [f'v_mul_f32 v{vAC2+8*pi+4*e_+j}, v{G2 + 2*(pi & 1)}, v{vAC2+8*pi+4*e_+j}' for j in range(4)]
    vY = vWA
    xadr = [f'v_add_u32 v{vY}, s{sW4K}, v{vL16}', f'v_add_u32 v{vY+1}, {WPOS[13]*16384}, v{vY}', f'v_add_u32 v{vY}, {WPOS[14]*16384}, v{vY}']
    PRE = xadr + gadr + [redo(t) for t in gt] + late
    if g == 0:
        for f in more(-1) + stx('p1') + unpack4(BB, vB2) + unpack4(BB + 4, vB2 + 2) + PRE + stx('p2'): emit(f)
    else:
        if cfg.xg: PRE, POST = xadr, PRE[3:]
        else: POST = []
        for f in more(-1, cfg.xp1) + stx('p1') + PRE + stx('p2') + reads(-1, 8): emit(f)
        for q in range(22, 9, -1): wait_key(('W', q))
        stamp('p3')
        k('s_barrier')
        stamp('z1')
        for i, (pi, e_) in enumerate(order):
            k(f'ds_read_b128 {vr(vAC2 + 8*pi + 4*e_, 4)}, v{vY + (i >> 2)} offset:{1024*(i & 3)}')
        for f in more(-1, cfg.xi1): emit(f)
        k.wait_lg_all()
        for f in wpairs(13, 15) + more(-1) + POST: emit(f)
        stamp('p4')
    for f in chk(0): emit(f)
    for i, (kind, r) in enumerate(J):
        if kind == 'R': stamp(f'r{r}')
        else: stamp(f'x{r}')
        F = (more(i - 1) if i > 0 else []) + reads(i - 1)
        if kind == 'R' and r == 9: F += checked(gt, [G2+1, G2+3], vE + 8, sN2, True)
        if kind == 'R' and r == 10: F = [f'v_sub_f32 v{G2}, 1.0, v{G2}', f'v_sub_f32 v{G2+2}, 1.0, v{G2+2}'] + F
        D = []
        if g == 0 and i == JD:
            D = [f'ds_write_b128 v{vY + (q >> 2)}, {vr(vWF + 8*pi + 4*e_, 4)} offset:{1024*(q & 3)}' for q, (pi, e_) in enumerate(order)]
        if i < NJ - 1:
            assert nload > i + 1, (g, i, nload)
            if not D: F += chk(i + 1)
        acc = vAC2 if kind == 'R' else vWF
        M = []
        for pi, e_ in order:
            c = None
            if r == 0: c = vr(BB + 4*e_, 4) if pi == 0 else '0'
            M.append(mf(acc + 8*pi + 4*e_, wreg(r) + 4*(2*(pi >> 1) + e_), areg(i, pi & 1), c))
        assert r < nrd[0], (g, i, r, nrd)
        wait_regs([wreg(r) + q for q in range(16)])
        sc = kind == 'R' and r
        j = 0
        for q, m in enumerate(M):
            if sc == 11 and q < 4:
                for t in scale(4 + q): k(t)
            k(m)
            if D: k(D[q])
            if sc == 10 and q >= 4:
                for t in scale(q - 4): k(t)
            tgt = ((q + 1) * len(F) + 7) // 8
            if sc == 10: tgt = min(len(F), ((q + 1) * len(F) + 4) // 5) if q < 7 else len(F)
            if sc == 11: tgt = 0 if q < 3 else ((q - 2) * len(F) + 4) // 5
            while j < tgt: emit(F[j]); j += 1
        if D:
            k.wait_lg_all()
            stamp('p3')
            k('s_barrier')
            stamp('z1')
            for f in chk(i + 1): emit(f)
        if i == z2:
            assert nrd[0] >= 8
            wait_key(('W', 24))
            k('s_barrier')
            stamp('z2')
    stamp('mm')
    for pi in range(1, 4):
        for h in range(2):
            k(f'ds_write_b128 v{6+pi}, {vr(vAC2 + 8*pi + 4*h, 4)} offset:{(pi-1)*2048 + 1024*h}')
    k.wait_lg_all()
    k('s_barrier')
    stamp('red')
    R = vAW
    for p in range(3):
        for h in range(2):
            k(f'ds_read_b128 {vr(R + 8*p + 4*h, 4)}, v6 offset:{p*2048 + 1024*h}')
    for p in range(3):
        for i in range(0, 8, 2):
            k(f'v_pk_add_f32 {vr(vAC2+i,2)}, {vr(vAC2+i,2)}, {vr(R+8*p+i,2)}')
    for i in range(4): k(f'v_cvt_pk_bf16_f32 v{vE+i}, v{vAC2+2*i}, v{vAC2+2*i+1}')
    k(f'v_permlane16_swap_b32 v{vE}, v{vE+2}\nv_permlane16_swap_b32 v{vE+1}, v{vE+3}')
    k(f'buffer_store_dwordx4 {vr(vE,4)}, v3, {sr(S_OUT,4)}, s{sT5} offen')
    if g == 1: k('s_branch L_fin' if cfg.stamps else 's_endpgm')

def phase2y(g, vmA, nload, wnext):
    k.label(f'L_P2_{g}')
    k('s_nop 1')
    k.vm = merge_vm(k.vm, vmA); k.lg = []
    stamp('P2')
    n = cfg.xs
    assert 2 <= n <= 5
    J, pos, A = plan(g)
    NJ = len(J)
    P = lambda r: pos.get(('R', r), -1)
    ord_, lrd, win = (cfg.ord0, cfg.lrd0, cfg.xw0) if g == 0 else (cfg.ord1, cfg.lrd1, cfg.xw1)
    k(f's_setprio {cfg.pp0 if g == 0 else cfg.pp1}')
    def wreg(r): return vWR + 16*(r % 5)
    z1 = JD + cfg.z0x if g == 0 else P(cfg.z1r)
    assert z1 <= P(6 if g == 0 else 7) and cfg.z1r < cfg.ra <= 8
    def more(i):
        nonlocal nload, wnext
        L = []
        while nload < NJ:
            q = J[nload][1]
            if A[nload][0] > i or nload > i + (cfg.xw2 if cfg.xw2 and g == 0 and i >= z1 else win) or (i >= 0 and len(L) >= 3*cfg.xm): break
            if q >= 11 and i < P(ord_): break
            if q >= 7 and i < P(lrd): break
            L += loadA(nload)
            nload += 1
        for q in range(cfg.dper):
            if wnext < 15:
                L += wpairs(wnext, wnext + 1)
                wnext += 1
        return L
    nrd = [5 if g == 0 else 7]
    def reads(i):
        L = []
        while nrd[0] < 15 and P(nrd[0] - 5) <= i and (nrd[0] < (8 if g == 0 else 13) or i >= z1) and (nrd[0] < (7 if g == 0 else 9) or P(nrd[0]) <= i + 1 + cfg.xrd):
            if g == 1: L.append(lambda q=nrd[0]: wait_key(('W', 10 + q)))
            L += rdP2(wreg(nrd[0]), nrd[0]); nrd[0] += 1
        return L
    def chk(i): return checked([Atext[(i, j)] for j in range(3)], [vCS + i % 16] + list(range(areg(i, 0), areg(i, 0) + 8)), vE + 8, sN10 if J[i][1] == 10 else sN, True)
    G2 = vE + 12
    BB = vE
    gadr = f'''s_lshl1_add_u32 s{sT0}, s{sSLAB}, {g}
    s_lshl_b32 s{sGO}, s{sT0}, 8
    s_add_u32 s{sGO}, s{sGO}, {WS_G}
    s_and_b32 s{sT1}, s{sW}, 1
    s_lshl_b32 s{sT2}, s{sT1}, 7
    v_and_b32 v3, 15, v{vLANE}
    v_lshlrev_b32 v4, 3, v3
    v_add_u32 v4, s{sT2}, v4
    v_xor_b32 v5, 0x80, v4'''.split('\n')
    gt = [f'buffer_load_dwordx2 {vr(G2+2*j,2)}, v{4+j}, {sr(S_WS,4)}, s{sGO} offen sc1' for j in range(2)]
    def redo(t):
        def f():
            k.redo = True; k(t); k.redo = False
        return f
    SA, SB = (7*16384, 0) if g == 0 else (5*16384, 6*16384)
    vY = vWA
    late = f'''s_lshl1_add_u32 s{sT0}, s{sT0}, s{sT1}
    s_lshl_b32 s{sT5}, s{sT0}, 14
    s_lshl_b32 s{sT0}, s{sCT}, 7
    s_add_u32 s{sT5}, s{sT5}, s{sT0}
    s_and_b32 s{sT0}, s{sW}, 2
    s_lshl_b32 s{sT0}, s{sT0}, 5
    s_add_u32 s{sT5}, s{sT5}, s{sT0}
    v_lshlrev_b32 v3, 10, v3
    v_and_b32 v6, 16, v{vLANE}
    v_lshl_add_u32 v3, v6, 1, v3
    v_lshrrev_b32 v6, 5, v{vLANE}
    v_lshl_add_u32 v3, v6, 4, v3
    v_add_u32 v10, s{sW4K}, v{vL16}
    v_add_u32 v{vY}, {5*16384}, v10
    v_add_u32 v6, {SA}, v10
    v_add_u32 v10, {SB}, v10
    v_xor_b32 v7, 0x1000, v6
    v_xor_b32 v8, 0x2000, v6
    v_xor_b32 v9, 0x3000, v10'''.split('\n')
    order = [(pi, e_) for pi in (1, 2, 3, 0) for e_ in range(2)]
    def scale(i):
        pi, e_ = order[i]
        return [f'v_mul_f32 v{vAC2+8*pi+4*e_+j}, v{G2 + 2*(pi & 1)}, v{vAC2+8*pi+4*e_+j}' for j in range(4)]
    def addx(i):
        pi, e_ = order[i]
        if cfg.xg: return [f'v_pk_add_f32 {vr(vAC2+8*pi+4*e_+j,2)}, {vr(vWF+8*pi+4*e_+j,2)}, {vr(vAC2+8*pi+4*e_+j,2)}' for j in (0, 2)]
        return [f'v_add_f32 v{vAC2+8*pi+4*e_+j}, v{vWF+8*pi+4*e_+j}, v{vAC2+8*pi+4*e_+j}' for j in range(4)]
    XO = lambda q: 16384*(q >> 2) + 1024*(q & 3)
    for f in more(-1) + unpack4(BB, vB2) + unpack4(BB + 4, vB2 + 2) + gadr + late + reads(-1): emit(f)
    for f in chk(0): emit(f)
    DEF = []
    XR = []
    for i, (kind, r) in enumerate(J):
        stamp(f'r{r}' if kind == 'R' else f'x{r}')
        F = (more(i - 1) if i > 0 else []) + XR + reads(i - 1)
        XR = []
        sc = kind == 'R' and r
        if sc == 5: F += [redo(t) for t in gt]
        if sc == 9: F += checked(gt, [G2+1, G2+3], vE + 8, sN2, True)
        if sc == 10: F = [f'v_sub_f32 v{G2}, 1.0, v{G2}', f'v_sub_f32 v{G2+2}, 1.0, v{G2+2}'] + F
        D = []
        if g == 0 and i == JD:
            assert nrd[0] >= 7
            wait_regs(range(wreg(5), wreg(5) + 32))
            D = [f'ds_write_b128 v{vY}, {vr(vWF + 8*pi + 4*e_, 4)} offset:{XO(q)}' for q, (pi, e_) in enumerate(order)]
        if i < NJ - 1:
            assert nload > i + 1, (g, i, nload)
            F += [''] * max(0, cfg.ce - len(F)) + chk(i + 1)
        acc = vAC2 if kind == 'R' else vWF
        M = []
        for pi, e_ in order:
            c = None
            if r == (n if g else 0): c = vr(BB + 4*e_, 4) if pi == 0 and kind == 'R' else '0'
            M.append(mf(acc + 8*pi + 4*e_, wreg(r) + 4*(2*(pi >> 1) + e_), areg(i, pi & 1), c))
        assert r < nrd[0], (g, i, r, nrd)
        wait_regs([wreg(r) + q for q in range(16)])
        if r >= 15 - cfg.df:
            DEF += M[6:]; M = M[:6] + ['', '']
        fa, fb = (scale if sc == 10 else addx if g == 1 and sc == cfg.ra else None), (scale if sc == 11 else addx if g == 1 and sc == cfg.ra + 1 else None)
        j = 0
        for q, m in enumerate(M):
            if fb and q < 4:
                for t in fb(4 + q): k(t)
            k(m)
            if D: k(D[q])
            if fa and q >= 4:
                for t in fa(q - 4): k(t)
            tgt = ((q + 1) * len(F) + 7) // 8
            if sc == 10: tgt = min(len(F), ((q + 1) * len(F) + 4) // 5) if q < 7 else len(F)
            if sc == 11: tgt = 0 if q < 3 else ((q - 2) * len(F) + 4) // 5
            if g == 1 and cfg.xb and r == cfg.xb and q == cfg.xbm - 1: k('s_barrier')
            while j < tgt: emit(F[j]); j += 1
        if i == z1:
            assert wnext == 15 and (g == 0 or nrd[0] >= 9)
            for q in range(24, 9, -1): wait_key(('W', q))
            k.wait_lg_all()
            k('s_barrier')
            stamp('z1')
            if g == 1: XR = [f'ds_read_b128 {vr(vWF + 8*pi + 4*e_, 4)}, v{vY} offset:{XO(q)}' for q, (pi, e_) in enumerate(order)]
    stamp('mm')
    WR = [f'ds_write_b128 v{6 if pi < 3 else 10}, {vr(vAC2 + 8*pi + 4*h, 4)} offset:{(pi == 2)*2048 + 1024*h}' for pi in range(1, 4) for h in range(2)]
    nb = min(cfg.dfb if g or cfg.dfb0 < 0 else cfg.dfb0, len(DEF))
    if cfg.dw and nb >= 2:
        for t in WR[:2] + DEF[:1] + WR[2:4] + DEF[1:2] + WR[4:] + DEF[2:nb]: k(t)
    else:
        for t in WR + DEF[:nb]: k(t)
    k.wait_lg_all()
    k('s_barrier')
    stamp('red')
    R = vWF
    for p in range(3):
        for h in range(2):
            k(f'ds_read_b128 {vr(R + 8*p + 4*h, 4)}, v{7+p} offset:{(p == 1)*2048 + 1024*h}')
    for t in DEF[nb:]: k(t)
    for p in (1, 2):
        for i in range(0, 8, 2):
            k(f'v_pk_add_f32 {vr(R+i,2)}, {vr(R+i,2)}, {vr(R+8*p+i,2)}')
    for i in range(0, 8, 2):
        k(f'v_pk_add_f32 {vr(vAC2+i,2)}, {vr(vAC2+i,2)}, {vr(R+i,2)}')
    for i in range(4): k(f'v_cvt_pk_bf16_f32 v{vE+i}, v{vAC2+2*i}, v{vAC2+2*i+1}')
    k(f'v_permlane16_swap_b32 v{vE}, v{vE+2}\nv_permlane16_swap_b32 v{vE+1}, v{vE+3}')
    k(f'buffer_store_dwordx4 {vr(vE,4)}, v3, {sr(S_OUT,4)}, s{sT5} offen')
    if g == 0 and cfg.xb: k('s_barrier')
    if g == 1: k('s_branch L_fin' if cfg.stamps else 's_endpgm')

def phase2(g, vmA, nload, wnext):
    if cfg.xv: return phase2y(g, vmA, nload, wnext)
    if cfg.xs:
        assert NW1 == 13 and (g == 1 or wnext == 13)
        return phase2x(g, vmA, nload)
    k.label(f'L_P2_{g}')
    k('s_nop 1')
    k.vm = merge_vm(k.vm, vmA); k.lg = []
    stamp('P2')
    ord_, lrd = (cfg.ord0, cfg.lrd0) if g == 0 else (cfg.ord1, cfg.lrd1)
    k(f's_setprio {cfg.pp0 if g == 0 else cfg.pp1}')
    BUF = [vWF + 16, vWF, vAW, vAW + 16, vAW + 32]
    def wreg(r): return vWR + 16*r if r < 5 else BUF[r % 5]
    FREE = {5: -1, 6: -1, 7: 1, 8: 3, 9: 5, 10: 5, 11: 6, 12: 7, 13: 8, 14: 9}
    zr = cfg.z0 if g == 0 or cfg.z1 < 0 else cfg.z1
    def more(r):
        nonlocal nload, wnext
        L = []
        while nload < 15:
            need = (nload - 6) // 2 if nload >= 6 else -1
            if need > r or nload > r + (cfg.aw3 if cfg.aw3 and r >= cfg.a3r and cfg.a3g >> g & 1 else cfg.aw2 if cfg.aw2 and r >= zr else cfg.aw1st if g == 1 and cfg.aw1st and r < zr else cfg.awin) or (r >= 0 and len(L) >= 3*cfg.amax): break
            if nload >= 11 and r < ord_: break
            if nload >= 7 and r < lrd: break
            L += loadA(nload)
            nload += 1
        for i in range(cfg.dper):
            if wnext < 15:
                L += wpairs(wnext, wnext + 1)
                wnext += 1
        return L
    vT = vXR
    TD = [vWA, vWA + 1, vWA + 2, vWA + 3, 11, 10]
    TCH = [(cfg.t0, 1, 0), (cfg.t4, 1, 4), (cfg.t7a, 0, 7), (cfg.t7, 1, 7), (cfg.t11a, 0, 11), (cfg.t11, 1, 11)] if g == 0 else []
    def touch(r):
        return [f'buffer_load_dword v{TD[i]}, v{vT+o}, {sr(S_WS,4)}, s{sU+q} offen sc1' for i, (t, o, q) in enumerate(TCH) if t == r]
    if any(t != 99 for t, o, q in TCH):
        sh, nd = (6, 32) if cfg.th else (7, 16)
        k(f'''
        v_and_b32 v{vWA}, 0xfffff800, v{vA}
        v_and_b32 v{vWA+1}, 0xffffff00, v{vA+2}
        v_and_b32 v{vWA+2}, {nd//8 - 1}, v{vLANE}
        v_lshl_add_u32 v{vWA}, v{vLANE}, {sh}, v{vWA}
        v_lshl_add_u32 v{vWA+1}, v{vWA+2}, {sh}, v{vWA+1}
        v_cmp_gt_u32 vcc, {nd}, v{vLANE}
        v_add_u32 v{vWA+2}, {RTS}, v{vWA}
        v_add_u32 v{vWA+3}, 512, v{vWA+1}
        v_cndmask_b32 v{vT}, v{vWA+1}, v{vWA}, vcc
        v_cndmask_b32 v{vT+1}, v{vWA+3}, v{vWA+2}, vcc
        ''')
    nrd = [5]
    def reads(r):
        L = []
        while nrd[0] < 15 and FREE[nrd[0]] <= r and (nrd[0] < 8 or r >= zr) and (not L or nrd[0] <= r + 3):
            L += rdP2(wreg(nrd[0]), nrd[0]); nrd[0] += 1
        return L
    def chk(r): return checked([Atext[(r, j)] for j in range(3)], [vCS + r] + list(range(areg(r, 0), areg(r, 0) + 8)), vE + 8, sN10 if r == 10 else sN, True)
    G2 = vE + 12
    BB = vE
    gadr = f'''s_lshl1_add_u32 s{sT0}, s{sSLAB}, {g}
    s_lshl_b32 s{sGO}, s{sT0}, 8
    s_add_u32 s{sGO}, s{sGO}, {WS_G}
    s_and_b32 s{sT1}, s{sW}, 1
    s_lshl_b32 s{sT2}, s{sT1}, 7
    v_and_b32 v3, 15, v{vLANE}
    v_lshlrev_b32 v4, 3, v3
    v_add_u32 v4, s{sT2}, v4
    v_xor_b32 v5, 0x80, v4'''.split('\n')
    gt = [f'buffer_load_dwordx2 {vr(G2+2*j,2)}, v{4+j}, {sr(S_WS,4)}, s{sGO} offen sc1' for j in range(2)]
    def redo(t):
        def f():
            k.redo = True; k(t); k.redo = False
        return f
    late = f'''s_lshl1_add_u32 s{sT0}, s{sT0}, s{sT1}
    s_lshl_b32 s{sT5}, s{sT0}, 14
    s_lshl_b32 s{sT0}, s{sCT}, 7
    s_add_u32 s{sT5}, s{sT5}, s{sT0}
    s_and_b32 s{sT0}, s{sW}, 2
    s_lshl_b32 s{sT0}, s{sT0}, 5
    s_add_u32 s{sT5}, s{sT5}, s{sT0}
    v_lshlrev_b32 v3, 10, v3
    v_and_b32 v6, 16, v{vLANE}
    v_lshl_add_u32 v3, v6, 1, v3
    v_lshrrev_b32 v6, 5, v{vLANE}
    v_lshl_add_u32 v3, v6, 4, v3
    s_xor_b32 s{sT1}, s{sWAVE}, 1
    s_xor_b32 s{sT2}, s{sWAVE}, 2
    s_xor_b32 s{sT3}, s{sWAVE}, 3
    s_mul_i32 s{sT0}, s{sWAVE}, 6144
    s_mul_i32 s{sT1}, s{sT1}, 6144
    s_mul_i32 s{sT2}, s{sT2}, 6144
    s_mul_i32 s{sT3}, s{sT3}, 6144
    v_add_u32 v10, {L_RED}, v{vL16}
    v_add_u32 v6, s{sT0}, v10
    v_add_u32 v7, s{sT1}, v10
    v_add_u32 v8, s{sT2}, v10
    v_add_u32 v9, s{sT3}, v10'''.split('\n')
    order = [(pi, e_) for pi in (1, 2, 3, 0) for e_ in range(2)]
    def scale(i):
        pi, e_ = order[i]
        return [f'v_mul_f32 v{vAC2+8*pi+4*e_+j}, v{G2 + 2*(pi & 1)}, v{vAC2+8*pi+4*e_+j}' for j in range(4)]
    for f in more(-1) + touch(-1): emit(f)
    for f in chk(0): emit(f)
    DEF = []
    for r in range(15):
        stamp(f'r{r}')
        F = (more(r - 1) if r > 0 else []) + touch(r) + reads(r - 1)
        if r == 0: F = unpack4(BB, vB2) + unpack4(BB + 4, vB2 + 2) + F
        if r == 3: F += gadr + [redo(t) for t in gt]
        if r == 4: F += late[:12]
        if r == 12: F += late[12:]
        if r == 9: F += checked(gt, [G2+1, G2+3], vE + 8, sN2, True)
        if r == 10: F = [f'v_sub_f32 v{G2}, 1.0, v{G2}', f'v_sub_f32 v{G2+2}, 1.0, v{G2+2}'] + F
        if r < 14:
            assert nload > r + 1
            C = chk(r + 1)
            if cfg.lf >> g & 1 and r != zr:
                Lm = more(r)
                C = [lambda q=r+1, Lm=Lm: (wait_key((q, 2)), [emit(f) for f in Lm])] + C
            F += [''] * max(0, cfg.ce - len(F)) + C
        M = []
        for pi, e_ in order:
            c = None
            if r == 0: c = vr(BB + 4*e_, 4) if pi == 0 else '0'
            M.append(mf(vAC2 + 8*pi + 4*e_, wreg(r) + 4*(2*(pi >> 1) + e_), areg(r, pi & 1), c))
        wait_regs([wreg(r) + i for i in range(16)])
        if cfg.m32p:
            M = [x for c in range(4) for x in (f'v_mfma_f32_32x32x16_bf16 {vr(vAC2+16*(1-(c>>1)),16)}, {vr(wreg(r)+4*c,4)}, {vr(areg(r, c&1),4)}, {vr(vAC2+16*(1-(c>>1)),16) if r or c & 1 else 0}', '')]
        if r >= 15 - cfg.df:
            DEF += M[6:]; M = M[:6] + ['', '']
        j = 0
        for i, m in enumerate(M):
            if cfg.m32p and r in (10, 11):
                k(m)
                tgt = ((i + 1) * len(F) + 7) // 8
                while j < tgt: emit(F[j]); j += 1
                if r == 10 and i >= 6:
                    for t in scale(2*i-10) + scale(2*i-9): k(t)
                if r == 11 and i in (1, 3):
                    for t in scale((i-1)*3) + scale((i-1)*3+1): k(t)
                continue
            if r == 11 and i < 4:
                for t in scale(4 + i): k(t)
            k(m)
            if r == 10 and i >= 4:
                for t in scale(i - 4): k(t)
            tgt = ((i + 1) * len(F) + 7) // 8
            if r == 10: tgt = min(len(F), ((i + 1) * len(F) + 4) // 5) if i < 7 else len(F)
            if r == 11: tgt = 0 if i < 3 else ((i - 2) * len(F) + 4) // 5
            if g == 1 and cfg.xb and r == cfg.xb and i == cfg.xbm - 1: k('s_barrier')
            while j < tgt: emit(F[j]); j += 1
        if r == zr:
            assert wnext == 15 and nrd[0] == 8
            for q in range(24, 9, -1): wait_key(('W', q))
            k.wait_lg_all()
            for i in range(cfg.zx if g == 0 else 0):
                for f in loadA(nload): emit(f)
                nload += 1
            for f in touch(50): emit(f)
            k('s_barrier')
    stamp('mm')
    WR = [f'ds_write_b128 v{6+pi}, {vr(vAC2 + 8*pi + 4*h, 4)} offset:{(pi-1)*2048 + 1024*h}' for pi in range(1, 4) for h in range(2)]
    nb = min(cfg.dfb if g or cfg.dfb0 < 0 else cfg.dfb0, len(DEF))
    if cfg.dw and nb >= 2:
        for t in WR[:2] + DEF[:1] + WR[2:4] + DEF[1:2] + WR[4:] + DEF[2:nb]: k(t)
    else:
        for t in WR + DEF[:nb]: k(t)
    k.wait_lg_all()
    k('s_barrier')
    stamp('red')
    R = vAW if not cfg.df else vWR
    for p in range(3):
        for h in range(2):
            k(f'ds_read_b128 {vr(R + 8*p + 4*h, 4)}, v6 offset:{p*2048 + 1024*h}')
    for t in DEF[nb:]: k(t)
    if g == 0 and cfg.xb and cfg.yb == 1: k('s_barrier')
    if cfg.df:
        for p in (1, 2):
            for i in range(0, 8, 2):
                k(f'v_pk_add_f32 {vr(R+i,2)}, {vr(R+i,2)}, {vr(R+8*p+i,2)}')
    for p in range(3 if not cfg.df else 1):
        for i in range(0, 8, 2):
            k(f'v_pk_add_f32 {vr(vAC2+i,2)}, {vr(vAC2+i,2)}, {vr(R+8*p+i,2)}')
    if g == 0 and cfg.xb and cfg.yb == 2: k('s_barrier')
    for i in range(4): k(f'v_cvt_pk_bf16_f32 v{vE+i}, v{vAC2+2*i}, v{vAC2+2*i+1}')
    k(f'v_permlane16_swap_b32 v{vE}, v{vE+2}\nv_permlane16_swap_b32 v{vE+1}, v{vE+3}')
    k(f'buffer_store_dwordx4 {vr(vE,4)}, v3, {sr(S_OUT,4)}, s{sT5} offen')
    if g == 0 and cfg.xb and cfg.yb == 0: k('s_barrier')
    if g == 1: k('s_branch L_fin' if cfg.stamps else 's_endpgm')

if cfg.sp1: k(f's_setprio {cfg.sp1}')
k(f'''
v_lshrrev_b32 v{vE+2}, 1, v{vE}
v_xor_b32 v{vE+2}, v{vE+1}, v{vE+2}
v_lshlrev_b32 v{vE+2}, 4, v{vE+2}
s_lshl2_add_u32 s{sT1}, s{sRB}, s{sW}
s_lshl_b32 s{sT1}, s{sT1}, 15
v_lshl_add_u32 v{vDX}, v{vE}, 10, v{vE+2}
v_add_u32 v{vDX}, s{sT1}, v{vDX}
v_xor_b32 v{vDX+1}, 64, v{vDX}
v_add_u32 v{vDX+1}, 0x2000, v{vDX+1}
v_add_u32 v{vDX+2}, 0x4000, v{vDX}
v_add_u32 v{vDX+3}, 0x4000, v{vDX+1}
v_and_b32 v{vE+2}, 2, v{vE}
v_xor_b32 v{vE+2}, v{vE+1}, v{vE+2}
v_lshlrev_b32 v{vE+2}, 4, v{vE+2}
v_xor_b32 v{vE+3}, 64, v{vE+2}
s_lshl_b32 s{sT3}, s{sGRP}, 7
s_add_u32 s{sT4}, s{sT3}, 1024
s_mul_i32 s{sT3}, s{sT3}, 3
s_movk_i32 s{sT1}, 3072
s_movk_i32 s{sT5}, 0x400
s_cmp_eq_u32 s{sTYPE}, 1
s_cselect_b32 s{sT1}, 2752, s{sT1}
s_cselect_b32 s{sT3}, s{sT3}, s{sT4}
s_cselect_b32 s{sT4}, 0x80, s{sT5}
s_movk_i32 s{sT5}, 0xfc00
s_cselect_b32 s{sT5}, 0x100, s{sT5}
s_mov_b32 s{S_W+2}, 0x180000
s_cselect_b32 s{S_W+2}, {512*2752}, s{S_W+2}
s_cmp_eq_u32 s{sB7}, 1
s_cselect_b32 s{sT4}, {hex(OOB)}, s{sT4}
s_cselect_b32 s{sT5}, {hex(OOB)}, s{sT5}
s_cselect_b32 s{sT2}, 24, 0
s_lshl_b32 s{sT0}, s{sW}, 4
v_add_u32 v{vE+4}, s{sT0}, v{vE}
v_mul_lo_u32 v{vE+4}, v{vE+4}, s{sT1}
s_lshl_b32 s{sSTP}, s{sT1}, 6
s_lshl3_add_u32 s{sT0}, s{sT1}, s{sT3}
v_add3_u32 v{vDW}, v{vE+4}, v{vE+2}, s{sT3}
v_add3_u32 v{vDW+1}, v{vE+4}, v{vE+3}, s{sT0}
v_add_u32 v{vDW+2}, s{sT4}, v{vDW}
v_add_u32 v{vDW+3}, s{sT4}, v{vDW+1}
v_add_u32 v{vDW+4}, s{sT5}, v{vDW}
v_add_u32 v{vDW+5}, s{sT5}, v{vDW+1}
v_and_b32 v{vE+2}, 64, v{vE+2}
v_and_b32 v{vE+3}, 64, v{vE+3}
v_lshlrev_b32 v{vE+2}, s{sT2}, v{vE+2}
v_lshlrev_b32 v{vE+3}, s{sT2}, v{vE+3}
v_and_b32 v{vE+2}, 0x40000000, v{vE+2}
v_and_b32 v{vE+3}, 0x40000000, v{vE+3}
v_add_u32 v{vDW}, v{vE+2}, v{vDW}
v_add_u32 v{vDW+1}, v{vE+3}, v{vDW+1}
s_mov_b32 s{S_X+2}, 0x200000
s_mov_b32 s{S_X+3}, 0x20000
s_mov_b32 s{S_W+3}, 0x20000
''')
if cfg.stamps == 7: k.wait_lg_all()
stamp('ka')
for f in item(0): f()
stamp('i0')
if cfg.ka: k(KA2)
GF = vAC2
GA = vE + 8
e = side('L_nogf', f's_cmp_eq_u32 s{sB7}, 0')
srd_tail(S_GW, 1024)
k(f'v_and_b32 v{vE+2}, 48, v{vLANE}')
for s in range(8):
    k(f's_add_u32 s{sT0}, s{sROT}, {s}\ns_and_b32 s{sT0}, s{sT0}, 7\ns_lshl_b32 s{sT0}, s{sT0}, 7')
    for kk in range(2):
        k(f'buffer_load_dwordx4 {vr(GF + 8*s + 4*kk, 4)}, v{vE+2}, {sr(S_GW,4)}, s{sT0} offen offset:{64*kk}')
e()
if not cfg.so:
    for q in range(1, cfg.d0):
        for f in item(q): f()
common_setup(1)
xw_addr(f's{sW4K}', '0')
CI = vAW + 48
k(f'''
v_add_u32 v{vWA}, 0x18000, v{vWA}
v_xor_b32 v{vWA+1}, 32, v{vWA}
v_xor_b32 v{vWA+2}, 64, v{vWA}
v_xor_b32 v{vWA+3}, 0x60, v{vWA}
v_lshlrev_b32 v{vE+5}, 3, v{vE+3}
s_mul_i32 s{sT0}, s{sGRP}, 384
s_cmp_eq_u32 s{sTYPE}, 1
s_cselect_b32 s{sT0}, s{sT0}, {hex(OOB)}
v_add_u32 v{CI+3}, s{sT0}, v{vE+5}
''')
if cfg.nb1 & 2: k(f'v_mov_b32 v{CI+3}, {hex(OOB)}')
if cfg.nb1 & 4: k(f'v_mov_b32 v{vB2}, {hex(OOB)}')
LB1 = [f'buffer_load_dwordx2 {vr(CI + 4*c, 2)}, v{CI+3}, {sr(S_B1,4)}, 0 offen offset:{256 + 32*c}' for c in range(4)]
if not cfg.lb:
    for t in LB1: k(t)
k(f'''
s_lshl2_add_u32 s{sT0}, s{sRB}, s{sW}
''')
ck_off(sCK, sT0)
k(f'''
s_mul_i32 s{sH}, s{sT0}, {RTS}
s_lshl_b32 s{sGO}, s{sT0}, 8
s_add_u32 s{sGO}, s{sGO}, {WS_G}
s_mul_i32 s{sT0}, s{sGRP}, {3*UNT}
s_add_u32 s{sT0}, s{sT0}, {2*UNT}
s_mul_i32 s{sT1}, s{sGRP}, {UNT}
s_add_u32 s{sT1}, s{sT1}, {22*UNT}
s_cmp_eq_u32 s{sTYPE}, 1
s_cselect_b32 s{sT0}, s{sT0}, s{sT1}
s_add_u32 s{sH}, s{sH}, s{sT0}
s_cmp_eq_u32 s{sB7}, 1
s_cselect_b32 s{sH}, {hex(OOB)}, s{sH}
s_cmp_eq_u32 s{sTYPE}, 1
s_cselect_b32 s{sEPS}, 0, {f32(1e-6)}
''')
def xreg(t, rt): return vWR + 8*t + 4*rt
def gate_mm(s):
    e = side(f'L_ng{s}', f's_cmp_eq_u32 s{sB7}, 0')
    if cfg.sq and s < 6 and cfg.xo == 2: k.waitcnt(lgkm=4 + 2*cfg.pad)
    elif cfg.sq and s < 7 and cfg.xo == 2: k.waitcnt(lgkm=4 + cfg.pad)
    else: k.wait_lg_all()
    for kk in range(2):
        for rt in range(2):
            k(mf(GA + 4*rt, GF + 8*s + 4*kk, xreg(2*s + kk, rt), '0' if s == 0 and kk == 0 else None))
    e()
STREAM = []
NW1 = 4 + cfg.q9 + cfg.q10 + cfg.q11
assert 4 + cfg.q9 + cfg.q10 >= 8 and cfg.q9 >= 1
for q in range(cfg.d0, 10 + NW1): STREAM += item(q)
done = [8*cfg.d0]
LIM = [40, 40, 48, 56, 64, 72, 80, 88, 96, 108, 120, 132]
def take(i):
    n = min(LIM[i], done[0] + (cfg.q0 if i < 7 else {7: cfg.q7, 8: cfg.q8, 9: 4*cfg.q9, 10: 4*cfg.q10, 11: 4*cfg.q11}[i])) - done[0]
    done[0] += n
    r = STREAM[:2*n]; del STREAM[:2*n]
    return r
win = 0
if cfg.aw1 >= 0:
    k.raw(f'    s_cmp_eq_u32 s{sTYPE}, 1\n    s_cbranch_scc1 L_aw1\n    s_waitcnt vmcnt({cfg.aw1})\nL_aw1:')
if cfg.so:
    for q in range(1, cfg.d0):
        for f in item(q): f()
if cfg.lb:
    for t in LB1: k(t)
    k(LB2)
SQ = [int(c_) for c_ in str(cfg.sq)] if cfg.sq else []
SPF = [f'    s_buffer_load_dwordx2 s[0:1], {sr(S_W2,4)}, s{sT3} offset:{128*i+60}' for i in range(11)]
SPF += [f'    s_buffer_load_dwordx2 s[0:1], {sr(S_WO,4)}, s{sT5} offset:{128*i+60}' for i in range(4)]
U3 = [f'    s_buffer_load_dwordx2 s[0:1], {sr(S_W,4)}, s{sT4} offset:60\n    s_add_u32 s{sT4}, s{sT4}, s{sH+2}' for i in range(8)]
if cfg.u3p: SPF = SPF[:cfg.u3p - 1] + U3 + SPF[cfg.u3p - 1:]
def spf(i):
    n = SQ[i] if i < len(SQ) else 0
    for t in SPF[:n]: k.raw(t)
    del SPF[:n]
if cfg.sq:
    k(f'''
    s_mul_i32 s{sT3}, s2, {43*128}
    s_mul_i32 s{sT5}, s{sW}, {11*128}
    s_min_u32 s{sT5}, s{sT5}, {32*128}
    s_add_u32 s{sT3}, s{sT3}, s{sT5}
    s_lshl2_add_u32 s{sT5}, s2, s{sW}
    s_lshl_b32 s{sT5}, s{sT5}, 9
    ''')
    if cfg.u3p: k(f'''
    s_lshr_b32 s{sH+2}, s{sSTP}, 6
    s_lshl2_add_u32 s{sT4}, s{sRB}, s{sW}
    s_lshl_b32 s{sT4}, s{sT4}, 3
    s_mul_i32 s{sT4}, s{sT4}, s{sH+2}
    s_lshl_b32 s{sH+3}, s{sGRP}, 7
    s_add_u32 s{sT4}, s{sT4}, s{sH+3}
    s_lshl1_add_u32 s{sH+3}, s{sH+3}, 0x100
    s_mul_i32 s{sH+3}, s{sH+3}, s{sTYPE}
    s_add_u32 s{sT4}, s{sT4}, s{sH+3}
    s_cmp_eq_u32 s{sB7}, 1
    s_cselect_b32 s{sT4}, 0, s{sT4}
    ''')
    k.wait_lg_all()
    spf(0)
stamp('i1')
if cfg.sp1 or cfg.sp2: k(f's_setprio {cfg.sp2}')
if cfg.stamps == 7:
    k.raw(f'    s_waitcnt vmcnt({len(k.vm)-1})'); stamp('f0'); k.raw(f'    s_waitcnt vmcnt({len(k.vm)-2})'); stamp('f1')
for s in range(8):
    k.wait_vm_tok(tokQ[s + (s == 7 and not cfg.l8)])
    if cfg.xo >= 2 and s > 0: k.waitcnt(lgkm=4 + 2*cfg.pad)
    else: k.wait_lg_all()
    k('s_barrier')
    stamp(f'B{s}')
    w = ((s % 5) * 32768) >> 16
    if w != win:
        k(f'v_add_u32 v{vXR}, {hex(((w - win) << 16) & 0xffffffff)}, v{vXR}\nv_add_u32 v{vXR+1}, {hex(((w - win) << 16) & 0xffffffff)}, v{vXR+1}')
        win = w
    if s == 3: k(DBTEXT(vE+7))
    F = take(s)
    if cfg.sql:
        for f in F[:2*cfg.sql]: f()
        F = F[2*cfg.sql:]
    spf(s + 1)
    R = [f'ds_read_b128 {vr(xreg(2*s+kk, rt), 4)}, v{vXR+kk} offset:{((s % 5) * 32768) % 65536 + 2048*rt}' for kk in range(2) for rt in range(2)]
    if cfg.nox: R = ['s_nop 0'] * 4
    if s == 2:
        for c in range(4): R += unpack4(CI + 4*c, CI + 4*c)
    if s == 3: R += [f'v_add_f32 v{CI+i}, s{sEPS}, v{CI+i}' for i in range(16)]
    if s == 7 and cfg.xo7:
        for r in R[:4]: k(r)
        F7 = F; F = []
    elif cfg.xo == 1:
        for r in R[:4]: k(r)
        weave(F, R[4:])
    elif cfg.xo == 2:
        weave(F, R[4:])
        for r in R[:4]: k(r)
        if s < 7:
            for i in range(cfg.pad):
                k.raw(f'    ds_read_u8 v{vE+6}, v{vLANE}'); k.lg.append({'id': -1, 'wr': {('v', vE+6)}})
    else:
        for f in F[:2]: f()
        weave(F[2:], R)
    if s >= 1: gate_mm(s - 1)
    if s == 6: get_epoch(vE+7)
gate_mm(7)
assert not cfg.sq or not SPF
e = side('L_nogate', f's_cmp_eq_u32 s{sB7}, 0')
k(f'''
v_cmp_gt_u32 vcc, 16, v{vLANE}
v_cndmask_b32 v{vE}, v{GA+4}, v{GA}, vcc
v_mul_f32 v{vE}, {f32(-1.4426950408889634)}, v{vE}
v_exp_f32 v{vE}, v{vE}
v_lshlrev_b32 v{vE+2}, 3, v{vLANE}
v_add_f32 v{vE}, 1.0, v{vE}
v_mov_b32 v{vE+1}, s{sN}
v_rcp_f32 v{vE}, v{vE}
s_mov_b32 exec_hi, 0
buffer_store_dwordx2 {vr(vE,2)}, v{vE+2}, {sr(S_WS,4)}, s{sGO} offen sc1
s_mov_b32 exec_hi, -1
''')
e()
POOL = [vWF + 4*i for i in range(8)] + [vE + 4*i for i in range(4)]
def wfrag(t, c): return POOL[(4*t + c) % 12]
def w2reads(t):
    return [f'ds_read_b64_tr_b16 {vr(wfrag(t, c) + 2*h, 2)}, v{vWA+c} offset:{4096*t + 512*h}' for c in range(4) for h in range(2)]
k.wait_lg_all()
if not cfg.l8:
    for r in w2reads(0) + w2reads(1): k(r)
assert done[0] >= 80
if cfg.xo7:
    for f in F7: f()
k(f'v_lshl_add_u32 v{vL4}, v{vLANE}, 2, s{sCK}')
if cfg.c4 & 2: k(f'v_and_b32 v11, 3, v{vLANE}\nv_lshl_add_u32 v{vL4}, v11, 28, v{vL4}')
if cfg.l8: k.wait_vm_tok(tokQ[8])
k('s_barrier')
stamp('B8')
if cfg.l8:
    for r in w2reads(0) + w2reads(1): k(r)
k(f's_setprio {cfg.prg1}')
MV = {0: (), 1: (0, 1), 2: (2, 3), 3: (4,)}
for t in range(16):
    if t in (4, 8, 12):
        k.wait_vm_tok(tokQ[{4: 11, 8: 13, 12: 14}[t]])
        if t > 4: wait_regs(range(vWR + 16*MV[t//4 - 1][0], vWR + 16*MV[t//4 - 1][-1] + 16))
        k('s_barrier')
        stamp(f'B{8 + t//4}')
    if t % 4 == 0:
        D = take(8 + t//4)
        nd = 2*((len(D) + 7) // 8)
        Mv = moves([r_ for r_ in MV[t//4] if r_ >= cfg.xs])
        if cfg.nomv & 2: Mv = [x for x in Mv if not x.startswith('ds_')]
    R = w2reads(t + 2) if t + 2 < 16 else []
    X = D[nd*(t%4):nd*(t%4)+nd]
    nm = (len(Mv) + 2) // 3
    Y = Mv[nm*(t%4):nm*(t%4)+nm]
    Z = []
    for i in range(4): Z += R[2*i:2*i+1] + X[(i*len(X)+3)//4:((i+1)*len(X)+3)//4] + R[2*i+1:2*i+2] + Y[(i*len(Y)+3)//4:((i+1)*len(Y)+3)//4]
    R = Z
    wait_regs([wfrag(t, c) + i for c in range(4) for i in range(4)])
    M = [mf(vAC2 + ((c >> 1)*2 + rt)*8 + (c & 1)*4, wfrag(t, c), xreg(t, rt), vr(CI + 4*c, 4) if t == 0 else None) for c in range(4) for rt in range(2)]
    if cfg.m32: M = [f'v_mfma_f32_32x32x16_bf16 {vr(vAC2+16*(c&1),16)}, {vr(wfrag(t, c),4)}, {vr(xreg(t, c>>1),4)}, {vr(vAC2+16*(c&1),16) if t or c > 1 else 0}' for c in range(4)]
    j = 0
    for i, m in enumerate(M):
        k(m)
        tgt = ((i + 1) * len(R) + len(M) - 1) // len(M)
        while j < tgt: emit(R[j]); j += 1
assert not STREAM
k.wait_vm_tok(tokQ[17])
k.wait_lg_all()
k('s_barrier')
stamp('B12')
k(f's_setprio {cfg.pe1}')
if cfg.xv:
    for t in rdP2(vWR, 5) + rdP2(vWR + 16, 6): k(t)
k(f's_cmp_eq_u32 s{sTYPE}, 1\ns_cbranch_scc1 L_G1B')
snap1 = k.snapshot(); nst1 = nst[0]
C0_1 = 8
def early(n): return [f for r in range(n) for f in loadA(r)]
def wpairs(lo, hi):
    L = []
    for r in range(lo, hi):
        it = item(10 + r)
        for i in range(0, 8, 2): L.append(lambda a=it[i], b=it[i+1]: (a(), b()))
    return L
def fill(n, lo, hi): return early(n) + wpairs(lo, hi) if cfg.afirst else wpairs(lo, hi) + early(n)
W0 = NW1 + cfg.wa1
consts('A', C0_1)
GG = 4
gtexts = [f'buffer_load_dwordx2 {vr(GG+2*rt,2)}, v3, {sr(S_WS,4)}, s{sGO} offen offset:{128*rt} sc1' for rt in range(2)]
k(f'v_and_b32 v3, 15, v{vLANE}\nv_lshlrev_b32 v3, 3, v3')
for t in gtexts: k(t)
PQ = vAW + 32
assert cfg.e1a <= 4
V = stx('e1') + phi(vAC2, PQ, vE, C0_1, cfg.pk) + phi(vAC2 + 16, PQ + 8, vE, C0_1, cfg.pk) + stx('e2')
if cfg.e1la:
    for v in V: k(v)
    if cfg.e1la == 1:
        for f in early(cfg.e1a): f()
else: weave_int(V, fill(cfg.e1a, NW1, W0), cfg.gint1, cfg.f1)
k(f'''
v_lshlrev_b32 v10, 3, v{vLANE}
v_lshrrev_b32 v11, 4, v{vLANE}
v_lshlrev_b32 v11, 3, v11
''')
checked(gtexts, [GG+1, GG+3], vE, sN2)
if cfg.xv: k.wait_lg_all()
k('s_barrier')
stamp('e3')
KV, ZZ = vE, vE + 8
for c in range(4):
    k(f'ds_read_b64 {vr(ZZ+2*c,2)}, v11 offset:{L_KV + 2048 + 32*c}')
    k(f'ds_read_b64 {vr(KV+2*c,2)}, v10 offset:{L_KV + 512*c}')
if cfg.e1la == 2:
    for f in early(cfg.e1a): f()
DEN = vWF
def idx(c, rt): return ((c >> 1)*2 + rt)*2 + (c & 1)
for c in range(4):
    for rt in range(2):
        i = idx(c, rt)
        k(f'v_mfma_f32_16x16x16_bf16 {vr(DEN+4*i,4)}, {vr(ZZ+2*c,2)}, {vr(PQ+2*i,2)}, 0')
for c in range(4):
    for rt in range(2):
        i = idx(c, rt)
        k(f'v_mfma_f32_16x16x16_bf16 {vr(vAC2+4*i,4)}, {vr(KV+2*c,2)}, {vr(PQ+2*i,2)}, 0')
for i in range(8): k(f'v_add_f32 v{DEN+4*i}, s{sEPS}, v{DEN+4*i}')
for i in range(8): k(f'v_rcp_f32 v{DEN+4*i}, v{DEN+4*i}')
for i in range(8): k(f'v_mul_f32 v{DEN+4*i}, v{DEN+4*i}, v{GG + 2*((i >> 1) & 1)}')
OO = PQ
stamp('e4')
for f in range(4):
    for i in (2*f, 2*f + 1):
        for h in range(2):
            k(f'v_pk_mul_f32 {vr(vAC2+4*i+2*h,2)}, {vr(vAC2+4*i+2*h,2)}, {vr(DEN+4*i,2)} op_sel_hi:[1,0]')
    for j in range(4): k(f'v_cvt_pk_bf16_f32 v{OO+4*f+j}, v{vAC2+8*f+2*j}, v{vAC2+8*f+2*j+1}')
    if f & 1:
        for t in strec(OO + 4*f - 4, sH, STP*(f >> 1), vE + 2*f, None, vE + 6 + 2*f, C0_1): k(t)
for r in range(cfg.e1a, max(cfg.e1a, cfg.e1b)):
    for f in loadA(r): f()
k('s_branch L_P2_1')
vmA = [dict(x) for x in k.vm]
k.label('L_G1B')
k.restore(snap1); nst[0] = nst1
consts('B', C0_1)
V = stx('e1') + gelu(vAC2, vWF, vE, C0_1, cfg.pk) + stx('e2') + strec(vWF, sH, 0, vWF + 16, None, vWF + 20, vWF + 28) + stx('e3')
if cfg.es:
    V = stx('e1') + gelu(vAC2, vWF, vE, C0_1, cfg.pk) + stx('e2') + stx('e3')
    S0 = strec(vWF, sH, 0, vWF + 16, None, vWF + 20, vWF + 28)
    V2 = gelu(vAC2 + 16, vWF + 8, vE, C0_1, cfg.pk) + stx('e4')
    if cfg.es == 1: V2 += S0
    else:
        for i, t in enumerate(S0): V2.insert(i * (cfg.es + 1) + cfg.es, t)
    for v in V + V2 + strec(vWF + 8, sH, STP, vWF + 18, None, vWF + 24, vWF + 28): k(v)
elif cfg.e1l:
    for v in V: k(v)
    V = gelu(vAC2 + 16, vWF + 8, vE, C0_1, cfg.pk) + stx('e4')
    n0 = {1: 0, 2: len(V) // 2, 3: len(V) - 10}[cfg.e1l]
    for v in V[:n0]: k(v)
    weave(V[n0:], early(cfg.e1b))
    for v in strec(vWF + 8, sH, STP, vWF + 18, None, vWF + 24, vWF + 28): k(v)
else:
    V += gelu(vAC2 + 16, vWF + 8, vE, C0_1, cfg.pk) + stx('e4') + strec(vWF + 8, sH, STP, vWF + 18, None, vWF + 24, vWF + 28)
    if cfg.xv: V[cfg.bxp:cfg.bxp] = ['s_waitcnt lgkmcnt(0)', 's_barrier']
    weave_int(V, fill(cfg.e1b, NW1, W0), cfg.gint1, cfg.f1)
for r in range(cfg.e1b, max(cfg.e1a, cfg.e1b)):
    for f in loadA(r): f()
phase2(1, vmA, max(cfg.e1a, cfg.e1b), 15)

WT = [f'buffer_load_dword v10, v{vE+6}, {sr(S_W2,4)}, s{sT0} offen', f'buffer_load_dword v11, v{vE+7}, {sr(S_WO,4)}, s{sT2} offen']
def stouch(part=0):
    k(f'''
    s_mul_i32 s{sT0}, s2, {43*128}
    s_mul_i32 s{sT2}, s{sW}, {11*128}
    s_min_u32 s{sT2}, s{sT2}, {32*128}
    s_add_u32 s{sT0}, s{sT0}, s{sT2}
    s_lshl2_add_u32 s{sT2}, s2, s{sW}
    s_lshl_b32 s{sT2}, s{sT2}, 9
    s_mov_b32 s{S_W2+2}, {1376*1024}
    s_mov_b32 s{S_W2+3}, 0x20000
    s_mov_b32 s{S_WO+2}, {512*1024}
    s_mov_b32 s{S_WO+3}, 0x20000
    ''')
    if part < 2: k.wait_lg_all()
    op, dst, o = ('dword', 'vcc_lo', 0) if cfg.wts in (1, 3) else ('dwordx2', 'vcc', 60)
    L = [f'    s_buffer_load_{op} {dst}, {sr(S_W2,4)}, s{sT0} offset:{128*i+o}' for i in range(11 if cfg.wts != 3 else 1)]
    L += [f'    s_buffer_load_{op} {dst}, {sr(S_WO,4)}, s{sT2} offset:{128*i+o}' for i in range(4 if cfg.wts != 3 else 1)]
    if part == 1: L = L[:cfg.wn1]
    if part == 2: L = L[cfg.wn1:]
    for t in L: k.raw(t)
    k.smem_pending.add(('s', 'vcc'))
def wtouch():
    if cfg.wts == 5: stouch(2)
    elif cfg.wts and cfg.wsp == 1: stouch()
    if not cfg.wtouch: return
    if cfg.tx:
        G = f'''
        s_lshr_b32 s{sT3}, s2, 3
        s_and_b32 s{sT4}, s2, 3
        s_lshl2_add_u32 s{sT4}, s{sT3}, s{sT4}
        s_lshl1_add_u32 s{sT0}, s{sT4}, s{sW}
        s_sub_u32 s{sT0}, s{sT0}, 1
        s_mul_i32 s{sT0}, s{sT0}, {43*128}
        s_lshl_b32 s{sT2}, s{sT4}, 12
        s_sub_u32 s{sT4}, s{sW}, 1
        s_cmp_le_u32 s{sT4}, 1
        s_cselect_b32 s{sT0}, s{sT0}, {hex(OOB)}
        s_cmp_eq_u32 s{sW}, 2
        s_cselect_b32 s{sT2}, s{sT2}, {hex(OOB)}
        s_bitcmp1_b32 s2, 2
        s_cselect_b32 s{sT0}, {hex(OOB)}, s{sT0}
        s_cselect_b32 s{sT2}, {hex(OOB)}, s{sT2}
        s_movk_i32 s{sT5}, 31
        '''
    else:
        G = f'''
        s_lshr_b32 s{sT3}, s2, 3
        s_mul_i32 s{sT0}, s2, {43*128}
        s_lshl_b32 s{sT2}, s2, 11
        s_cmp_eq_u32 s{sW}, 1
        s_cselect_b32 s{sT0}, s{sT0}, {hex(OOB)}
        s_cmp_eq_u32 s{sW}, 2
        s_cselect_b32 s{sT2}, s{sT2}, {hex(OOB)}
        s_movk_i32 s{sT5}, 15
        '''
    k(G)
    if cfg.c3o: k(f's_mov_b32 s{sT0}, {hex(OOB)}\ns_mov_b32 s{sT2}, {hex(OOB)}')
    k(f's_movk_i32 s{sT1}, 7')
    if cfg.c3: k(f'''
        s_mul_i32 s{sT4}, s{sT3}, {43*1024}
        s_add_u32 s{sT4}, s{sT4}, 384
        s_cmp_eq_u32 s{sW}, 0
        s_cselect_b32 s{sT0}, s{sT4}, s{sT0}
        s_cselect_b32 s{sT1}, 10, s{sT1}
        s_lshl_b32 s{sT4}, s{sT3}, 14
        s_add_u32 s{sT4}, s{sT4}, 384
        s_cmp_eq_u32 s{sW}, 3
        s_cselect_b32 s{sT2}, s{sT4}, s{sT2}
        s_cselect_b32 s{sT1}, 10, s{sT1}
        s_cselect_b32 s{sT5}, 15, s{sT5}
        ''')
    k(f'''
    v_min_u32 v{vE+6}, 42, v{vLANE}
    v_and_b32 v{vE+7}, s{sT5}, v{vLANE}
    v_lshlrev_b32 v{vE+6}, s{sT1}, v{vE+6}
    v_lshlrev_b32 v{vE+7}, s{sT1}, v{vE+7}
    ''')
    if cfg.wtd < 0:
        for t in WT: k(t)
k.label('L_G0')
k.restore(snapE); nst[0] = nstE; tokQ.clear(); p2w[0] = 0; curg[0] = 0
if cfg.kk:
    k.raw(f'''    s_cmp_lg_u32 s{sWAVE}, 3
    s_cbranch_scc1 L_nokk
    s_mov_b32 s{S_X+2}, 0x200000
    s_mov_b32 s{S_X+3}, 0x20000
    s_mov_b32 s{S_W+2}, {512*2752}
    s_mov_b32 s{S_W+3}, 0x20000
    s_lshl_b32 s{sT0}, s{sRB}, 17
    s_mul_i32 s{sT1}, s{sROT}, {64*2752 if cfg.kk == 1 else 0}
    v_and_b32 v10, {0 if cfg.kk == 1 else 3}, v{vLANE}
    v_lshlrev_b32 v10, 15, v10
    v_mul_u32_u24 v11, {0 if cfg.kk == 1 else 22016 if cfg.kk == 2 else 88064}, v{vLANE}
    s_waitcnt lgkmcnt(0)
    buffer_load_dword v10, v10, {sr(S_X,4)}, s{sT0} offen
    buffer_load_dword v11, v11, {sr(S_W,4)}, s{sT1} offen
L_nokk:''')
if cfg.cp:
    k.raw(f'''    s_cmp_lg_u32 s{sWAVE}, {cfg.cp - 1}
    s_cbranch_scc1 L_nocp
    s_getpc_b64 {sr(sT0,2)}
L_pc:
    s_sub_u32 s{sT0}, s{sT0}, L_pc-{KNAME}
    s_subb_u32 s{sT0+1}, s{sT0+1}, 0
    s_lshr_b32 s{sT2}, s2, 3
    s_and_b32 s{sT2}, s{sT2}, {cfg.cpm}
    s_lshl_b32 s{sT2}, s{sT2}, 13
    v_lshl_add_u32 v10, v{vLANE}, 7, s{sT2}
    v_min_u32 v10, {"L_cend-4" if cfg.cpe else "L_end"}-{KNAME}, v10
    global_load_dword v10, v10, {sr(sT0,2)}
L_nocp:''')
if cfg.ka: k(KA2)
k(f's_or_b32 s{sT5}, s2, s{sWAVE}')
e = side('L_noclr', f's_cmp_lg_u32 s{sT5}, 0')
k(f'''
s_mov_b32 s{sT0}, {WS_EP}
buffer_load_dword v{vE+8}, off, {sr(S_WS,4)}, s{sT0} sc1
s_waitcnt vmcnt(0)
v_add_u32 v{vE+8}, 2, v{vE+8}
v_or_b32 v{vE+8}, 1, v{vE+8}
s_mov_b64 exec, 1
buffer_store_dword v{vE+8}, off, {sr(S_DBG,4)}, 0 sc1
buffer_store_dword v{vE+8}, off, {sr(S_WS,4)}, s{sT0} sc1
s_mov_b64 exec, -1
''')
e()
if cfg.stamps == 7:
    k.wait_lg_all()
    for nm in ('ka', 'i0', 'i1', 'f0', 'f1'): stamp(nm)
if cfg.wts and cfg.wsp == 0 and cfg.wts != 5: stouch()
if not cfg.lb: common_setup(0)
vEP, C0_0 = 4, 6
k(f's_cmp_eq_u32 s{sTYPE}, 1\ns_cbranch_scc1 L_G0B')
snap0 = k.snapshot(); nst0 = nst[0]
CI0 = vWF

def TL():
    L = []
    T = sT1
    if cfg.tlm & 1: L += [f's_lshl_b32 s{T}, s{sSLAB}, 16', f'buffer_load_dword v{vE+8}, off, {sr(S_OUT,4)}, s{T}']
    if cfg.tlm & 2: L += [f's_lshl2_add_u32 s{T}, s{sRB}, s{sW}', f's_mul_i32 s{T}, s{T}, {RTS}', f's_add_u32 s{T}, s{T}, {21*4096+2048}', f'buffer_load_dword v{vE+9}, off, {sr(S_WS,4)}, s{T}',
                          f's_mov_b32 s{T}, {WS_EP+64}', f'buffer_load_dword v{vE+10}, off, {sr(S_WS,4)}, s{T}',
                          f's_lshr_b32 s{T}, s{sRB}, 1', f's_mul_i32 s{T}, s{T}, {RTS}', f's_add_u32 s{T}, s{T}, {WS_CB + 21*4096 + 256}', f'buffer_load_dword v{vE+13}, off, {sr(S_WS,4)}, s{T}']
    if cfg.tlm & 4: L += [f's_and_b32 s{T}, s{sW}, 1', f's_lshl1_add_u32 s{T}, s{sSLAB}, s{T}', f's_mul_i32 s{T}, s{T}, {RTS}', f's_add_u32 s{T}, s{T}, {21*4096+2048}', f'buffer_load_dword v{vE+11}, off, {sr(S_WS,4)}, s{T}',
                          f's_lshr_b32 s{T}, s{sSLAB}, 2', f's_mul_i32 s{T}, s{T}, {RTS}', f's_add_u32 s{T}, s{T}, {WS_CB + 21*4096 + 256}', f'buffer_load_dword v{vE+12}, off, {sr(S_WS,4)}, s{T}']
    return L
def pass1(typ):
    nfr = 10 if typ == 'A' else 8
    def fr(t, i): return vWR + 4*(nfr*(t & 1) + i)
    def reads(t):
        s, kk = t >> 1, t & 1
        off = ((s % 5) * 32768) % 65536
        X = lambda i, f: f'ds_read_b128 {vr(fr(t, f), 4)}, v{vXR+kk} offset:{off + 2048*i}'
        W = lambda a, u, f: [f'ds_read_b64_tr_b16 {vr(fr(t, f) + 2*h, 2)}, v{vWA+a} offset:{off + 16384 + 8192*u + 4096*kk + 512*h}' for h in range(2)]
        if typ == 'A':
            return W(0, 0, 8) + [X(0, 0)] + W(0, 1, 9) + [X(i, i) for i in range(1, 8)]
        return W(0, 0, 4) + [X(0, 0), X(1, 1)] + W(1, 0, 5) + [X(2, 2), X(3, 3)] + W(0, 1, 6) + W(1, 1, 7)
    def mms(t):
        if typ == 'A':
            return [(mf(vAW + 32*u + 4*i, fr(t, i), fr(t, 8+u), (vr(CI0, 4) if u == 0 else '0') if t == 0 else None), (i, 8+u)) for i in range(8) for u in range(2)]
        order = [(0,0),(0,1),(1,0),(1,1),(0,2),(0,3),(1,2),(1,3)] + [(w, i) for w in (2, 3) for i in range(4)]
        return [(mf(vAW + (((w >> 1)*4 + i + 6) % 8)*8 + (w & 1)*4, fr(t, 4+w), fr(t, i), vr(CI0 + 4*w, 4) if t == 0 else None), (i, 4+w)) for w, i in order]
    na = 1 if typ == 'A' else 2
    if cfg.lb and cfg.stamps == 7: k(LB2)
    if cfg.prio: k(f's_setprio {cfg.prio}')
    k('s_barrier')
    stamp('B0')
    for r in reads(0): k(r)
    win = 0
    for t in range(16):
        R = []
        if t % 2 == 1:
            s = (t + 1) // 2
            k('s_barrier')
            stamp(f'B{s}')
            w = ((s % 5) * 32768) >> 16
            if s < 8 and w != win:
                d = hex(((w - win) << 16) & 0xffffffff); win = w
                R += [f'v_add_u32 v{vWA+a}, {d}, v{vWA+a}' for a in range(na)] + [f'v_add_u32 v{vXR+a}, {d}, v{vXR+a}' for a in range(2)]
        if t + 1 < 16: R += reads(t + 1)
        if t == 8: R.append(DBTEXT(vEP))
        if cfg.lb and cfg.stamps != 7 and t == 4: R += LB2.split('\n')
        if t == cfg.tl: R += TL()
        if cfg.wtouch and t == cfg.wtd: R.append(WT[0])
        if cfg.wtouch and cfg.wtd >= 0 and t == cfg.wtd + cfg.wtd2: R.append(WT[1])
        M = mms(t)
        if cfg.nog0 & 1: R = [x for x in R if not x.startswith('ds_')]
        if cfg.nog0 & 2: M = [('s_nop 0', f) for m, f in M]
        j = 0
        for i, (m, fs) in enumerate(M):
            if i % 8 == 0:
                wait_regs([fr(t, f) + q for mm in M[i:i+8] for f in mm[1] for q in range(4)])
            k(m)
            tgt = min(len(R), ((i + 1) * len(R) + 11) // 12)
            while j < tgt: k(R[j]); j += 1
    if cfg.prio: k('s_setprio 0')

def pass2(V, nv, extra=[]):
    assert W0 + cfg.g4 <= 13 or cfg.g4 == 0
    V = list(V)
    if cfg.prio2: k(f's_setprio {cfg.prio2}')
    get_epoch(vEP)
    if cfg.xs: k(f'v_add_u32 v{vXR}, {RTS}, v{vA}\nv_add_u32 v{vXR+1}, {RTS}, v{vA+1}')
    p2w[0] = 0
    for i in range(4):
        F = moves(MV[i])
        if cfg.nomv & 1: F = [x for x in F if not x.startswith('ds_')]
        if cfg.mvb == 1:
            for x in F: k(x)
            F = []
        if i == 3: F += [f for r in range(W0, W0 + cfg.g4) for f in item(10 + r)] + extra
        n = nv - len(F) // 2
        if cfg.nv0 and nv == cfg.nvb: n = cfg.nv0 if i == 0 else nv if i < 3 else 999
        if cfg.mvb == 2:
            weave(V[:n], []); weave([], F)
        else: weave(V[:n], F)
        V = V[n:]
        k.wait_lg_all()
        k('s_barrier')
        stamp(f'B{9+i}')
    k(f's_setprio {cfg.pe0}')
    return V

W1 = W0 + cfg.g4; W2 = min(15, W1 + cfg.we0)
if cfg.wts == 5: stouch(1)
if cfg.lb: common_setup(0)
if not cfg.kv2: k(f'''
s_lshl2_add_u32 s{sT0}, s{sGRP}, s{sW}
s_lshl4_add_u32 s{sT1}, s{sT0}, s{sRB}
s_lshl_b32 s{sH}, s{sT1}, 10
s_add_u32 s{sH}, s{sH}, {WS_KVP}
v_and_b32 v{vE+5}, 1, v{vLANE}
v_cmp_eq_u32 {sr(sH+1,2)}, 1, v{vE+5}
v_lshlrev_b32 v8, 3, v{vLANE}
s_lshl_b32 s{sT1}, s{sW}, 9
v_add_u32 v8, s{sT1}, v8
v_lshlrev_b32 v9, 2, v{vE+5}
v_lshl_add_u32 v9, v{vE+3}, 3, v9
s_lshl_b32 s{sT0}, s{sW}, 5
v_add_u32 v9, s{sT0}, v9
''')
SEL, SD = vWF + 16, vWF + 20
if cfg.kv2:
    k(f'''
    s_lshl2_add_u32 s{sT0}, s{sGRP}, s{sW}
    s_lshl4_add_u32 s{sT1}, s{sT0}, s{sRB}
    s_lshl_b32 s{sH}, s{sT1}, 9
    s_add_u32 s{sH}, s{sH}, {WS_KVP}
    s_lshl_b32 s{sH+1}, s{sT1}, 6
    s_add_u32 s{sH+1}, s{sH+1}, {WS_KVP + 0x40000}
    v_lshlrev_b32 v8, 3, v{vLANE}
    s_lshl_b32 s{sT1}, s{sW}, 9
    v_add_u32 v8, s{sT1}, v8
    s_lshl_b32 s{sT0}, s{sW}, 5
    v_lshl_add_u32 v9, v{vE+3}, 3, s{sT0}
    v_lshrrev_b32 v{vE+8}, 1, v{vE+3}
    v_lshl_add_u32 v{vE+8}, v{vE+8}, 4, v{vE+2}
    v_and_b32 v{vE+9}, 1, v{vE+3}
    v_lshl_add_u32 v{vE+8}, v{vE+8}, 1, v{vE+9}
    v_lshlrev_b32 v3, 3, v{vE+8}
    v_lshlrev_b32 v5, 4, v{vE+3}
    v_lshl_add_u32 v12, v{vE+2}, 6, v5
    v_lshl_add_u32 v5, v{vE+2}, 26, v5
    v_lshrrev_b32 v{vE+8}, 1, v{vE+2}
    v_lshlrev_b32 v{vE+9}, 2, v{vE+9}
    v_xor_b32 v{vE+8}, v{vE+8}, v{vE+9}
    v_and_b32 v{vE+9}, 1, v{vE+2}
    v_lshlrev_b32 v{vE+9}, 4, v{vE+9}
    v_mov_b32 v{vE+10}, 0x3f80
    v_lshlrev_b32 v{vE+10}, v{vE+9}, v{vE+10}
    ''')
    for r in range(4): k(f'v_cmp_eq_u32 vcc, {r}, v{vE+8}\nv_cndmask_b32 v{SEL+r}, 0, v{vE+10}, vcc')
xw_addr('0', f's{sT0}')
wtouch()
consts('A', C0_0)
for i in range(4): k(f'v_mov_b32 v{CI0+i}, s{sEPS}')
ONES = vWF + 4
for i in range(4): k(f'v_mov_b32 v{ONES+i}, 0x3f803f80')
pass1('A')
PK, VV = vAC2, vAC2 + 16
KVA, ZA = vWF + 8, vWF + 12
V = phi(vAW, PK, vE, C0_0, 0)
V += [f'v_cvt_pk_bf16_f32 v{VV+i}, v{vAW+32+2*i}, v{vAW+32+2*i+1}' for i in range(16)]
V += [mf(KVA, PK, VV, '0'), mf(ZA, PK, ONES, '0'), mf(KVA, PK+4, VV+4), mf(ZA, PK+4, ONES)]
V += phi(vAW + 16, PK + 8, vE, C0_0, 0)
V += [mf(KVA, PK+8, VV+8), mf(ZA, PK+8, ONES), mf(KVA, PK+12, VV+12), mf(ZA, PK+12, ONES)]
V += [f'v_cvt_pk_bf16_f32 v{vE+i}, v{KVA+2*i}, v{KVA+2*i+1}' for i in range(4)]
if not cfg.kv2:
    V += [f'v_cndmask_b32_e64 v{vE+2}, v{vE+2}, v{vE+3}, {sr(sH+1,2)}', f'v_mov_b32 v{vE+3}, s{sN}', st4(vE, sH, 0)]
    KB = vAC2
    kt = [f'buffer_load_dwordx4 {vr(KB+4*r,4)}, v{vL16}, {sr(S_WS,4)}, s{sH + r//4} offen offset:{1024*(r%4)} sc1' for r in range(16)]
    V += [f's_and_b32 s{sH}, s{sH}, 0xffffc000', f's_add_u32 s{sH+1}, s{sH}, 4096', f's_add_u32 s{sH+2}, s{sH}, 8192', f's_add_u32 s{sH+3}, s{sH}, 12288']
ROR = lambda op, r, n: f'{op}_dpp v{r}, v{r}, v{r} row_ror:{n} row_mask:0xf bank_mask:0xf'
if cfg.kv2:
    V += [f'v_add_u32 v{vE+4}, v{vE}, v{vE+1}', f'buffer_store_dwordx2 {vr(vE,2)}, v3, {sr(S_WS,4)}, s{sH} offen sc1']
    V += [ROR('v_add_u32', vE + 4, n) for n in (8, 4, 2, 1)]
    V += [f'v_add3_u32 v{vE+4}, v{vE+4}, v{vE+2}, v{vE+3}', f'v_sub_u32 v{vE+4}, s{sN}, v{vE+4}',
          f'buffer_store_dwordx3 {vr(vE+2,3)}, v5, {sr(S_WS,4)}, s{sH+1} offen sc1']
    KB = vAC2
    kt = [f'buffer_load_dwordx3 {vr(SD,3)}, v12, {sr(S_WS,4)}, s{sH+1} offen sc1']
    kt += [f'buffer_load_dwordx4 {vr(KB+4*r,4)}, v{vL16}, {sr(S_WS,4)}, s{sH + 2*(r//4)} offen offset:{1024*(r%4)} sc1' for r in range(8)]
    V += [f's_and_b32 s{sH}, s{sH}, 0xffffe000', f's_add_u32 s{sH+2}, s{sH}, 4096', f's_and_b32 s{sH+1}, s{sH+1}, 0xfffffc00', f's_lshl_b32 s{sH+3}, s{sN}, 6']
if cfg.kve: assert len(V) <= 3*cfg.nva - 40
V = pass2(V, cfg.nva, kt if cfg.kve else [])
for v in V: k(v)
if not cfg.kve:
    for t in kt: k(t)
stamp('e1')
for f in fill(cfg.e0a, W1, W2): f()
stamp('e2')
if not cfg.kv2:
    k(f's_lshl_b32 s{sT5}, s{sN}, 4\ns_mov_b32 s{sSEL0}, 0x00003f80\ns_mov_b32 s{sSEL1}, 0x3f800000')
    checked(kt, [KB + 4*r + 3 for r in range(16)], vE, sT5)
    stamp('e3')
    SUM = vE
    V = []
    for r in range(16):
        for j in range(3):
            for h in range(2):
                d = SUM + 6*(r & 1) + 2*j + h
                V.append(f'v_dot2_f32_bf16 v{d}, v{KB+4*r+j}, s{sSEL0+h}, {"0" if r < 2 else "v%d" % d}')
    for i in range(0, 6, 2): V.append(f'v_pk_add_f32 {vr(SUM+i,2)}, {vr(SUM+i,2)}, {vr(SUM+6+i,2)}')
    for i in range(3): V.append(f'v_cvt_pk_bf16_f32 v{vE+12+i}, v{SUM+2*i}, v{SUM+2*i+1}')
    weave(V, [f for r in range(cfg.e0a, max(cfg.e0a, cfg.e0b)) for f in loadA(r)])
    k(f'ds_write_b64 v8, {vr(vE+12,2)} offset:{L_KV}')
    k(f'ds_write_b32 v9, v{vE+14} offset:{L_KV + 2048}')
else:
    k.label('L_kvc')
    k('s_nop 1')
    Z, T, D = vE, vE + 4, vE + 8
    V = unpack4(Z, SD) + [f'v_add3_u32 v{T}, v{SD}, v{SD+1}, v{SD+2}']
    V += [ROR('v_add_f32', Z + i, n) for n in (8, 4, 2, 1) for i in range(4)]
    V += [f'v_cvt_pk_bf16_f32 v{Z+i}, v{Z+2*i}, v{Z+2*i+1}' for i in range(2)] + [f'ds_write_b64 v9, {vr(Z,2)} offset:{L_KV + 2048}']
    V += stx('e3')
    for r in range(8):
        V += [mf(D, SEL, KB + 4*r, '0' if r == 0 else None), f'v_add3_u32 v{T}, v{T}, v{KB+4*r}, v{KB+4*r+1}']
        V += [f'v_add3_u32 v{T+1}, v{T+1}, v{KB+4*r+2}, v{KB+4*r+3}' if r else f'v_add_u32 v{T+1}, v{KB+2}, v{KB+3}']
    for v in V: k(v)
    V = [f'v_add_u32 v{T}, v{T}, v{T+1}'] + [ROR('v_add_u32', T, n) for n in (8, 4, 2, 1)]
    V.insert(3, f'v_cvt_pk_bf16_f32 v{D}, v{D}, v{D+1}'); V.insert(5, f'v_cvt_pk_bf16_f32 v{D+1}, v{D+2}, v{D+3}')
    V += [f'v_mov_b32 v{T+1}, v{T}', f'ds_write_b64 v8, {vr(D,2)} offset:{L_KV}', f'v_permlane16_swap_b32 v{T}, v{T+1}', f'v_add_u32 v{T}, v{T}, v{T+1}',
          f'v_mov_b32 v{T+1}, v{T}', f'v_permlane32_swap_b32 v{T}, v{T+1}', f'v_add_u32 v{T}, v{T}, v{T+1}', f'v_cmp_ne_u32 vcc, s{sH+3}, v{T}']
    weave(V, [f for r in range(cfg.e0a, max(cfg.e0a, cfg.e0b)) for f in loadA(r)] if cfg.kv2 == 1 else [])
    if not cfg.nocheck: k('s_cbranch_vccnz L_kvs')
    k.label('L_kvd')
    s_ = Kern()
    s_.label('L_kvs')
    s_(f's_sub_u32 s{sSPIN}, s{sSPIN}, 1\ns_cbranch_scc1 L_kvg\ns_nop 7\ns_nop 3')
    for t in kt: s_(t)
    s_('s_waitcnt vmcnt(0) lgkmcnt(0)\ns_branch L_kvc')
    s_.label('L_kvg')
    s_(f's_mov_b32 s{sSPIN}, 0\ns_branch L_kvd')
    slow.append(s_.text())
k.wait_lg_all()
stamp('e4')
k('s_barrier')
if cfg.kv2 == 2:
    for r in range(cfg.e0a, max(cfg.e0a, cfg.e0b)):
        for f in loadA(r): f()
k('s_branch L_P2_0')
vmA = [dict(x) for x in k.vm]

k.label('L_G0B')
k.restore(snap0); nst[0] = nst0; tokQ.clear()
k(f'''
s_and_b32 s{sT2}, s{sW}, 1
s_lshl_b32 s{sT2}, s{sT2}, 6
s_mul_i32 s{sT0}, s{sGRP}, 384
s_add_u32 s{sT0}, s{sT0}, s{sT2}
v_lshrrev_b32 v{vE+5}, 4, v{vLANE}
v_lshlrev_b32 v{vE+5}, 3, v{vE+5}
''')
srd_tail(S_B1, 2752)
if cfg.nb1 & 1: k(f's_mov_b32 s{sT0}, {hex(OOB)}')
for w in range(4):
    k(f'buffer_load_dwordx2 {vr(CI0 + 4*w, 2)}, v{vE+5}, {sr(S_B1,4)}, s{sT0} offen offset:{128*(w >> 1) + 32*(w & 1)}')
if cfg.wts == 5: stouch(1)
if cfg.lb:
    common_setup(0)
    k(f's_and_b32 s{sT2}, s{sW}, 1\ns_lshl_b32 s{sT2}, s{sT2}, 6')
k(f'''
s_mul_i32 s{sT0}, s{sGRP}, {3*UNT}
s_and_b32 s{sT1}, s{sW}, 2
s_lshl2_add_u32 s{sT1}, s{sRB}, s{sT1}
''')
ck_off(sT3, sT1)
k(f'''
s_mul_i32 s{sT4}, s{sT2}, {1792//64}
s_sub_u32 s{sT3}, s{sT3}, s{sT4}
v_lshl_add_u32 v{vL4}, v{vLANE}, 2, s{sT3}
{f"v_and_b32 v5, 3, v{vLANE}" if cfg.c4 & 1 else ""}
{f"v_lshl_add_u32 v{vL4}, v5, 28, v{vL4}" if cfg.c4 & 1 else ""}
v_subrev_u32 v5, {RTS - 512}, v{vL4}
s_mul_i32 s{sT1}, s{sT1}, {RTS}
s_add_u32 s{sT1}, s{sT1}, s{sT0}
s_mul_i32 s{sT3}, s{sT2}, {STP//64}
s_add_u32 s{sH}, s{sT1}, s{sT3}
s_add_u32 s{sH+1}, s{sH}, {RTS}
s_add_u32 s{sH+2}, s{sH}, {UNT}
s_add_u32 s{sH+3}, s{sH+1}, {UNT}
s_cmp_eq_u32 s{sB7}, 1
s_cselect_b32 s{sH+2}, {hex(OOB)}, s{sH+2}
s_cselect_b32 s{sH+3}, {hex(OOB)}, s{sH+3}
''')
k(f's_and_b32 s{sT1}, s{sW}, 2\ns_lshl_b32 s{sT1}, s{sT1}, 12')
xw_addr(f's{sT1}', f's{sT2}')
k(f'v_xor_b32 v{vWA+1}, 32, v{vWA}')
wtouch()
consts('B', C0_0)
for w in range(4):
    for t in unpack4(CI0 + 4*w, CI0 + 4*w): k(t)
pass1('B')
def btile(i, pk):
    o = vAC2 + 8*i
    S = strec(o, sH + i, 0, vWF + 2*i, 5 if i & 1 else vL4, vWF + 8 + 4*i, vWF + 24)
    if cfg.pst >= 0: S = [f's_setprio {cfg.pst}'] + S + [f's_setprio {cfg.prio2}']
    return gelu(vAW + 16*((i + 3) % 4), o, vE, C0_0, pk) + S
ntile = min(4, -(-(4*cfg.nvb - 16) // 128)) if not cfg.nv0 else 4
V = []
for i in range(ntile): V += btile(i, cfg.gpk if i or cfg.gpk0 < 0 else cfg.gpk0)
if cfg.e0p:
    assert ntile == 4
    pos = len(V) - 8 - cfg.e0q
    E = early(cfg.e0p)
    step = max(1, cfg.e0q // len(E))
    for i, f in enumerate(E): V.insert(pos + i * (step + 1), f)
V = pass2(V, cfg.nvb)
if cfg.e0p:
    for v in V: emit(v)
    V = []
V = stx('e1') + V + stx('e2')
for i in range(ntile, 4): V += btile(i, cfg.pk) + stx(f'e{i+1}')
weave_int(V, fill(cfg.e0b, W1, W2)[3*cfg.e0p:], cfg.gint, cfg.f0)
for r in range(cfg.e0b, max(cfg.e0a, cfg.e0b)):
    for f in loadA(r): f()
if cfg.xv: k('s_barrier')
phase2(0, vmA, max(cfg.e0a, cfg.e0b), W2)
k.label('L_fin')
k('s_nop 1')

if cfg.stamps:
    stamp('sto')
    k('s_waitcnt vmcnt(0)')
    stamp('end')
    k(f'''
    s_waitcnt lgkmcnt(0)
    s_cmp_lg_u32 s{sW}, 0
    s_cbranch_scc1 L_end
    ''')
    if cfg.probe >= 0:
        k(f's_cmp_lg_u32 s{sGI}, {cfg.pgrp}\ns_cbranch_scc1 L_end')
        if cfg.ptype >= 0:
            k(f's_cmp_lg_u32 s{sTYPE}, {cfg.ptype}\ns_cbranch_scc1 L_end')
        k(f'''
        s_sub_u32 s{sT0}, s{STREG[cfg.probe]}, s{STREG[0]}
        s_lshl_b32 s{sT0}, s{sT0}, 2
        s_add_u32 s{sT0}, s{sT0}, 5000
        L_probe:
        s_memrealtime s[72:73]
        s_waitcnt lgkmcnt(0)
        s_sub_u32 s{sT1}, s72, s{STREG[0]}
        s_cmp_lt_u32 s{sT1}, s{sT0}
        s_cbranch_scc1 L_probe
        s_branch L_end
        ''')
    k(f'''
    s_mov_b64 exec, 1
    s_lshl1_add_u32 s{sT0}, s2, s{sGI}
    s_mul_i32 s{sT0}, s{sT0}, {8*(nst[0]+1)}
    s_add_u32 s{sT0}, s{sT0}, {STAMP_OFF}
    ''')
    for s in range(nst[0]):
        k(f'v_mov_b32 v4, s{STREG[s]}\nv_mov_b32 v5, s{STREG[s]+1}\nbuffer_store_dwordx2 v[4:5], off, {sr(S_WS,4)}, s{sT0} offset:{8*s}\ns_nop 1')
    k(f'''
    s_sub_u32 s{sT1}, 0x4000, s{sSPIN}
    s_mul_i32 s{sT1}, s{sT1}, 100
    s_add_u32 s{sT1}, s{sT1}, s{STREG[0]}
    s_addc_u32 s{sT2}, s{STREG[0]+1}, 0
    v_mov_b32 v4, s{sT1}
    v_mov_b32 v5, s{sT2}
    buffer_store_dwordx2 v[4:5], off, {sr(S_WS,4)}, s{sT0} offset:{8*nst[0]}
    ''')
k.label('L_end')
k('s_endpgm')

hdr = open('gated_mix__linear_attn_block__dense_activation_gelu__prompt.s.ref').read().split('; @launch')[0]
text = hdr + f'''; @launch grid=(256,1,1) block=(512,1,1) lds={LDS_BYTES}
.amdgcn_target "amdgcn-amd-amdhsa--gfx950"
.text
.globl {KNAME}
.p2align 8
.type {KNAME},@function
{KNAME}:
{k.text()}
{"".join(slow)}{"L_cend:" if cfg.cpe else ""}
.section .rodata,"a"
.p2align 6
.amdhsa_kernel {KNAME}
  .amdhsa_next_free_vgpr 256
  .amdhsa_next_free_sgpr 102
  .amdhsa_accum_offset 256
  .amdhsa_group_segment_fixed_size 0
  .amdhsa_kernarg_size 96
  .amdhsa_user_sgpr_count 2
  .amdhsa_user_sgpr_kernarg_segment_ptr 1
  .amdhsa_system_sgpr_workgroup_id_x 1
.end_amdhsa_kernel
'''
if cfg.al:
    from align import align
    text = text.replace('.section .rodata', 'L_z0:\nL_z1:\n.section .rodata', 1)
    text, st_ = align(text, cfg.al, cfg.alt, cfg.alw)
    print(st_)
open(sys.argv[1], 'w').write(text)
print('instructions', k.ninstr, 'nops', k.nnop, 'stamps', nst[0])
```
